```python
import torch

def _softmax(x, axis=-1):
    return torch.softmax(x, dim=axis)
def _gelu(x):
    return torch.nn.functional.gelu(x, approximate="tanh")
def _silu(x):
    return torch.nn.functional.silu(x)
def _sigmoid(x):
    return torch.sigmoid(x)
def _layernorm(x, axis=-1, eps=1e-5):
    m = x.mean(dim=axis, keepdim=True)
    v = x.var(dim=axis, keepdim=True, unbiased=False)
    return (x - m) / torch.sqrt(v + eps)
def _scatter_add(tgt, idx, src, axis=0):
    return tgt.clone().index_add_(axis, idx, src)
def _segment_sum(src, seg, n):
    out = torch.zeros((n,) + src.shape[1:], dtype=src.dtype)
    return out.index_add_(0, seg, src)
def _pad(x, pw):
    flat = tuple(v for pair in reversed(pw) for v in pair)
    return torch.nn.functional.pad(x, flat)

kernel_name = 'parallel_sum__ssm_conv_s4d__mixer_channel_mlp__prompt'

def setup_inputs():

    _w = (lambda a: (lambda t: t.to(torch.bfloat16) if t.is_floating_point() else t)(torch.as_tensor(a)))
    def _A_setup():
        Bsz, L, D, N = 1, 2048, 640, 192
        return {
            "u": _w((lambda *s: torch.randn(*s, dtype=torch.bfloat16) * 0.05)(Bsz, L, D)),
            "log_A_real": _w((lambda *s: torch.randn(*s, dtype=torch.bfloat16) * 3.2)(D, N) * 0.5),
            "A_imag": _w((lambda *s: torch.randn(*s, dtype=torch.bfloat16) * 0.05)(D, N) * 3.14),
            "C_real": _w((lambda *s: torch.randn(*s, dtype=torch.bfloat16) * 0.1)(D, N) / N ** 0.5),
            "C_imag": _w((lambda *s: torch.randn(*s, dtype=torch.bfloat16) * 0.2)(D, N) / N ** 0.5),
            "log_dt": _w((lambda *s: torch.randn(*s, dtype=torch.bfloat16) * 0.05)(D) * 0.5 - 4.0),
            "D_skip": _w((lambda *s: torch.randn(*s, dtype=torch.bfloat16) * 0.05)(D)),
        }
    _A_in = _A_setup()

    def _B_setup():
        B, S, D, F = 1, 2048, 640, 1536
        return {
            "x": _w((lambda *s: torch.randn(*s, dtype=torch.bfloat16) * 0.05)(B, S, D)),
            "w1": _w((lambda *s: torch.randn(*s, dtype=torch.bfloat16) * 1.6)(D, F) * (D ** -0.5)),
            "b1": _w((lambda *s: torch.randn(*s, dtype=torch.bfloat16) * 0.8)(F)),
            "w2": _w((lambda *s: torch.randn(*s, dtype=torch.bfloat16) * 0.05)(F, D) * (F ** -0.5)),
            "b2": _w((lambda *s: torch.randn(*s, dtype=torch.bfloat16) * 0.05)(D)),
        }
    _B_in = _B_setup()

    return {
        "A_u": _A_in["u"],
        "A_log_A_real": _A_in["log_A_real"],
        "A_A_imag": _A_in["A_imag"],
        "A_C_real": _A_in["C_real"],
        "A_C_imag": _A_in["C_imag"],
        "A_log_dt": _A_in["log_dt"],
        "A_D_skip": _A_in["D_skip"],
        "B_x": _B_in["x"],
        "B_w1": _B_in["w1"],
        "B_b1": _B_in["b1"],
        "B_w2": _B_in["w2"],
        "B_b2": _B_in["b2"],
    }

def reference(A_u, A_log_A_real, A_A_imag, A_C_real, A_C_imag, A_log_dt, A_D_skip, B_x, B_w1, B_b1, B_w2, B_b2):
    def _A_ref(u, log_A_real, A_imag, C_real, C_imag, log_dt, D_skip):
        L = u.shape[1]
        dt = torch.exp(log_dt)
        A = -torch.exp(log_A_real) + 1j * A_imag
        C = (C_real + 1j * C_imag) * dt[:, None]
        pos = (lambda x, dt: x.to(dt))(torch.arange(L), log_dt.dtype)
        P = torch.exp((A * dt[:, None])[:, :, None] * pos[None, None, :])
        K = 2.0 * torch.einsum("dn,dnl->dl", C, P).real
        L2 = 2 * L
        u_t = (lambda x, *d: x.permute(*d))(u, 0, 2, 1)
        Kf = (lambda x, *a, **k: torch.fft.rfft(x.float(), *a, **k))(K, L2)
        Uf = (lambda x, *a, **k: torch.fft.rfft(x.float(), *a, **k))(u_t, L2)
        y = (lambda x, *a, **k: torch.fft.irfft(x, *a, **k).to(torch.bfloat16))(Uf * Kf[None, :, :], L2)[:, :, :L]
        y = (lambda x, *d: x.permute(*d))(y, 0, 2, 1)
        return y + u * D_skip[None, None, :]

    def _B_ref(x, w1, b1, w2, b2):
        y = _layernorm(x, axis=-1)
        h = _gelu(torch.einsum("bsd,df->bsf", y, w1) + b1)
        return torch.einsum("bsf,fd->bsd", h, w2) + b2

    x = A_u
    xn = _layernorm(x, axis=-1)
    return x + _A_ref(xn, A_log_A_real, A_A_imag, A_C_real, A_C_imag, A_log_dt, A_D_skip) + _B_ref(xn, B_w1, B_b1, B_w2, B_b2)
```

```python
import re
TRANS = ('v_exp_f32', 'v_log_f32', 'v_rcp_f32', 'v_rsq_f32', 'v_sqrt_f32', 'v_sin_f32', 'v_cos_f32', 'v_rcp_iflag_f32')
def regs(tok):
    tok = tok.strip().lstrip('-')
    if tok.startswith('abs(') or tok.startswith('|'): tok = tok.replace('abs(', '').replace(')', '').replace('|', '')
    m = re.fullmatch(r'([vsa])\[(\d+):(\d+)\]', tok)
    if m: return {(m.group(1), i) for i in range(int(m.group(2)), int(m.group(3)) + 1)}
    m = re.fullmatch(r'([vsa])(\d+)', tok)
    if m: return {(m.group(1), int(m.group(2)))}
    if tok == 'vcc': return {('s', 'vcc')}
    if tok == 'exec': return {('s', 'exec')}
    if tok == 'm0': return {('s', 'm0')}
    return set()
class Ins:
    def __init__(self, text):
        self.text = text
        t = text.split(';')[0].strip()
        self.label = t.endswith(':')
        self.directive = t.startswith('.')
        parts = t.split(None, 1)
        self.op = parts[0] if parts else ''
        rest = parts[1] if len(parts) > 1 else ''
        ops = [o.strip() for o in re.split(r',\s*(?![^\[]*\])', rest)] if rest else []
        mods = ''
        if ops:
            last = ops[-1].split(None, 1)
            ops[-1] = last[0]
            mods = last[1] if len(last) > 1 else ''
        self.ops, self.mods = ops, mods
        op = self.op
        for suf in ('_e32', '_e64', '_dpp', '_sdwa'):
            if op.endswith(suf): op = op[:-len(suf)]
        self.base = op
        self.mfma = op.startswith('v_mfma')
        self.valu = op.startswith('v_') and not self.mfma
        self.salu = op.startswith('s_')
        self.ds = op.startswith('ds_')
        self.vmem = op.startswith(('buffer_', 'global_', 'flat_'))
        self.trans = op in TRANS
        self.dpp = 'row_' in mods or 'quad_perm' in mods or 'wave_' in mods
        self.branch = op.startswith(('s_cbranch', 's_branch', 's_setpc', 's_endpgm'))
        self.ldsdma = self.vmem and re.search(r'\blds\b', mods + ' ' + ' '.join(ops)) is not None
        R = [regs(o) for o in ops]
        w, r = set(), set()
        self.A = self.B = self.C = set()
        self.store_data = set()
        if self.mfma:
            w = R[0]; self.A, self.B, self.C = R[1], R[2], R[3]; r = R[1] | R[2] | R[3]
            self.passes = 8 if '32x32x16' in op else 4
        elif self.valu:
            if op.startswith('v_cmp'):
                w = R[0]; r = set().union(*R[1:])
                if op.startswith('v_cmpx'): w = w | {('s', 'exec')}
            elif op.startswith('v_permlane') and 'swap' in op:
                w = R[0] | R[1]; r = R[0] | R[1]
            elif op in ('v_add_co_u32', 'v_sub_co_u32', 'v_addc_co_u32', 'v_subb_co_u32'):
                w = R[0] | R[1]; r = set().union(*R[2:])
            elif op == 'v_nop': pass
            else:
                w = R[0]; r = set().union(*R[1:]) if len(R) > 1 else set()
                if op.startswith(('v_fmac', 'v_dot2c', 'v_pk_fmac')) or self.dpp or op == 'v_writelane_b32': r = r | R[0]
        elif self.ds:
            if op.startswith(('ds_read', 'ds_bpermute', 'ds_permute', 'ds_swizzle')): w = R[0]; r = set().union(*R[1:])
            else: r = set().union(*R)
        elif self.vmem:
            if 'load' in op and not self.ldsdma:
                w = R[0]; r = set().union(*R[1:])
                if 'd16' in op: r = r | R[0]
            else:
                r = set().union(*R) if R else set()
                if 'store' in op and ('x3' in op or 'x4' in op):
                    self.store_data = R[0] if op.startswith('buffer') else R[1]
            if self.ldsdma: r = r | {('s', 'm0')}
        elif self.salu:
            if op.startswith(('s_cmp', 's_waitcnt', 's_barrier', 's_nop', 's_cbranch', 's_branch', 's_setprio', 's_sleep', 's_endpgm', 's_bitcmp')):
                r = set().union(*R) if R else set()
            elif R:
                w = R[0]; r = set().union(*R[1:]) if len(R) > 1 else set()
                if 'saveexec' in op: w = w | {('s', 'exec')}
        self.w, self.r = w, r
        self.states = 1
        if op == 's_nop': self.states = int(ops[0], 0) + 1
def need(p, c):
    n = 0
    pv = {x for x in p.w if x[0] in 'va'}; ps = {x for x in p.w if x[0] == 's'}
    if p.valu:
        if c.mfma and pv & c.r: n = max(n, 2)
        if c.valu and c.dpp and pv & c.r: n = max(n, 2)
        if c.base.startswith('v_permlane') and pv & c.r: n = max(n, 2)
        if c.base in ('v_readfirstlane_b32', 'v_readlane_b32') and pv & c.r: n = max(n, 1)
        if p.trans and (c.valu or c.mfma or c.ds or c.vmem) and pv & c.r: n = max(n, 1)
        if ps:
            if c.vmem and ps & c.r: n = max(n, 5)
            if c.valu and ps & c.r: n = max(n, 4 if c.base in ('v_readlane_b32', 'v_writelane_b32') else 2)
            if c.salu and (ps & c.r or (c.base.startswith('s_cbranch_vcc') and ('s', 'vcc') in ps)): n = max(n, 1)
            if ('s', 'exec') in ps and (c.mfma or c.dpp or c.base.startswith(('v_permlane', 'v_read', 'v_write'))): n = max(n, 5)
        if ('op_sel' in p.mods and not p.base.startswith('v_pk')) or 'sdwa' in p.op:
            if c.valu and pv & (c.r | c.w): n = max(n, 1)
    if p.mfma:
        big = p.passes == 8
        if c.mfma:
            if pv & (c.A | c.B): n = max(n, 12 if big else 8)
            if pv & c.C and not (c.C == pv and c.passes == p.passes): n = max(n, 10 if big else 6)
            if pv & c.w and not (pv & c.C): n = max(n, 10 if big else 6)
        elif (c.valu or c.vmem or c.ds) and pv & (c.r | c.w): n = max(n, 12 if big else 8)
        if c.valu and p.C & c.w: n = max(n, 7 if big else 3)
    if p.salu and ('s', 'm0') in ps and c.ldsdma: n = max(n, 1)
    if p.store_data and p.store_data & c.w: n = max(n, 2)
    return n
class Asm:
    def __init__(self): self.lines = []
    def __call__(self, s):
        for l in s.strip('\n').split('\n'):
            if l.strip(): self.lines.append(l.strip())
    def finish(self, verbose=False):
        ins = [Ins(l) for l in self.lines]
        out = []
        nops = 0
        def pad(hist, c):
            d = 0; req = 0
            for p in reversed(hist):
                if p.label or p.directive or p.op == '': continue
                k = need(p, c) - d
                if k > req: req = k
                d += p.states
                if d >= 20: break
            return req
        for c in ins:
            if not (c.label or c.directive or c.op == ''):
                k = pad(out[-40:], c)
                if k > 0:
                    out.append(Ins('s_nop %d' % (k - 1))); nops += 1
                    if verbose: print('nop %d before: %s' % (k, c.text))
            out.append(c)
        labels = {c.text.split(':')[0].strip(): i for i, c in enumerate(out) if c.label}
        for i, c in enumerate(out):
            if c.base.startswith(('s_cbranch', 's_branch')) and c.ops[0] in labels:
                hist = out[max(0, i - 40):i + 1]
                j = labels[c.ops[0]]
                for t in out[j:j + 24]:
                    if t.label or t.directive or t.op == '': continue
                    k = pad(hist[-60:], t)
                    if k > 0: raise SystemExit('hazard across branch to %s at: %s (need %d more)' % (c.ops[0], t.text, k))
                    hist = hist + [t]
                    if t.base in ('s_branch', 's_endpgm'): break
        self.nops = nops
        return '\n'.join(('' if c.label or c.directive else '    ') + c.text for c in out) + '\n'
def interleave(main, fill, start=0, every=1, per=1):
    out = []; fi = 0
    for i, m in enumerate(main):
        out.append(m)
        if i >= start and (i - start) % every == 0:
            for _ in range(per):
                if fi < len(fill): out.append(fill[fi]); fi += 1
    out.extend(fill[fi:])
    return out
```

```python
import sys, math, struct
sys.path.insert(0, 'work')
from asmdsl import Asm, interleave
NAME = 'parallel_sum__ssm_conv_s4d__mixer_channel_mlp__prompt_kernel'
def f32(x): return '0x%08x' % struct.unpack('<I', struct.pack('<f', x))[0]
LOG2E = math.log2(math.e)
XT, HH, AA, FL, DBG = 0x000000, 0x400000, 0xA00000, 0xD00000, 0xE00000
ST, FH, FA, FX = FL, FL + 0x4000, FL + 0x6000, FL + 0x7400
WS_BYTES = 0x1000000
XR = 131072
L_TAB, L_U, L_CS, L_ST = XR, XR + 2 * 8320, XR + 2 * 8320 + 2 * 4608, XR + 2 * 8320 + 2 * 4608 + 1024
L_SCR = 98304
L_AT = XR
L_RED = 65536
N_T, N_SCR, N_TAB, N_U = 0, 49152, 114688, 0
TSTR = 1296
sWV, sXCD, sJ = 34, 35, 36
X_, W1_, W2_, WS_, OUT_ = 's[40:43]', 's[44:47]', 's[48:51]', 's[52:55]', 's[56:59]'
POLLMAX = 0x8000
class G:
    def __init__(self, stamps=False):
        self.a = Asm(); self.stamps = stamps; self.nlab = 0
    def lab(self, p='L'):
        self.nlab += 1; return '%s%d' % (p, self.nlab)
    def stamp(self, k):
        if self.stamps: self.a('s_memrealtime s[%d:%d]\ns_waitcnt lgkmcnt(0)\ns_mov_b32 s%d, s%d' % (98, 99, 80 + k, 98))
    def dump_stamps(self):
        if not self.stamps: return
        a = self.a
        a('s_lshl_b32 s60, s2, 3\ns_add_u32 s60, s60, s%d\ns_lshl_b32 s60, s60, 6\ns_add_u32 s60, s60, %d' % (sWV, DBG))
        a('s_mov_b64 exec, -1\nv_mov_b32 v0, 0')
        for k in range(16):
            a('v_mov_b32 v1, s%d\nbuffer_store_dword v1, v0, %s, s60 offen offset:%d' % (80 + k, WS_, 4 * k))
    def poll(self, load, check):
        L = self.lab('P'); E = self.lab('PE')
        self.a('s_mov_b32 s79, 0\n%s:\n%s\ns_add_u32 s79, s79, 1\ns_waitcnt vmcnt(0)\n%s\ns_cmp_gt_u32 s79, %d\ns_cbranch_scc1 %s\ns_cbranch_vccnz %s\n%s:' % (L, load, check, POLLMAX, E, L, E))
    def poll_go(self, vt, va):
        self.a('v_and_b32 v%d, 7, v1\nv_lshlrev_b32 v%d, 2, v%d' % (va, va, va))
        self.poll('global_load_dword v%d, v%d, s[30:31] sc1' % (vt, va), 'v_cmp_eq_u32 vcc, 0, v%d' % vt)

    def prologue(self):
        a = self.a
        a('''s_cmp_ge_u32 s2, 256
        s_cbranch_scc1 L_END
        s_load_dwordx16 s[4:19], s[0:1], 0
        s_load_dwordx8 s[20:27], s[0:1], 64
        s_load_dwordx4 s[28:31], s[0:1], 96
        s_load_dwordx2 s[32:33], s[0:1], 112''')
        if self.stamps:
            for k in range(16): a('s_mov_b32 s%d, 0' % (80 + k))
        a('''v_lshrrev_b32 v2, 6, v0
        v_and_b32 v1, 63, v0
        s_and_b32 s35, s2, 7
        v_readfirstlane_b32 s34, v2
        s_lshr_b32 s36, s2, 3
        s_mov_b32 s42, %d
        s_mov_b32 s43, 0x20000
        s_mov_b32 s46, %d
        s_mov_b32 s47, 0x20000
        s_mov_b32 s50, %d
        s_mov_b32 s51, 0x20000
        s_mov_b32 s54, %d
        s_mov_b32 s55, 0x20000
        s_mov_b32 s58, %d
        s_mov_b32 s59, 0x20000''' % (2048 * 1280, 640 * 3072, 1536 * 1280, WS_BYTES, 2048 * 1280))
    def srds(self):
        self.a('''s_waitcnt lgkmcnt(0)
        s_mov_b32 s40, s4
        s_mov_b32 s41, s5
        s_mov_b32 s44, s20
        s_mov_b32 s45, s21
        s_mov_b32 s48, s24
        s_mov_b32 s49, s25
        s_mov_b32 s52, s32
        s_mov_b32 s53, s33
        s_mov_b32 s56, s28
        s_mov_b32 s57, s29''')
        self.stamp(0)
    def g12_ids(self):
        self.a('''s_mul_i32 s60, s36, 43
        s_lshr_b32 s60, s60, 8
        s_mul_i32 s61, s60, 6
        s_sub_u32 s61, s36, s61
        s_lshr_b32 s64, s35, 1
        s_and_b32 s65, s35, 1
        s_lshl_b32 s37, s64, 2
        s_add_u32 s37, s37, s60
        s_mul_i32 s38, s65, 6
        s_add_u32 s38, s38, s61
        s_mul_i32 s39, s60, 5
        s_lshr_b32 s39, s39, 1
        s_mul_i32 s66, s61, 427
        s_lshr_b32 s66, s66, 8
        s_add_u32 s39, s39, s66
        s_add_u32 s39, s39, s65
        s_mul_i32 s66, s64, 3
        s_lshr_b32 s66, s66, 2
        s_add_u32 s39, s39, s66
        s_cmp_ge_u32 s39, 10
        s_cselect_b32 s66, 10, 0
        s_sub_u32 s39, s39, s66
        s_cmp_ge_u32 s36, 10
        s_cselect_b32 s62, 1, 0
        s_mul_i32 s63, s62, 10
        s_sub_u32 s63, s36, s63
        s_lshl_b32 s66, s35, 1
        s_add_u32 s62, s62, s66''')
    def g2_offsets(self):
        a = self.a
        a('''s_and_b32 s76, s62, 1
        s_mul_i32 s76, s76, 6
        s_add_u32 s76, s76, s63
        s_cmp_ge_u32 s76, 12
        s_cselect_b32 s77, 12, 0
        s_sub_u32 s76, s76, s77
        s_lshl_b32 s64, s76, 1''')
        for i in range(1, 12):
            a('s_add_u32 s%d, s%d, 2\ns_cmp_eq_u32 s%d, 24\ns_cselect_b32 s%d, 0, s%d' % (64 + i, 63 + i, 64 + i, 64 + i, 64 + i))
    def w2_voff(self, v0, wv, t):
        self.a('''s_lshr_b32 s76, s{wv}, 1
        s_mul_i32 s76, s76, {khs}
        s_and_b32 s77, s{wv}, 1
        s_mul_i32 s77, s77, {r16}
        s_add_u32 s76, s76, s77
        s_lshl_b32 s77, s63, 7
        s_add_u32 s76, s76, s77
        v_lshrrev_b32 v{t}, 3, v1
        v_mul_u32_u24 v{v0}, 1280, v{t}
        v_lshrrev_b32 v{t}, 4, v1
        v_lshlrev_b32 v{t}, 1, v{t}
        v_xor_b32 v{t}, v{t}, v1
        v_and_b32 v{t}, 7, v{t}
        v_lshl_add_u32 v{v0}, v{t}, 4, v{v0}
        v_add_u32 v{v0}, s76, v{v0}
        v_add_u32 v{v1}, {d}, v{v0}'''.format(wv=wv, khs=24 * 32 * 1280, r16=16 * 1280, t=t, v0=v0, v1=v0 + 1, d=8 * 1280 - 1024))
    def w2_dma(self, step, slot, v0, sbase):
        part, i = step // 12, step % 12
        return ['s_add_u32 s76, s%d, %d\ns_mul_i32 s76, s76, 40960\ns_add_u32 m0, s%d, %d\nbuffer_load_dwordx4 v%d, %s, s76 offen lds' % (64 + i, part, sbase, slot * 8192, v0, W2_),
                'buffer_load_dwordx4 v%d, %s, s76 offen offset:1024 lds' % (v0 + 1, W2_)]

    def gwave(self):
        a = self.a
        NT = 4
        VX, VW, RX, RW = 16, 20, 24, 28
        FR = 32
        CS, BS = 64, 72
        AUG = 76
        VB1 = 92
        ACC = [[144, 160], [176, 192]]
        self.g12_ids()
        a('''s_and_b32 s60, s34, 1
        s_lshr_b32 s61, s34, 1''')
        a('''s_lshl_b32 s76, s37, 7
        s_lshl_b32 s77, s34, 5
        s_add_u32 s76, s76, s77
        s_mul_i32 s76, s76, 1280
        v_lshrrev_b32 v2, 3, v1
        v_mul_u32_u24 v3, 1280, v2
        v_lshrrev_b32 v4, 4, v1
        v_xor_b32 v5, v4, v1
        v_and_b32 v5, 7, v5
        v_lshl_add_u32 v6, v5, 4, v3
        v_xor_b32 v5, 4, v5
        v_lshl_add_u32 v7, v5, 4, v3
        v_add_u32 v%d, s76, v6
        v_add_u32 v7, s76, v7
        v_add_u32 v%d, %d, v7
        v_add_u32 v%d, %d, v%d
        v_add_u32 v%d, %d, v7''' % (VX, VX + 1, 8 * 1280 - 1024, VX + 2, 16 * 1280 - 2048, VX, VX + 3, 24 * 1280 - 3072))
        a('''s_mul_i32 s76, s34, %d
        s_lshl_b32 s77, s38, 8
        s_add_u32 s76, s76, s77
        v_mul_u32_u24 v3, 3072, v4
        v_lshlrev_b32 v5, 2, v4
        v_xor_b32 v5, v5, v1
        v_and_b32 v5, 15, v5
        v_lshl_add_u32 v3, v5, 4, v3
        v_add_u32 v%d, s76, v3''' % (16 * 3072, VW))
        for i in range(1, 4): a('v_add_u32 v%d, %d, v%d' % (VW + i, i * (4 * 3072 - 1024), VW))
        a('s_lshl_b32 s67, s34, 12')
        self.srds()
        def dma(stage):
            idx = stage % 3
            l = []
            for i in range(4):
                pre = 's_lshl_b32 s76, s39, 7\ns_add_u32 m0, s67, %d\n' % (idx * 16384) if i == 0 else ''
                l.append(pre + 'buffer_load_dwordx4 v%d, %s, s76 offen offset:%d lds' % (VX + i, X_, 1024 * i))
            for i in range(4):
                pre = 's_mul_i32 s77, s39, %d\ns_add_u32 m0, s67, %d\n' % (64 * 3072, 49152 + idx * 16384) if i == 0 else ''
                post = '\ns_add_u32 s39, s39, 1\ns_cmp_eq_u32 s39, 10\ns_cselect_b32 s39, 0, s39' if i == 3 else ''
                l.append(pre + 'buffer_load_dwordx4 v%d, %s, s77 offen offset:%d lds' % (VW + i, W1_, 1024 * i) + post)
            return l
        for x in dma(0): a(x)
        a('''s_lshl_b32 s76, s38, 8
        s_lshl_b32 s77, s60, 7
        s_add_u32 s76, s76, s77
        v_and_b32 v2, 31, v1
        v_lshl_add_u32 v3, v2, 1, s76
        v_mov_b32 v%d, 0
        v_mov_b32 v%d, 0
        global_load_short_d16_hi v%d, v3, s[22:23]
        global_load_short_d16_hi v%d, v3, s[22:23] offset:64''' % (VB1, VB1 + 1, VB1, VB1 + 1))
        for x in dma(1): a(x)
        a('''v_lshrrev_b32 v3, 5, v1
        v_bfe_u32 v4, v1, 1, 3
        v_xor_b32 v4, v4, v3
        s_lshl_b32 s76, s61, 1
        v_xor_b32 v4, s76, v4
        v_lshlrev_b32 v4, 4, v4
        v_lshl_add_u32 v4, v2, 7, v4
        s_lshl_b32 s76, s61, 13
        v_add_u32 v%d, s76, v4''' % RX)
        for s in range(1, 4): a('v_xor_b32 v%d, %d, v%d' % (RX + s, 32 * s, RX))
        a('''v_bfe_u32 v4, v1, 2, 2
        v_lshl_add_u32 v5, v3, 3, v4
        v_lshlrev_b32 v5, 8, v5
        s_lshl_b32 s76, s60, 1
        v_xor_b32 v4, s76, v4
        v_lshl_add_u32 v5, v4, 6, v5
        v_bfe_u32 v4, v1, 4, 1
        v_lshl_add_u32 v5, v4, 5, v5
        v_and_b32 v4, 3, v1
        v_lshl_add_u32 v5, v4, 3, v5
        s_lshl_b32 s76, s61, 12
        s_add_u32 s76, s76, 49152
        v_add_u32 v%d, s76, v5
        v_xor_b32 v%d, 64, v%d
        v_xor_b32 v%d, 0x1000, v%d
        v_xor_b32 v%d, 0x1040, v%d''' % (RW, RW + 1, RW, RW + 2, RW, RW + 3, RW))
        a('''v_lshrrev_b32 v4, 4, v1
        v_xor_b32 v4, v4, v1
        v_and_b32 v4, 1, v4
        v_cmp_eq_u32 vcc, 0, v4
        v_mov_b32 v5, 0x3f803f80
        v_cndmask_b32 v%d, 0, v5, vcc
        v_cndmask_b32 v%d, 0, v5, vcc
        v_cndmask_b32 v%d, 0, v5, vcc
        v_cndmask_b32 v%d, 0, v5, vcc''' % (BS, BS + 1, BS + 2, BS + 3))
        def reads(stage, s):
            idx = stage % 3; f = FR + 16 * (s & 1)
            l = []
            for mt in range(2):
                for e in range(2):
                    l.append('ds_read_b64_tr_b16 v[%d:%d], v%d offset:%d' % (f + 4 * mt + 2 * e, f + 4 * mt + 2 * e + 1, RW + 2 * (s & 1) + mt, idx * 16384 + (s & 2) * 4096 + 1024 * e))
            for nt in range(2):
                l.append('ds_read_b128 v[%d:%d], v%d offset:%d' % (f + 8 + 4 * nt, f + 11 + 4 * nt, RX + s, idx * 16384 + 4096 * nt))
            return l
        def mfmas(s, first):
            f = FR + 16 * (s & 1); l = []
            if s % 2 == 0:
                for mt in range(2):
                    c = 'v[%d:%d]' % (CS + 4 * mt, CS + 4 * mt + 3)
                    l.append('v_mfma_f32_16x16x32_bf16 %s, v[%d:%d], v[%d:%d], %s' % (c, f + 4 * mt, f + 4 * mt + 3, BS, BS + 3, '0' if first else c))
            for mt in range(2):
                for nt in range(2):
                    c = 'v[%d:%d]' % (ACC[mt][nt], ACC[mt][nt] + 15)
                    l.append('v_mfma_f32_32x32x16_bf16 %s, v[%d:%d], v[%d:%d], %s' % (c, f + 4 * mt, f + 4 * mt + 3, f + 8 + 4 * nt, f + 11 + 4 * nt, '0' if first else c))
            return l
        for st in range(10):
            a('s_waitcnt vmcnt(%d) lgkmcnt(0)\ns_barrier' % (8 if st < 9 else 0))
            if st in (0, 1, 5, 9): self.stamp({0: 1, 1: 2, 5: 3, 9: 4}[st])
            d = dma(st + 2) if st + 2 < 10 else []
            for s in range(4):
                rd = reads(st, s)
                dd = d[2 * s:2 * s + 2]
                if s == 0 and st == 0:
                    for x in rd + dd: a(x)
                    continue
                mm = mfmas((s - 1) & 3, st == 0 and s == 1)
                if s > 0: a('s_waitcnt lgkmcnt(0)')
                n32 = mm[-4:]; n16 = mm[:-4]
                for x in n16: a(x)
                fill = [[rd[0], rd[1]], [rd[2], rd[3]], [rd[4]] + dd[:1], [rd[5]] + dd[1:]]
                for m, f in zip(n32, fill):
                    a(m)
                    for x in f: a(x)
        a('''v_and_b32 v4, 15, v1
        v_lshrrev_b32 v5, 4, v1
        v_lshlrev_b32 v5, 4, v5
        v_lshl_add_u32 v5, v4, 6, v5
        s_lshl_b32 s76, s61, 9
        s_lshl_b32 s77, s60, 8
        s_add_u32 s76, s76, s77
        s_add_u32 s76, s76, %d
        v_add_u32 v5, s76, v5
        v_cmp_gt_u32 vcc, 2, v4
        s_and_saveexec_b64 s[68:69], vcc
        ds_write_b128 v5, v[%d:%d]
        ds_write_b128 v5, v[%d:%d] offset:128
        s_mov_b64 exec, s[68:69]
        s_waitcnt lgkmcnt(0)
        s_barrier''' % (L_CS, CS, CS + 3, CS + 4, CS + 7))
        a('''s_add_u32 s77, s77, %d
        v_lshl_add_u32 v5, v2, 2, s77
        s_lshl_b32 s76, s61, 9
        s_add_u32 s76, s76, %d
        v_lshl_add_u32 v6, v2, 3, s76
        ds_read2_b32 v[8:9], v5 offset0:0 offset1:128
        ds_read2_b32 v[10:11], v5 offset0:32 offset1:160
        ds_read_b64 v[12:13], v6
        ds_read_b64 v[14:15], v6 offset:256''' % (L_CS, L_ST))
        mm = mfmas(3, False)
        KC = 240
        aug = []
        aug.append('v_cmp_gt_u32 vcc, 32, v1\ns_waitcnt lgkmcnt(0)')
        for mt in range(2):
            A = AUG + 4 * mt; c = 8 + 2 * mt
            aug += ['v_add_f32 v%d, v%d, v%d' % (c, c, c + 1), 'v_cndmask_b32 v%d, 0, v%d, vcc' % (VB1 + mt, VB1 + mt), 'v_cndmask_b32 v%d, 0, v%d, vcc' % (c, c),
                    'v_cvt_pk_bf16_f32 v%d, v%d, v%d' % (A + 1, c, VB1 + mt), 'v_lshlrev_b32 v%d, 16, v%d' % (c + 1, A + 1), 'v_sub_f32 v%d, v%d, v%d' % (c + 1, c, c + 1),
                    'v_cvt_pk_bf16_f32 v%d, v%d, v%d' % (A, c, c + 1), 'v_lshrrev_b32 v%d, 16, v%d' % (A + 2, VB1 + mt), 'v_mov_b32 v%d, 0' % (A + 3)]
        for nt in range(2):
            B = AUG + 8 + 4 * nt; g = 12 + 2 * nt; k = KC + 4 * nt
            aug += ['v_cvt_pk_bf16_f32 v%d, v%d, v%d' % (B, g, g), 'v_and_b32 v4, 0xffff0000, v%d' % B, 'v_sub_f32 v4, v%d, v4' % g,
                    'v_cvt_pk_bf16_f32 v%d, v4, v%d' % (B + 1, g + 1), 'v_and_b32 v4, 0xffff0000, v%d' % (B + 1), 'v_sub_f32 v4, v%d, v4' % (g + 1),
                    'v_cvt_pk_bf16_f32 v%d, v4, 0' % (B + 2), 'v_mov_b32 v%d, 0' % (B + 3)]
        a(mm[0]); a(mm[1])
        for x in interleave(aug, mm[2:], start=6, every=6): a(x)
        for mt in range(2):
            for nt in range(2):
                c = 'v[%d:%d]' % (ACC[mt][nt], ACC[mt][nt] + 15)
                a('v_mfma_f32_32x32x16_bf16 %s, v[%d:%d], v[%d:%d], %s' % (c, AUG + 4 * mt, AUG + 4 * mt + 3, AUG + 8 + 4 * nt, AUG + 11 + 4 * nt, c))
        C1 = -2.0 * LOG2E * math.sqrt(2.0 / math.pi)
        for nt in range(2):
            g = 12 + 2 * nt; k = KC + 4 * nt
            a('''v_rcp_f32 v4, v{d}
            v_mov_b32 v{k2}, v{d}
            v_mul_f32 v{k1}, {c1}, v4
            v_mul_f32 v4, v4, v4
            v_mul_f32 v4, {c2}, v4
            v_mul_f32 v{k0}, v4, v{k1}'''.format(d=g + 1, k0=k, k1=k + 1, k2=k + 2, c1=f32(C1), c2=f32(0.044715)))
        a('''v_bfe_u32 v4, v1, 4, 1
        v_mul_u32_u24 v4, 49152, v4
        v_lshrrev_b32 v5, 5, v1
        v_lshl_add_u32 v4, v5, 8, v4
        v_and_b32 v5, 15, v1
        v_lshl_add_u32 v2, v5, 4, v4
        s_lshl_b32 s76, s37, 3
        s_lshl_b32 s77, s61, 2
        s_add_u32 s76, s76, s77
        s_mul_i32 s68, s76, 49152
        s_lshl_b32 s76, s38, 2
        s_lshl_b32 s77, s60, 1
        s_add_u32 s76, s76, s77
        s_lshl_b32 s76, s76, 10
        s_add_u32 s68, s68, s76
        s_add_u32 s68, s68, %d
        s_add_u32 s69, s68, %d''' % (HH, 2 * 49152))
        a('''s_lshl_b32 s76, s37, 1
        s_add_u32 s76, s76, s61
        s_lshl_b32 s3, s76, 7
        s_lshl_b32 s76, s38, 3
        s_lshl_b32 s77, s60, 2
        s_add_u32 s3, s3, s76
        s_add_u32 s3, s3, s77
        s_add_u32 s3, s3, %d''' % FH)
        self.stamp(5)
        T, P = 208, 224
        def gelu(mt, nt):
            q = ACC[mt][nt]; k = KC + 4 * nt; p = P + 8 * nt; l = []
            pr = lambda b, i: 'v[%d:%d]' % (b + 2 * i, b + 2 * i + 1)
            l += ['v_pk_mul_f32 %s, %s, %s' % (pr(T, i), pr(q, i), pr(q, i)) for i in range(8)]
            l += ['v_pk_fma_f32 %s, %s, v[%d:%d], v[%d:%d] op_sel:[0,0,1] op_sel_hi:[1,0,1]' % (pr(T, i), pr(T, i), k, k + 1, k, k + 1) for i in range(8)]
            l += ['v_pk_mul_f32 %s, %s, %s' % (pr(T, i), pr(T, i), pr(q, i)) for i in range(8)]
            l += ['v_exp_f32 v%d, v%d' % (T + i, T + i) for i in range(16)]
            l += ['v_pk_fma_f32 %s, %s, v[%d:%d], v[%d:%d] op_sel_hi:[1,0,0]' % (pr(T, i), pr(T, i), k + 2, k + 3, k + 2, k + 3) for i in range(8)]
            l += ['v_rcp_f32 v%d, v%d' % (T + i, T + i) for i in range(16)]
            l += ['v_pk_mul_f32 %s, %s, %s' % (pr(T, i), pr(T, i), pr(q, i)) for i in range(8)]
            for s in range(2):
                l += ['v_cvt_pk_bf16_f32 v%d, v%d, v%d' % (p + i, T + 2 * i, T + 2 * i + 1) for i in range(4 * s, 4 * s + 4)]
                l.append('buffer_store_dwordx4 v[%d:%d], v2, %s, s%d offen offset:%d sc1' % (p + 4 * s, p + 4 * s + 3, WS_, 68 + nt, 1024 * mt + 512 * s))
            return l
        for x in gelu(0, 0) + gelu(0, 1): a(x)
        TR = 4
        a('''v_bfe_u32 v8, v1, 2, 2
        v_bfe_u32 v9, v1, 4, 1
        v_lshl_add_u32 v8, v9, 2, v8
        v_lshrrev_b32 v9, 1, v8
        v_lshrrev_b32 v10, 5, v1
        v_lshl_add_u32 v8, v10, 4, v8
        v_lshlrev_b32 v8, 7, v8
        s_lshl_b32 s76, s60, 1
        v_xor_b32 v9, s76, v9
        v_lshl_add_u32 v8, v9, 5, v8
        v_and_b32 v9, 3, v1
        v_lshl_add_u32 v8, v9, 3, v8
        s_lshl_b32 s76, s60, 12
        v_add_u32 v4, s76, v8
        v_xor_b32 v5, 32, v4
        v_xor_b32 v6, 64, v4
        v_xor_b32 v7, 96, v4''')
        RF = 16
        def trreads(buf, slot):
            return ['ds_read_b64_tr_b16 v[%d:%d], v%d offset:%d' % (RF + 16 * buf + 4 * t + 2 * e, RF + 16 * buf + 4 * t + 2 * e + 1, TR + t, (slot % 8) * 8192 + 1024 * e) for t in range(4) for e in range(2)]
        a('s_barrier')
        self.stamp(6)
        rr = []
        for b in range(8): rr += trreads(b, b)
        for x in interleave(gelu(1, 0) + gelu(1, 1), rr, start=0, every=2): a(x)
        a('s_waitcnt lgkmcnt(0)\ns_barrier')
        self.stamp(7)
        a('''v_mov_b32 v8, 0
        v_mov_b32 v9, 1
        s_waitcnt vmcnt(4)
        s_mov_b64 exec, 1
        buffer_store_dword v9, v8, {ws}, s3 offen sc1
        s_mov_b64 exec, -1
        s_cmp_lt_u32 s36, 20
        s_cbranch_scc1 L_G2
        s_waitcnt vmcnt(1)
        s_mov_b64 exec, 1
        s_add_u32 s3, s3, 4096
        buffer_store_dword v9, v8, {ws}, s3 offen sc1
        s_branch L_FIN
        L_G2:'''.format(ws=WS_))
        self.g2_offsets()
        self.w2_voff(10, sWV, 12)
        a('s_lshl_b32 s78, s34, 11')
        dm = []
        for k in range(8): dm += self.w2_dma(10 + k, k, 10, 78)
        for x in dm[:6]: a(x)
        a('''s_waitcnt vmcnt(7)
        s_mov_b64 exec, 1
        s_add_u32 s3, s3, 4096
        buffer_store_dword v9, v8, {ws}, s3 offen sc1
        s_mov_b64 exec, -1'''.format(ws=WS_))
        self.stamp(8)
        for x in dm[6:]: a(x)
        A2 = 144; HR = 208
        acc = lambda t, nt: A2 + 16 * nt + 4 * t
        a('''s_lshl_b32 s76, s62, 7
        s_lshl_b32 s77, s61, 6
        s_add_u32 s76, s76, s77
        s_mul_i32 s37, s76, 1280
        s_lshl_b32 s76, s63, 7
        s_lshl_b32 s77, s60, 6
        s_add_u32 s38, s76, s77
        s_add_u32 s37, s37, s38
        v_and_b32 v8, 15, v1
        v_mul_u32_u24 v3, 1280, v8
        v_lshrrev_b32 v9, 4, v1
        v_lshl_add_u32 v10, v9, 3, v3
        v_lshl_add_u32 v11, v9, 3, s38''')
        for nt in range(NT):
            a('s_add_u32 s76, s37, %d' % (nt * 16 * 1280))
            for t in range(2):
                a('buffer_load_dwordx2 v[%d:%d], v10, %s, s76 offen offset:%d' % (HR + 4 * nt + 2 * t, HR + 4 * nt + 2 * t + 1, X_, 32 * t))
        a('global_load_dwordx2 v[12:13], v11, s[26:27]\nglobal_load_dwordx2 v[14:15], v11, s[26:27] offset:32')
        a('s_waitcnt vmcnt(0)')
        B2F = HR + 16
        for t in range(2):
            for d in range(2):
                a('v_lshlrev_b32 v%d, 16, v%d\nv_and_b32 v%d, 0xffff0000, v%d' % (B2F + 4 * t + 2 * d, 12 + 2 * t + d, B2F + 4 * t + 2 * d + 1, 12 + 2 * t + d))
        for nt in range(NT):
            for t in range(2):
                for d in range(2):
                    s = HR + 4 * nt + 2 * t + d; o = acc(t, nt) + 2 * d
                    a('v_lshlrev_b32 v%d, 16, v%d\nv_and_b32 v%d, 0xffff0000, v%d\nv_add_f32 v%d, v%d, v%d\nv_add_f32 v%d, v%d, v%d' % (o, s, o + 1, s, o, o, B2F + 4 * t + 2 * d, o + 1, o + 1, B2F + 4 * t + 2 * d + 1))
        a('''s_lshl_b32 s76, s62, 3
        s_lshl_b32 s77, s61, 2
        s_add_u32 s76, s76, s77
        s_mul_i32 s76, s76, 49152
        v_lshl_add_u32 v8, v1, 4, s76
        v_add_u32 v9, 49152, v8
        v_add_u32 v10, %d, v8
        v_add_u32 v11, %d, v8
        s_mul_i32 s77, s60, %d
        s_add_u32 s77, s77, %d''' % (2 * 49152, 3 * 49152, 24 * 1024, HH))
        for i in range(12): a('s_lshl_b32 s%d, s%d, 10\ns_add_u32 s%d, s%d, s77' % (64 + i, 64 + i, 64 + i, 64 + i))
        a('''s_lshl_b32 s76, s62, 1
        s_add_u32 s76, s76, s61
        s_lshl_b32 s76, s76, 7
        s_mul_i32 s77, s60, 48
        s_add_u32 s76, s76, s77
        s_add_u32 s39, s76, %d
        v_min_u32 v12, 11, v1
        v_lshlrev_b32 v12, 2, v12''' % FH)
        self.stamp(9)
        self.poll('buffer_load_dword v13, v12, %s, s39 offen sc1' % WS_, 'v_cmp_eq_u32 vcc, 0, v13')
        self.stamp(10)
        a('s_add_u32 s39, s39, 4096')
        def hloads(s):
            r = HR + 16 * (s % 3)
            return ['buffer_load_dwordx4 v[%d:%d], v%d, %s, s%d offen offset:%d sc1' % (r + 4 * nt, r + 4 * nt + 3, 8 + nt, WS_, 64 + s % 12, 1024 * (s // 12)) for nt in range(NT)]
        for s in range(3):
            for x in hloads(s): a(x)
        a('s_barrier')
        def wbuf(s): return s if s < 2 else (s - 16 if s >= 18 else (s & 1))
        PCHK = 7
        for s in range(24):
            r = HR + 16 * (s % 3); wb = RF + 16 * wbuf(s)
            nxt = s + 1
            rd = []
            if 2 <= nxt < 18:
                if nxt == 2: a('v_add_u32 v4, 0x10000, v4\nv_add_u32 v5, 0x10000, v5\nv_add_u32 v6, 0x10000, v6\nv_add_u32 v7, 0x10000, v7')
                if nxt == 10: a('v_add_u32 v4, 0xffff0000, v4\nv_add_u32 v5, 0xffff0000, v5\nv_add_u32 v6, 0xffff0000, v6\nv_add_u32 v7, 0xffff0000, v7')
                rd = trreads(wbuf(nxt), nxt - 2)
            if 2 <= s < 18: a('s_waitcnt lgkmcnt(0)')
            hl = hloads(s + 3) if s + 3 < 24 else []
            if s == PCHK: a('buffer_load_dword v13, v12, %s, s39 offen sc1' % WS_)
            for nt in range(NT):
                issued_after = (min(s + 2, 23) - s) * NT + (NT - 1 - nt) + (nt if hl else 0)
                if PCHK <= s <= PCHK + 2: issued_after += 1
                a('s_waitcnt vmcnt(%d)' % issued_after)
                for t in range(4):
                    c = 'v[%d:%d]' % (acc(t, nt), acc(t, nt) + 3)
                    a('v_mfma_f32_16x16x32_bf16 %s, v[%d:%d], v[%d:%d], %s' % (c, wb + 4 * t, wb + 4 * t + 3, r + 4 * nt, r + 4 * nt + 3, '0' if (s == 0 and t >= 2) else c))
                    if rd and t in (0, 2): a(rd.pop(0))
                if hl:
                    if s == PCHK + 2 and nt == 0:
                        Lok = self.lab('OK')
                        a('s_waitcnt vmcnt(%d)\nv_cmp_eq_u32 vcc, 0, v13\ns_cbranch_vccz %s' % (2 * NT, Lok))
                        self.poll('buffer_load_dword v13, v12, %s, s39 offen sc1' % WS_, 'v_cmp_eq_u32 vcc, 0, v13')
                        a('%s:' % Lok)
                    a(hl[nt])
            if s == 0: a('s_barrier')
            if s == 5: a('s_barrier')
            if s == 0: self.stamp(11)
        self.stamp(12)
        a('''s_lshl_b32 s76, s34, 13
        s_add_u32 s76, s76, %d
        v_lshl_add_u32 v8, v1, 4, s76
        v_xor_b32 v9, 0x2000, v8''' % L_RED)
        a('''v_bfe_u32 v10, v1, 2, 3
        s_lshl_b32 s76, s61, 2
        v_xor_b32 v10, s76, v10
        v_lshlrev_b32 v10, 5, v10
        v_lshrrev_b32 v11, 2, v1
        v_lshl_add_u32 v10, v11, 8, v10
        v_and_b32 v11, 3, v1
        v_lshl_add_u32 v10, v11, 3, v10
        s_lshl_b32 s76, s60, 13
        s_add_u32 s76, s76, %d
        v_add_u32 v10, s76, v10
        v_xor_b32 v11, 32, v10
        v_xor_b32 v12, 64, v10
        v_xor_b32 v13, 96, v10''' % L_AT)
        for nt in range(NT):
            for t in range(2):
                a('ds_write_b128 v8, v[%d:%d] offset:%d' % (acc(2 + t, nt), acc(2 + t, nt) + 3, 1024 * (2 * nt + t)))
        a('''v_bfe_u32 v14, v1, 4, 1
        v_lshl_add_u32 v3, v14, 5, v3
        v_lshrrev_b32 v14, 5, v1
        v_lshl_add_u32 v3, v14, 4, v3
        s_waitcnt lgkmcnt(0)
        s_barrier''')
        self.stamp(13)
        for nt in range(NT):
            for t in range(2):
                a('ds_read_b128 v[%d:%d], v9 offset:%d' % (acc(2 + t, nt), acc(2 + t, nt) + 3, 1024 * (2 * nt + t)))
                a('ds_read_b64_tr_b16 v[%d:%d], v%d offset:%d' % (HR + 4 * nt + 2 * t, HR + 4 * nt + 2 * t + 1, 10 + nt, 4096 * t))
        for nt in range(NT):
            a('s_waitcnt lgkmcnt(%d)' % (4 * (NT - 1 - nt)))
            o = RF + 4 * nt
            for t in range(2):
                k = acc(t, nt); p = acc(2 + t, nt)
                for d in range(2):
                    s = HR + 4 * nt + 2 * t + d
                    a('''v_pk_add_f32 v[{k0}:{k1}], v[{k0}:{k1}], v[{p0}:{p1}]
                    v_lshlrev_b32 v14, 16, v{s}
                    v_and_b32 v15, 0xffff0000, v{s}
                    v_pk_add_f32 v[{k0}:{k1}], v[{k0}:{k1}], v[14:15]
                    v_cvt_pk_bf16_f32 v{o}, v{k0}, v{k1}'''.format(k0=k + 2 * d, k1=k + 2 * d + 1, p0=p + 2 * d, p1=p + 2 * d + 1, s=s, o=o + 2 * t + d))
            a('s_add_u32 s76, s37, %d' % (nt * 16 * 1280))
            a('v_permlane16_swap_b32 v%d, v%d\nv_permlane16_swap_b32 v%d, v%d' % (o, o + 2, o + 1, o + 3))
            a('buffer_store_dwordx4 v[%d:%d], v3, %s, s76 offen' % (o, o + 3, OUT_))
        self.stamp(14)
        a('s_branch L_FIN')

    def s_param_loads(self):
        a = self.a
        a('s_mul_i32 s76, s61, 384\nv_lshl_add_u32 v2, v1, 1, s76\ns_lshl_b32 s76, s61, 1\nv_mov_b32 v3, s76')
        for r in range(16, 30): a('v_mov_b32 v%d, 0' % r)
        a('global_load_short_d16_hi v28, v3, s[14:15]')
        for st in range(3):
            for k, p in enumerate((6, 8, 10, 12)):
                a('global_load_short_d16_hi v%d, v2, s[%d:%d] offset:%d' % (16 + 4 * st + k, p, p + 1, 128 * st))
        a('global_load_short_d16_hi v29, v3, s[16:17]')
    def cmul(self, d, x, w, pk):
        if pk:
            return ['v_pk_mul_f32 v[%d:%d], v[%d:%d], v[%d:%d] op_sel:[1,0] op_sel_hi:[0,1]' % (d, d + 1, x, x + 1, w, w + 1),
                    'v_pk_fma_f32 v[%d:%d], v[%d:%d], v[%d:%d], v[%d:%d] op_sel_hi:[1,0,1]' % (d, d + 1, x, x + 1, w + 2, w + 3, d, d + 1)]
        return ['v_mul_f32 v%d, v%d, v%d' % (d, x + 1, w), 'v_mul_f32 v%d, v%d, v%d' % (d + 1, x, w + 1),
                'v_fmac_f32 v%d, v%d, v%d' % (d, x, w + 2), 'v_fmac_f32 v%d, v%d, v%d' % (d + 1, x + 1, w + 2)]
    def cexp(self, w, zr, zi, t):
        return '''v_rndne_f32 v{t}, v{zi}
        v_exp_f32 v{t1}, v{zr}
        v_sub_f32 v{t}, v{zi}, v{t}
        v_sin_f32 v{w1}, v{t}
        v_cos_f32 v{w2}, v{t}
        v_mul_f32 v{w1}, v{w1}, v{t1}
        v_mul_f32 v{w2}, v{w2}, v{t1}
        v_sub_f32 v{w0}, 0, v{w1}'''.format(t=t, t1=t + 1, zr=zr, zi=zi, w0=w, w1=w + 1, w2=w + 2)
    def scode(self, N):
        a = self.a; pk = N
        tag = 'N' if N else 'S'
        WA, RA, KA = 32, 48, 52
        FRG = 68
        W0, W1 = 100, 104
        X = 108
        PKD = 176
        DT = 30
        def bar(k):
            if N and k == 2: a('s_waitcnt vmcnt(0) lgkmcnt(0)\ns_barrier')
            else: a('s_waitcnt lgkmcnt(0)\ns_barrier')
        a('s_lshl_b32 s76, s60, 13\ns_add_u32 s76, s76, s37\nv_lshl_add_u32 v%d, v1, 2, s76' % WA)
        for r in range(1, 16): a('v_xor_b32 v%d, %d, v%d' % (WA + r, r << 4, WA))
        a('''v_and_b32 v4, 15, v1
        v_lshrrev_b32 v5, 5, v1
        v_xor_b32 v4, v4, v5
        s_lshl_b32 s76, s60, 3
        v_xor_b32 v4, s76, v4
        v_lshlrev_b32 v4, 4, v4
        v_and_b32 v5, 31, v1
        v_lshl_add_u32 v4, v5, 8, v4
        v_add_u32 v%d, s37, v4''' % RA)
        for k in range(1, 4): a('v_xor_b32 v%d, %d, v%d' % (RA + k, 32 * k, RA))
        for r in range(16): a('v_mov_b32 v%d, 0' % (KA + r))
        if not N: a('s_barrier')
        if not N:
            Ls = self.lab('NG')
            a('''s_waitcnt vmcnt(0)
            s_cmp_eq_u32 s78, 0
            s_cbranch_scc1 {L}
            s_lshl_b32 s76, s36, 2
            v_mov_b32 v4, s76
            v_mov_b32 v5, 1
            s_mov_b64 exec, 1
            global_store_dword v4, v5, s[30:31] sc1
            s_mov_b64 exec, -1
            {L}:'''.format(L=Ls))
        self.stamp(2)
        a('''v_mul_f32 v{dt}, {l2e}, v28
        v_exp_f32 v{dt}, v{dt}
        s_mov_b32 s70, 0
        v_cvt_pk_bf16_f32 v{dt}, v{dt}, v{dt}
        v_lshlrev_b32 v{dt}, 16, v{dt}
        s_cmp_eq_u32 s60, 0
        s_cbranch_scc0 L{t}_B'''.format(dt=DT, l2e=f32(LOG2E), t=tag))
        def zsetup(scale, conj):
            a('''v_mul_f32 v4, {l2e}, v16
            v_exp_f32 v4, v4
            v_mul_f32 v5, v17, v{dt}
            v_cvt_pk_bf16_f32 v4, v4, v4
            v_mul_f32 v5, {ci}, v5
            v_lshlrev_b32 v4, 16, v4
            v_mul_f32 v4, v4, v{dt}
            v_mul_f32 v4, {cr}, v4'''.format(l2e=f32(LOG2E), dt=DT, ci=f32((-1 if conj else 1) * scale / (2 * math.pi)), cr=f32(-scale * LOG2E)))
        def rotate_params():
            for k in range(8): a('v_mov_b32 v%d, v%d' % (16 + k, 20 + k))
        def mfma_phase():
            for k in range(4):
                a('ds_read_b128 v[%d:%d], v%d\nds_read_b128 v[%d:%d], v%d offset:8192' % (FRG + 8 * k, FRG + 8 * k + 3, RA + k, FRG + 8 * k + 4, FRG + 8 * k + 7, RA + k))
            rotate_params()
            for k in range(4):
                a('s_waitcnt lgkmcnt(%d)' % (6 - 2 * k))
                a('v_mfma_f32_32x32x16_bf16 v[{c}:{c2}], v[{f}:{f3}], v[{g}:{g3}], v[{c}:{c2}]'.format(c=KA, c2=KA + 15, f=FRG + 8 * k, f3=FRG + 8 * k + 3, g=FRG + 8 * k + 4, g3=FRG + 8 * k + 7))
        def xflag():
            if N:
                L = self.lab('XF')
                a('''s_or_b32 s76, s70, s34
                s_cbranch_scc1 {L}
                s_lshl_b32 s76, s35, 3
                s_add_u32 s76, s76, s36
                s_lshl_b32 s76, s76, 2
                s_add_u32 s76, s76, {fx}
                v_mov_b32 v4, 0
                v_mov_b32 v5, 1
                s_mov_b64 exec, 1
                buffer_store_dword v5, v4, {ws}, s76 offen sc1
                s_mov_b64 exec, -1
                {L}:'''.format(L=L, fx=FX - 24 * 4, ws=WS_))
        def wr(r, lo, hi):
            return 'ds_write2st64_b32 v%d, v%d, v%d offset0:%d offset1:%d' % (WA + r, lo, hi, r, r + 16)
        a('L%s_A:' % tag)
        zsetup(1.0, True)
        a(self.cexp(W0, 4, 5, 6))
        a('v_mul_f32 v4, 0x43800000, v4\nv_mul_f32 v5, 0x43800000, v5')
        a(self.cexp(W1, 4, 5, 6))
        val = {}; pkd = {}
        def newv(key):
            val[key] = X + 2 * len(val); pkd[key] = PKD + len(pkd); return val[key]
        def cvt(key): return 'v_cvt_pk_bf16_f32 v%d, v%d, v%d' % (pkd[key], val[key], val[key] + 1)
        g0 = newv(0)
        a('v_add_f32 v6, v{dt}, v{dt}\nv_mul_f32 v{g}, v18, v6\nv_mul_f32 v{g1}, v19, v6\nv_sub_f32 v{g1}, 0, v{g1}'.format(dt=DT, g=g0, g1=g0 + 1))
        a(cvt(0))
        def step(key, src, w):
            d = newv(key)
            for x in self.cmul(d, val[src], w, pk): a(x)
            a(cvt(key))
        for k in range(1, 9):
            step(k, k - 1, W0)
            if k % 2 == 0: step(256 + k - 2, k - 2, W1)
        step(264, 8, W1)
        bar(1)
        rows = {0: [0, 1, 2, 3, 4, 5, 6, 7, 8, 512, 516, 520, 1024, 1032, 1536, 1544],
                1: [256, 256, 258, 260, 260, 260, 262, 264, 264, 768, 772, 776, 1280, 1288, 1792, 1800]}
        pend = [(r, h) for h in range(2) for r in range(8)]
        def flush():
            for (r, h) in list(pend):
                lo, hi = rows[h][r], rows[h][r + 8]
                if lo in pkd and hi in pkd:
                    m = (r & 3) + 8 * (r >> 2) + 4 * h
                    a(wr(m, pkd[lo], pkd[hi])); pend.remove((r, h))
        flush()
        for b in (512, 768):
            for o in (0, 4, 8): step(b + o, b - 256 + o, W1); flush()
        for b in (1024, 1280, 1536, 1792):
            for o in (0, 8): step(b + o, b - 256 + o, W1); flush()
        assert not pend
        bar(2); xflag()
        mfma_phase()
        a('s_add_u32 s70, s70, 1\ns_cmp_eq_u32 s70, 3\ns_cbranch_scc1 L%s_J\ns_barrier\ns_branch L%s_A' % (tag, tag))
        a('L%s_B:' % tag)
        zsetup(8.0, False)
        a(self.cexp(W0, 4, 5, 6))
        a('v_mul_f32 v4, 0x41800000, v4\nv_mul_f32 v5, 0x41800000, v5')
        a(self.cexp(W1, 4, 5, 6))
        E0, E1 = X, X + 4
        a('''v_mov_b32 v{a}, v{wr}
        v_mov_b32 v{a1}, v{wi}
        v_mov_b32 v{b}, v{vr}
        v_mov_b32 v{b1}, v{vi}
        v_mov_b32 v{p}, 0x3f80
        v_cvt_pk_bf16_f32 v{p1}, v{b}, v{b1}'''.format(a=E0 + 2, a1=E0 + 3, wr=W0 + 2, wi=W0 + 1, b=E1, b1=E1 + 1, vr=W1 + 2, vi=W1 + 1, p=PKD, p1=PKD + 1))
        a(wr(0, PKD, PKD + 1))
        for r in range(1, 16):
            d0, s0 = E0 + 2 * (r & 1), E0 + 2 * ((r - 1) & 1)
            d1, s1 = E1 + 2 * (r & 1), E1 + 2 * ((r - 1) & 1)
            c0 = self.cmul(d0, s0, W0, pk) if r > 1 else []
            c1 = self.cmul(d1, s1, W0, pk)
            for x in interleave(c1, c0): a(x)
            p = PKD + 2 * (r & 1)
            a('v_cvt_pk_bf16_f32 v%d, v%d, v%d\nv_cvt_pk_bf16_f32 v%d, v%d, v%d' % (p, d0, d0 + 1, p + 1, d1, d1 + 1))
            a(wr(r, p, p + 1))
            if r == 6: bar(1)
        bar(2); xflag()
        mfma_phase()
        a('s_add_u32 s70, s70, 1\ns_cmp_eq_u32 s70, 3\ns_cbranch_scc1 L%s_J\ns_barrier\ns_branch L%s_B' % (tag, tag))
        a('L%s_J:' % tag)
        self.stamp(3)
        a('''s_xor_b32 s76, s60, 1
        s_mul_i32 s76, s76, 4160
        s_add_u32 s76, s76, s38
        v_lshl_add_u32 v4, v1, 4, s76
        s_mul_i32 s71, s60, 4160
        s_add_u32 s71, s71, s38
        v_lshl_add_u32 v5, v1, 4, s71
        v_mov_b32 v8, 0
        v_mov_b32 v9, 0
        v_mov_b32 v10, 0
        v_mov_b32 v11, 0
        v_lshl_add_u32 v6, v1, 3, s39
        ds_write_b64 v6, v[8:9]''')
        for k in range(4): a('ds_write_b128 v4, v[%d:%d] offset:%d' % (KA + 4 * k, KA + 4 * k + 3, 1024 * k))
        if not N:
            self.poll_go(12, 13)
            a('''s_lshr_b32 s76, s35, 1
            s_lshl_b32 s76, s76, 2
            s_mul_i32 s77, s36, 43
            s_lshr_b32 s77, s77, 8
            s_add_u32 s76, s76, s77
            s_lshl_b32 s76, s76, 10
            s_add_u32 s76, s76, %d
            s_and_b32 s77, s34, 3
            s_lshl_b32 s77, s77, 8
            v_and_b32 v13, 31, v1
            v_lshl_add_u32 v13, v13, 3, s77''' % ST)
            self.poll('buffer_load_dwordx2 v[14:15], v13, %s, s76 offen sc1' % WS_, 'v_cmp_eq_u32 vcc, 0, v15')
            a('v_add_u32 v13, %d, v13\nds_write_b64 v13, v[14:15]' % L_ST)
        a('s_waitcnt lgkmcnt(0)\ns_barrier')
        self.stamp(4)
        for k in range(4): a('ds_read_b128 v[%d:%d], v5 offset:%d' % (FRG + 4 * k, FRG + 4 * k + 3, 1024 * k))
        if not N:
            a('s_barrier')
            Lw = self.lab('NW')
            a('s_cmp_lt_u32 s36, 20\ns_cbranch_scc0 %s' % Lw)
            self.g2_offsets_s()
            a('s_and_b32 s77, s34, 3\ns_mov_b32 s3, s77')
            self.w2_voff(12, 3, 14)
            a('s_lshl_b32 s78, s3, 11')
            for k, s in enumerate([0, 1, 18, 19, 20, 21, 22, 23]):
                for x in self.w2_dma(s, k, 12, 78): a(x)
            a('%s:' % Lw)
        a('v_cmp_eq_u32 vcc, 0, v1\nv_cndmask_b32 v29, 0, v29, vcc\ns_waitcnt lgkmcnt(0)')
        for r in range(16): a('v_add_f32 v%d, v%d, v%d' % (KA + r, KA + r, FRG + r))
        V = lambda r: KA + r
        a('''v_add_f32 v{v0}, v{v0}, v29
        v_cndmask_b32 v8, 0, v{v0}, vcc
        v_and_b32 v4, 1, v1
        v_cmp_eq_u32 vcc, 0, v4
        v_lshlrev_b32 v4, 4, v1
        s_mul_i32 s76, s60, 4160
        s_add_u32 s76, s76, s38
        s_add_u32 s77, s76, 1008
        v_sub_u32 v6, s77, v4
        s_add_u32 s77, s76, 4096
        v_add_u32 v7, s77, v4
        v_cndmask_b32 v{m0}, v{v13}, v{v12}, vcc
        v_cndmask_b32 v{m1}, v{v15}, v{v14}, vcc
        s_cmp_eq_u32 s60, 0
        s_cbranch_scc0 L{t}_T1'''.format(v0=V(0), m0=FRG + 16, m1=FRG + 17, v12=V(12), v13=V(13), v14=V(14), v15=V(15), t=tag))
        def table(c):
            lv = [([V(o) for o in range(9)], 3072), ([V(9)] * 3 + [V(10)] * 3 + [V(11)] * 3, 2048),
                  ([V(12)] * 4 + [FRG + 16] + [V(13)] * 4, 1024), ([V(14)] * 4 + [FRG + 17] + [V(15)] * 4, 0)]
            for n, (t, off) in enumerate(lv):
                for d in range(4):
                    a('v_cvt_pk_bf16_f32 v%d, v%d, v%d' % (FRG + 4 * n + d, t[7 + c - 2 * d], t[6 + c - 2 * d]))
                a('ds_write_b128 v6, v[%d:%d] offset:%d' % (FRG + 4 * n, FRG + 4 * n + 3, off))
        table(0)
        a('v_mov_b32 v8, 0\ns_branch L%s_T2\nL%s_T1:' % (tag, tag))
        table(1)
        a('v_cvt_pk_bf16_f32 v8, v8, 0\nL%s_T2:' % tag)
        a('s_mov_b64 exec, 3\nds_write_b128 v7, v[8:11]\ns_mov_b64 exec, -1')
        if not N: a('s_waitcnt vmcnt(0)\ns_barrier')
        self.stamp(5)
        a('v_lshlrev_b32 v4, 2, v1\ns_mov_b32 s76, %d' % FX)
        self.poll('buffer_load_dword v5, v4, %s, s76 offen sc1' % WS_, 'v_cmp_eq_u32 vcc, 0, v5')
        self.stamp(6)
        a('''s_lshr_b32 s76, s61, 2
        s_lshl_b32 s76, s76, 14
        s_and_b32 s77, s61, 3
        s_lshl_b32 s77, s77, 4
        s_add_u32 s76, s76, s77
        s_lshl_b32 s77, s60, 13
        s_add_u32 s76, s76, s77
        v_lshlrev_b32 v4, 6, v1
        s_lshl_b32 s77, s60, 11
        s_add_u32 s77, s77, s39
        s_add_u32 m0, s77, 512
        s_add_u32 s77, s76, 3072
        buffer_load_dwordx4 v4, {ws}, s76 offen sc1 lds
        buffer_load_dwordx4 v4, {ws}, s77 offen offset:1024 sc1 lds'''.format(ws=WS_))
        if not N:
            Lw = self.lab('NW'); Lx = self.lab('NX')
            a('s_cmp_lt_u32 s36, 20\ns_cbranch_scc0 %s' % Lw)
            for k in range(8):
                for x in self.w2_dma(2 + k, 8 + k, 12, 78): a(x)
            a('s_waitcnt vmcnt(16)\ns_branch %s\n%s:\ns_waitcnt vmcnt(0)\n%s:' % (Lx, Lw, Lx))
        else: a('s_waitcnt vmcnt(0)')
        CA, CB = 4, 8
        a('''v_and_b32 v9, 15, v1
        v_lshrrev_b32 v10, 4, v1
        v_and_b32 v11, 1, v1
        v_xor_b32 v11, 1, v11
        v_mul_u32_u24 v11, 4162, v11
        v_lshl_add_u32 v11, v10, 4, v11
        v_lshlrev_b32 v14, 1, v9
        v_sub_u32 v11, v11, v14
        s_lshl_b32 s76, s60, 8
        s_sub_u32 s76, s38, s76
        s_add_u32 s76, s76, %d
        v_add_u32 v%d, s76, v11''' % (2 * (2047 - 16) - 512 - 192, CA))
        for p in range(1, 4): a('v_add_u32 v%d, %d, v%d' % (CA + p, -1024 * p, CA))
        a('''v_lshlrev_b32 v9, 5, v9
        v_lshl_add_u32 v9, v10, 4, v9
        s_lshl_b32 s76, s60, 8
        s_sub_u32 s76, s39, s76
        s_add_u32 s76, s76, %d
        v_add_u32 v%d, s76, v9
        s_waitcnt lgkmcnt(0)
        s_barrier''' % (512 - 32 - 192, CB))
        self.stamp(7)
        YA = 16; FA_ = [48, 112]
        def creads(tt):
            f = FA_[tt & 1]; l = []
            for i in range(8):
                o = (128 if i % 2 == 0 else 0) + 16 * (3 - tt)
                ra = ['ds_read2_b32 v[%d:%d], v%d offset0:%d offset1:%d' % (f + 4 * i + 2 * e, f + 4 * i + 2 * e + 1, CA + i // 2, o + 2 * e, o + 2 * e + 1) for e in range(2)]
                rb = 'ds_read_b128 v[%d:%d], v%d offset:%d' % (f + 32 + 4 * i, f + 35 + 4 * i, CB, 512 * i + 64 * (3 - tt))
                l += ra + [rb]
            return l
        def cm(tt, i, j, first):
            f = FA_[tt & 1]; c = 'v[%d:%d]' % (YA + 4 * (i + j), YA + 4 * (i + j) + 3)
            return 'v_mfma_f32_16x16x32_bf16 %s, v[%d:%d], v[%d:%d], %s' % (c, f + 4 * i, f + 4 * i + 3, f + 32 + 4 * j, f + 35 + 4 * j, '0' if first else c)
        r0 = creads(0)
        for x in r0[:12]: a(x)
        for tt in range(4):
            order = []
            for k in range(8):
                order += [(k, i, j) for i in range(k + 1) for j in range(k + 1) if max(i, j) == k and i + j <= 7]
            seen = set()
            nxt = (r0[12:] if tt == 0 else []) + (creads(tt + 1) if tt < 3 else [])
            issued = 12 if tt == 0 else 24
            extra = 0
            lastk = -1
            if tt > 0: a('s_waitcnt lgkmcnt(0)')
            for (k, i, j) in order:
                if tt == 0 and k != lastk:
                    while issued < 3 * (k + 1): a(nxt.pop(0)); issued += 1
                    a('s_waitcnt lgkmcnt(%d)' % min(15, issued + extra - 3 * (k + 1)))
                    lastk = k
                a(cm(tt, i, j, tt == 0 and (i + j) not in seen)); seen.add(i + j)
                if nxt:
                    a(nxt.pop(0))
                    if issued < 24: issued += 1
                    else: extra += 1
            for x in nxt: a(x)
        self.stamp(8)
        a('''s_mul_i32 s76, s60, 4160
        s_add_u32 s76, s76, s38
        v_lshl_add_u32 v4, v1, 4, s76
        s_xor_b32 s76, s60, 1
        s_mul_i32 s76, s76, 4160
        s_add_u32 s76, s76, s38
        v_lshl_add_u32 v5, v1, 4, s76
        s_waitcnt vmcnt(0)
        s_barrier
        s_cmp_eq_u32 s60, 0
        s_cbranch_scc0 L{t}_R1'''.format(t=tag))
        for k in range(4): a('ds_write_b128 v4, v[%d:%d] offset:%d' % (YA + 16 + 4 * k, YA + 19 + 4 * k, 1024 * k))
        a('s_branch L%s_R2\nL%s_R1:' % (tag, tag))
        for k in range(4): a('ds_write_b128 v4, v[%d:%d] offset:%d' % (YA + 4 * k, YA + 3 + 4 * k, 1024 * k))
        a('s_waitcnt lgkmcnt(0)')
        for k in range(16): a('v_mov_b32 v%d, v%d' % (YA + k, YA + 16 + k))
        a('L%s_R2:\ns_waitcnt lgkmcnt(0)\ns_barrier' % tag)
        for k in range(4): a('ds_read_b128 v[%d:%d], v5 offset:%d' % (48 + 4 * k, 51 + 4 * k, 1024 * k))
        a('''s_lshl_b32 s76, s61, 12
        s_lshl_b32 s77, s60, 11
        s_add_u32 s76, s76, s77
        s_add_u32 s76, s76, %d
        v_lshlrev_b32 v4, 4, v1''' % AA)
        for p in range(2):
            a('s_waitcnt lgkmcnt(%d)' % (2 - 2 * p))
            for k in range(8 * p, 8 * p + 8): a('v_add_f32 v%d, v%d, v%d' % (YA + k, YA + k, 48 + k))
            o = 64 + 4 * p
            for d in range(4): a('v_cvt_pk_bf16_f32 v%d, v%d, v%d' % (o + d, YA + 8 * p + 2 * d, YA + 8 * p + 2 * d + 1))
            a('v_permlane16_swap_b32 v%d, v%d\nv_permlane16_swap_b32 v%d, v%d' % (o, o + 2, o + 1, o + 3))
            a('buffer_store_dwordx4 v[%d:%d], v4, %s, s76 offen offset:%d sc1' % (o, o + 3, WS_, 1024 * p))
        self.stamp(9)
        if not N: a('s_barrier')
        a('''s_mul_i32 s76, s60, 2560
        s_lshl_b32 s77, s61, 2
        s_add_u32 s76, s76, s77
        s_add_u32 s76, s76, {fa}
        v_mov_b32 v4, 0
        v_mov_b32 v5, 1
        s_waitcnt vmcnt(0)
        s_mov_b64 exec, 1
        buffer_store_dword v5, v4, {ws}, s76 offen sc1
        s_mov_b64 exec, -1'''.format(fa=FA, ws=WS_))
        self.stamp(10)
        if N:
            a('s_branch L_FIN'); return
        a('s_cmp_lt_u32 s36, 20\ns_cbranch_scc0 L_FIN')
        a('''s_lshl_b32 s60, s63, 6
        s_lshl_b32 s76, s3, 4
        s_add_u32 s60, s60, s76
        s_lshr_b32 s76, s35, 2
        s_mul_i32 s76, s76, 2560
        s_lshl_b32 s77, s60, 2
        s_add_u32 s76, s76, s77
        s_add_u32 s61, s76, {fa}
        v_and_b32 v4, 15, v1
        v_lshlrev_b32 v6, 2, v4
        v_lshrrev_b32 v7, 4, v1
        v_lshlrev_b32 v8, 1, v7
        v_xor_b32 v8, v8, v4
        v_lshrrev_b32 v9, 1, v8
        v_lshlrev_b32 v9, 4, v9
        v_and_b32 v8, 1, v8
        v_lshl_add_u32 v9, v8, 9, v9
        v_lshl_add_u32 v9, v7, 12, v9
        v_xor_b32 v10, 64, v9
        s_lshl_b32 s60, s60, 12
        s_lshr_b32 s76, s35, 1
        s_lshl_b32 s76, s76, 10
        s_add_u32 s60, s60, s76
        s_and_b32 s76, s35, 1
        s_lshl_b32 s76, s76, 8
        s_add_u32 s60, s60, s76
        s_and_b32 s76, s62, 1
        s_lshl_b32 s76, s76, 7
        s_add_u32 s60, s60, s76
        s_add_u32 s60, s60, {aa}
        s_lshl_b32 s76, s3, 12
        s_add_u32 m0, s76, {at}'''.format(fa=FA, aa=AA, at=L_AT))
        self.poll('buffer_load_dword v5, v6, %s, s61 offen sc1' % WS_, 'v_cmp_eq_u32 vcc, 0, v5')
        self.stamp(11)
        for i in range(4):
            a('s_add_u32 s76, s60, %d\nbuffer_load_dwordx4 v%d, %s, s76 offen offset:%d sc1 lds' % (i * (16384 - 1024), 9 + (i & 1), WS_, 1024 * i))
        a('s_waitcnt vmcnt(0)')
        self.stamp(12)
        a('s_barrier\ns_branch L_FIN')
    def g2_offsets_s(self):
        self.a('''s_cmp_ge_u32 s36, 10
        s_cselect_b32 s62, 1, 0
        s_mul_i32 s63, s62, 10
        s_sub_u32 s63, s36, s63
        s_lshl_b32 s66, s35, 1
        s_add_u32 s62, s62, s66''')
        self.g2_offsets()
    def swave(self):
        a = self.a
        a('''s_and_b32 s60, s34, 1
        s_bfe_u32 s76, s34, 0x10001
        s_mul_i32 s61, s35, 80
        s_lshl_b32 s77, s36, 1
        s_add_u32 s61, s61, s77
        s_add_u32 s61, s61, s76
        s_lshl_b32 s37, s76, 14
        s_add_u32 s37, s37, %d
        s_mul_i32 s38, s76, 8320
        s_add_u32 s38, s38, %d
        s_mul_i32 s39, s76, 4608
        s_add_u32 s39, s39, %d
        s_mov_b32 s78, 0''' % (L_SCR, L_TAB, L_U))
        self.srds()
        L = self.lab('NI')
        a('''s_cmp_eq_u32 s34, 7
        s_cbranch_scc0 {L}
        s_and_b32 s76, s2, 0xffffffc7
        s_cbranch_scc1 {L}
        s_mov_b32 s78, 1
        s_lshl_b32 s76, s36, 12
        s_add_u32 s76, s76, {fl}
        v_lshlrev_b32 v2, 4, v1
        v_mov_b32 v4, 0
        v_mov_b32 v5, 0
        v_mov_b32 v6, 0
        v_mov_b32 v7, 0
        buffer_store_dwordx4 v[4:7], v2, {ws}, s76 offen sc1
        buffer_store_dwordx4 v[4:7], v2, {ws}, s76 offen offset:1024 sc1
        buffer_store_dwordx4 v[4:7], v2, {ws}, s76 offen offset:2048 sc1
        buffer_store_dwordx4 v[4:7], v2, {ws}, s76 offen offset:3072 sc1
        {L}:'''.format(L=L, fl=FL, ws=WS_))
        self.s_param_loads()
        self.scode(False)
    def nwave(self):
        a = self.a
        a('''s_and_b32 s60, s34, 1
        s_lshr_b32 s76, s34, 1
        s_mul_i32 s61, s35, 80
        s_lshl_b32 s77, s36, 2
        s_add_u32 s61, s61, s77
        s_add_u32 s61, s61, s76
        s_sub_u32 s61, s61, 48
        s_lshl_b32 s37, s76, 14
        s_add_u32 s37, s37, %d
        s_mul_i32 s38, s76, 8320
        s_add_u32 s38, s38, %d
        s_mul_i32 s39, s76, 4608
        s_lshl_b32 s62, s35, 3
        s_add_u32 s62, s62, s36
        s_sub_u32 s62, s62, 24
        s_lshl_b32 s63, s62, 5
        s_lshl_b32 s76, s34, 2
        s_add_u32 s63, s63, s76
        s_mul_i32 s64, s63, 1280
        v_lshrrev_b32 v4, 4, v1
        v_and_b32 v5, 15, v1
        v_mul_u32_u24 v6, 1280, v4
        v_lshl_add_u32 v6, v5, 4, v6''' % (N_SCR, N_TAB))
        self.srds()
        XI = 32; XF = 64
        for i in range(5): a('buffer_load_dwordx4 v[%d:%d], v6, %s, s64 offen offset:%d' % (XI + 4 * i, XI + 4 * i + 3, X_, 256 * i))
        self.s_param_loads()
        a('''s_and_b32 s76, s34, 1
        s_lshl_b32 s76, s76, 4
        s_lshr_b32 s77, s34, 1
        s_lshl_b32 s77, s77, 2
        s_add_u32 s76, s76, s77
        v_add_u32 v6, s76, v4
        v_mul_u32_u24 v6, {ts}, v6
        v_lshl_add_u32 v6, v5, 4, v6
        v_and_b32 v7, 3, v1
        v_bfe_u32 v8, v1, 2, 2
        v_lshl_add_u32 v7, v7, 2, v8
        v_mul_u32_u24 v7, {ts}, v7
        v_lshl_add_u32 v7, v4, 3, v7
        s_mul_i32 s76, s34, 160
        v_add_u32 v7, s76, v7
        v_lshlrev_b32 v8, 14, v4
        v_lshl_add_u32 v8, v5, 4, v8
        s_mul_i32 s65, s34, {cq}
        s_lshl_b32 s76, s62, 8
        s_add_u32 s65, s65, s76
        v_mov_b32 v10, 0
        v_mov_b32 v11, 0
        v_mov_b32 v12, 0
        v_mov_b32 v13, 0'''.format(ts=TSTR, cq=20 * 16384))
        for i in range(5):
            a('s_waitcnt vmcnt(%d)' % (14 + 4 - i))
            for d in range(4):
                s = XI + 4 * i + d; f = XF + 8 * i + 2 * d
                a('''v_lshlrev_b32 v{f}, 16, v{s}
                v_and_b32 v{f1}, 0xffff0000, v{s}
                v_pk_add_f32 v[10:11], v[10:11], v[{f}:{f1}]
                v_pk_fma_f32 v[12:13], v[{f}:{f1}], v[{f}:{f1}], v[12:13]'''.format(f=f, f1=f + 1, s=s))
        self.stamp(1)
        a('v_add_f32 v10, v10, v11\nv_add_f32 v12, v12, v13')
        for sh in (8, 4, 2, 1):
            a('v_add_f32 v10, v10, v10 row_ror:%d\nv_add_f32 v12, v12, v12 row_ror:%d' % (sh, sh))
        rb = lambda d, s: 'v_cvt_pk_bf16_f32 v%d, v%d, v%d\nv_lshlrev_b32 v%d, 16, v%d' % (d, s, s, d, d)
        EPS = f32(1e-5)
        a('v_mul_f32 v10, {c}, v10\nv_mul_f32 v12, {c}, v12\nv_fma_f32 v12, -v10, v10, v12\nv_max_f32 v12, 0, v12'.format(c=f32(1.0 / 640)))
        a(rb(11, 10))
        a(rb(13, 12)); a('v_add_f32 v13, %s, v13' % EPS); a(rb(13, 13)); a('v_sqrt_f32 v13, v13'); a(rb(13, 13))
        a('v_rcp_f32 v14, v13\nv_mul_f32 v15, v11, v14\nv_sub_f32 v15, 0, v15')
        for i in range(5):
            for d in range(4):
                s = XI + 4 * i + d; f = XF + 8 * i + 2 * d
                a('v_pk_fma_f32 v[{f}:{f1}], v[{f}:{f1}], v[14:15], v[14:15] op_sel:[0,0,1] op_sel_hi:[1,0,1]\nv_cvt_pk_bf16_f32 v{s}, v{f}, v{f1}'.format(f=f, f1=f + 1, s=s))
            a('ds_write_b128 v6, v[%d:%d] offset:%d' % (XI + 4 * i, XI + 4 * i + 3, 256 * i))
        a('v_sub_f32 v10, v10, v11\nv_mul_f32 v10, v10, v14'); a(rb(10, 10))
        a('v_mul_f32 v12, v12, v14\nv_mul_f32 v12, v12, v14'); a(rb(12, 12)); a('v_add_f32 v12, %s, v12' % EPS); a(rb(12, 12)); a('v_sqrt_f32 v12, v12'); a(rb(12, 12))
        a('v_fma_f32 v10, -v10, v13, -v11\nv_mul_f32 v11, v13, v12')
        a('s_waitcnt lgkmcnt(0)\ns_barrier')
        for i in range(5):
            for e in range(2):
                a('ds_read_b64_tr_b16 v[%d:%d], v7 offset:%d' % (XI + 4 * i + 2 * e, XI + 4 * i + 2 * e + 1, 32 * i + 16 * TSTR * e))
        for i in range(5):
            a('s_waitcnt lgkmcnt(%d)\ns_add_u32 s76, s65, %d\nbuffer_store_dwordx4 v[%d:%d], v8, %s, s76 offen sc1' % (8 - 2 * i, XT + i * 4 * 16384, XI + 4 * i, XI + 4 * i + 3, WS_))
        self.poll_go(12, 13)
        a('''s_lshl_b32 s76, s63, 3
        s_add_u32 s76, s76, {st}
        v_lshlrev_b32 v12, 3, v4
        v_cmp_eq_u32 vcc, 0, v5
        s_and_saveexec_b64 s[68:69], vcc
        buffer_store_dwordx2 v[10:11], v12, {ws}, s76 offen sc1
        s_mov_b64 exec, s[68:69]'''.format(st=ST, ws=WS_))
        self.scode(True)

    def build(self):
        a = self.a
        self.prologue()
        a('s_cmp_ge_u32 s36, 24\ns_cbranch_scc1 L_N\ns_cmp_ge_u32 s34, 4\ns_cbranch_scc1 L_S')
        self.gwave()
        a('L_S:'); self.swave()
        a('L_N:'); self.nwave()
        a('L_FIN:')
        self.stamp(15)
        self.dump_stamps()
        a('L_END:')
        body = a.finish()
        ref = open('parallel_sum__ssm_conv_s4d__mixer_channel_mlp__prompt.s.ref').read()
        head = ''.join(l + '\n' for l in ref.split('\n') if l.startswith(';') and '@launch' not in l)
        return head + '''; @launch grid=(256,1,1) block=(512,1,1) lds=163840
.amdgcn_target "amdgcn-amd-amdhsa--gfx950"
.text
.globl {n}
.p2align 8
.type {n},@function
{n}:
{body}    s_endpgm
.section .rodata,"a"
.p2align 6
.amdhsa_kernel {n}
  .amdhsa_next_free_vgpr 256
  .amdhsa_next_free_sgpr 102
  .amdhsa_accum_offset 256
  .amdhsa_group_segment_fixed_size 0
  .amdhsa_kernarg_size 120
  .amdhsa_user_sgpr_count 2
  .amdhsa_user_sgpr_kernarg_segment_ptr 1
  .amdhsa_system_sgpr_workgroup_id_x 1
  .amdhsa_float_denorm_mode_32 3
.end_amdhsa_kernel
'''.format(n=NAME, body=body)
if __name__ == '__main__':
    out = sys.argv[1]; stamps = len(sys.argv) > 2 and sys.argv[2] == 'stamps'
    g = G(stamps); s = g.build(); open(out, 'w').write(s)
    print('wrote', out, len(s), 'bytes; nops inserted', g.a.nops)
```

```python
import sys, math, struct
sys.path.insert(0, 'work')
from asmdsl import Asm, interleave
NAME = 'parallel_sum__ssm_conv_s4d__mixer_channel_mlp__prompt_kernel'
def f32(x): return '0x%08x' % struct.unpack('<I', struct.pack('<f', x))[0]
LOG2E = math.log2(math.e)
XT, HH, AA, FL, DBG = 0x000000, 0x400000, 0xA00000, 0xD00000, 0xE00000
ST, FH, FA, FX = FL, FL + 0x4000, FL + 0x6000, FL + 0x7400
WS_BYTES = 0x1000000
XR = 131072
L_TAB, L_U, L_CS, L_ST = XR, XR + 2 * 8320, XR + 2 * 8320 + 2 * 4608, XR + 2 * 8320 + 2 * 4608 + 1024
L_SCR = 98304
L_AT = XR
L_RED = 65536
N_T, N_SCR, N_TAB, N_U = 0, 49152, 114688, 0
TSTR = 1296
sWV, sXCD, sJ = 34, 35, 36
X_, W1_, W2_, WS_, OUT_ = 's[40:43]', 's[44:47]', 's[48:51]', 's[52:55]', 's[56:59]'
POLLMAX = 0x8000
SEL = {'G': [0, 1, 4, 5, 7, 10, 11, 12, 13], 'S': [0, 2, 3, 5, 7, 8, 10, 11, 12], 'N': [0, 1, 2, 3, 6, 7, 8, 9, 10]}
class G:
    def __init__(self, stamps=False, opts=()):
        self.a = Asm(); self.stamps = stamps; self.nlab = 0; self.opts = set(opts); self.sel = None
    def lab(self, p='L'):
        self.nlab += 1; return '%s%d' % (p, self.nlab)
    def stamp(self, k):
        if self.stamps and k in self.sel:
            i = self.sel.index(k); self.a('s_memrealtime s[%d:%d]' % (80 + 2 * i, 81 + 2 * i))
    def dump_stamps(self):
        if not self.stamps: return
        a = self.a
        a('s_lshl_b32 s60, s2, 3\ns_add_u32 s60, s60, s%d\ns_lshl_b32 s60, s60, 6\ns_add_u32 s60, s60, %d' % (sWV, DBG))
        a('s_mov_b64 exec, -1\nv_mov_b32 v0, 0')
        a('s_memtime s[76:77]\ns_memrealtime s[98:99]\ns_waitcnt lgkmcnt(0)\ns_sub_u32 s100, s76, s100')
        for k in range(11):
            a('v_mov_b32 v1, s%d\nbuffer_store_dword v1, v0, %s, s60 offen offset:%d' % (80 + 2 * k, WS_, 4 * k))
    def poll(self, load, check):
        L = self.lab('P'); E = self.lab('PE')
        self.a('s_mov_b32 s79, 0\n%s:\n%s\ns_add_u32 s79, s79, 1\ns_waitcnt vmcnt(0)\n%s\ns_cmp_gt_u32 s79, %d\ns_cbranch_scc1 %s\ns_cbranch_vccnz %s\n%s:' % (L, load, check, POLLMAX, E, L, E))
    def poll_go(self, vt, va):
        self.a('v_and_b32 v%d, 7, v1\nv_lshlrev_b32 v%d, 2, v%d' % (va, va, va))
        self.poll('global_load_dword v%d, v%d, s[30:31] offset:128 sc1' % (vt, va), 'v_cmp_eq_u32 vcc, 0, v%d' % vt)

    def prologue(self):
        a = self.a
        a('''s_cmp_ge_u32 s2, 256
        s_cbranch_scc1 L_END
        s_load_dwordx16 s[4:19], s[0:1], 0
        s_load_dwordx8 s[20:27], s[0:1], 64
        s_load_dwordx4 s[28:31], s[0:1], 96
        s_load_dwordx2 s[32:33], s[0:1], 112''')
        if self.stamps:
            a('s_memtime s[100:101]\ns_memrealtime s[80:81]')
            for k in range(1, 10): a('s_mov_b32 s%d, 0' % (80 + 2 * k))
        if 'span' in self.opts or any(o.startswith('pad=') for o in self.opts): a('s_memrealtime s[96:97]\ns_memtime s[100:101]')
        a('''v_lshrrev_b32 v2, 6, v0
        v_and_b32 v1, 63, v0
        s_and_b32 s35, s2, 7
        v_readfirstlane_b32 s34, v2
        s_lshr_b32 s36, s2, 3
        s_mov_b32 s42, %d
        s_mov_b32 s43, 0x20000
        s_mov_b32 s46, %d
        s_mov_b32 s47, 0x20000
        s_mov_b32 s50, %d
        s_mov_b32 s51, 0x20000
        s_mov_b32 s54, %d
        s_mov_b32 s55, 0x20000
        s_mov_b32 s58, %d
        s_mov_b32 s59, 0x20000''' % (2048 * 1280, 640 * 3072, 1536 * 1280, WS_BYTES, 2048 * 1280))
    def srds(self):
        self.a('''s_waitcnt lgkmcnt(0)
        s_mov_b32 s40, s4
        s_mov_b32 s41, s5
        s_mov_b32 s44, s20
        s_mov_b32 s45, s21
        s_mov_b32 s48, s24
        s_mov_b32 s49, s25
        s_mov_b32 s52, s32
        s_mov_b32 s53, s33
        s_mov_b32 s56, s28
        s_mov_b32 s57, s29''')
        self.stamp('srd')
    def g12_ids(self):
        self.a('''s_mul_i32 s60, s36, 43
        s_lshr_b32 s60, s60, 8
        s_mul_i32 s61, s60, 6
        s_sub_u32 s61, s36, s61
        s_lshr_b32 s64, s35, 1
        s_and_b32 s65, s35, 1
        s_lshl_b32 s37, s64, 2
        s_add_u32 s37, s37, s60
        s_mul_i32 s38, s65, 6
        s_add_u32 s38, s38, s61
        s_mul_i32 s39, s60, 5
        s_lshr_b32 s39, s39, 1
        s_mul_i32 s66, s61, 427
        s_lshr_b32 s66, s66, 8
        s_add_u32 s39, s39, s66
        s_add_u32 s39, s39, s65
        s_mul_i32 s66, s64, 3
        s_lshr_b32 s66, s66, 2
        s_add_u32 s39, s39, s66
        s_cmp_ge_u32 s39, 10
        s_cselect_b32 s66, 10, 0
        s_sub_u32 s39, s39, s66
        s_cmp_ge_u32 s36, 10
        s_cselect_b32 s62, 1, 0
        s_mul_i32 s63, s62, 10
        s_sub_u32 s63, s36, s63
        s_lshl_b32 s66, s35, 1
        s_add_u32 s62, s62, s66''')
    def g2_offsets(self):
        a = self.a
        a('''s_and_b32 s76, s62, 1
        s_mul_i32 s76, s76, 6
        s_add_u32 s76, s76, s63
        s_cmp_ge_u32 s76, 12
        s_cselect_b32 s77, 12, 0
        s_sub_u32 s76, s76, s77
        s_lshl_b32 s64, s76, 1''')
        for i in range(1, 12):
            a('s_add_u32 s%d, s%d, 2\ns_cmp_eq_u32 s%d, 24\ns_cselect_b32 s%d, 0, s%d' % (64 + i, 63 + i, 64 + i, 64 + i, 64 + i))
    def w2_voff(self, v0, wv, t):
        self.a('''s_lshr_b32 s76, s{wv}, 1
        s_mul_i32 s76, s76, {khs}
        s_and_b32 s77, s{wv}, 1
        s_mul_i32 s77, s77, {r16}
        s_add_u32 s76, s76, s77
        s_lshl_b32 s77, s63, 7
        s_add_u32 s76, s76, s77
        v_lshrrev_b32 v{t}, 3, v1
        v_mul_u32_u24 v{v0}, 1280, v{t}
        v_lshrrev_b32 v{t}, 4, v1
        v_lshlrev_b32 v{t}, 1, v{t}
        v_xor_b32 v{t}, v{t}, v1
        v_and_b32 v{t}, 7, v{t}
        v_lshl_add_u32 v{v0}, v{t}, 4, v{v0}
        v_add_u32 v{v0}, s76, v{v0}
        v_add_u32 v{v1}, {d}, v{v0}'''.format(wv=wv, khs=24 * 32 * 1280, r16=16 * 1280, t=t, v0=v0, v1=v0 + 1, d=8 * 1280 - 1024))
    def w2_dma(self, step, slot, v0, sbase):
        part, i = step // 12, step % 12
        return ['s_add_u32 s76, s%d, %d\ns_mul_i32 s76, s76, 40960\ns_add_u32 m0, s%d, %d\nbuffer_load_dwordx4 v%d, %s, s76 offen lds' % (64 + i, part, sbase, slot * 8192, v0, W2_),
                'buffer_load_dwordx4 v%d, %s, s76 offen offset:1024 lds' % (v0 + 1, W2_)]

    def gwave(self):
        a = self.a
        NT = 4
        VX, VW, RX, RW = 16, 20, 24, 28
        FR = 32
        CS, BS = 64, 72
        AUG = 76
        VB1 = 92
        ACC = [[144, 160], [176, 192]]
        self.g12_ids()
        a('''s_and_b32 s60, s34, 1
        s_lshr_b32 s61, s34, 1''')
        a('''s_lshl_b32 s76, s37, 7
        s_lshl_b32 s77, s34, 5
        s_add_u32 s76, s76, s77
        s_mul_i32 s76, s76, 1280
        v_lshrrev_b32 v2, 3, v1
        v_mul_u32_u24 v3, 1280, v2
        v_lshrrev_b32 v4, 4, v1
        v_xor_b32 v5, v4, v1
        v_and_b32 v5, 7, v5
        v_lshl_add_u32 v6, v5, 4, v3
        v_xor_b32 v5, 4, v5
        v_lshl_add_u32 v7, v5, 4, v3
        v_add_u32 v%d, s76, v6
        v_add_u32 v7, s76, v7
        v_add_u32 v%d, %d, v7
        v_add_u32 v%d, %d, v%d
        v_add_u32 v%d, %d, v7''' % (VX, VX + 1, 8 * 1280 - 1024, VX + 2, 16 * 1280 - 2048, VX, VX + 3, 24 * 1280 - 3072))
        a('''s_mul_i32 s76, s34, %d
        s_lshl_b32 s77, s38, 8
        s_add_u32 s76, s76, s77
        v_mul_u32_u24 v3, 3072, v4
        v_lshlrev_b32 v5, 2, v4
        v_xor_b32 v5, v5, v1
        v_and_b32 v5, 15, v5
        v_lshl_add_u32 v3, v5, 4, v3
        v_add_u32 v%d, s76, v3''' % (16 * 3072, VW))
        for i in range(1, 4): a('v_add_u32 v%d, %d, v%d' % (VW + i, i * (4 * 3072 - 1024), VW))
        a('s_lshl_b32 s67, s34, 12')
        self.srds()
        def dma(stage):
            idx = stage % 3
            l = []
            for i in range(4):
                pre = 's_lshl_b32 s76, s39, 7\ns_add_u32 m0, s67, %d\n' % (idx * 16384) if i == 0 else ''
                l.append(pre + 'buffer_load_dwordx4 v%d, %s, s76 offen offset:%d lds' % (VX + i, X_, 1024 * i))
            for i in range(4):
                pre = 's_mul_i32 s77, s39, %d\ns_add_u32 m0, s67, %d\n' % (64 * 3072, 49152 + idx * 16384) if i == 0 else ''
                post = '\ns_add_u32 s39, s39, 1\ns_cmp_eq_u32 s39, 10\ns_cselect_b32 s39, 0, s39' if i == 3 else ''
                l.append(pre + 'buffer_load_dwordx4 v%d, %s, s77 offen offset:%d lds' % (VW + i, W1_, 1024 * i) + post)
            return l
        for x in dma(0): a(x)
        a('''s_lshl_b32 s76, s38, 8
        s_lshl_b32 s77, s60, 7
        s_add_u32 s76, s76, s77
        v_and_b32 v2, 31, v1
        v_lshl_add_u32 v3, v2, 1, s76
        v_mov_b32 v%d, 0
        v_mov_b32 v%d, 0
        global_load_short_d16_hi v%d, v3, s[22:23]
        global_load_short_d16_hi v%d, v3, s[22:23] offset:64''' % (VB1, VB1 + 1, VB1, VB1 + 1))
        for x in dma(1): a(x)
        a('''v_lshrrev_b32 v3, 5, v1
        v_bfe_u32 v4, v1, 1, 3
        v_xor_b32 v4, v4, v3
        s_lshl_b32 s76, s61, 1
        v_xor_b32 v4, s76, v4
        v_lshlrev_b32 v4, 4, v4
        v_lshl_add_u32 v4, v2, 7, v4
        s_lshl_b32 s76, s61, 13
        v_add_u32 v%d, s76, v4''' % RX)
        for s in range(1, 4): a('v_xor_b32 v%d, %d, v%d' % (RX + s, 32 * s, RX))
        a('''v_bfe_u32 v4, v1, 2, 2
        v_lshl_add_u32 v5, v3, 3, v4
        v_lshlrev_b32 v5, 8, v5
        s_lshl_b32 s76, s60, 1
        v_xor_b32 v4, s76, v4
        v_lshl_add_u32 v5, v4, 6, v5
        v_bfe_u32 v4, v1, 4, 1
        v_lshl_add_u32 v5, v4, 5, v5
        v_and_b32 v4, 3, v1
        v_lshl_add_u32 v5, v4, 3, v5
        s_lshl_b32 s76, s61, 12
        s_add_u32 s76, s76, 49152
        v_add_u32 v%d, s76, v5
        v_xor_b32 v%d, 64, v%d
        v_xor_b32 v%d, 0x1000, v%d
        v_xor_b32 v%d, 0x1040, v%d''' % (RW, RW + 1, RW, RW + 2, RW, RW + 3, RW))
        a('''v_lshrrev_b32 v4, 4, v1
        v_xor_b32 v4, v4, v1
        v_and_b32 v4, 1, v4
        v_cmp_eq_u32 vcc, 0, v4
        v_mov_b32 v5, 0x3f803f80
        v_cndmask_b32 v%d, 0, v5, vcc
        v_cndmask_b32 v%d, 0, v5, vcc
        v_cndmask_b32 v%d, 0, v5, vcc
        v_cndmask_b32 v%d, 0, v5, vcc''' % (BS, BS + 1, BS + 2, BS + 3))
        def reads(stage, s):
            idx = stage % 3; f = FR + 16 * (s & 1)
            l = []
            for mt in range(2):
                for e in range(2):
                    l.append('ds_read_b64_tr_b16 v[%d:%d], v%d offset:%d' % (f + 4 * mt + 2 * e, f + 4 * mt + 2 * e + 1, RW + 2 * (s & 1) + mt, idx * 16384 + (s & 2) * 4096 + 1024 * e))
            for nt in range(2):
                l.append('ds_read_b128 v[%d:%d], v%d offset:%d' % (f + 8 + 4 * nt, f + 11 + 4 * nt, RX + s, idx * 16384 + 4096 * nt))
            return l
        def mfmas(s, first):
            f = FR + 16 * (s & 1); l = []
            if s % 2 == 0:
                for mt in range(2):
                    c = 'v[%d:%d]' % (CS + 4 * mt, CS + 4 * mt + 3)
                    l.append('v_mfma_f32_16x16x32_bf16 %s, v[%d:%d], v[%d:%d], %s' % (c, f + 4 * mt, f + 4 * mt + 3, BS, BS + 3, '0' if first else c))
            for mt in range(2):
                for nt in range(2):
                    c = 'v[%d:%d]' % (ACC[mt][nt], ACC[mt][nt] + 15)
                    l.append('v_mfma_f32_32x32x16_bf16 %s, v[%d:%d], v[%d:%d], %s' % (c, f + 4 * mt, f + 4 * mt + 3, f + 8 + 4 * nt, f + 11 + 4 * nt, '0' if first else c))
            return l
        for st in range(10):
            a('s_waitcnt vmcnt(%d) lgkmcnt(0)\ns_barrier' % (8 if st < 9 else 0))
            if st in (0, 1, 5, 9): self.stamp({0: 1, 1: 2, 5: 3, 9: 4}[st])
            d = dma(st + 2) if st + 2 < 10 else []
            for s in range(4):
                rd = reads(st, s)
                dd = d[2 * s:2 * s + 2]
                if s == 0 and st == 0:
                    for x in rd + dd: a(x)
                    continue
                mm = mfmas((s - 1) & 3, st == 0 and s == 1)
                if s > 0: a('s_waitcnt lgkmcnt(0)')
                n32 = mm[-4:]; n16 = mm[:-4]
                for x in n16: a(x)
                fill = [[rd[0], rd[1]], [rd[2], rd[3]], [rd[4]] + dd[:1], [rd[5]] + dd[1:]]
                for m, f in zip(n32, fill):
                    a(m)
                    for x in f: a(x)
        a('''v_and_b32 v4, 15, v1
        v_lshrrev_b32 v5, 4, v1
        v_lshlrev_b32 v5, 4, v5
        v_lshl_add_u32 v5, v4, 6, v5
        s_lshl_b32 s76, s61, 9
        s_lshl_b32 s77, s60, 8
        s_add_u32 s76, s76, s77
        s_add_u32 s76, s76, %d
        v_add_u32 v5, s76, v5
        v_cmp_gt_u32 vcc, 2, v4
        s_and_saveexec_b64 s[68:69], vcc
        ds_write_b128 v5, v[%d:%d]
        ds_write_b128 v5, v[%d:%d] offset:128
        s_mov_b64 exec, s[68:69]
        s_waitcnt lgkmcnt(0)
        s_barrier''' % (L_CS, CS, CS + 3, CS + 4, CS + 7))
        a('''s_add_u32 s77, s77, %d
        v_lshl_add_u32 v5, v2, 2, s77
        s_lshl_b32 s76, s61, 9
        s_add_u32 s76, s76, %d
        v_lshl_add_u32 v6, v2, 3, s76
        ds_read2_b32 v[8:9], v5 offset0:0 offset1:128
        ds_read2_b32 v[10:11], v5 offset0:32 offset1:160
        ds_read_b64 v[12:13], v6
        ds_read_b64 v[14:15], v6 offset:256''' % (L_CS, L_ST))
        mm = mfmas(3, False)
        KC = 240
        aug = []
        aug.append('v_cmp_gt_u32 vcc, 32, v1\ns_waitcnt lgkmcnt(0)')
        for mt in range(2):
            A = AUG + 4 * mt; c = 8 + 2 * mt
            aug += ['v_add_f32 v%d, v%d, v%d' % (c, c, c + 1), 'v_cndmask_b32 v%d, 0, v%d, vcc' % (VB1 + mt, VB1 + mt), 'v_cndmask_b32 v%d, 0, v%d, vcc' % (c, c),
                    'v_cvt_pk_bf16_f32 v%d, v%d, v%d' % (A + 1, c, VB1 + mt), 'v_lshlrev_b32 v%d, 16, v%d' % (c + 1, A + 1), 'v_sub_f32 v%d, v%d, v%d' % (c + 1, c, c + 1),
                    'v_cvt_pk_bf16_f32 v%d, v%d, v%d' % (A, c, c + 1), 'v_lshrrev_b32 v%d, 16, v%d' % (A + 2, VB1 + mt), 'v_mov_b32 v%d, 0' % (A + 3)]
        for nt in range(2):
            B = AUG + 8 + 4 * nt; g = 12 + 2 * nt; k = KC + 4 * nt
            aug += ['v_cvt_pk_bf16_f32 v%d, v%d, v%d' % (B, g, g), 'v_and_b32 v4, 0xffff0000, v%d' % B, 'v_sub_f32 v4, v%d, v4' % g,
                    'v_cvt_pk_bf16_f32 v%d, v4, v%d' % (B + 1, g + 1), 'v_and_b32 v4, 0xffff0000, v%d' % (B + 1), 'v_sub_f32 v4, v%d, v4' % (g + 1),
                    'v_cvt_pk_bf16_f32 v%d, v4, 0' % (B + 2), 'v_mov_b32 v%d, 0' % (B + 3)]
        a(mm[0]); a(mm[1])
        for x in interleave(aug, mm[2:], start=6, every=6): a(x)
        for mt in range(2):
            for nt in range(2):
                c = 'v[%d:%d]' % (ACC[mt][nt], ACC[mt][nt] + 15)
                a('v_mfma_f32_32x32x16_bf16 %s, v[%d:%d], v[%d:%d], %s' % (c, AUG + 4 * mt, AUG + 4 * mt + 3, AUG + 8 + 4 * nt, AUG + 11 + 4 * nt, c))
        C1 = -2.0 * LOG2E * math.sqrt(2.0 / math.pi)
        for nt in range(2):
            g = 12 + 2 * nt; k = KC + 4 * nt
            a('''v_rcp_f32 v4, v{d}
            v_mov_b32 v{k2}, v{d}
            v_mul_f32 v{k1}, {c1}, v4
            v_mul_f32 v4, v4, v4
            v_mul_f32 v4, {c2}, v4
            v_mul_f32 v{k0}, v4, v{k1}'''.format(d=g + 1, k0=k, k1=k + 1, k2=k + 2, c1=f32(C1), c2=f32(0.044715)))
        a('''v_bfe_u32 v4, v1, 4, 1
        v_mul_u32_u24 v4, 49152, v4
        v_lshrrev_b32 v5, 5, v1
        v_lshl_add_u32 v4, v5, 8, v4
        v_and_b32 v5, 15, v1
        v_lshl_add_u32 v2, v5, 4, v4
        s_lshl_b32 s76, s37, 3
        s_lshl_b32 s77, s61, 2
        s_add_u32 s76, s76, s77
        s_mul_i32 s68, s76, 49152
        s_lshl_b32 s76, s38, 2
        s_lshl_b32 s77, s60, 1
        s_add_u32 s76, s76, s77
        s_lshl_b32 s76, s76, 10
        s_add_u32 s68, s68, s76
        s_add_u32 s68, s68, %d
        s_add_u32 s69, s68, %d''' % (HH, 2 * 49152))
        a('''s_lshl_b32 s76, s37, 1
        s_add_u32 s76, s76, s61
        s_lshl_b32 s3, s76, 7
        s_lshl_b32 s76, s38, 3
        s_lshl_b32 s77, s60, 2
        s_add_u32 s3, s3, s76
        s_add_u32 s3, s3, s77
        s_add_u32 s3, s3, %d''' % FH)
        self.stamp(5)
        T, P = 208, 224
        def gelu(mt, nt):
            q = ACC[mt][nt]; k = KC + 4 * nt; p = P + 8 * nt; l = []
            pr = lambda b, i: 'v[%d:%d]' % (b + 2 * i, b + 2 * i + 1)
            l += ['v_pk_mul_f32 %s, %s, %s' % (pr(T, i), pr(q, i), pr(q, i)) for i in range(8)]
            l += ['v_pk_fma_f32 %s, %s, v[%d:%d], v[%d:%d] op_sel:[0,0,1] op_sel_hi:[1,0,1]' % (pr(T, i), pr(T, i), k, k + 1, k, k + 1) for i in range(8)]
            l += ['v_pk_mul_f32 %s, %s, %s' % (pr(T, i), pr(T, i), pr(q, i)) for i in range(8)]
            l += ['v_exp_f32 v%d, v%d' % (T + i, T + i) for i in range(16)]
            l += ['v_pk_fma_f32 %s, %s, v[%d:%d], v[%d:%d] op_sel_hi:[1,0,0]' % (pr(T, i), pr(T, i), k + 2, k + 3, k + 2, k + 3) for i in range(8)]
            l += ['v_rcp_f32 v%d, v%d' % (T + i, T + i) for i in range(16)]
            l += ['v_pk_mul_f32 %s, %s, %s' % (pr(T, i), pr(T, i), pr(q, i)) for i in range(8)]
            for s in range(2):
                l += ['v_cvt_pk_bf16_f32 v%d, v%d, v%d' % (p + i, T + 2 * i, T + 2 * i + 1) for i in range(4 * s, 4 * s + 4)]
                l.append('buffer_store_dwordx4 v[%d:%d], v2, %s, s%d offen offset:%d sc1' % (p + 4 * s, p + 4 * s + 3, WS_, 68 + nt, 1024 * mt + 512 * s))
            return l
        for x in gelu(0, 0) + gelu(0, 1): a(x)
        TR = 4
        a('''v_bfe_u32 v8, v1, 2, 2
        v_bfe_u32 v9, v1, 4, 1
        v_lshl_add_u32 v8, v9, 2, v8
        v_lshrrev_b32 v9, 1, v8
        v_lshrrev_b32 v10, 5, v1
        v_lshl_add_u32 v8, v10, 4, v8
        v_lshlrev_b32 v8, 7, v8
        s_lshl_b32 s76, s60, 1
        v_xor_b32 v9, s76, v9
        v_lshl_add_u32 v8, v9, 5, v8
        v_and_b32 v9, 3, v1
        v_lshl_add_u32 v8, v9, 3, v8
        s_lshl_b32 s76, s60, 12
        v_add_u32 v4, s76, v8
        v_xor_b32 v5, 32, v4
        v_xor_b32 v6, 64, v4
        v_xor_b32 v7, 96, v4''')
        RF = 16
        def trreads(buf, slot):
            return ['ds_read_b64_tr_b16 v[%d:%d], v%d offset:%d' % (RF + 16 * buf + 4 * t + 2 * e, RF + 16 * buf + 4 * t + 2 * e + 1, TR + t, (slot % 8) * 8192 + 1024 * e) for t in range(4) for e in range(2)]
        a('s_barrier')
        self.stamp(6)
        rr = []
        for b in range(8): rr += trreads(b, b)
        for x in interleave(gelu(1, 0) + gelu(1, 1), rr, start=0, every=2): a(x)
        a('s_waitcnt lgkmcnt(0)\ns_barrier')
        self.stamp(7)
        a('''v_mov_b32 v8, 0
        v_mov_b32 v9, 1
        s_waitcnt vmcnt(4)
        s_mov_b64 exec, 1
        buffer_store_dword v9, v8, {ws}, s3 offen sc1
        s_mov_b64 exec, -1
        s_cmp_lt_u32 s36, 20
        s_cbranch_scc1 L_G2
        s_waitcnt vmcnt(1)
        s_mov_b64 exec, 1
        s_add_u32 s3, s3, 4096
        buffer_store_dword v9, v8, {ws}, s3 offen sc1
        s_branch L_FIN
        L_G2:'''.format(ws=WS_))
        self.g2_offsets()
        self.w2_voff(10, sWV, 12)
        a('s_lshl_b32 s78, s34, 11')
        dm = []
        for k in range(8): dm += self.w2_dma(10 + k, k, 10, 78)
        for x in dm[:6]: a(x)
        a('''s_waitcnt vmcnt(7)
        s_mov_b64 exec, 1
        s_add_u32 s3, s3, 4096
        buffer_store_dword v9, v8, {ws}, s3 offen sc1
        s_mov_b64 exec, -1'''.format(ws=WS_))
        self.stamp(8)
        for x in dm[6:]: a(x)
        A2 = 144; HR = 208
        acc = lambda t, nt: A2 + 16 * nt + 4 * t
        a('''s_lshl_b32 s76, s62, 7
        s_lshl_b32 s77, s61, 6
        s_add_u32 s76, s76, s77
        s_mul_i32 s37, s76, 1280
        s_lshl_b32 s76, s63, 7
        s_lshl_b32 s77, s60, 6
        s_add_u32 s38, s76, s77
        s_add_u32 s37, s37, s38
        v_and_b32 v8, 15, v1
        v_mul_u32_u24 v3, 1280, v8
        v_lshrrev_b32 v9, 4, v1
        v_lshl_add_u32 v10, v9, 3, v3
        v_lshl_add_u32 v11, v9, 3, s38''')
        for nt in range(NT):
            a('s_add_u32 s76, s37, %d' % (nt * 16 * 1280))
            for t in range(2):
                a('buffer_load_dwordx2 v[%d:%d], v10, %s, s76 offen offset:%d' % (HR + 4 * nt + 2 * t, HR + 4 * nt + 2 * t + 1, X_, 32 * t))
        a('global_load_dwordx2 v[12:13], v11, s[26:27]\nglobal_load_dwordx2 v[14:15], v11, s[26:27] offset:32')
        a('s_waitcnt vmcnt(0)')
        B2F = HR + 16
        for t in range(2):
            for d in range(2):
                a('v_lshlrev_b32 v%d, 16, v%d\nv_and_b32 v%d, 0xffff0000, v%d' % (B2F + 4 * t + 2 * d, 12 + 2 * t + d, B2F + 4 * t + 2 * d + 1, 12 + 2 * t + d))
        for nt in range(NT):
            for t in range(2):
                for d in range(2):
                    s = HR + 4 * nt + 2 * t + d; o = acc(t, nt) + 2 * d
                    a('v_lshlrev_b32 v%d, 16, v%d\nv_and_b32 v%d, 0xffff0000, v%d\nv_add_f32 v%d, v%d, v%d\nv_add_f32 v%d, v%d, v%d' % (o, s, o + 1, s, o, o, B2F + 4 * t + 2 * d, o + 1, o + 1, B2F + 4 * t + 2 * d + 1))
        a('''s_lshl_b32 s76, s62, 3
        s_lshl_b32 s77, s61, 2
        s_add_u32 s76, s76, s77
        s_mul_i32 s76, s76, 49152
        v_lshl_add_u32 v8, v1, 4, s76
        v_add_u32 v9, 49152, v8
        v_add_u32 v10, %d, v8
        v_add_u32 v11, %d, v8
        s_mul_i32 s77, s60, %d
        s_add_u32 s77, s77, %d''' % (2 * 49152, 3 * 49152, 24 * 1024, HH))
        for i in range(12): a('s_lshl_b32 s%d, s%d, 10\ns_add_u32 s%d, s%d, s77' % (64 + i, 64 + i, 64 + i, 64 + i))
        a('''s_lshl_b32 s76, s62, 1
        s_add_u32 s76, s76, s61
        s_lshl_b32 s76, s76, 7
        s_mul_i32 s77, s60, 48
        s_add_u32 s76, s76, s77
        s_add_u32 s39, s76, %d
        v_min_u32 v12, 11, v1
        v_lshlrev_b32 v12, 2, v12''' % FH)
        self.stamp(9)
        self.poll('buffer_load_dword v13, v12, %s, s39 offen sc1' % WS_, 'v_cmp_eq_u32 vcc, 0, v13')
        self.stamp(10)
        a('s_add_u32 s39, s39, 4096')
        def hloads(s):
            r = HR + 16 * (s % 3)
            return ['buffer_load_dwordx4 v[%d:%d], v%d, %s, s%d offen offset:%d sc1' % (r + 4 * nt, r + 4 * nt + 3, 8 + nt, WS_, 64 + s % 12, 1024 * (s // 12)) for nt in range(NT)]
        for s in range(3):
            for x in hloads(s): a(x)
        a('s_barrier')
        def wbuf(s): return s if s < 2 else (s - 16 if s >= 18 else (s & 1))
        PCHK = 7
        for s in range(24):
            r = HR + 16 * (s % 3); wb = RF + 16 * wbuf(s)
            nxt = s + 1
            rd = []
            if 2 <= nxt < 18:
                if nxt == 2: a('v_add_u32 v4, 0x10000, v4\nv_add_u32 v5, 0x10000, v5\nv_add_u32 v6, 0x10000, v6\nv_add_u32 v7, 0x10000, v7')
                if nxt == 10: a('v_add_u32 v4, 0xffff0000, v4\nv_add_u32 v5, 0xffff0000, v5\nv_add_u32 v6, 0xffff0000, v6\nv_add_u32 v7, 0xffff0000, v7')
                rd = trreads(wbuf(nxt), nxt - 2)
            if 2 <= s < 18: a('s_waitcnt lgkmcnt(0)')
            hl = hloads(s + 3) if s + 3 < 24 else []
            if s == PCHK: a('buffer_load_dword v13, v12, %s, s39 offen sc1' % WS_)
            for nt in range(NT):
                issued_after = (min(s + 2, 23) - s) * NT + (NT - 1 - nt) + (nt if hl else 0)
                if PCHK <= s <= PCHK + 2: issued_after += 1
                a('s_waitcnt vmcnt(%d)' % issued_after)
                for t in range(4):
                    c = 'v[%d:%d]' % (acc(t, nt), acc(t, nt) + 3)
                    a('v_mfma_f32_16x16x32_bf16 %s, v[%d:%d], v[%d:%d], %s' % (c, wb + 4 * t, wb + 4 * t + 3, r + 4 * nt, r + 4 * nt + 3, '0' if (s == 0 and t >= 2) else c))
                    if rd and t in (0, 2): a(rd.pop(0))
                if hl:
                    if s == PCHK + 2 and nt == 0:
                        Lok = self.lab('OK')
                        a('s_waitcnt vmcnt(%d)\nv_cmp_eq_u32 vcc, 0, v13\ns_cbranch_vccz %s' % (2 * NT, Lok))
                        self.poll('buffer_load_dword v13, v12, %s, s39 offen sc1' % WS_, 'v_cmp_eq_u32 vcc, 0, v13')
                        a('%s:' % Lok)
                    a(hl[nt])
            if s == 0: a('s_barrier')
            if s == 5: a('s_barrier')
            if s == 0: self.stamp(11)
        self.stamp(12)
        a('''s_lshl_b32 s76, s34, 13
        s_add_u32 s76, s76, %d
        v_lshl_add_u32 v8, v1, 4, s76
        v_xor_b32 v9, 0x2000, v8''' % L_RED)
        a('''v_bfe_u32 v10, v1, 2, 3
        s_lshl_b32 s76, s61, 2
        v_xor_b32 v10, s76, v10
        v_lshlrev_b32 v10, 5, v10
        v_lshrrev_b32 v11, 2, v1
        v_lshl_add_u32 v10, v11, 8, v10
        v_and_b32 v11, 3, v1
        v_lshl_add_u32 v10, v11, 3, v10
        s_lshl_b32 s76, s60, 13
        s_add_u32 s76, s76, %d
        v_add_u32 v10, s76, v10
        v_xor_b32 v11, 32, v10
        v_xor_b32 v12, 64, v10
        v_xor_b32 v13, 96, v10''' % L_AT)
        for nt in range(NT):
            for t in range(2):
                a('ds_write_b128 v8, v[%d:%d] offset:%d' % (acc(2 + t, nt), acc(2 + t, nt) + 3, 1024 * (2 * nt + t)))
        a('''v_bfe_u32 v14, v1, 4, 1
        v_lshl_add_u32 v3, v14, 5, v3
        v_lshrrev_b32 v14, 5, v1
        v_lshl_add_u32 v3, v14, 4, v3
        s_waitcnt lgkmcnt(0)
        s_barrier''')
        self.stamp(13)
        for nt in range(NT):
            for t in range(2):
                a('ds_read_b128 v[%d:%d], v9 offset:%d' % (acc(2 + t, nt), acc(2 + t, nt) + 3, 1024 * (2 * nt + t)))
                a('ds_read_b64_tr_b16 v[%d:%d], v%d offset:%d' % (HR + 4 * nt + 2 * t, HR + 4 * nt + 2 * t + 1, 10 + nt, 4096 * t))
        for nt in range(NT):
            a('s_waitcnt lgkmcnt(%d)' % (4 * (NT - 1 - nt)))
            o = RF + 4 * nt
            for t in range(2):
                k = acc(t, nt); p = acc(2 + t, nt)
                for d in range(2):
                    s = HR + 4 * nt + 2 * t + d
                    a('''v_pk_add_f32 v[{k0}:{k1}], v[{k0}:{k1}], v[{p0}:{p1}]
                    v_lshlrev_b32 v14, 16, v{s}
                    v_and_b32 v15, 0xffff0000, v{s}
                    v_pk_add_f32 v[{k0}:{k1}], v[{k0}:{k1}], v[14:15]
                    v_cvt_pk_bf16_f32 v{o}, v{k0}, v{k1}'''.format(k0=k + 2 * d, k1=k + 2 * d + 1, p0=p + 2 * d, p1=p + 2 * d + 1, s=s, o=o + 2 * t + d))
            for o_ in self.opts:
                if o_.startswith('inj=') and nt == 0:
                    a('s_or_b32 s76, s2, s34\ns_cmp_eq_u32 s76, 0\ns_cselect_b64 exec, 1, 0\nv_add_f32 v%d, %s, v%d\nv_cvt_pk_bf16_f32 v%d, v%d, v%d\ns_mov_b64 exec, -1' % (acc(0, 0), f32(float(o_[4:])), acc(0, 0), o, acc(0, 0), acc(0, 0) + 1))
            a('s_add_u32 s76, s37, %d' % (nt * 16 * 1280))
            a('v_permlane16_swap_b32 v%d, v%d\nv_permlane16_swap_b32 v%d, v%d' % (o, o + 2, o + 1, o + 3))
            a('buffer_store_dwordx4 v[%d:%d], v3, %s, s76 offen' % (o, o + 3, OUT_))
        self.stamp(14)
        a('s_branch L_FIN')

    def s_param_loads(self):
        a = self.a
        a('s_mul_i32 s76, s61, 384\nv_lshl_add_u32 v2, v1, 1, s76\ns_lshl_b32 s76, s61, 1\nv_mov_b32 v3, s76')
        for r in range(16, 30): a('v_mov_b32 v%d, 0' % r)
        a('global_load_short_d16_hi v28, v3, s[14:15]')
        for st in range(3):
            for k, p in enumerate((6, 8, 10, 12)):
                a('global_load_short_d16_hi v%d, v2, s[%d:%d] offset:%d' % (16 + 4 * st + k, p, p + 1, 128 * st))
        a('global_load_short_d16_hi v29, v3, s[16:17]')
    def cmul(self, d, x, w, pk):
        if pk:
            return ['v_pk_mul_f32 v[%d:%d], v[%d:%d], v[%d:%d] op_sel:[1,0] op_sel_hi:[0,1]' % (d, d + 1, x, x + 1, w, w + 1),
                    'v_pk_fma_f32 v[%d:%d], v[%d:%d], v[%d:%d], v[%d:%d] op_sel_hi:[1,0,1]' % (d, d + 1, x, x + 1, w + 2, w + 3, d, d + 1)]
        return ['v_mul_f32 v%d, v%d, v%d' % (d, x + 1, w), 'v_mul_f32 v%d, v%d, v%d' % (d + 1, x, w + 1),
                'v_fmac_f32 v%d, v%d, v%d' % (d, x, w + 2), 'v_fmac_f32 v%d, v%d, v%d' % (d + 1, x + 1, w + 2)]
    def cexp(self, w, zr, zi, t):
        return '''v_rndne_f32 v{t}, v{zi}
        v_exp_f32 v{t1}, v{zr}
        v_sub_f32 v{t}, v{zi}, v{t}
        v_sin_f32 v{w1}, v{t}
        v_cos_f32 v{w2}, v{t}
        v_mul_f32 v{w1}, v{w1}, v{t1}
        v_mul_f32 v{w2}, v{w2}, v{t1}
        v_sub_f32 v{w0}, 0, v{w1}'''.format(t=t, t1=t + 1, zr=zr, zi=zi, w0=w, w1=w + 1, w2=w + 2)
    def scode(self, N):
        a = self.a; pk = N
        tag = 'N' if N else 'S'
        WA, RA, KA = 32, 48, 52
        FRG = 68
        W0, W1 = 100, 104
        X = 108
        PKD = 176
        DT = 30
        def bar(k):
            if N and k == 2: a('s_waitcnt vmcnt(0) lgkmcnt(0)\ns_barrier')
            else: a('s_waitcnt lgkmcnt(0)\ns_barrier')
        a('s_lshl_b32 s76, s60, 13\ns_add_u32 s76, s76, s37\nv_lshl_add_u32 v%d, v1, 2, s76' % WA)
        for r in range(1, 16): a('v_xor_b32 v%d, %d, v%d' % (WA + r, r << 4, WA))
        a('''v_and_b32 v4, 15, v1
        v_lshrrev_b32 v5, 5, v1
        v_xor_b32 v4, v4, v5
        s_lshl_b32 s76, s60, 3
        v_xor_b32 v4, s76, v4
        v_lshlrev_b32 v4, 4, v4
        v_and_b32 v5, 31, v1
        v_lshl_add_u32 v4, v5, 8, v4
        v_add_u32 v%d, s37, v4''' % RA)
        for k in range(1, 4): a('v_xor_b32 v%d, %d, v%d' % (RA + k, 32 * k, RA))
        for r in range(16): a('v_mov_b32 v%d, 0' % (KA + r))
        if not N: a('s_barrier')
        if not N:
            Ls = self.lab('NG')
            a('''s_waitcnt vmcnt(0)
            s_cmp_eq_u32 s78, 0
            s_cbranch_scc1 {L}
            s_lshl_b32 s76, s36, 2
            v_mov_b32 v4, s76
            v_mov_b32 v5, 1
            s_mov_b64 exec, 1
            global_store_dword v4, v5, s[30:31] offset:128 sc1
            s_mov_b64 exec, -1
            {L}:'''.format(L=Ls))
        self.stamp(2)
        a('''v_mul_f32 v{dt}, {l2e}, v28
        v_exp_f32 v{dt}, v{dt}
        s_mov_b32 s70, 0
        v_cvt_pk_bf16_f32 v{dt}, v{dt}, v{dt}
        v_lshlrev_b32 v{dt}, 16, v{dt}
        s_cmp_eq_u32 s60, 0
        s_cbranch_scc0 L{t}_B'''.format(dt=DT, l2e=f32(LOG2E), t=tag))
        def zsetup(scale, conj):
            a('''v_mul_f32 v4, {l2e}, v16
            v_exp_f32 v4, v4
            v_mul_f32 v5, v17, v{dt}
            v_cvt_pk_bf16_f32 v4, v4, v4
            v_mul_f32 v5, {ci}, v5
            v_lshlrev_b32 v4, 16, v4
            v_mul_f32 v4, v4, v{dt}
            v_mul_f32 v4, {cr}, v4'''.format(l2e=f32(LOG2E), dt=DT, ci=f32((-1 if conj else 1) * scale / (2 * math.pi)), cr=f32(-scale * LOG2E)))
        def rotate_params():
            for k in range(8): a('v_mov_b32 v%d, v%d' % (16 + k, 20 + k))
        def mfma_phase():
            for k in range(4):
                a('ds_read_b128 v[%d:%d], v%d\nds_read_b128 v[%d:%d], v%d offset:8192' % (FRG + 8 * k, FRG + 8 * k + 3, RA + k, FRG + 8 * k + 4, FRG + 8 * k + 7, RA + k))
            rotate_params()
            for k in range(4):
                a('s_waitcnt lgkmcnt(%d)' % (6 - 2 * k))
                a('v_mfma_f32_32x32x16_bf16 v[{c}:{c2}], v[{f}:{f3}], v[{g}:{g3}], v[{c}:{c2}]'.format(c=KA, c2=KA + 15, f=FRG + 8 * k, f3=FRG + 8 * k + 3, g=FRG + 8 * k + 4, g3=FRG + 8 * k + 7))
        def xflag():
            if N:
                L = self.lab('XF')
                a('''s_or_b32 s76, s70, s34
                s_cbranch_scc1 {L}
                s_lshl_b32 s76, s35, 3
                s_add_u32 s76, s76, s36
                s_lshl_b32 s76, s76, 2
                s_add_u32 s76, s76, {fx}
                v_mov_b32 v4, 0
                v_mov_b32 v5, 1
                s_mov_b64 exec, 1
                buffer_store_dword v5, v4, {ws}, s76 offen sc1
                s_mov_b64 exec, -1
                {L}:'''.format(L=L, fx=FX - 24 * 4, ws=WS_))
        def wr(r, lo, hi):
            return 'ds_write2st64_b32 v%d, v%d, v%d offset0:%d offset1:%d' % (WA + r, lo, hi, r, r + 16)
        a('L%s_A:' % tag)
        zsetup(1.0, True)
        a(self.cexp(W0, 4, 5, 6))
        a('v_mul_f32 v4, 0x43800000, v4\nv_mul_f32 v5, 0x43800000, v5')
        a(self.cexp(W1, 4, 5, 6))
        val = {}; pkd = {}
        def newv(key):
            val[key] = X + 2 * len(val); pkd[key] = PKD + len(pkd); return val[key]
        def cvt(key): return 'v_cvt_pk_bf16_f32 v%d, v%d, v%d' % (pkd[key], val[key], val[key] + 1)
        g0 = newv(0)
        a('v_add_f32 v6, v{dt}, v{dt}\nv_mul_f32 v{g}, v18, v6\nv_mul_f32 v{g1}, v19, v6\nv_sub_f32 v{g1}, 0, v{g1}'.format(dt=DT, g=g0, g1=g0 + 1))
        a(cvt(0))
        def step(key, src, w):
            d = newv(key)
            for x in self.cmul(d, val[src], w, pk): a(x)
            a(cvt(key))
        for k in range(1, 9):
            step(k, k - 1, W0)
            if k % 2 == 0: step(256 + k - 2, k - 2, W1)
        step(264, 8, W1)
        bar(1)
        rows = {0: [0, 1, 2, 3, 4, 5, 6, 7, 8, 512, 516, 520, 1024, 1032, 1536, 1544],
                1: [256, 256, 258, 260, 260, 260, 262, 264, 264, 768, 772, 776, 1280, 1288, 1792, 1800]}
        pend = [(r, h) for h in range(2) for r in range(8)]
        def flush():
            for (r, h) in list(pend):
                lo, hi = rows[h][r], rows[h][r + 8]
                if lo in pkd and hi in pkd:
                    m = (r & 3) + 8 * (r >> 2) + 4 * h
                    a(wr(m, pkd[lo], pkd[hi])); pend.remove((r, h))
        flush()
        for b in (512, 768):
            for o in (0, 4, 8): step(b + o, b - 256 + o, W1); flush()
        for b in (1024, 1280, 1536, 1792):
            for o in (0, 8): step(b + o, b - 256 + o, W1); flush()
        assert not pend
        bar(2); xflag()
        mfma_phase()
        a('s_add_u32 s70, s70, 1\ns_cmp_eq_u32 s70, 3\ns_cbranch_scc1 L%s_J\ns_barrier\ns_branch L%s_A' % (tag, tag))
        a('L%s_B:' % tag)
        zsetup(8.0, False)
        a(self.cexp(W0, 4, 5, 6))
        a('v_mul_f32 v4, 0x41800000, v4\nv_mul_f32 v5, 0x41800000, v5')
        a(self.cexp(W1, 4, 5, 6))
        E0, E1 = X, X + 4
        a('''v_mov_b32 v{a}, v{wr}
        v_mov_b32 v{a1}, v{wi}
        v_mov_b32 v{b}, v{vr}
        v_mov_b32 v{b1}, v{vi}
        v_mov_b32 v{p}, 0x3f80
        v_cvt_pk_bf16_f32 v{p1}, v{b}, v{b1}'''.format(a=E0 + 2, a1=E0 + 3, wr=W0 + 2, wi=W0 + 1, b=E1, b1=E1 + 1, vr=W1 + 2, vi=W1 + 1, p=PKD, p1=PKD + 1))
        a(wr(0, PKD, PKD + 1))
        for r in range(1, 16):
            d0, s0 = E0 + 2 * (r & 1), E0 + 2 * ((r - 1) & 1)
            d1, s1 = E1 + 2 * (r & 1), E1 + 2 * ((r - 1) & 1)
            c0 = self.cmul(d0, s0, W0, pk) if r > 1 else []
            c1 = self.cmul(d1, s1, W0, pk)
            for x in interleave(c1, c0): a(x)
            p = PKD + 2 * (r & 1)
            a('v_cvt_pk_bf16_f32 v%d, v%d, v%d\nv_cvt_pk_bf16_f32 v%d, v%d, v%d' % (p, d0, d0 + 1, p + 1, d1, d1 + 1))
            a(wr(r, p, p + 1))
            if r == 6: bar(1)
        bar(2); xflag()
        mfma_phase()
        a('s_add_u32 s70, s70, 1\ns_cmp_eq_u32 s70, 3\ns_cbranch_scc1 L%s_J\ns_barrier\ns_branch L%s_B' % (tag, tag))
        a('L%s_J:' % tag)
        self.stamp(3)
        a('''s_xor_b32 s76, s60, 1
        s_mul_i32 s76, s76, 4160
        s_add_u32 s76, s76, s38
        v_lshl_add_u32 v4, v1, 4, s76
        s_mul_i32 s71, s60, 4160
        s_add_u32 s71, s71, s38
        v_lshl_add_u32 v5, v1, 4, s71
        v_mov_b32 v8, 0
        v_mov_b32 v9, 0
        v_mov_b32 v10, 0
        v_mov_b32 v11, 0
        v_lshl_add_u32 v6, v1, 3, s39
        ds_write_b64 v6, v[8:9]''')
        for k in range(4): a('ds_write_b128 v4, v[%d:%d] offset:%d' % (KA + 4 * k, KA + 4 * k + 3, 1024 * k))
        if not N:
            self.poll_go(12, 13)
            a('''s_lshr_b32 s76, s35, 1
            s_lshl_b32 s76, s76, 2
            s_mul_i32 s77, s36, 43
            s_lshr_b32 s77, s77, 8
            s_add_u32 s76, s76, s77
            s_lshl_b32 s76, s76, 10
            s_add_u32 s76, s76, %d
            s_and_b32 s77, s34, 3
            s_lshl_b32 s77, s77, 8
            v_and_b32 v13, 31, v1
            v_lshl_add_u32 v13, v13, 3, s77''' % ST)
            self.poll('buffer_load_dwordx2 v[14:15], v13, %s, s76 offen sc1' % WS_, 'v_cmp_eq_u32 vcc, 0, v15')
            a('v_add_u32 v13, %d, v13\nds_write_b64 v13, v[14:15]' % L_ST)
        a('s_waitcnt lgkmcnt(0)\ns_barrier')
        self.stamp(4)
        for k in range(4): a('ds_read_b128 v[%d:%d], v5 offset:%d' % (FRG + 4 * k, FRG + 4 * k + 3, 1024 * k))
        if not N:
            a('s_barrier')
            Lw = self.lab('NW')
            a('s_cmp_lt_u32 s36, 20\ns_cbranch_scc0 %s' % Lw)
            self.g2_offsets_s()
            a('s_and_b32 s77, s34, 3\ns_mov_b32 s3, s77')
            self.w2_voff(12, 3, 14)
            a('s_lshl_b32 s78, s3, 11')
            for k, s in enumerate([0, 1, 18, 19, 20, 21, 22, 23]):
                for x in self.w2_dma(s, k, 12, 78): a(x)
            a('%s:' % Lw)
        a('v_cmp_eq_u32 vcc, 0, v1\nv_cndmask_b32 v29, 0, v29, vcc\ns_waitcnt lgkmcnt(0)')
        for r in range(16): a('v_add_f32 v%d, v%d, v%d' % (KA + r, KA + r, FRG + r))
        V = lambda r: KA + r
        a('''v_add_f32 v{v0}, v{v0}, v29
        v_cndmask_b32 v8, 0, v{v0}, vcc
        v_and_b32 v4, 1, v1
        v_cmp_eq_u32 vcc, 0, v4
        v_lshlrev_b32 v4, 4, v1
        s_mul_i32 s76, s60, 4160
        s_add_u32 s76, s76, s38
        s_add_u32 s77, s76, 1008
        v_sub_u32 v6, s77, v4
        s_add_u32 s77, s76, 4096
        v_add_u32 v7, s77, v4
        v_cndmask_b32 v{m0}, v{v13}, v{v12}, vcc
        v_cndmask_b32 v{m1}, v{v15}, v{v14}, vcc
        s_cmp_eq_u32 s60, 0
        s_cbranch_scc0 L{t}_T1'''.format(v0=V(0), m0=FRG + 16, m1=FRG + 17, v12=V(12), v13=V(13), v14=V(14), v15=V(15), t=tag))
        def table(c):
            lv = [([V(o) for o in range(9)], 3072), ([V(9)] * 3 + [V(10)] * 3 + [V(11)] * 3, 2048),
                  ([V(12)] * 4 + [FRG + 16] + [V(13)] * 4, 1024), ([V(14)] * 4 + [FRG + 17] + [V(15)] * 4, 0)]
            for n, (t, off) in enumerate(lv):
                for d in range(4):
                    a('v_cvt_pk_bf16_f32 v%d, v%d, v%d' % (FRG + 4 * n + d, t[7 + c - 2 * d], t[6 + c - 2 * d]))
                a('ds_write_b128 v6, v[%d:%d] offset:%d' % (FRG + 4 * n, FRG + 4 * n + 3, off))
        table(0)
        a('v_mov_b32 v8, 0\ns_branch L%s_T2\nL%s_T1:' % (tag, tag))
        table(1)
        a('v_cvt_pk_bf16_f32 v8, v8, 0\nL%s_T2:' % tag)
        a('s_mov_b64 exec, 3\nds_write_b128 v7, v[8:11]\ns_mov_b64 exec, -1')
        if not N: a('s_waitcnt vmcnt(0)\ns_barrier')
        self.stamp(5)
        a('v_lshlrev_b32 v4, 2, v1\ns_mov_b32 s76, %d' % FX)
        self.poll('buffer_load_dword v5, v4, %s, s76 offen sc1' % WS_, 'v_cmp_eq_u32 vcc, 0, v5')
        self.stamp(6)
        a('''s_lshr_b32 s76, s61, 2
        s_lshl_b32 s76, s76, 14
        s_and_b32 s77, s61, 3
        s_lshl_b32 s77, s77, 4
        s_add_u32 s76, s76, s77
        s_lshl_b32 s77, s60, 13
        s_add_u32 s76, s76, s77
        v_lshlrev_b32 v4, 6, v1
        s_lshl_b32 s77, s60, 11
        s_add_u32 s77, s77, s39
        s_add_u32 m0, s77, 512
        s_add_u32 s77, s76, 3072
        buffer_load_dwordx4 v4, {ws}, s76 offen sc1 lds
        buffer_load_dwordx4 v4, {ws}, s77 offen offset:1024 sc1 lds'''.format(ws=WS_))
        if not N:
            Lw = self.lab('NW'); Lx = self.lab('NX')
            a('s_cmp_lt_u32 s36, 20\ns_cbranch_scc0 %s' % Lw)
            for k in range(8):
                for x in self.w2_dma(2 + k, 8 + k, 12, 78): a(x)
            a('s_waitcnt vmcnt(16)\ns_branch %s\n%s:\ns_waitcnt vmcnt(0)\n%s:' % (Lx, Lw, Lx))
        else: a('s_waitcnt vmcnt(0)')
        CA, CB = 4, 8
        a('''v_and_b32 v9, 15, v1
        v_lshrrev_b32 v10, 4, v1
        v_and_b32 v11, 1, v1
        v_xor_b32 v11, 1, v11
        v_mul_u32_u24 v11, 4162, v11
        v_lshl_add_u32 v11, v10, 4, v11
        v_lshlrev_b32 v14, 1, v9
        v_sub_u32 v11, v11, v14
        s_lshl_b32 s76, s60, 8
        s_sub_u32 s76, s38, s76
        s_add_u32 s76, s76, %d
        v_add_u32 v%d, s76, v11''' % (2 * (2047 - 16) - 512 - 192, CA))
        for p in range(1, 4): a('v_add_u32 v%d, %d, v%d' % (CA + p, -1024 * p, CA))
        a('''v_lshlrev_b32 v9, 5, v9
        v_lshl_add_u32 v9, v10, 4, v9
        s_lshl_b32 s76, s60, 8
        s_sub_u32 s76, s39, s76
        s_add_u32 s76, s76, %d
        v_add_u32 v%d, s76, v9
        s_waitcnt lgkmcnt(0)
        s_barrier''' % (512 - 32 - 192, CB))
        self.stamp(7)
        YA = 16; FA_ = [48, 112]
        def creads(tt):
            f = FA_[tt & 1]; l = []
            for i in range(8):
                o = (128 if i % 2 == 0 else 0) + 16 * (3 - tt)
                ra = ['ds_read2_b32 v[%d:%d], v%d offset0:%d offset1:%d' % (f + 4 * i + 2 * e, f + 4 * i + 2 * e + 1, CA + i // 2, o + 2 * e, o + 2 * e + 1) for e in range(2)]
                rb = 'ds_read_b128 v[%d:%d], v%d offset:%d' % (f + 32 + 4 * i, f + 35 + 4 * i, CB, 512 * i + 64 * (3 - tt))
                l += ra + [rb]
            return l
        def cm(tt, i, j, first):
            f = FA_[tt & 1]; c = 'v[%d:%d]' % (YA + 4 * (i + j), YA + 4 * (i + j) + 3)
            return 'v_mfma_f32_16x16x32_bf16 %s, v[%d:%d], v[%d:%d], %s' % (c, f + 4 * i, f + 4 * i + 3, f + 32 + 4 * j, f + 35 + 4 * j, '0' if first else c)
        r0 = creads(0)
        for x in r0[:12]: a(x)
        for tt in range(4):
            order = []
            for k in range(8):
                order += [(k, i, j) for i in range(k + 1) for j in range(k + 1) if max(i, j) == k and i + j <= 7]
            seen = set()
            nxt = (r0[12:] if tt == 0 else []) + (creads(tt + 1) if tt < 3 else [])
            issued = 12 if tt == 0 else 24
            extra = 0
            lastk = -1
            if tt > 0: a('s_waitcnt lgkmcnt(0)')
            for (k, i, j) in order:
                if tt == 0 and k != lastk:
                    while issued < 3 * (k + 1): a(nxt.pop(0)); issued += 1
                    a('s_waitcnt lgkmcnt(%d)' % min(15, issued + extra - 3 * (k + 1)))
                    lastk = k
                a(cm(tt, i, j, tt == 0 and (i + j) not in seen)); seen.add(i + j)
                if nxt:
                    a(nxt.pop(0))
                    if issued < 24: issued += 1
                    else: extra += 1
            for x in nxt: a(x)
        self.stamp(8)
        a('''s_mul_i32 s76, s60, 4160
        s_add_u32 s76, s76, s38
        v_lshl_add_u32 v4, v1, 4, s76
        s_xor_b32 s76, s60, 1
        s_mul_i32 s76, s76, 4160
        s_add_u32 s76, s76, s38
        v_lshl_add_u32 v5, v1, 4, s76
        s_waitcnt vmcnt(0)
        s_barrier
        s_cmp_eq_u32 s60, 0
        s_cbranch_scc0 L{t}_R1'''.format(t=tag))
        for k in range(4): a('ds_write_b128 v4, v[%d:%d] offset:%d' % (YA + 16 + 4 * k, YA + 19 + 4 * k, 1024 * k))
        a('s_branch L%s_R2\nL%s_R1:' % (tag, tag))
        for k in range(4): a('ds_write_b128 v4, v[%d:%d] offset:%d' % (YA + 4 * k, YA + 3 + 4 * k, 1024 * k))
        a('s_waitcnt lgkmcnt(0)')
        for k in range(16): a('v_mov_b32 v%d, v%d' % (YA + k, YA + 16 + k))
        a('L%s_R2:\ns_waitcnt lgkmcnt(0)\ns_barrier' % tag)
        for k in range(4): a('ds_read_b128 v[%d:%d], v5 offset:%d' % (48 + 4 * k, 51 + 4 * k, 1024 * k))
        a('''s_lshl_b32 s76, s61, 12
        s_lshl_b32 s77, s60, 11
        s_add_u32 s76, s76, s77
        s_add_u32 s76, s76, %d
        v_lshlrev_b32 v4, 4, v1''' % AA)
        for p in range(2):
            a('s_waitcnt lgkmcnt(%d)' % (2 - 2 * p))
            for k in range(8 * p, 8 * p + 8): a('v_add_f32 v%d, v%d, v%d' % (YA + k, YA + k, 48 + k))
            o = 64 + 4 * p
            for d in range(4): a('v_cvt_pk_bf16_f32 v%d, v%d, v%d' % (o + d, YA + 8 * p + 2 * d, YA + 8 * p + 2 * d + 1))
            a('v_permlane16_swap_b32 v%d, v%d\nv_permlane16_swap_b32 v%d, v%d' % (o, o + 2, o + 1, o + 3))
            a('buffer_store_dwordx4 v[%d:%d], v4, %s, s76 offen offset:%d sc1' % (o, o + 3, WS_, 1024 * p))
        self.stamp(9)
        if not N: a('s_barrier')
        a('''s_mul_i32 s76, s60, 2560
        s_lshl_b32 s77, s61, 2
        s_add_u32 s76, s76, s77
        s_add_u32 s76, s76, {fa}
        v_mov_b32 v4, 0
        v_mov_b32 v5, 1
        s_waitcnt vmcnt(0)
        s_mov_b64 exec, 1
        buffer_store_dword v5, v4, {ws}, s76 offen sc1
        s_mov_b64 exec, -1'''.format(fa=FA, ws=WS_))
        self.stamp(10)
        if N:
            a('s_branch L_FIN'); return
        a('s_cmp_lt_u32 s36, 20\ns_cbranch_scc0 L_FIN')
        a('''s_lshl_b32 s60, s63, 6
        s_lshl_b32 s76, s3, 4
        s_add_u32 s60, s60, s76
        s_lshr_b32 s76, s35, 2
        s_mul_i32 s76, s76, 2560
        s_lshl_b32 s77, s60, 2
        s_add_u32 s76, s76, s77
        s_add_u32 s61, s76, {fa}
        v_and_b32 v4, 15, v1
        v_lshlrev_b32 v6, 2, v4
        v_lshrrev_b32 v7, 4, v1
        v_lshlrev_b32 v8, 1, v7
        v_xor_b32 v8, v8, v4
        v_lshrrev_b32 v9, 1, v8
        v_lshlrev_b32 v9, 4, v9
        v_and_b32 v8, 1, v8
        v_lshl_add_u32 v9, v8, 9, v9
        v_lshl_add_u32 v9, v7, 12, v9
        v_xor_b32 v10, 64, v9
        s_lshl_b32 s60, s60, 12
        s_lshr_b32 s76, s35, 1
        s_lshl_b32 s76, s76, 10
        s_add_u32 s60, s60, s76
        s_and_b32 s76, s35, 1
        s_lshl_b32 s76, s76, 8
        s_add_u32 s60, s60, s76
        s_and_b32 s76, s62, 1
        s_lshl_b32 s76, s76, 7
        s_add_u32 s60, s60, s76
        s_add_u32 s60, s60, {aa}
        s_lshl_b32 s76, s3, 12
        s_add_u32 m0, s76, {at}'''.format(fa=FA, aa=AA, at=L_AT))
        self.poll('buffer_load_dword v5, v6, %s, s61 offen sc1' % WS_, 'v_cmp_eq_u32 vcc, 0, v5')
        self.stamp(11)
        for i in range(4):
            a('s_add_u32 s76, s60, %d\nbuffer_load_dwordx4 v%d, %s, s76 offen offset:%d sc1 lds' % (i * (16384 - 1024), 9 + (i & 1), WS_, 1024 * i))
        a('s_waitcnt vmcnt(0)')
        self.stamp(12)
        a('s_barrier\ns_branch L_FIN')
    def g2_offsets_s(self):
        self.a('''s_cmp_ge_u32 s36, 10
        s_cselect_b32 s62, 1, 0
        s_mul_i32 s63, s62, 10
        s_sub_u32 s63, s36, s63
        s_lshl_b32 s66, s35, 1
        s_add_u32 s62, s62, s66''')
        self.g2_offsets()
    def swave(self):
        a = self.a
        a('''s_and_b32 s60, s34, 1
        s_bfe_u32 s76, s34, 0x10001
        s_mul_i32 s61, s35, 80
        s_lshl_b32 s77, s36, 1
        s_add_u32 s61, s61, s77
        s_add_u32 s61, s61, s76
        s_lshl_b32 s37, s76, 14
        s_add_u32 s37, s37, %d
        s_mul_i32 s38, s76, 8320
        s_add_u32 s38, s38, %d
        s_mul_i32 s39, s76, 4608
        s_add_u32 s39, s39, %d
        s_mov_b32 s78, 0''' % (L_SCR, L_TAB, L_U))
        self.srds()
        L = self.lab('NI')
        a('''s_cmp_eq_u32 s34, 7
        s_cbranch_scc0 {L}
        s_and_b32 s76, s2, 0xffffffc7
        s_cbranch_scc1 {L}
        s_mov_b32 s78, 1
        s_lshl_b32 s76, s36, 12
        s_add_u32 s76, s76, {fl}
        v_lshlrev_b32 v2, 4, v1
        v_mov_b32 v4, 0
        v_mov_b32 v5, 0
        v_mov_b32 v6, 0
        v_mov_b32 v7, 0
        buffer_store_dwordx4 v[4:7], v2, {ws}, s76 offen sc1
        buffer_store_dwordx4 v[4:7], v2, {ws}, s76 offen offset:1024 sc1
        buffer_store_dwordx4 v[4:7], v2, {ws}, s76 offen offset:2048 sc1
        buffer_store_dwordx4 v[4:7], v2, {ws}, s76 offen offset:3072 sc1
        {L}:'''.format(L=L, fl=FL, ws=WS_))
        self.s_param_loads()
        self.scode(False)
    def nwave(self):
        a = self.a
        a('''s_and_b32 s60, s34, 1
        s_lshr_b32 s76, s34, 1
        s_mul_i32 s61, s35, 80
        s_lshl_b32 s77, s36, 2
        s_add_u32 s61, s61, s77
        s_add_u32 s61, s61, s76
        s_sub_u32 s61, s61, 48
        s_lshl_b32 s37, s76, 14
        s_add_u32 s37, s37, %d
        s_mul_i32 s38, s76, 8320
        s_add_u32 s38, s38, %d
        s_mul_i32 s39, s76, 4608
        s_lshl_b32 s62, s35, 3
        s_add_u32 s62, s62, s36
        s_sub_u32 s62, s62, 24
        s_lshl_b32 s63, s62, 5
        s_lshl_b32 s76, s34, 2
        s_add_u32 s63, s63, s76
        s_mul_i32 s64, s63, 1280
        v_lshrrev_b32 v4, 4, v1
        v_and_b32 v5, 15, v1
        v_mul_u32_u24 v6, 1280, v4
        v_lshl_add_u32 v6, v5, 4, v6''' % (N_SCR, N_TAB))
        self.srds()
        XI = 32; XF = 64
        for i in range(5): a('buffer_load_dwordx4 v[%d:%d], v6, %s, s64 offen offset:%d' % (XI + 4 * i, XI + 4 * i + 3, X_, 256 * i))
        self.s_param_loads()
        a('''s_and_b32 s76, s34, 1
        s_lshl_b32 s76, s76, 4
        s_lshr_b32 s77, s34, 1
        s_lshl_b32 s77, s77, 2
        s_add_u32 s76, s76, s77
        v_add_u32 v6, s76, v4
        v_mul_u32_u24 v6, {ts}, v6
        v_lshl_add_u32 v6, v5, 4, v6
        v_and_b32 v7, 3, v1
        v_bfe_u32 v8, v1, 2, 2
        v_lshl_add_u32 v7, v7, 2, v8
        v_mul_u32_u24 v7, {ts}, v7
        v_lshl_add_u32 v7, v4, 3, v7
        s_mul_i32 s76, s34, 160
        v_add_u32 v7, s76, v7
        v_lshlrev_b32 v8, 14, v4
        v_lshl_add_u32 v8, v5, 4, v8
        s_mul_i32 s65, s34, {cq}
        s_lshl_b32 s76, s62, 8
        s_add_u32 s65, s65, s76
        v_mov_b32 v10, 0
        v_mov_b32 v11, 0
        v_mov_b32 v12, 0
        v_mov_b32 v13, 0'''.format(ts=TSTR, cq=20 * 16384))
        for i in range(5):
            a('s_waitcnt vmcnt(%d)' % (14 + 4 - i))
            for d in range(4):
                s = XI + 4 * i + d; f = XF + 8 * i + 2 * d
                a('''v_lshlrev_b32 v{f}, 16, v{s}
                v_and_b32 v{f1}, 0xffff0000, v{s}
                v_pk_add_f32 v[10:11], v[10:11], v[{f}:{f1}]
                v_pk_fma_f32 v[12:13], v[{f}:{f1}], v[{f}:{f1}], v[12:13]'''.format(f=f, f1=f + 1, s=s))
        self.stamp(1)
        a('v_add_f32 v10, v10, v11\nv_add_f32 v12, v12, v13')
        for sh in (8, 4, 2, 1):
            a('v_add_f32 v10, v10, v10 row_ror:%d\nv_add_f32 v12, v12, v12 row_ror:%d' % (sh, sh))
        rb = lambda d, s: 'v_cvt_pk_bf16_f32 v%d, v%d, v%d\nv_lshlrev_b32 v%d, 16, v%d' % (d, s, s, d, d)
        EPS = f32(1e-5)
        a('v_mul_f32 v10, {c}, v10\nv_mul_f32 v12, {c}, v12\nv_fma_f32 v12, -v10, v10, v12\nv_max_f32 v12, 0, v12'.format(c=f32(1.0 / 640)))
        a(rb(11, 10))
        a(rb(13, 12)); a('v_add_f32 v13, %s, v13' % EPS); a(rb(13, 13)); a('v_sqrt_f32 v13, v13'); a(rb(13, 13))
        a('v_rcp_f32 v14, v13\nv_mul_f32 v15, v11, v14\nv_sub_f32 v15, 0, v15')
        for i in range(5):
            for d in range(4):
                s = XI + 4 * i + d; f = XF + 8 * i + 2 * d
                a('v_pk_fma_f32 v[{f}:{f1}], v[{f}:{f1}], v[14:15], v[14:15] op_sel:[0,0,1] op_sel_hi:[1,0,1]\nv_cvt_pk_bf16_f32 v{s}, v{f}, v{f1}'.format(f=f, f1=f + 1, s=s))
            a('ds_write_b128 v6, v[%d:%d] offset:%d' % (XI + 4 * i, XI + 4 * i + 3, 256 * i))
        a('v_sub_f32 v10, v10, v11\nv_mul_f32 v10, v10, v14'); a(rb(10, 10))
        a('v_mul_f32 v12, v12, v14\nv_mul_f32 v12, v12, v14'); a(rb(12, 12)); a('v_add_f32 v12, %s, v12' % EPS); a(rb(12, 12)); a('v_sqrt_f32 v12, v12'); a(rb(12, 12))
        a('v_fma_f32 v10, -v10, v13, -v11\nv_mul_f32 v11, v13, v12')
        a('s_waitcnt lgkmcnt(0)\ns_barrier')
        for i in range(5):
            for e in range(2):
                a('ds_read_b64_tr_b16 v[%d:%d], v7 offset:%d' % (XI + 4 * i + 2 * e, XI + 4 * i + 2 * e + 1, 32 * i + 16 * TSTR * e))
        for i in range(5):
            a('s_waitcnt lgkmcnt(%d)\ns_add_u32 s76, s65, %d\nbuffer_store_dwordx4 v[%d:%d], v8, %s, s76 offen sc1' % (8 - 2 * i, XT + i * 4 * 16384, XI + 4 * i, XI + 4 * i + 3, WS_))
        self.poll_go(12, 13)
        a('''s_lshl_b32 s76, s63, 3
        s_add_u32 s76, s76, {st}
        v_lshlrev_b32 v12, 3, v4
        v_cmp_eq_u32 vcc, 0, v5
        s_and_saveexec_b64 s[68:69], vcc
        buffer_store_dwordx2 v[10:11], v12, {ws}, s76 offen sc1
        s_mov_b64 exec, s[68:69]'''.format(st=ST, ws=WS_))
        self.scode(True)

    def build(self):
        a = self.a
        self.prologue()
        a('s_cmp_ge_u32 s36, 24\ns_cbranch_scc1 L_N\ns_cmp_ge_u32 s34, 4\ns_cbranch_scc1 L_S')
        self.sel = SEL['G']; self.gwave()
        self.sel = SEL['S']; a('L_S:'); self.swave()
        self.sel = SEL['N']; a('L_N:'); self.nwave()
        a('L_FIN:')
        self.dump_stamps()
        for o_ in self.opts:
            if o_.startswith('pad='):
                a('''s_cmp_eq_u32 s34, 0
                s_cbranch_scc0 L_END
                s_cmp_lt_u32 s36, 20
                s_cbranch_scc0 L_END
                L_PAD:
                s_memrealtime s[98:99]
                s_waitcnt lgkmcnt(0)
                s_sub_u32 s77, s98, s96
                s_cmp_lt_u32 s77, %d
                s_cbranch_scc1 L_PAD''' % int(o_[4:]))
        if 'span' in self.opts:
            a('''s_cmp_eq_u32 s34, 0
            s_cbranch_scc0 L_END
            s_waitcnt vmcnt(0)
            s_memrealtime s[98:99]
            s_memtime s[76:77]
            s_waitcnt lgkmcnt(0)
            s_not_b32 s97, s96
            s_sub_u32 s76, s76, s100
            s_sub_u32 s77, s98, s96
            s_mov_b64 exec, 1
            v_mov_b32 v0, 0
            v_mov_b32 v1, s97
            v_mov_b32 v2, s98
            v_mov_b32 v3, s96
            v_mov_b32 v4, s76
            v_mov_b32 v5, s77
            global_atomic_umax v0, v1, s[30:31]
            global_atomic_umax v0, v2, s[30:31] offset:4
            global_atomic_umax v0, v3, s[30:31] offset:8
            global_atomic_umax v0, v4, s[30:31] offset:12
            global_atomic_umax v0, v5, s[30:31] offset:16''')
        a('L_END:')
        body = a.finish()
        ref = open('parallel_sum__ssm_conv_s4d__mixer_channel_mlp__prompt.s.ref').read()
        head = ''.join(l + '\n' for l in ref.split('\n') if l.startswith(';') and '@launch' not in l)
        return head + '''; @launch grid=(256,1,1) block=(512,1,1) lds=163840
.amdgcn_target "amdgcn-amd-amdhsa--gfx950"
.text
.globl {n}
.p2align 8
.type {n},@function
{n}:
{body}    s_endpgm
.section .rodata,"a"
.p2align 6
.amdhsa_kernel {n}
  .amdhsa_next_free_vgpr 256
  .amdhsa_next_free_sgpr 102
  .amdhsa_accum_offset 256
  .amdhsa_group_segment_fixed_size 0
  .amdhsa_kernarg_size 120
  .amdhsa_user_sgpr_count 2
  .amdhsa_user_sgpr_kernarg_segment_ptr 1
  .amdhsa_system_sgpr_workgroup_id_x 1
  .amdhsa_float_denorm_mode_32 3
.end_amdhsa_kernel
'''.format(n=NAME, body=body)
if __name__ == '__main__':
    out = sys.argv[1]; opts = sys.argv[2:]
    g = G('stamps' in opts, opts); s = g.build(); open(out, 'w').write(s)
    print('wrote', out, len(s), 'bytes; nops inserted', g.a.nops)
```

```python
import sys, math, struct
sys.path.insert(0, 'work')
from asmdsl import Asm, interleave
NAME = 'parallel_sum__ssm_conv_s4d__mixer_channel_mlp__prompt_kernel'
def f32(x): return '0x%08x' % struct.unpack('<I', struct.pack('<f', x))[0]
LOG2E = math.log2(math.e)
XT, HH, AA, FL, DBG = 0x000000, 0x400000, 0xA00000, 0xD00000, 0xE00000
ST, FX, EP, FH, FA = FL, FL + 0x8000, FL + 0xC000, FL + 0x10000, FL + 0x40000
WS_BYTES = 0x1000000
XR = 131072
L_TAB, L_U, L_CS, L_ST = XR, XR + 2 * 8320, XR + 2 * 8320 + 2 * 4608, XR + 2 * 8320 + 2 * 4608 + 1024
L_NON = L_ST + 1024
VN = 27
L_AT = XR
L_RED = 0
N_T, N_TAB, N_U = 0, 49152, 49152 + 4 * 8320
TSTR = 1296
sWV, sXCD, sJ = 34, 35, 36
X_, W1_, W2_, WS_, OUT_ = 's[40:43]', 's[44:47]', 's[48:51]', 's[52:55]', 's[56:59]'
POLLMAX = 0x8000
BARPOS = [0.85, 1.0, 1.0, 1.0, 1.0, 1.0, 1.0]
RB8, RB9 = 8, 10
FLAG0 = 40
FLAG1 = 6
THR = None
LORD = [2, 3, 4, 5, 0, 1, 6, 7]
XHOOK = 0.3
TOUCH = [0.32, 0.45, 0.7]
SLP = 4
XST = 2
XI = 228
NL0, NL1 = 4, 8
SA = 84
OUTAUX = ''
import os
SELS = {
 'main': {'G': [0, 'b0', 'b9', 5, 6, 7, 10, 11, 12], 'S': [0, 2, 3, 'st', 5, 6, 'R', 8, 10]},
 'start': {'G': [0, 'srd', 'd0', 'd1', 'w0', 'b0', 'w1', 'b1', 'b2'], 'S': [0, 'pl', 'a0', 2, 'ln', 1, 'xs', 'xf', 3]},
 'g1': {'G': [0, 'b0', 'b1', 'b2', 'b3', 'b4', 'b6', 'b8', 'b9'], 'S': [0, 2, 'xf', 3, 'st', 4, 5, 6, 'R']},
 'mid': {'G': [0, 'b9', 5, 't1', 't2', 't3', 'B1', 'f0', 6], 'S': [0, 3, 4, 5, 6, 'r1', 'u', 'R', 7]},
 'ln': {'G': [0, 'b5', 'b6', 'b7', 'a8', 'b8', 'a9', 'w9', 'b9'], 'S': [0, 2, 'ln', 1, 'l4', 'xs', 'xf', 3, 'st']},
 'g2': {'G': [0, 's0', 's2', 's5', 's8', 's11', 's14', 's17', 's23'], 'S': [0, 7, 8, 9, 10, 11, 12]},
 'none': {'G': [0, 'b0', 'b2', 'b9', 7, 11, 12], 'S': [0, 2, 'xs', 3, 7, 9]},
 'end': {'G': [0, 7, 8, 10, 9, 11, 12, 13, 14], 'S': [0, 7, 8, 9, 10, 'h1', 11, 12]},
}
CLK = 's_memtime' if os.environ.get('CYC') else 's_memrealtime'
SEL = SELS[os.environ.get('SEL', 'main')]
SEL['N'] = SEL['S']
for _k in ('BARPOS', 'XHOOK', 'XST', 'NL0', 'NL1', 'FLAG0', 'FLAG1', 'THR', 'SLP', 'TOUCH', 'SA', 'OUTAUX', 'RB8', 'RB9'):
    if os.environ.get(_k): globals()[_k] = eval(os.environ[_k])
class G:
    def __init__(self, stamps=False, opts=()):
        self.a = Asm(); self.stamps = stamps; self.nlab = 0; self.opts = set(opts); self.sel = None
    def lab(self, p='L'):
        self.nlab += 1; return '%s%d' % (p, self.nlab)
    def stamp(self, k):
        if 'padat=%s' % k in self.opts: self.a('s_memrealtime s[96:97]')
        if self.stamps and k in self.sel:
            i = self.sel.index(k); self.a('%s s[%d:%d]' % (CLK, 80 + 2 * i, 81 + 2 * i))
    def dump_stamps(self):
        if not self.stamps: return
        a = self.a
        a('s_lshl_b32 s60, s2, 3\ns_add_u32 s60, s60, s%d\ns_lshl_b32 s60, s60, 6\ns_add_u32 s60, s60, %d' % (sWV, DBG))
        a('s_mov_b64 exec, -1\nv_mov_b32 v0, 0')
        a('s_memtime s[76:77]\n' + CLK + ' s[98:99]\ns_waitcnt lgkmcnt(0)\ns_sub_u32 s100, s76, s100')
        for k in range(11):
            a('v_mov_b32 v1, s%d\nbuffer_store_dword v1, v0, %s, s60 offen offset:%d' % (80 + 2 * k, WS_, 4 * k))
    def poll(self, load, check):
        L = self.lab('P'); E = self.lab('PE')
        self.a('s_mov_b32 s79, 0\n%s:\n%s\ns_add_u32 s79, s79, 1\ns_waitcnt vmcnt(0)\n%s\ns_cbranch_vccz %s\ns_sleep %d\ns_cmp_gt_u32 s79, %d\ns_cbranch_scc0 %s\n%s:' % (L, load, check, E, SLP, POLLMAX, L, E))
    def spoll(self, n, off):
        a = self.a
        D = list(range(64, 76)) + [16, 17, 18, 19]
        L = self.lab('SP'); E = self.lab('SE')
        a('s_add_u32 s22, s32, s%d\ns_addc_u32 s23, s33, 0\ns_mov_b32 s79, 0\n%s:' % (off, L))
        for i in range(n): a('s_load_dword s%d, s[22:23], %d glc' % (D[i], 128 * i))
        a('s_add_u32 s79, s79, 1\ns_waitcnt lgkmcnt(0)\ns_xor_b32 s76, s%d, s21' % D[0])
        for i in range(1, n): a('s_xor_b32 s77, s%d, s21\ns_or_b32 s76, s76, s77' % D[i])
        a('s_cbranch_scc0 %s\ns_sleep %d\ns_cmp_gt_u32 s79, %d\ns_cbranch_scc0 %s\n%s:' % (E, SLP, POLLMAX, L, E))
    def nonce0(self): self.a('s_mov_b32 s76, %d\ns_load_dword s21, s[32:33], s76' % EP)
    def nonce2(self): return 's_mul_i32 s21, s21, 0x9e3779b1\ns_add_u32 s21, s21, 0x7f4a7c15'
    def flag(self, v, soff):
        return 's_mov_b64 exec, 0xff\nbuffer_store_dwordx4 v[%d:%d], v%d, %s, s%d offen sc1\ns_mov_b64 exec, -1' % (v, v + 3, v + 4, WS_, soff)
    def flag_regs(self, v):
        return ['v_mov_b32 v%d, s21' % (v + i) for i in range(4)] + ['v_lshlrev_b32 v%d, 4, v1' % (v + 4)]
    def prologue(self):
        a = self.a
        a('''s_cmp_ge_u32 s2, 256
        s_cbranch_scc1 L_END
        s_load_dwordx16 s[4:19], s[0:1], 0
        s_load_dwordx8 s[20:27], s[0:1], 64
        s_load_dwordx4 s[28:31], s[0:1], 96
        s_load_dwordx2 s[32:33], s[0:1], 112''')
        if self.stamps:
            a('s_memtime s[100:101]\n' + CLK + ' s[80:81]')
            for k in range(1, 10): a('s_mov_b32 s%d, 0' % (80 + 2 * k))
        if 'span' in self.opts or any(o.startswith('pad=') for o in self.opts): a('s_memrealtime s[96:97]\ns_memtime s[100:101]')
        a('''v_lshrrev_b32 v2, 6, v0
        v_and_b32 v1, 63, v0
        s_and_b32 s35, s2, 7
        v_readfirstlane_b32 s34, v2
        s_lshr_b32 s36, s2, 3
        s_mov_b32 s42, %d
        s_mov_b32 s43, 0x20000
        s_mov_b32 s46, %d
        s_mov_b32 s47, 0x20000
        s_mov_b32 s50, %d
        s_mov_b32 s51, 0x20000
        s_mov_b32 s54, %d
        s_mov_b32 s55, 0x20000
        s_mov_b32 s58, %d
        s_mov_b32 s59, 0x20000''' % (2048 * 1280, 640 * 3072, 1536 * 1280, WS_BYTES, 2048 * 1280))
    def srds(self):
        self.a('''s_waitcnt lgkmcnt(0)
        s_mov_b32 s40, s4
        s_mov_b32 s41, s5
        s_mov_b32 s44, s20
        s_mov_b32 s45, s21
        s_mov_b32 s48, s24
        s_mov_b32 s49, s25
        s_mov_b32 s52, s32
        s_mov_b32 s53, s33
        s_mov_b32 s56, s28
        s_mov_b32 s57, s29''')
        self.stamp('srd')
    def g12_ids(self):
        self.a('''s_mul_i32 s60, s36, 43
        s_lshr_b32 s60, s60, 8
        s_mul_i32 s61, s60, 6
        s_sub_u32 s61, s36, s61
        s_lshr_b32 s64, s35, 1
        s_and_b32 s65, s35, 1
        s_lshl_b32 s37, s64, 2
        s_add_u32 s37, s37, s60
        s_mul_i32 s38, s65, 6
        s_add_u32 s38, s38, s61
        s_mul_i32 s39, s60, 5
        s_lshr_b32 s39, s39, 1
        s_mul_i32 s66, s61, 427
        s_lshr_b32 s66, s66, 8
        s_add_u32 s39, s39, s66
        s_add_u32 s39, s39, s65
        s_mul_i32 s66, s64, 3
        s_lshr_b32 s66, s66, 2
        s_add_u32 s39, s39, s66
        s_cmp_ge_u32 s39, 10
        s_cselect_b32 s66, 10, 0
        s_sub_u32 s39, s39, s66
        s_cmp_ge_u32 s36, 10
        s_cselect_b32 s62, 1, 0
        s_mul_i32 s63, s62, 10
        s_sub_u32 s63, s36, s63
        s_lshl_b32 s66, s35, 1
        s_add_u32 s62, s62, s66''')
    def g2_offsets(self):
        a = self.a
        a('s_lshl_b32 s4, s63, 10')
        for i in range(1, 12):
            a('s_add_u32 s%d, s%d, 1024\ns_cmp_eq_u32 s%d, 12288\ns_cselect_b32 s%d, 0, s%d' % (4 + i, 3 + i, 4 + i, 4 + i, 4 + i))
    def w2_voff(self, v0, wv, t):
        self.a("""s_lshr_b32 s76, s{wv}, 1
        s_mul_i32 s76, s76, {khs}
        s_and_b32 s77, s{wv}, 1
        s_mul_i32 s77, s77, {r16}
        s_add_u32 s76, s76, s77
        s_lshl_b32 s77, s63, 7
        s_add_u32 s76, s76, s77
        v_lshrrev_b32 v{t}, 3, v1
        v_mul_u32_u24 v{v0}, 1280, v{t}
        v_lshrrev_b32 v{t}, 4, v1
        v_lshlrev_b32 v{t}, 1, v{t}
        v_xor_b32 v{t}, v{t}, v1
        v_and_b32 v{t}, 7, v{t}
        v_lshl_add_u32 v{v0}, v{t}, 4, v{v0}
        v_add_u32 v{v0}, s76, v{v0}
        v_add_u32 v{v1}, {d}, v{v0}
        s_lshl_b32 s78, s{wv}, 11""".format(wv=wv, khs=24 * 32 * 1280, r16=16 * 1280, t=t, v0=v0, v1=v0 + 1, d=8 * 1280 - 1024))
    def w2_dma(self, step, slot, v0):
        part, i = step // 12, step % 12
        return ['s_add_u32 m0, s78, %d\ns_mul_i32 s76, s%d, 80\n%sbuffer_load_dwordx4 v%d, %s, s76 offen lds' % (slot * 8192, 4 + i, 's_add_u32 s76, s76, 40960\n' if part else '', v0, W2_),
                'buffer_load_dwordx4 v%d, %s, s76 offen offset:1024 lds' % (v0 + 1, W2_)]
    def w2_round(self, units, v0, thr=None):
        l = []
        for st, sl in units:
            d = self.w2_dma(st, sl, v0)
            if thr is not None: d[0] = 's_waitcnt vmcnt(%d)\n' % thr + d[0]
            l += d
        return l
    def gwave(self):
        a = self.a
        NT = 4
        VX, VW, RX, RW = 16, 20, 24, 26
        RX, RW = 24, 28
        FR = 32
        CS, BS = 64, 72
        AUG = 76
        VB1 = 92
        VCW, VCR, VSR, VBA = 94, 95, 96, 97
        TM = 100
        VB2, VXI = 12, 240
        T, P, KC = 208, 224, 232
        TR, RF, A2, HR = 4, 16, 144, 208
        ACC = [[144, 160], [176, 192]]
        acc = lambda t, nt: A2 + 32 * (t >> 1) + 8 * nt + 4 * (t & 1)
        self.g12_ids()
        a("""s_and_b32 s60, s34, 1
        s_lshr_b32 s61, s34, 1""")
        a("""s_lshl_b32 s76, s37, 7
        s_lshl_b32 s77, s34, 5
        s_add_u32 s76, s76, s77
        s_mul_i32 s76, s76, 1280
        v_lshrrev_b32 v2, 3, v1
        v_mul_u32_u24 v3, 1280, v2
        v_lshrrev_b32 v4, 4, v1
        v_xor_b32 v5, v4, v1
        v_and_b32 v5, 7, v5
        v_lshl_add_u32 v6, v5, 4, v3
        v_xor_b32 v5, 4, v5
        v_lshl_add_u32 v7, v5, 4, v3
        v_add_u32 v%d, s76, v6
        v_add_u32 v7, s76, v7
        v_add_u32 v%d, %d, v7
        v_add_u32 v%d, %d, v%d
        v_add_u32 v%d, %d, v7""" % (VX, VX + 1, 8 * 1280 - 1024, VX + 2, 16 * 1280 - 2048, VX, VX + 3, 24 * 1280 - 3072))
        a("""s_mul_i32 s76, s34, %d
        s_lshl_b32 s77, s38, 8
        s_add_u32 s76, s76, s77
        v_mul_u32_u24 v3, 3072, v4
        v_lshlrev_b32 v5, 2, v4
        v_xor_b32 v5, v5, v1
        v_and_b32 v5, 15, v5
        v_lshl_add_u32 v3, v5, 4, v3
        v_add_u32 v%d, s76, v3""" % (16 * 3072, VW))
        for i in range(1, 4): a('v_add_u32 v%d, %d, v%d' % (VW + i, i * (4 * 3072 - 1024), VW))
        a('s_lshl_b32 s67, s34, 12')
        a("""v_and_b32 v8, 31, v1
        v_lshrrev_b32 v9, 5, v1
        v_and_b32 v10, 15, v1
        v_lshrrev_b32 v11, 4, v1
        v_bfe_u32 v12, v1, 4, 1
        v_bfe_u32 v13, v1, 2, 2
        v_and_b32 v14, 3, v1""")
        a("""v_bfe_u32 v4, v1, 1, 3
        v_xor_b32 v4, v4, v9
        s_lshl_b32 s76, s61, 2
        v_xor_b32 v4, s76, v4
        v_lshlrev_b32 v4, 4, v4
        v_lshl_add_u32 v4, v8, 7, v4
        s_lshl_b32 s76, s61, 13
        v_add_u32 v%d, s76, v4""" % RX)
        for s in range(1, 4): a('v_xor_b32 v%d, %d, v%d' % (RX + s, 32 * s, RX))
        a("""v_lshl_add_u32 v5, v9, 3, v13
        v_lshlrev_b32 v5, 8, v5
        s_lshl_b32 s77, s60, 1
        v_xor_b32 v4, s77, v13
        v_lshl_add_u32 v5, v4, 6, v5
        v_lshl_add_u32 v5, v12, 5, v5
        v_lshl_add_u32 v5, v14, 3, v5
        s_add_u32 s76, s76, 49152
        v_add_u32 v%d, s76, v5
        v_xor_b32 v%d, 64, v%d
        v_xor_b32 v%d, 0x2000, v%d
        v_xor_b32 v%d, 0x2040, v%d""" % (RW, RW + 1, RW, RW + 2, RW, RW + 3, RW))
        a("""v_xor_b32 v4, v11, v1
        v_and_b32 v4, 1, v4
        v_cmp_eq_u32 vcc, 0, v4
        v_mov_b32 v5, 0x3f803f80
        v_cmp_gt_u32 s[64:65], 32, v1
        v_cmp_gt_u32 s[74:75], 2, v10
        v_cndmask_b32 v%d, 0, v5, vcc
        v_cndmask_b32 v%d, 0, v5, vcc
        v_cndmask_b32 v%d, 0, v5, vcc
        v_cndmask_b32 v%d, 0, v5, vcc""" % (BS, BS + 1, BS + 2, BS + 3))
        a("""s_lshl_b32 s76, s61, 9
        s_lshl_b32 s77, s60, 8
        s_add_u32 s77, s77, {cs}
        s_add_u32 s76, s76, s77
        v_lshlrev_b32 v5, 4, v11
        v_lshl_add_u32 v5, v10, 6, v5
        v_add_u32 v{cw}, s76, v5
        v_lshl_add_u32 v{cr}, v8, 2, s77
        s_lshl_b32 s76, s37, 1
        s_add_u32 s76, s76, s61
        s_lshl_b32 s76, s76, 10
        s_add_u32 s76, s76, {st}
        v_lshl_add_u32 v{sr}, v8, 4, s76
        s_lshl_b32 s76, s38, 8
        s_lshl_b32 s77, s60, 7
        s_add_u32 s76, s76, s77
        v_lshl_add_u32 v{ba}, v8, 1, s76
        v_mov_b32 v{b1}, 0
        v_mov_b32 v{b11}, 0""".format(cs=L_CS, st=ST, cw=VCW, cr=VCR, sr=VSR, ba=VBA, b1=VB1, b11=VB1 + 1))
        a("""v_mul_u32_u24 v4, 49152, v12
        v_lshl_add_u32 v4, v9, 8, v4
        v_lshl_add_u32 v2, v10, 4, v4
        s_lshl_b32 s76, s37, 1
        s_add_u32 s76, s76, s61
        s_mul_i32 s68, s76, {b4}
        s_mul_i32 s3, s76, 3072
        s_lshl_b32 s76, s38, 1
        s_add_u32 s76, s76, s60
        s_lshl_b32 s77, s76, 10
        s_add_u32 s68, s68, s77
        s_add_u32 s68, s68, {hh}
        s_add_u32 s69, s68, {b2}
        s_add_u32 s70, s68, 24576
        s_add_u32 s71, s69, 24576
        s_lshl_b32 s76, s76, 7
        s_add_u32 s3, s3, s76
        s_add_u32 s3, s3, {fh}""".format(b4=4 * 49152, b2=2 * 49152, hh=HH, fh=FH))
        a("""s_lshl_b32 s76, s62, 1
        s_add_u32 s76, s76, s61
        s_mul_i32 s72, s76, {r64}
        s_mul_i32 s73, s76, {b4}
        s_mul_i32 s66, s76, 3072
        s_mul_i32 s77, s60, 12288
        s_add_u32 s73, s73, s77
        s_add_u32 s73, s73, {hh}
        s_mul_i32 s77, s60, 1536
        s_add_u32 s66, s66, s77
        s_add_u32 s66, s66, {fh}
        s_min_u32 s76, s63, 9
        s_lshl_b32 s76, s76, 7
        s_lshl_b32 s77, s60, 6
        s_add_u32 s76, s76, s77
        s_add_u32 s72, s72, s76
        v_lshlrev_b32 v4, 5, v12
        v_lshl_add_u32 v4, v9, 4, v4
        v_mul_u32_u24 v5, 1280, v10
        v_add_u32 v3, v4, v5
        v_add_u32 v{ba}, s76, v4""".format(r64=64 * 1280, b4=4 * 49152, hh=HH, fh=FH, ba=VBA + 1))
        a("""v_lshl_add_u32 v15, v12, 2, v13
        v_lshrrev_b32 v5, 1, v15
        v_lshl_add_u32 v15, v9, 4, v15
        v_lshlrev_b32 v15, 7, v15
        s_lshl_b32 s76, s60, 1
        v_xor_b32 v5, s76, v5
        v_lshl_add_u32 v15, v5, 5, v15
        v_lshl_add_u32 v15, v14, 3, v15
        s_lshl_b32 s76, s60, 12
        s_add_u32 s76, s76, 0x10000
        v_add_u32 v4, s76, v15
        v_xor_b32 v5, 32, v4
        v_xor_b32 v6, 64, v4
        v_xor_b32 v7, 96, v4""")
        self.w2_voff(8, sWV, 10)
        self.srds()
        self.nonce0()
        self.g2_offsets()
        def dma(stage):
            idx = stage % 3
            l = []
            for i in range(4):
                pre = 's_add_u32 m0, s67, %d\ns_lshl_b32 s76, s39, 7\n' % (idx * 16384) if i == 0 else ''
                l.append(pre + 'buffer_load_dwordx4 v%d, %s, s76 offen offset:%d lds' % (VX + i, X_, 1024 * i))
            for i in range(4):
                pre = 's_add_u32 m0, s67, %d\ns_mul_i32 s77, s39, %d\n' % (49152 + idx * 16384, 64 * 3072) if i == 0 else ''
                post = '\ns_add_u32 s39, s39, 1\ns_cmp_eq_u32 s39, 10\ns_cselect_b32 s39, 0, s39' if i == 3 else ''
                l.append(pre + 'buffer_load_dwordx4 v%d, %s, s77 offen offset:%d lds' % (VW + i, W1_, 1024 * i) + post)
            return l
        a('s_barrier')
        for x in dma(0): a(x)
        self.stamp('d0')
        a('global_load_short_d16_hi v%d, v%d, s[22:23]\nglobal_load_short_d16_hi v%d, v%d, s[22:23] offset:64' % (VB1, VBA, VB1 + 1, VBA))
        a('global_load_dwordx4 v[%d:%d], v%d, s[26:27]' % (VB2, VB2 + 3, VBA + 1))
        for x in dma(1): a(x)
        self.stamp('d1')
        def reads(stage, s):
            idx = stage % 3; f = FR + 16 * (s & 1)
            l = []
            for mt in range(2):
                for e in range(2):
                    l.append('ds_read_b64_tr_b16 v[%d:%d], v%d offset:%d' % (f + 4 * mt + 2 * e, f + 4 * mt + 2 * e + 1, RW + 2 * (s >> 1) + mt, idx * 16384 + (s & 1) * 4096 + 1024 * e))
            for nt in range(2):
                l.append('ds_read_b128 v[%d:%d], v%d offset:%d' % (f + 8 + 4 * nt, f + 11 + 4 * nt, RX + s, idx * 16384 + 4096 * nt))
            return [l[4], l[0], l[1], l[5], l[2], l[3]]
        def mfmas(s, first):
            f = FR + 16 * (s & 1); n16 = []; n32 = []
            if s < 2:
                for mt in range(2):
                    c = 'v[%d:%d]' % (CS + 4 * mt, CS + 4 * mt + 3)
                    n16.append('v_mfma_f32_16x16x32_bf16 %s, v[%d:%d], v[%d:%d], %s' % (c, f + 4 * mt, f + 4 * mt + 3, BS, BS + 3, '0' if first else c))
            for mt in range(2):
                for nt in range(2):
                    c = 'v[%d:%d]' % (ACC[mt][nt], ACC[mt][nt] + 15)
                    n32.append('v_mfma_f32_32x32x16_bf16 %s, v[%d:%d], v[%d:%d], %s' % (c, f + 4 * mt, f + 4 * mt + 3, f + 8 + 4 * nt, f + 11 + 4 * nt, '0' if first else c))
            return n32, n16
        C1 = -2.0 * LOG2E * math.sqrt(2.0 / math.pi)
        augA0, augB, augA = [], [], []
        for mt in range(2):
            A = AUG + 4 * mt; c = TM + 2 * mt
            augA0 += ['v_cndmask_b32 v%d, 0, v%d, s[64:65]' % (VB1 + mt, VB1 + mt), 'v_lshrrev_b32 v%d, 16, v%d' % (A + 2, VB1 + mt), 'v_mov_b32 v%d, 0' % (A + 3), 'v_mov_b32 v%d, 0' % (A + 11)]
            augA.append(['v_add_f32 v%d, v%d, v%d' % (c, c, c + 1), 'v_cndmask_b32 v%d, 0, v%d, s[64:65]' % (c, c),
                    'v_cvt_pk_bf16_f32 v%d, v%d, v%d' % (A + 1, c, VB1 + mt), 'v_lshlrev_b32 v%d, 16, v%d' % (c + 1, A + 1), 'v_sub_f32 v%d, v%d, v%d' % (c + 1, c, c + 1),
                    'v_cvt_pk_bf16_f32 v%d, v%d, v%d' % (A, c, c + 1)])
        augA = interleave(augA[0], augA[1])
        for nt in range(2):
            B = AUG + 8 + 4 * nt; g = TM + 4 + 4 * nt; k = KC + 4 * nt; t = TM + 12 + 2 * nt
            augB.append(['v_rcp_f32 v%d, v%d' % (t + 1, g + 2), 'v_cvt_pk_bf16_f32 v%d, v%d, v%d' % (B, g, g), 'v_and_b32 v%d, 0xffff0000, v%d' % (t, B), 'v_sub_f32 v%d, v%d, v%d' % (t, g, t),
                    'v_cvt_pk_bf16_f32 v%d, v%d, v%d' % (B + 1, t, g + 2), 'v_and_b32 v%d, 0xffff0000, v%d' % (t, B + 1), 'v_sub_f32 v%d, v%d, v%d' % (t, g + 2, t),
                    'v_cvt_pk_bf16_f32 v%d, v%d, 0' % (B + 2, t), 'v_mov_b32 v%d, v%d' % (k + 2, g + 2), 'v_mul_f32 v%d, %s, v%d' % (k + 1, f32(C1), t + 1),
                    'v_mul_f32 v%d, v%d, v%d' % (t + 1, t + 1, t + 1), 'v_mul_f32 v%d, %s, v%d' % (t + 1, f32(0.044715), t + 1), 'v_mul_f32 v%d, v%d, v%d' % (k, t + 1, k + 1)])
        augB = interleave(augB[0], augB[1])
        xst = lambda st: XST <= st < XST + NT
        for st in range(10):
            self.stamp('a%d' % st)
            a('s_waitcnt vmcnt(%d) lgkmcnt(0)' % (11 if st == 0 else 2 if st == 9 else 10 if st == 8 else 8 + xst(st - 1)))
            self.stamp('w%d' % st)
            a('s_barrier')
            self.stamp('b%d' % st)
            d = dma(st + 2) if st + 2 < 10 else []
            if st == 0: a(self.nonce2())
            stl = 'buffer_load_dwordx4 v[%d:%d], v%d, %s, 0 offen sc1\nbuffer_load_dwordx4 v[%d:%d], v%d, %s, 0 offen offset:512 sc1' % (TM + 4, TM + 7, VSR, WS_, TM + 8, TM + 11, VSR, WS_)
            if st == 7: d[7] += '\n' + stl
            for s in range(4):
                rd = reads(st, s)
                dd = d[2 * s:2 * s + 2]
                if s == 0 and st == 0:
                    for x in rd + dd: a(x)
                    continue
                n32, n16 = mfmas((s - 1) & 3, st == 0 and s == 1)
                if s > 0: a('s_waitcnt lgkmcnt(0)')
                fill = [rd[0:3], rd[3:6], dd[:1], dd[1:]]
                post = []
                if xst(st) and s == 1:
                    nt = st - XST
                    post = ['s_add_u32 s79, s72, %d\nbuffer_load_dwordx4 v[%d:%d], v3, %s, s79 offen' % (nt * 16 * 1280, VXI + 4 * nt, VXI + 4 * nt + 3, X_)]
                if st == 8 and s == 1: fill[2:] = [augA0[:4], augA0[4:]]
                if st == 9:
                    if s == 2:
                        Lok = self.lab('OK')
                        chk = 'v_cmp_ne_u32 vcc, s21, v%d\nv_cmp_ne_u32 s[76:77], s21, v%d\nv_cmp_ne_u32 s[16:17], s21, v%d\nv_cmp_ne_u32 s[18:19], s21, v%d\ns_or_b64 vcc, vcc, s[76:77]\ns_or_b64 vcc, vcc, s[16:17]\ns_or_b64 vcc, vcc, s[18:19]' % (TM + 5, TM + 7, TM + 9, TM + 11)
                        for x in n16: a(x)
                        n16 = []
                        a(n32[0])
                        for x in fill[0]: a(x)
                        a(n32[1])
                        for x in fill[1]: a(x)
                        a(n32[2])
                        a('s_waitcnt vmcnt(0)\n' + chk + '\ns_cbranch_vccz %s' % Lok)
                        self.poll(stl, chk)
                        a('%s:' % Lok)
                        n32 = n32[3:]
                        fill = [['s_mov_b64 exec, s[74:75]\nds_write_b128 v%d, v[%d:%d]\nds_write_b128 v%d, v[%d:%d] offset:128\ns_mov_b64 exec, -1' % (VCW, CS, CS + 3, VCW, CS + 4, CS + 7)] + augB[:6]]
                    if s == 3:
                        a('s_barrier')
                        fill[2:] = [['ds_read2_b32 v[%d:%d], v%d offset0:0 offset1:128' % (TM, TM + 1, VCR), 'ds_read2_b32 v[%d:%d], v%d offset0:32 offset1:160' % (TM + 2, TM + 3, VCR)] + augB[6:10], augB[10:16]]
                for m, f in zip(n32, fill):
                    a(m)
                    for x in f: a(x)
                for x in interleave(n16, post): a(x)
        n32, _ = mfmas(3, False)
        a('s_waitcnt lgkmcnt(0)')
        for m, f in zip(n32, [augA[:5], augA[5:10], augA[10:], augB[16:21]]):
            a(m)
            for x in f: a(x)
        for mt in range(2):
            for nt in range(2):
                c = 'v[%d:%d]' % (ACC[mt][nt], ACC[mt][nt] + 15)
                a('v_mfma_f32_32x32x16_bf16 %s, v[%d:%d], v[%d:%d], %s' % (c, AUG + 4 * mt, AUG + 4 * mt + 3, AUG + 8 + 4 * nt, AUG + 11 + 4 * nt, c))
                if mt + nt == 0:
                    for x in augB[21:]: a(x)
        self.stamp(5)
        def gelu(mt, nt):
            q = ACC[mt][nt]; k = KC + 4 * nt; p = P; l = []
            pr = lambda b, i: 'v[%d:%d]' % (b + 2 * i, b + 2 * i + 1)
            l += ['v_pk_mul_f32 %s, %s, %s' % (pr(T, i), pr(q, i), pr(q, i)) for i in range(8)]
            l += ['v_pk_fma_f32 %s, %s, v[%d:%d], v[%d:%d] op_sel:[0,0,1] op_sel_hi:[1,0,1]' % (pr(T, i), pr(T, i), k, k + 1, k, k + 1) for i in range(8)]
            l += ['v_pk_mul_f32 %s, %s, %s' % (pr(T, i), pr(T, i), pr(q, i)) for i in range(8)]
            l += ['v_exp_f32 v%d, v%d' % (T + i, T + i) for i in range(16)]
            l += ['v_pk_fma_f32 %s, %s, v[%d:%d], v[%d:%d] op_sel_hi:[1,0,0]' % (pr(T, i), pr(T, i), k + 2, k + 3, k + 2, k + 3) for i in range(8)]
            l += ['v_rcp_f32 v%d, v%d' % (T + i, T + i) for i in range(16)]
            l += ['v_pk_mul_f32 %s, %s, %s' % (pr(T, i), pr(T, i), pr(q, i)) for i in range(8)]
            for s in range(2):
                l += ['v_cvt_pk_bf16_f32 v%d, v%d, v%d' % (p + i, T + 2 * i, T + 2 * i + 1) for i in range(4 * s, 4 * s + 4)]
                l.append('buffer_store_dwordx4 v[%d:%d], v2, %s, s%d offen offset:%d sc1' % (p + 4 * s, p + 4 * s + 3, WS_, 68 + nt + 2 * mt, 512 * s))
            return l
        def trreads(buf, slot):
            return ['ds_read_b64_tr_b16 v[%d:%d], v%d offset:%d' % (RF + 16 * buf + 4 * t + 2 * e, RF + 16 * buf + 4 * t + 2 * e + 1, TR + t, (slot % 8) * 8192 + 1024 * e) for t in range(4) for e in range(2)]
        FV = ACC[1][0]
        flag = self.flag(FV, 3) + '\ns_add_u32 s3, s3, %d' % (32 * 3072)
        for x in gelu(0, 0): a(x)
        self.stamp('t1')
        for x in gelu(0, 1): a(x)
        self.stamp('t2')
        for x in gelu(1, 0): a(x)
        for x in self.flag_regs(FV): a(x)
        self.stamp('t3')
        a('s_barrier')
        self.stamp('B1')
        rr = []
        for b in range(8): rr += trreads(b, b)
        g = gelu(1, 1)
        for i, x in enumerate(g):
            if i == FLAG0:
                a('s_waitcnt vmcnt(2)'); a(flag); self.stamp('f0')
            a(x)
            if i < len(rr): a(rr[i])
        self.stamp(6)
        a('s_waitcnt lgkmcnt(0)\ns_barrier')
        self.stamp(7)
        a("""s_cmp_lt_u32 s36, 20
        s_cbranch_scc1 L_G2
        s_waitcnt vmcnt(0)
        {flag}
        s_branch L_FIN
        L_G2:""".format(flag=flag))
        ini = []
        for r in [VB2] + [VXI + 4 * nt for nt in range(NT)]:
            ini += ['v_permlane16_swap_b32 v%d, v%d' % (r, r + 2), 'v_permlane16_swap_b32 v%d, v%d' % (r + 1, r + 3)]
        for i in range(4):
            ini += ['v_lshlrev_b32 v%d, 16, v%d' % (T + 2 * i, VB2 + i), 'v_and_b32 v%d, 0xffff0000, v%d' % (T + 2 * i + 1, VB2 + i)]
        for nt in range(NT):
            for i in range(4):
                s = VXI + 4 * nt + i; o = acc(0, nt) + 2 * i
                ini += ['v_lshlrev_b32 v%d, 16, v%d' % (o, s), 'v_and_b32 v%d, 0xffff0000, v%d' % (o + 1, s),
                        'v_add_f32 v%d, v%d, v%d' % (o, o, T + 2 * i), 'v_add_f32 v%d, v%d, v%d' % (o + 1, o + 1, T + 2 * i + 1)]
        dm = self.w2_round([(2 + k, k) for k in LORD[NL1:]] + [(10 + k, 8 + k) for k in range(8)], 8)
        dm[FLAG1] = 's_waitcnt vmcnt(%d)\n' % FLAG1 + flag + '\n' + dm[FLAG1]
        for x in interleave(dm, ini, per=6): a(x)
        self.stamp(8)
        a("""v_lshl_add_u32 v8, v1, 4, s73
        v_add_u32 v9, 49152, v8
        v_add_u32 v10, %d, v8
        v_add_u32 v11, %d, v8
        v_min_u32 v12, 11, v1
        v_lshlrev_b32 v12, 7, v12""" % (2 * 49152, 3 * 49152))
        self.poll('buffer_load_dword v13, v12, %s, s66 offen sc1' % WS_, 'v_cmp_ne_u32 vcc, s21, v13')
        self.stamp(10)
        RING = 3 * NT; NJ = 24 * NT
        def hload(j):
            s, nt = j // NT, j % NT
            r = HR + 16 * (s % 3) + 4 * nt
            if 'noh' in self.opts and j >= RING: return 's_nop 0'
            if 'hsame' in self.opts: return 'buffer_load_dwordx4 v[%d:%d], v%d, %s, s%d offen sc1' % (r, r + 3, 8 + nt, WS_, 4 + s % 3)
            return ('v_add_u32 v%d, 24576, v%d\n' % (8 + nt, 8 + nt) if s == 12 else '') + 'buffer_load_dwordx4 v[%d:%d], v%d, %s, s%d offen %s' % (r, r + 3, 8 + nt, WS_, 4 + s % 12, '' if 'hplain' in self.opts else 'sc1')
        RING = 3 * NT; NJ = 24 * NT
        for j in range(RING): a(hload(j))
        a("""s_lshl_b32 s76, s34, 13
        v_lshl_add_u32 v2, v1, 4, s76
        v_bfe_u32 v14, v1, 2, 3
        s_lshl_b32 s76, s61, 2
        v_xor_b32 v14, s76, v14
        v_lshlrev_b32 v14, 5, v14
        v_lshrrev_b32 v15, 2, v1
        v_lshl_add_u32 v14, v15, 8, v14
        v_and_b32 v15, 3, v1
        v_lshl_add_u32 v14, v15, 3, v14
        s_mul_i32 s16, s60, 8320
        s_add_u32 s16, s16, %d
        s_barrier
        s_barrier""" % L_TAB)
        self.stamp(9)
        def wbuf(s): return s if s < 2 else (s - 16 if s >= 18 else (s & 1))
        vm = list(range(RING))
        AZ = RF
        JF = 12 * NT - RING + 1
        extra = []
        for s in range(24):
            wb = RF + 16 * wbuf(s); nxt = s + 1; rd = []
            if 2 <= nxt < 18:
                if nxt in (2, 10): extra += ['v_add_u32 v%d, %s, v%d' % (r, '0x10000' if nxt == 10 else '0xffff0000', r) for r in range(4, 8)]
                rd = trreads(wbuf(nxt), nxt - 2)
            if s == 18: extra += ['v_xor_b32 v%d, %d, v14' % (4 + nt, 32 * nt) for nt in range(NT)] + ['v_add_u32 v%d, s16, v%d' % (4 + nt, 4 + nt) for nt in range(NT)]
            if nxt in (2, 10):
                for x in extra: a(x)
                extra = []
            wl = 2 <= s < 18
            order = [(nt, t) for nt in range(NT) for t in range(4)]
            if s == 23: order = [(nt, t) for nt in range(NT) for t in (2, 3)] + [(nt, t) for nt in range(NT) for t in (0, 1)]
            wr = []
            for k, (nt, t) in enumerate(order):
                j = s * NT + nt
                if j in vm:
                    n = len(vm) - 1 - vm.index(j); vm = vm[vm.index(j) + 1:]
                    a('s_waitcnt vmcnt(%d)' % n + (' lgkmcnt(0)' if wl else '')); wl = False
                r = HR + 16 * (s % 3) + 4 * nt
                c = 'v[%d:%d]' % (acc(t, nt), acc(t, nt) + 3)
                a('v_mfma_f32_16x16x32_bf16 %s, v[%d:%d], v[%d:%d], %s' % (c, wb + 4 * t, wb + 4 * t + 3, r, r + 3, '0' if (s == 0 and t >= 2) else c))
                if s == 23:
                    if k >= 8: a('ds_write_b128 v2, v[%d:%d] offset:%d' % (acc(2 + (k & 1), (k - 8) // 2), acc(2 + (k & 1), (k - 8) // 2) + 3, 1024 * (k - 8)))
                    elif extra: a(extra.pop(0))
                    continue
                if t == 1 and j >= 1 and j - 1 + RING < NJ:
                    if j == JF: a('s_barrier')
                    a(hload(j - 1 + RING)); vm.append(j - 1 + RING)
                    if j == SA: a('s_barrier')
                elif rd and t != 3: a(rd.pop(0))
                elif rd and nt < 2: a(rd.pop(0))
                elif extra and t != 3:
                    a(extra.pop(0))
                    if extra: a(extra.pop(0))
            assert not rd
            if s == 0: self.stamp(11)
            self.stamp('s%d' % s)
        self.stamp(12)
        for x in extra: a(x)
        a('v_xor_b32 v2, 0x2000, v2')
        a('s_waitcnt lgkmcnt(0)\ns_barrier')
        self.stamp(13)
        for nt in range(NT):
            for t in range(2):
                a('ds_read_b64_tr_b16 v[%d:%d], v%d offset:%d' % (AZ + 32 + 4 * nt + 2 * t, AZ + 33 + 4 * nt + 2 * t, 4 + nt, 4160 * (1 - t)))
                a('ds_read_b128 v[%d:%d], v2 offset:%d' % (acc(2 + t, nt), acc(2 + t, nt) + 3, 1024 * (2 * nt + t)))
        for nt in range(NT):
            a('s_waitcnt lgkmcnt(%d)' % (4 * (NT - 1 - nt)))
            o = HR + 4 * nt; k = acc(0, nt)
            for d in range(4): a('v_lshlrev_b32 v%d, 16, v%d\nv_and_b32 v%d, 0xffff0000, v%d' % (AZ + 2 * d, AZ + 32 + 4 * nt + d, AZ + 2 * d + 1, AZ + 32 + 4 * nt + d))
            for d in range(4): a('v_pk_add_f32 v[%d:%d], v[%d:%d], v[%d:%d]' % (k + 2 * d, k + 2 * d + 1, k + 2 * d, k + 2 * d + 1, k + 32 + 2 * d, k + 33 + 2 * d))
            for d in range(4): a('v_pk_add_f32 v[%d:%d], v[%d:%d], v[%d:%d]' % (k + 2 * d, k + 2 * d + 1, k + 2 * d, k + 2 * d + 1, AZ + 2 * d, AZ + 2 * d + 1))
            for d in range(4): a('v_cvt_pk_bf16_f32 v%d, v%d, v%d' % (o + d, k + 2 * d, k + 2 * d + 1))
            a('s_add_u32 s76, s72, %d' % (nt * 16 * 1280))
            a('v_permlane16_swap_b32 v%d, v%d\nv_permlane16_swap_b32 v%d, v%d' % (o, o + 2, o + 1, o + 3))
            a('buffer_store_dwordx4 v[%d:%d], v3, %s, s76 offen %s' % (o, o + 3, OUT_, OUTAUX))
        self.stamp(14)
        a('s_branch L_FIN')

    def s_param_pre(self):
        self.a("""s_mul_i32 s76, s61, 384
        v_and_b32 v2, 31, v1
        v_mul_u32_u24 v2, 12, v2
        v_add_u32 v2, s76, v2
        s_lshl_b32 s66, s61, 1
        s_and_b32 s66, s66, 0xfffc""")
    def s_param_loads(self):
        a = self.a
        for k, p in enumerate((6, 8, 10, 12)):
            a('global_load_dwordx3 v[%d:%d], v2, s[%d:%d]' % (16 + 4 * k, 18 + 4 * k, p, p + 1))
        self.nonce0()
        a('s_load_dword s72, s[14:15], s66\ns_load_dword s73, s[16:17], s66')
        self.stamp('pl')
    def cmul(self, d, x, w):
        return ['v_mul_f32 v%d, v%d, v%d' % (d[0], x[1], w[0]), 'v_mul_f32 v%d, v%d, v%d' % (d[1], x[0], w[1]),
                'v_fmac_f32 v%d, v%d, v%d' % (d[0], x[0], w[2]), 'v_fmac_f32 v%d, v%d, v%d' % (d[1], x[1], w[2])]
    def scode(self):
        a = self.a
        tag = 'S'
        SELB, SELA, KA = 32, 40, 52
        FRG = 68
        PB, PA = 68, 84
        DB, DA = 100, 132
        FB, FA2 = 164, 180
        VV = 196
        DT, D2, SC1, SC2 = 48, 49, 50, 51
        a('L_SC:')
        a("""v_lshrrev_b32 v3, 5, v1
        v_cmp_eq_u32 s[74:75], 1, v3
        v_bfe_u32 v4, v1, 4, 1
        v_and_b32 v5, 15, v1
        v_cmp_eq_u32 vcc, v3, v4
        v_cndmask_b32 v5, 64, v5, vcc
        v_and_b32 v6, 3, v1
        v_bfe_u32 v7, v1, 3, 2
        v_lshl_add_u32 v6, v7, 2, v6
        v_add_u32 v7, 1, v6
        v_and_b32 v7, 12, v7
        v_and_b32 v8, 9, v6
        v_cmp_eq_u32 vcc, 1, v8
        s_and_b64 vcc, vcc, s[74:75]
        v_cndmask_b32 v6, v6, v7, vcc
        v_bfe_u32 v4, v1, 2, 1
        v_cmp_eq_u32 vcc, v3, v4
        v_cndmask_b32 v6, 64, v6, vcc
        v_mov_b32 v9, 0x3f80""")
        for v, sel in ((5, SELB), (6, SELA)):
            a('v_and_b32 v7, 1, v{v}\nv_lshlrev_b32 v7, 4, v7\nv_lshlrev_b32 v7, v7, v9\nv_lshrrev_b32 v8, 1, v{v}'.format(v=v))
            for d in range(0, 8, 2):
                a('v_cmp_eq_u32 vcc, %d, v8\nv_cmp_eq_u32 s[76:77], %d, v8\nv_nop\nv_cndmask_b32 v%d, 0, v7, vcc\nv_cndmask_b32 v%d, 0, v7, s[76:77]' % (d, d + 1, sel + d, sel + d + 1))
        a("""v_mov_b32 v4, 0x41000000
        v_mov_b32 v5, 0x43000000
        v_cndmask_b32 v{s1}, v4, v5, s[74:75]
        v_mov_b32 v5, 0x43800000
        v_cndmask_b32 v{s2}, 1.0, v5, s[74:75]
        s_and_b32 s76, s61, 1
        s_xor_b32 s76, s76, 1
        s_lshl_b32 s76, s76, 4
        s_xor_b32 s77, s60, 1
        s_lshl_b32 s77, s77, 4
        s_waitcnt lgkmcnt(0)
        {bp}
        s_lshl_b32 s72, s72, s76
        s_and_b32 s72, s72, 0xffff0000
        s_lshl_b32 s73, s73, s76
        s_and_b32 s73, s73, 0xffff0000
        v_mov_b32 v{dt}, s72
        v_mul_f32 v{dt}, {l2e}, v{dt}
        v_exp_f32 v{dt}, v{dt}
        v_mov_b32 v31, s73
        v_cvt_pk_bf16_f32 v{dt}, v{dt}, v{dt}
        v_lshlrev_b32 v{dt}, 16, v{dt}
        v_add_f32 v{d2}, v{dt}, v{dt}""".format(bp='s_barrier\n' + self.nonce2(), s1=SC1, s2=SC2, dt=DT, d2=D2, l2e=f32(LOG2E)))
        self.stamp('a0')
        Ls = self.lab('NG'); Lx = self.lab('NX')
        Ly = self.lab('NY')
        a('''s_setprio 0
        s_cmp_eq_u32 s37, 0
        s_cbranch_scc1 {Lx}'''.format(Lx=Lx))
        for i in range(5): a('buffer_load_dwordx4 v[%d:%d], v248, %s, s64 offen offset:%d' % (XI + 4 * i, XI + 4 * i + 3, X_, 256 * i))
        a('s_waitcnt vmcnt(5)\ns_branch %s\n%s:\ns_waitcnt vmcnt(0)\n%s:' % (Ls, Lx, Ls))
        self.stamp(2)
        for k in range(4):
            for p in range(3):
                r = 16 + 4 * k + p
                a('v_lshlrev_b32 v%d, s77, v%d\nv_and_b32 v%d, 0xffff0000, v%d' % (r, r, r, r))
        W8, W1, W5 = (VV, VV + 1, VV + 2), (VV + 3, VV + 4, VV + 5), (VV + 6, VV + 7, VV + 8)
        U = VV + 10
        XA = VV + 16
        def setup(p):
            l = """v_mul_f32 v4, {l2e}, v{la}
            v_exp_f32 v4, v4
            v_mul_f32 v5, v{ai}, v{dt}
            v_cvt_pk_bf16_f32 v4, v4, v4
            v_mul_f32 v5, {ci}, v5
            v_lshlrev_b32 v4, 16, v4
            v_mul_f32 v7, v5, v{s1}
            v_mul_f32 v4, v4, v{dt}
            v_mul_f32 v9, v5, v{s2}
            v_mul_f32 v4, {cr}, v4
            v_rndne_f32 v10, v7
            v_rndne_f32 v11, v9
            v_mul_f32 v6, v4, v{s1}
            v_mul_f32 v8, v4, v{s2}
            v_sub_f32 v7, v7, v10
            v_sub_f32 v9, v11, v9
            v_exp_f32 v6, v6
            v_exp_f32 v8, v8
            v_sin_f32 v10, v7
            v_cos_f32 v11, v7
            v_sin_f32 v12, v9
            v_cos_f32 v13, v9
            v_mul_f32 v{w8i}, v10, v6
            v_mul_f32 v{w8r}, v11, v6
            v_mul_f32 v{w1i}, v12, v8
            v_mul_f32 v{w1r}, v13, v8
            v_mul_f32 v{u1}, v10, v6
            v_mul_f32 v{u0}, v11, v6
            v_mul_f32 v{u3}, v12, v8
            v_mul_f32 v{u2}, v13, v8
            v_mul_f32 v4, v{cre}, v{d2}
            v_mul_f32 v5, v{cim}, v{d2}
            v_permlane32_swap_b32 v{w8i}, v{u1}
            v_permlane32_swap_b32 v{w8r}, v{u0}
            v_permlane32_swap_b32 v{w1i}, v{u3}
            v_permlane32_swap_b32 v{w1r}, v{u2}
            v_sub_f32 v{w8n}, 0, v{w8i}
            v_sub_f32 v{w1n}, 0, v{w1i}
            v_cndmask_b32 v{e0}, 1.0, v{u0}, s[74:75]
            v_cndmask_b32 v{e1}, 0, v{u1}, s[74:75]
            v_cndmask_b32 v6, 1.0, v{u2}, s[74:75]
            v_cndmask_b32 v7, 0, v{u3}, s[74:75]
            v_mul_f32 v{w5r}, v{u2}, v{u2}
            v_add_f32 v8, v{u2}, v{u2}
            v_fma_f32 v{w5r}, -v{u3}, v{u3}, v{w5r}
            v_mul_f32 v{w5i}, v8, v{u3}
            v_mul_f32 v{g0}, v4, v6
            v_mul_f32 v{g1}, v4, v7
            v_sub_f32 v{w5n}, 0, v{w5i}
            v_fmac_f32 v{g0}, v5, v7
            v_fma_f32 v{g1}, -v5, v6, v{g1}""".format(l2e=f32(LOG2E), la=16 + p, ai=20 + p, cre=24 + p, cim=28 + p, dt=DT, d2=D2, s1=SC1, s2=SC2,
                ci=f32(1 / (2 * math.pi)), cr=f32(-LOG2E), w8n=W8[0], w8i=W8[1], w8r=W8[2], w1n=W1[0], w1i=W1[1], w1r=W1[2], w5n=W5[0], w5i=W5[1], w5r=W5[2],
                u0=U, u1=U + 1, u2=U + 2, u3=U + 3, e0=XA, e1=XA + 1, g0=XA + 4, g1=XA + 5)
            return [x.strip() for x in l.split('\n')]
        def pack(P, v, x0, x1):
            return ['v_cvt_pk_bf16_f32 v%d, v%d, v%d' % (P + v // 2, x0[0], x1[0]), 'v_cvt_pk_bf16_f32 v%d, v%d, v%d' % (P + 8 + v // 2, x0[1], x1[1])]
        def chainB():
            l = []; r = [(XA, XA + 1), (XA + 2, XA + 3)]
            for v in range(1, 16):
                l += self.cmul(r[v & 1], r[(v - 1) & 1], W8)
                if v & 1: l += pack(PB, v, r[0], r[1])
            return l
        def chainA():
            l = []; reg = {v: (XA + 4 + 2 * k, XA + 5 + 2 * k) for v, k in enumerate([0, 3, 4, 3, 1, 3, 4, 3, 2, 3, 4, 0, 1, 2, 3, 4])}
            src = {9: 0, 10: 4, 11: 8, 12: 9, 13: 11, 14: 12, 15: 13}
            for v in range(1, 16):
                l += self.cmul(reg[v], reg[v - 1] if v < 9 else reg[src[v]], W1 if v < 9 else W5)
                if v & 1: l += pack(PA, v, reg[v - 1], reg[v])
            return l
        def transp(D, P, SEL_):
            l = []
            for sg in range(2):
                for c in range(2):
                    d = 'v[%d:%d]' % (D + 16 * c, D + 16 * c + 15)
                    l.append('v_mfma_f32_32x32x16_bf16 %s, v[%d:%d], v[%d:%d], %s' % (d, P + 8 * c + 4 * sg, P + 8 * c + 4 * sg + 3, SEL_ + 4 * sg, SEL_ + 4 * sg + 3, '0' if sg == 0 else d))
            return l
        def repack(F, D): return ['v_cvt_pk_bf16_f32 v%d, v%d, v%d' % (F + i, D + 2 * i, D + 2 * i + 1) for i in range(16)]
        def mf2(first):
            k = 'v[%d:%d]' % (KA, KA + 15)
            return ['v_mfma_f32_32x32x16_bf16 %s, v[%d:%d], v[%d:%d], %s' % (k, FA2 + 4 * i, FA2 + 4 * i + 3, FB + 4 * i, FB + 4 * i + 3, '0' if (first and i == 0) else k) for i in range(4)]
        seq = setup(0) + chainB()
        for p in range(3):
            seq += interleave(chainA(), transp(DB, PB, SELB), start=2, every=8)
            nx = setup(p + 1) if p < 2 else []
            seq += interleave(repack(FB, DB) + nx, transp(DA, PA, SELA), start=2, every=(8 if nx else 3))
            cb = chainB() if p < 2 else []
            seq += cb[:12] + repack(FA2, DA)
            seq += interleave(cb[12:], mf2(p == 0), start=2, every=8)
            if p == 0: seq.append('s_cmp_eq_u32 s37, 0\ns_cbranch_scc0 L_LN\nL_LNR:'); iln = len(seq)
        nb = 0; n = len(seq); xh = False
        for i, x in enumerate(seq):
            while nb < 7 and i >= BARPOS[nb] * n:
                a('s_barrier'); nb += 1
            if not xh and i >= iln + XHOOK * (n - iln):
                self.xhook(); xh = True
            for tp in TOUCH:
                if i == iln + int(tp * (n - iln)):
                    L = self.lab('TC')
                    a('s_cmp_eq_u32 s37, 0\ns_cbranch_scc1 %s' % L); self.touch(); a('%s:' % L)
            a(x)
        self.stamp(3)
        assert nb <= 5
        a("""s_xor_b32 s76, s60, 1
        s_mul_i32 s76, s76, 4160
        s_add_u32 s76, s76, s38
        v_lshl_add_u32 v4, v1, 4, s76
        s_mul_i32 s76, s60, 4160
        s_add_u32 s76, s76, s38
        v_lshl_add_u32 v5, v1, 4, s76
        v_mov_b32 v8, 0
        v_mov_b32 v9, 0
        v_mov_b32 v10, 0
        v_mov_b32 v11, 0
        v_lshl_add_u32 v6, v1, 3, s39
        ds_write_b64 v6, v[8:9]""")
        for k in range(4): a('ds_write_b128 v4, v[%d:%d] offset:%d' % (KA + 4 * k, KA + 4 * k + 3, 1024 * k))
        a('s_waitcnt lgkmcnt(0)\ns_barrier'); nb += 1
        self.stamp(4)
        for k in range(4): a('ds_read_b128 v[%d:%d], v5 offset:%d' % (FRG + 4 * k, FRG + 4 * k + 3, 1024 * k))
        a('v_cmp_eq_u32 vcc, 0, v1\nv_cndmask_b32 v31, 0, v31, vcc\ns_waitcnt lgkmcnt(0)')
        for r in range(16): a('v_add_f32 v%d, v%d, v%d' % (KA + r, KA + r, FRG + r))
        V = lambda r: KA + r
        a("""v_add_f32 v{v0}, v{v0}, v31
        v_cndmask_b32 v8, 0, v{v0}, vcc
        v_and_b32 v5, 1, v1
        v_cmp_eq_u32 vcc, 0, v5
        v_lshlrev_b32 v5, 4, v1
        s_mul_i32 s76, s60, 4160
        s_add_u32 s76, s76, s38
        s_add_u32 s77, s76, 1008
        v_sub_u32 v6, s77, v5
        s_add_u32 s77, s76, 4096
        v_add_u32 v7, s77, v5
        v_cndmask_b32 v{m0}, v{v13}, v{v12}, vcc
        v_cndmask_b32 v{m1}, v{v15}, v{v14}, vcc
        s_cmp_eq_u32 s60, 0
        s_cbranch_scc0 L{t}_T1""".format(v0=V(0), m0=FRG + 16, m1=FRG + 17, v12=V(12), v13=V(13), v14=V(14), v15=V(15), t=tag))
        def table(c):
            lv = [([V(o) for o in range(9)], 3072), ([V(9)] * 3 + [V(10)] * 3 + [V(11)] * 3, 2048),
                  ([V(12)] * 4 + [FRG + 16] + [V(13)] * 4, 1024), ([V(14)] * 4 + [FRG + 17] + [V(15)] * 4, 0)]
            for n, (t, off) in enumerate(lv):
                for d in range(4):
                    a('v_cvt_pk_bf16_f32 v%d, v%d, v%d' % (FRG + 4 * n + d, t[7 + c - 2 * d], t[6 + c - 2 * d]))
                a('ds_write_b128 v6, v[%d:%d] offset:%d' % (FRG + 4 * n, FRG + 4 * n + 3, off))
        table(0)
        a('v_mov_b32 v8, 0\ns_branch L%s_T2\nL%s_T1:' % (tag, tag))
        table(1)
        a('v_cvt_pk_bf16_f32 v8, v8, 0\nL%s_T2:' % tag)
        a('s_mov_b64 exec, 3\nds_write_b128 v7, v[8:11]\ns_mov_b64 exec, -1')
        self.stamp(5)
        Ln = self.lab('NN'); Lu = self.lab('NU')
        a('s_cmp_eq_u32 s37, 0\ns_cbranch_scc0 %s\ns_barrier\n%s:' % (Ln, Ln)); nb += 1
        CA, CB = 4, 8
        a("""v_and_b32 v9, 15, v1
        v_lshrrev_b32 v10, 4, v1
        v_and_b32 v11, 1, v1
        v_xor_b32 v11, 1, v11
        v_mul_u32_u24 v11, 4162, v11
        v_lshl_add_u32 v11, v10, 4, v11
        v_lshlrev_b32 v12, 1, v9
        v_sub_u32 v11, v11, v12
        s_lshl_b32 s76, s60, 8
        s_sub_u32 s76, s38, s76
        s_add_u32 s76, s76, %d
        v_add_u32 v%d, s76, v11""" % (2 * (2047 - 16) - 512 - 192, CA))
        for p in range(1, 4): a('v_add_u32 v%d, %d, v%d' % (CA + p, -1024 * p, CA))
        a("""v_lshlrev_b32 v9, 5, v9
        v_lshl_add_u32 v9, v10, 4, v9
        s_lshl_b32 s76, s60, 8
        s_sub_u32 s76, s39, s76
        s_add_u32 s76, s76, %d
        v_add_u32 v%d, s76, v9""" % (512 - 32 - 192, CB))
        a("""s_lshr_b32 s76, s61, 2
        s_lshl_b32 s76, s76, 14
        s_and_b32 s77, s61, 3
        s_lshl_b32 s77, s77, 4
        s_add_u32 s76, s76, s77
        s_lshl_b32 s77, s60, 13
        s_add_u32 s26, s76, s77
        v_lshlrev_b32 v12, 6, v1
        s_lshl_b32 s77, s60, 11
        s_add_u32 s77, s77, s39
        s_add_u32 s27, s77, 512
        s_and_b32 s3, s34, 3
        v_lshlrev_b32 v10, 4, v1
        s_mov_b32 s20, %d""" % FX)
        xld = 'buffer_load_dword v11, v10, %s, s20 offen sc1' % WS_; xchk = 'v_cmp_ne_u32 vcc, s21, v11'
        udma = """s_mov_b32 m0, s27
        s_add_u32 s77, s26, 3072
        buffer_load_dwordx4 v12, {ws}, s26 offen sc1 lds
        buffer_load_dwordx4 v12, {ws}, s77 offen offset:1024 sc1 lds""".format(ws=WS_)
        Lg = self.lab('NG'); Lw = self.lab('NW'); Lx = self.lab('NX')
        a('s_cmp_eq_u32 s37, 0\ns_cbranch_scc1 %s' % Lg)
        self.poll(xld, xchk)
        self.stamp(6)
        a(udma); a('s_waitcnt vmcnt(0)\ns_branch %s\n%s:' % (Lx, Lg))
        self.g2_offsets_s()
        self.w2_voff(14, 3, 13)
        while nb < 9:
            a('s_barrier'); nb += 1
        a('s_setprio 1\ns_cmp_lt_u32 s36, 20\ns_cbranch_scc0 %s' % Lw)
        Rn = [(s, 8 + k) for k, s in enumerate([0, 1, 18, 19, 20, 21, 22, 23])]
        Rn = Rn[4:] + Rn[:4]
        dm = self.w2_round(Rn, 14)
        for x in dm[:RB8]: a(x)
        a('s_barrier')
        for x in dm[RB8:RB9]: a(x)
        a(xld)
        a('s_barrier')
        for x in dm[RB9:]: a(x)
        Lok = self.lab('OK')
        a('s_waitcnt vmcnt(%d)\n%s\ns_cbranch_vccz %s' % (16 - RB9, xchk, Lok))
        self.poll(xld, xchk)
        a('%s:' % Lok)
        self.stamp(6)
        a(udma)
        for x in self.w2_round([(2 + k, k) for k in LORD[:NL0]], 14): a(x)
        self.stamp('r1')
        a('s_waitcnt vmcnt(%d)' % (2 * NL0 + 2))
        self.stamp('u')
        a('s_barrier')
        for x in self.w2_round([(2 + k, k) for k in LORD[NL0:NL1]], 14): a(x)
        a('s_waitcnt vmcnt(%d)\ns_branch %s\n%s:\ns_barrier\ns_barrier' % (2 * NL1, Lx, Lw))
        self.poll(xld, xchk)
        a(udma); a('s_barrier\ns_waitcnt vmcnt(0)\n%s:' % Lx)
        self.stamp('R')
        a('s_setprio 0\ns_waitcnt lgkmcnt(0)\ns_barrier')
        self.stamp(7)
        YA = 16; FA_ = [48, 112]
        def creads(tt):
            f = FA_[tt & 1]; l = []
            for i in range(8):
                o = (128 if i % 2 == 0 else 0) + 16 * (3 - tt)
                ra = ['ds_read2_b32 v[%d:%d], v%d offset0:%d offset1:%d' % (f + 4 * i + 2 * e, f + 4 * i + 2 * e + 1, CA + i // 2, o + 2 * e, o + 2 * e + 1) for e in range(2)]
                rb = 'ds_read_b128 v[%d:%d], v%d offset:%d' % (f + 32 + 4 * i, f + 35 + 4 * i, CB, 512 * i + 64 * (3 - tt))
                l += ra + [rb]
            return l
        def cm(tt, i, j, first):
            f = FA_[tt & 1]; c = 'v[%d:%d]' % (YA + 4 * (i + j), YA + 4 * (i + j) + 3)
            return 'v_mfma_f32_16x16x32_bf16 %s, v[%d:%d], v[%d:%d], %s' % (c, f + 4 * i, f + 4 * i + 3, f + 32 + 4 * j, f + 35 + 4 * j, '0' if first else c)
        r0 = creads(0)
        for x in r0[:12]: a(x)
        for tt in range(4):
            order = []
            for k in range(8):
                order += [(k, i, j) for i in range(k + 1) for j in range(k + 1) if max(i, j) == k and i + j <= 7]
            seen = set()
            nxt = (r0[12:] if tt == 0 else []) + (creads(tt + 1) if tt < 3 else [])
            issued = 12 if tt == 0 else 24
            extra = 0
            lastk = -1
            if tt > 0: a('s_waitcnt lgkmcnt(0)')
            for (k, i, j) in order:
                if tt == 0 and k != lastk:
                    while issued < 3 * (k + 1): a(nxt.pop(0)); issued += 1
                    a('s_waitcnt lgkmcnt(%d)' % min(15, issued + extra - 3 * (k + 1)))
                    lastk = k
                a(cm(tt, i, j, tt == 0 and (i + j) not in seen)); seen.add(i + j)
                if nxt:
                    a(nxt.pop(0))
                    if issued < 24: issued += 1
                    else: extra += 1
            for x in nxt: a(x)
        self.stamp(8)
        a('''s_mul_i32 s76, s60, 4160
        s_add_u32 s76, s76, s38
        v_lshl_add_u32 v4, v1, 4, s76
        s_xor_b32 s76, s60, 1
        s_mul_i32 s76, s76, 4160
        s_add_u32 s76, s76, s38
        v_lshl_add_u32 v5, v1, 4, s76
        s_waitcnt vmcnt(0)
        s_barrier
        s_cmp_eq_u32 s60, 0
        s_cbranch_scc0 L{t}_R1'''.format(t=tag))
        for k in range(4): a('ds_write_b128 v4, v[%d:%d] offset:%d' % (YA + 16 + 4 * k, YA + 19 + 4 * k, 1024 * k))
        a('s_branch L%s_R2\nL%s_R1:' % (tag, tag))
        for k in range(4): a('ds_write_b128 v4, v[%d:%d] offset:%d' % (YA + 4 * k, YA + 3 + 4 * k, 1024 * k))
        a('s_waitcnt lgkmcnt(0)')
        for k in range(16): a('v_mov_b32 v%d, v%d' % (YA + k, YA + 16 + k))
        a('L%s_R2:\ns_waitcnt lgkmcnt(0)\ns_barrier' % tag)
        for k in range(4): a('ds_read_b128 v[%d:%d], v5 offset:%d' % (48 + 4 * k, 51 + 4 * k, 1024 * k))
        a('''s_lshl_b32 s76, s61, 12
        s_lshl_b32 s77, s60, 11
        s_add_u32 s76, s76, s77
        s_add_u32 s76, s76, %d
        v_lshlrev_b32 v4, 4, v1''' % AA)
        for p in range(2):
            a('s_waitcnt lgkmcnt(%d)' % (2 - 2 * p))
            for k in range(8 * p, 8 * p + 8): a('v_add_f32 v%d, v%d, v%d' % (YA + k, YA + k, 48 + k))
            o = 64 + 4 * p
            for d in range(4): a('v_cvt_pk_bf16_f32 v%d, v%d, v%d' % (o + d, YA + 8 * p + 2 * d, YA + 8 * p + 2 * d + 1))
            a('v_permlane16_swap_b32 v%d, v%d\nv_permlane16_swap_b32 v%d, v%d' % (o, o + 2, o + 1, o + 3))
            a('buffer_store_dwordx4 v[%d:%d], v4, %s, s76 offen offset:%d sc1' % (o, o + 3, WS_, 1024 * p))
        self.stamp(9)
        a('s_mul_i32 s76, s60, 640\ns_add_u32 s76, s76, s61\ns_lshl_b32 s76, s76, 7\ns_add_u32 s76, s76, %d' % FA)
        for x in self.flag_regs(8): a(x)
        a('s_waitcnt vmcnt(0)'); a(self.flag(8, 76))
        self.stamp(10)
        Le = self.lab('EP')
        a('''s_lshl_b32 s76, s34, 8
        s_add_u32 s76, s76, s2
        s_cmp_eq_u32 s76, 192
        s_cbranch_scc0 {L}
        v_lshrrev_b32 v2, 2, v1
        v_mul_u32_u24 v2, 6144, v2
        v_and_b32 v3, 3, v1
        v_lshl_add_u32 v2, v3, 8, v2
        s_mov_b32 s20, {fh}'''.format(L=Le, fh=FH))
        ld = '\n'.join('buffer_load_dword v%d, v2, %s, s20 offen offset:%d sc1' % (3 + i, WS_, 1024 * i) for i in range(3))
        self.poll(ld, 'v_cmp_ne_u32 vcc, s21, v3\nv_cmp_ne_u32 s[76:77], s21, v4\nv_cmp_ne_u32 s[16:17], s21, v5\ns_or_b64 vcc, vcc, s[76:77]\ns_or_b64 vcc, vcc, s[16:17]')
        a('''s_mov_b32 s20, {ep}
        s_mov_b64 exec, 1
        buffer_store_dword v8, off, {ws}, s20 sc1
        s_branch L_FIN
        {L}:'''.format(L=Le, ep=EP, ws=WS_))
        a('s_cmp_lt_u32 s36, 20\ns_cbranch_scc0 L_FIN')
        a('''s_lshl_b32 s76, s62, 1
        s_lshr_b32 s77, s3, 1
        s_add_u32 s76, s76, s77
        s_mul_i32 s20, s76, 3072
        s_and_b32 s77, s3, 1
        s_mul_i32 s77, s77, 1536
        s_add_u32 s20, s20, s77
        s_add_u32 s20, s20, %d''' % (FH + 32 * 3072))
        self.spoll(12, 20)
        self.stamp('h1')
        a('s_barrier')
        a('''s_lshl_b32 s60, s63, 6
        s_lshl_b32 s76, s3, 4
        s_add_u32 s60, s60, s76
        s_lshr_b32 s76, s35, 2
        s_mul_i32 s76, s76, 640
        s_add_u32 s76, s76, s60
        s_lshl_b32 s76, s76, 7
        s_add_u32 s61, s76, {fa}
        v_and_b32 v4, 15, v1
        v_lshrrev_b32 v7, 4, v1
        v_lshlrev_b32 v8, 1, v7
        v_xor_b32 v8, v8, v4
        v_lshrrev_b32 v9, 1, v8
        v_lshlrev_b32 v9, 4, v9
        v_and_b32 v8, 1, v8
        v_lshl_add_u32 v9, v8, 9, v9
        v_lshl_add_u32 v9, v7, 12, v9
        v_xor_b32 v10, 64, v9
        s_lshl_b32 s60, s60, 12
        s_lshr_b32 s76, s35, 1
        s_lshl_b32 s76, s76, 10
        s_add_u32 s60, s60, s76
        s_and_b32 s76, s35, 1
        s_lshl_b32 s76, s76, 8
        s_add_u32 s60, s60, s76
        s_and_b32 s76, s62, 1
        s_lshl_b32 s76, s76, 7
        s_add_u32 s60, s60, s76
        s_add_u32 s60, s60, {aa}
        s_and_b32 s76, s3, 1
        s_xor_b32 s76, s76, 1
        s_mul_i32 s76, s76, 4160
        s_add_u32 m0, s76, s38'''.format(fa=FA, aa=AA))
        self.spoll(16, 61)
        self.stamp(11)
        a('s_barrier')
        for i in range(4):
            a('s_add_u32 s76, s60, %d\nbuffer_load_dwordx4 v%d, %s, s76 offen offset:%d sc1 lds' % (i * (16384 - 1024), 9 + (i & 1), WS_, 1024 * i))
        a('s_waitcnt vmcnt(0)')
        self.stamp(12)
        a('s_barrier\ns_branch L_FIN')
    def touch(self):
        self.a('s_and_b32 s76, s71, 3\ns_mul_i32 s76, s76, %d\ns_add_u32 s76, s76, s70\nbuffer_load_dword v255, v249, %s, s76 offen\ns_add_u32 s71, s71, 1' % (64 * 7680, W2_))
    def xhook(self):
        a = self.a
        L = self.lab('NH')
        a('s_cmp_eq_u32 s37, 0\ns_cbranch_scc1 %s' % L)
        a("""s_waitcnt vmcnt(0)
        s_barrier
        s_cmp_eq_u32 s34, 0
        s_cbranch_scc0 {L}
        s_lshl_b32 s76, s62, 4
        s_add_u32 s76, s76, {fx}""".format(L=L, fx=FX))
        for x in self.flag_regs(250): a(x)
        a(self.flag(250, 76).replace('0xff', '1')); a('%s:' % L)
        self.stamp('xf')
    def g2_offsets_s(self):
        self.a('''s_cmp_ge_u32 s36, 10
        s_cselect_b32 s62, 1, 0
        s_mul_i32 s63, s62, 10
        s_sub_u32 s63, s36, s63
        s_lshl_b32 s66, s35, 1
        s_add_u32 s62, s62, s66''')
        self.g2_offsets()
    def swave(self):
        a = self.a
        self.stamp('in')
        a("""s_setprio 3
        s_and_b32 s60, s34, 1
        s_bfe_u32 s76, s34, 0x10001
        s_mul_i32 s61, s35, 80
        s_lshl_b32 s77, s36, 1
        s_add_u32 s61, s61, s77
        s_add_u32 s61, s61, s76
        s_mov_b32 s37, 0
        v_mov_b32 v248, 0
        v_mov_b32 v249, 0
        s_mul_i32 s38, s76, 8320
        s_add_u32 s38, s38, %d
        s_mul_i32 s39, s76, 4608
        s_add_u32 s39, s39, %d
        s_mov_b32 s78, 0""" % (L_TAB, L_U))
        self.s_param_pre()
        self.srds()
        self.s_param_loads()
        self.scode()
    def nwave(self):
        a = self.a
        self.stamp('in')
        a('''s_and_b32 s60, s34, 1
        s_lshr_b32 s76, s34, 1
        s_mul_i32 s61, s35, 80
        s_lshl_b32 s77, s36, 2
        s_add_u32 s61, s61, s77
        s_add_u32 s61, s61, s76
        s_sub_u32 s61, s61, 48
        s_mov_b32 s37, 1
        s_mul_i32 s38, s76, 8320
        s_add_u32 s38, s38, %d
        s_mul_i32 s39, s76, 4608
        s_add_u32 s39, s39, %d
        s_lshl_b32 s62, s35, 3
        s_add_u32 s62, s62, s36
        s_sub_u32 s62, s62, 24
        s_lshl_b32 s63, s62, 5
        s_lshl_b32 s76, s34, 2
        s_add_u32 s63, s63, s76
        s_mul_i32 s64, s63, 1280
        s_mov_b32 s78, 0
        v_min_u32 v249, 59, v1
        v_lshlrev_b32 v249, 7, v249
        v_lshrrev_b32 v4, 4, v1
        v_and_b32 v5, 15, v1
        v_mul_u32_u24 v6, 1280, v4
        v_lshl_add_u32 v248, v5, 4, v6''' % (N_TAB, N_U))
        self.s_param_pre()
        if 'nocp' not in self.opts:
            L = self.lab('CP')
            a('''s_cmp_eq_u32 s34, 0
            s_cbranch_scc0 {L}
            s_getpc_b64 s[68:69]
            {L}pc:
            s_sub_u32 s68, s68, {L}pc-{n}
            s_subb_u32 s69, s69, 0
            s_sub_u32 s76, s36, 24
            s_lshl_b32 s76, s76, 12
            v_and_b32 v7, 31, v1
            v_lshl_add_u32 v7, v7, 7, s76
            v_min_u32 v7, L_END-{n}, v7
            global_load_dword v255, v7, s[68:69]
            {L}:'''.format(L=L, n=NAME))
        self.srds()
        self.s_param_loads()
        a('s_branch L_SC')
        XF = 100; T0 = 140
        a('L_LN:')
        self.stamp('ln')
        a('''s_sub_u32 s70, s36, 24
        s_lshl_b32 s70, s70, 3
        s_add_u32 s70, s70, s34
        s_mul_i32 s70, s70, 7680
        s_mov_b32 s71, s35''')
        self.touch()
        a('''        v_lshrrev_b32 v4, 4, v1
        v_and_b32 v5, 15, v1
        s_and_b32 s76, s34, 1
        s_lshl_b32 s76, s76, 4
        s_lshr_b32 s77, s34, 1
        s_lshl_b32 s77, s77, 2
        s_add_u32 s76, s76, s77
        v_add_u32 v6, s76, v4
        v_mul_u32_u24 v6, {ts}, v6
        v_lshl_add_u32 v6, v5, 4, v6
        v_and_b32 v7, 3, v1
        v_bfe_u32 v8, v1, 2, 2
        v_lshl_add_u32 v7, v7, 2, v8
        v_mul_u32_u24 v7, {ts}, v7
        v_lshl_add_u32 v7, v4, 3, v7
        s_mul_i32 s76, s34, 160
        v_add_u32 v7, s76, v7
        v_lshlrev_b32 v8, 14, v4
        v_lshl_add_u32 v8, v5, 4, v8
        s_mul_i32 s65, s34, {cq}
        s_lshl_b32 s76, s62, 8
        s_add_u32 s65, s65, s76
        v_mov_b32 v10, 0
        v_mov_b32 v11, 0
        v_mov_b32 v12, 0
        v_mov_b32 v13, 0'''.format(ts=TSTR, cq=20 * 16384, t8=T0 + 8, t9=T0 + 9))
        for i in range(5):
            a('s_waitcnt vmcnt(%d)' % (5 - i))
            for d in range(4):
                s = XI + 4 * i + d; f = XF + 8 * i + 2 * d
                a('''v_lshlrev_b32 v{f}, 16, v{s}
                v_and_b32 v{f1}, 0xffff0000, v{s}
                v_pk_add_f32 v[10:11], v[10:11], v[{f}:{f1}]
                v_pk_fma_f32 v[12:13], v[{f}:{f1}], v[{f}:{f1}], v[12:13]'''.format(f=f, f1=f + 1, s=s))
        self.stamp(1)
        a('v_add_f32 v10, v10, v11\nv_add_f32 v12, v12, v13')
        for sh in (8, 4, 2, 1):
            a('v_add_f32 v10, v10, v10 row_ror:%d\nv_add_f32 v12, v12, v12 row_ror:%d' % (sh, sh))
        rb = lambda d, s: 'v_cvt_pk_bf16_f32 v%d, v%d, v%d\nv_lshlrev_b32 v%d, 16, v%d' % (d, s, s, d, d)
        EPS = f32(1e-5)
        a('v_mul_f32 v10, {c}, v10\nv_mul_f32 v12, {c}, v12\nv_fma_f32 v12, -v10, v10, v12\nv_max_f32 v12, 0, v12'.format(c=f32(1.0 / 640)))
        a(rb(11, 10))
        a(rb(13, 12)); a('v_add_f32 v13, %s, v13' % EPS); a(rb(13, 13)); a('v_sqrt_f32 v13, v13'); a(rb(13, 13))
        a('v_rcp_f32 v14, v13\nv_mul_f32 v15, v11, v14\nv_sub_f32 v15, 0, v15')
        for i in range(5):
            for d in range(4):
                s = XI + 4 * i + d; f = XF + 8 * i + 2 * d
                a('v_pk_fma_f32 v[{f}:{f1}], v[{f}:{f1}], v[14:15], v[14:15] op_sel:[0,0,1] op_sel_hi:[1,0,1]\nv_cvt_pk_bf16_f32 v{s}, v{f}, v{f1}'.format(f=f, f1=f + 1, s=s))
            a('ds_write_b128 v6, v[%d:%d] offset:%d' % (XI + 4 * i, XI + 4 * i + 3, 256 * i))
        a('v_sub_f32 v10, v10, v11\nv_mul_f32 v10, v10, v14'); a(rb(10, 10))
        a('v_mul_f32 v12, v12, v14\nv_mul_f32 v12, v12, v14'); a(rb(12, 12)); a('v_add_f32 v12, %s, v12' % EPS); a(rb(12, 12)); a('v_sqrt_f32 v12, v12'); a(rb(12, 12))
        a('v_fma_f32 v10, -v10, v13, -v11\nv_mul_f32 v12, v13, v12')
        a('''s_lshl_b32 s67, s63, 4
        s_add_u32 s67, s67, {st}
        v_lshlrev_b32 v14, 4, v4
        v_mov_b32 v11, s21
        v_mov_b32 v13, s21
        v_cmp_eq_u32 vcc, 0, v5
        s_and_saveexec_b64 s[68:69], vcc
        buffer_store_dwordx4 v[10:13], v14, {ws}, s67 offen sc1
        s_mov_b64 exec, s[68:69]'''.format(st=ST, ws=WS_))
        self.stamp('l4')
        a('s_waitcnt lgkmcnt(0)\ns_barrier')
        for i in range(5):
            for e in range(2):
                a('ds_read_b64_tr_b16 v[%d:%d], v7 offset:%d' % (XI + 4 * i + 2 * e, XI + 4 * i + 2 * e + 1, 32 * i + 16 * TSTR * e))
        for i in range(5):
            a('s_waitcnt lgkmcnt(%d)\ns_add_u32 s76, s65, %d\nbuffer_store_dwordx4 v[%d:%d], v8, %s, s76 offen sc1' % (8 - 2 * i, XT + i * 4 * 16384, XI + 4 * i, XI + 4 * i + 3, WS_))
        self.stamp('xs')
        a('s_branch L_LNR')

    def build(self):
        a = self.a
        self.prologue()
        a('s_cmp_ge_u32 s36, 24\ns_cbranch_scc1 L_N\ns_cmp_ge_u32 s34, 4\ns_cbranch_scc1 L_S')
        self.sel = SEL['G']; self.gwave()
        self.sel = SEL['S']; a('L_S:'); self.swave()
        self.sel = SEL['N']; a('L_N:'); self.nwave()
        a('L_FIN:')
        self.dump_stamps()
        for o_ in self.opts:
            if o_.startswith('pad='):
                a('''s_cmp_eq_u32 s34, 0
                s_cbranch_scc0 L_END
                s_cmp_lt_u32 s36, 20
                s_cbranch_scc0 L_END''')
                for q_ in self.opts:
                    if q_.startswith('padwg='): a('s_cmp_eq_u32 s2, %d\ns_cbranch_scc0 L_END' % int(q_[6:]))
                a('''L_PAD:
                s_memrealtime s[98:99]
                s_waitcnt lgkmcnt(0)
                s_sub_u32 s77, s98, s96
                s_cmp_lt_u32 s77, %d
                s_cbranch_scc1 L_PAD''' % int(o_[4:]))
        if 'span' in self.opts:
            a('''s_cmp_eq_u32 s34, 0
            s_cbranch_scc0 L_END
            s_waitcnt vmcnt(0)
            s_memrealtime s[98:99]
            s_memtime s[76:77]
            s_waitcnt lgkmcnt(0)
            s_not_b32 s97, s96
            s_sub_u32 s76, s76, s100
            s_sub_u32 s77, s98, s96
            s_mov_b64 exec, 1
            v_mov_b32 v0, 0
            v_mov_b32 v1, s97
            v_mov_b32 v2, s98
            v_mov_b32 v3, s96
            v_mov_b32 v4, s76
            v_mov_b32 v5, s77
            global_atomic_umax v0, v1, s[30:31]
            global_atomic_umax v0, v2, s[30:31] offset:4
            global_atomic_umax v0, v3, s[30:31] offset:8
            global_atomic_umax v0, v4, s[30:31] offset:12
            global_atomic_umax v0, v5, s[30:31] offset:16''')
        a('L_END:')
        body = a.finish()
        ref = open('parallel_sum__ssm_conv_s4d__mixer_channel_mlp__prompt.s.ref').read()
        head = ''.join(l + '\n' for l in ref.split('\n') if l.startswith(';') and '@launch' not in l)
        return head + '''; @launch grid=(256,1,1) block=(512,1,1) lds=163840
.amdgcn_target "amdgcn-amd-amdhsa--gfx950"
.text
.globl {n}
.p2align 8
.type {n},@function
{n}:
{body}    s_endpgm
.section .rodata,"a"
.p2align 6
.amdhsa_kernel {n}
  .amdhsa_next_free_vgpr 256
  .amdhsa_next_free_sgpr 102
  .amdhsa_accum_offset 256
  .amdhsa_group_segment_fixed_size 0
  .amdhsa_kernarg_size 120
  .amdhsa_user_sgpr_count 2
  .amdhsa_user_sgpr_kernarg_segment_ptr 1
  .amdhsa_system_sgpr_workgroup_id_x 1
  .amdhsa_float_denorm_mode_32 3
.end_amdhsa_kernel
'''.format(n=NAME, body=body)
if __name__ == '__main__':
    out = sys.argv[1]; opts = sys.argv[2:]
    g = G('stamps' in opts, opts); s = g.build(); open(out, 'w').write(s)
    print('wrote', out, len(s), 'bytes; nops inserted', g.a.nops)
```

```python
import sys, math, struct
sys.path.insert(0, 'work')
from asmdsl import Asm, interleave
NAME = 'parallel_sum__ssm_conv_s4d__mixer_channel_mlp__prompt_kernel'
def f32(x): return '0x%08x' % struct.unpack('<I', struct.pack('<f', x))[0]
LOG2E = math.log2(math.e)
XT, HH, AA, FL, DBG = 0x000000, 0x400000, 0xA00000, 0xD00000, 0xE00000
ST, FX, EP, FH, FA = FL, FL + 0x8000, FL + 0xC000, FL + 0x10000, FL + 0x40000
WS_BYTES = 0x1000000
XR = 131072
L_TAB, L_U, L_CS, L_ST = XR, XR + 2 * 8320, XR + 2 * 8320 + 2 * 4608, XR + 2 * 8320 + 2 * 4608 + 1024
L_NON = L_ST + 1024
VN = 27
L_AT = XR
L_RED = 0
N_T, N_TAB, N_U = 0, 49152, 49152 + 4 * 8320
TSTR = 1296
sWV, sXCD, sJ = 34, 35, 36
X_, W1_, W2_, WS_, OUT_ = 's[40:43]', 's[44:47]', 's[48:51]', 's[52:55]', 's[56:59]'
POLLMAX = 0x8000
BARPOS = [.45, .7, .9, 1.0, 1.0, 1.0, 1.0]
PPOS, NPH, B1P, RBU, B3B = 8, 16, 22, 4, 0
RB8, RB9 = 8, 10
FLAG0 = 30
ROT = [40, 27, 0, 0]
SPRIO = 0
FLAG1 = 14
THR = 4
NOBP = 0
KPRIO = 1
LORD = [2, 3, 4, 5, 0, 1, 6, 7]
XHOOK = 0.3
TOUCH = [0.32, 0.45, 0.7]
SLP = 4
XST = 3
XI = 228
NL0, NL1 = 4, 8
THR0 = None
FRONT = 0
PK = 1
LNP = 1
PRE2 = 8
W1T = 0
WFIRST = 1
SA = 84
OUTAUX = ''
import os
SELS = {
 'main': {'G': [0, 'b0', 'b9', 5, 6, 7, 10, 11, 12], 'S': [0, 2, 3, 'st', 5, 6, 'R', 8, 10]},
 'start': {'G': [0, 'd0', 'd1', 'd2', 'w0', 'b0', 'b1', 'b2', 'b3'], 'S': [0, 'pl', 'a0', 2, 'ln', 'xs', 3, 4, 5]},
 'g1': {'G': [0, 'b0', 'b1', 'b2', 'b3', 'b4', 'b6', 'b8', 'b9'], 'S': [0, 2, 'xf', 3, 'st', 4, 5, 6, 'R']},
 'mid': {'G': [0, 'b9', 5, 't1', 't2', 't3', 'f0', 6, 7], 'S': [0, 3, 4, 5, 6, 'r1', 'u', 'R', 7]},
 'ln': {'G': [0, 'b5', 'b6', 'b7', 'a8', 'b8', 'a9', 'w9', 'b9'], 'S': [0, 2, 'ln', 1, 'l4', 'xs', 'xf', 3, 'st']},
 'g2': {'G': [0, 's0', 's2', 's5', 's8', 's11', 's14', 's17', 's23'], 'S': [0, 7, 8, 9, 10, 11, 12]},
 'none': {'G': [0, 'b0', 'b2', 'b9', 7, 11, 12], 'S': [0, 2, 'xs', 3, 7, 9]},
 'end': {'G': [0, 7, 'f1', 10, 8, 9, 11, 12, 13], 'S': [0, 7, 8, 9, 10, 'h1', 11, 12]},
}
CLK = 's_memtime' if os.environ.get('CYC') else 's_memrealtime'
SEL = SELS[os.environ.get('SEL', 'main')]
SEL['N'] = SEL['S']
for _k in ('BARPOS', 'XHOOK', 'XST', 'NL0', 'NL1', 'FLAG0', 'FLAG1', 'THR', 'SLP', 'TOUCH', 'SA', 'OUTAUX', 'RB8', 'RB9', 'PPOS', 'NPH', 'B1P', 'RBU', 'ROT', 'NOBP', 'THR0', 'FRONT', 'PK', 'LNP', 'PRE2', 'W1T', 'WFIRST', 'KPRIO', 'SPRIO', 'B3B'):
    if os.environ.get(_k): globals()[_k] = eval(os.environ[_k])
class G:
    def __init__(self, stamps=False, opts=()):
        self.a = Asm(); self.stamps = stamps; self.nlab = 0; self.opts = set(opts); self.sel = None
    def lab(self, p='L'):
        self.nlab += 1; return '%s%d' % (p, self.nlab)
    def stamp(self, k):
        if 'padat=%s' % k in self.opts: self.a('s_memrealtime s[96:97]')
        if self.stamps and k in self.sel:
            i = self.sel.index(k); self.a('%s s[%d:%d]' % (CLK, 80 + 2 * i, 81 + 2 * i))
    def dump_stamps(self):
        if not self.stamps: return
        a = self.a
        a('s_lshl_b32 s60, s2, 3\ns_add_u32 s60, s60, s%d\ns_lshl_b32 s60, s60, 6\ns_add_u32 s60, s60, %d' % (sWV, DBG))
        a('s_mov_b64 exec, -1\nv_mov_b32 v0, 0')
        a('s_memtime s[76:77]\n' + CLK + ' s[98:99]\ns_waitcnt lgkmcnt(0)\ns_sub_u32 s100, s76, s100')
        for k in range(11):
            a('v_mov_b32 v1, s%d\nbuffer_store_dword v1, v0, %s, s60 offen offset:%d' % (80 + 2 * k, WS_, 4 * k))
    def poll(self, load, check):
        L = self.lab('P'); E = self.lab('PE')
        self.a('s_mov_b32 s79, 0\n%s:\n%s\ns_add_u32 s79, s79, 1\ns_waitcnt vmcnt(0)\n%s\ns_cbranch_vccz %s\ns_sleep %d\ns_cmp_gt_u32 s79, %d\ns_cbranch_scc0 %s\n%s:' % (L, load, check, E, SLP, POLLMAX, L, E))
    def spoll(self, n, off):
        a = self.a
        D = list(range(64, 76)) + [16, 17, 18, 19]
        L = self.lab('SP'); E = self.lab('SE')
        a('s_add_u32 s22, s32, s%d\ns_addc_u32 s23, s33, 0\ns_mov_b32 s79, 0\n%s:' % (off, L))
        for i in range(n): a('s_load_dword s%d, s[22:23], %d glc' % (D[i], 128 * i))
        a('s_add_u32 s79, s79, 1\ns_waitcnt lgkmcnt(0)\ns_xor_b32 s76, s%d, s21' % D[0])
        for i in range(1, n): a('s_xor_b32 s77, s%d, s21\ns_or_b32 s76, s76, s77' % D[i])
        a('s_cbranch_scc0 %s\ns_sleep %d\ns_cmp_gt_u32 s79, %d\ns_cbranch_scc0 %s\n%s:' % (E, SLP, POLLMAX, L, E))
    def nonce0(self): self.a('s_mov_b32 s76, %d\ns_load_dword s21, s[32:33], s76' % EP)
    def nonce2(self): return 's_mul_i32 s21, s21, 0x9e3779b1\ns_add_u32 s21, s21, 0x7f4a7c15'
    def flag(self, v, soff):
        return 's_mov_b64 exec, 0xff\nbuffer_store_dwordx4 v[%d:%d], v%d, %s, s%d offen sc1\ns_mov_b64 exec, -1' % (v, v + 3, v + 4, WS_, soff)
    def flag_regs(self, v):
        return ['v_mov_b32 v%d, s21' % (v + i) for i in range(4)] + ['v_lshlrev_b32 v%d, 4, v1' % (v + 4)]
    def prologue(self):
        a = self.a
        a('''s_cmp_ge_u32 s2, 256
        s_cbranch_scc1 L_END
        s_load_dwordx16 s[4:19], s[0:1], 0
        s_load_dwordx8 s[20:27], s[0:1], 64
        s_load_dwordx4 s[28:31], s[0:1], 96
        s_load_dwordx2 s[32:33], s[0:1], 112''')
        if self.stamps:
            a('s_memtime s[100:101]\n' + CLK + ' s[80:81]')
            for k in range(1, 10): a('s_mov_b32 s%d, 0' % (80 + 2 * k))
        if 'span' in self.opts or any(o.startswith('pad=') for o in self.opts): a('s_memrealtime s[96:97]\ns_memtime s[100:101]')
        a('''v_lshrrev_b32 v2, 6, v0
        v_and_b32 v1, 63, v0
        s_and_b32 s35, s2, 7
        v_readfirstlane_b32 s34, v2
        s_lshr_b32 s36, s2, 3
        s_mov_b32 s42, %d
        s_mov_b32 s43, 0x20000
        s_mov_b32 s46, %d
        s_mov_b32 s47, 0x20000
        s_mov_b32 s50, %d
        s_mov_b32 s51, 0x20000
        s_mov_b32 s54, %d
        s_mov_b32 s55, 0x20000
        s_mov_b32 s58, %d
        s_mov_b32 s59, 0x20000''' % (2048 * 1280, 640 * 3072, 1536 * 1280, WS_BYTES, 2048 * 1280))
    def srds(self):
        self.a('''s_waitcnt lgkmcnt(0)
        s_mov_b32 s40, s4
        s_mov_b32 s41, s5
        s_mov_b32 s44, s20
        s_mov_b32 s45, s21
        s_mov_b32 s48, s24
        s_mov_b32 s49, s25
        s_mov_b32 s52, s32
        s_mov_b32 s53, s33
        s_mov_b32 s56, s28
        s_mov_b32 s57, s29''')
        self.stamp('srd')
    def g12_ids(self):
        self.a('''s_mul_i32 s60, s36, 43
        s_lshr_b32 s60, s60, 8
        s_mul_i32 s61, s60, 6
        s_sub_u32 s61, s36, s61
        s_lshr_b32 s64, s35, 1
        s_and_b32 s65, s35, 1
        s_lshl_b32 s37, s64, 2
        s_add_u32 s37, s37, s60
        s_mul_i32 s38, s65, 6
        s_add_u32 s38, s38, s61
        s_mul_i32 s39, s60, %d
        s_lshr_b32 s39, s39, 4
        s_mul_i32 s66, s61, %d
        s_lshr_b32 s66, s66, 4
        s_add_u32 s39, s39, s66
        s_mul_i32 s66, s64, %d
        s_lshr_b32 s66, s66, 4
        s_add_u32 s39, s39, s66
        s_mul_i32 s66, s65, %d
        s_lshr_b32 s66, s66, 4
        s_add_u32 s39, s39, s66
        s_cmp_ge_u32 s39, 10
        s_cselect_b32 s66, 10, 0
        s_sub_u32 s39, s39, s66''' % tuple(ROT))
        self.a('''        s_cmp_ge_u32 s36, 10
        s_cselect_b32 s62, 1, 0
        s_mul_i32 s63, s62, 10
        s_sub_u32 s63, s36, s63
        s_lshl_b32 s66, s35, 1
        s_add_u32 s62, s62, s66''')
    def g2_offsets(self):
        a = self.a
        a('s_lshl_b32 s4, s63, 10')
        for i in range(1, 12):
            a('s_add_u32 s%d, s%d, 1024\ns_cmp_eq_u32 s%d, 12288\ns_cselect_b32 s%d, 0, s%d' % (4 + i, 3 + i, 4 + i, 4 + i, 4 + i))
    def w2_voff(self, v0, wv, t):
        self.a("""s_lshr_b32 s76, s{wv}, 1
        s_mul_i32 s76, s76, {khs}
        s_and_b32 s77, s{wv}, 1
        s_mul_i32 s77, s77, {r16}
        s_add_u32 s76, s76, s77
        s_lshl_b32 s77, s63, 7
        s_add_u32 s76, s76, s77
        v_lshrrev_b32 v{t}, 3, v1
        v_mul_u32_u24 v{v0}, 1280, v{t}
        v_lshrrev_b32 v{t}, 4, v1
        v_lshlrev_b32 v{t}, 1, v{t}
        v_xor_b32 v{t}, v{t}, v1
        v_and_b32 v{t}, 7, v{t}
        v_lshl_add_u32 v{v0}, v{t}, 4, v{v0}
        v_add_u32 v{v0}, s76, v{v0}
        v_add_u32 v{v1}, {d}, v{v0}
        s_lshl_b32 s78, s{wv}, 11""".format(wv=wv, khs=24 * 32 * 1280, r16=16 * 1280, t=t, v0=v0, v1=v0 + 1, d=8 * 1280 - 1024))
    def w2_dma(self, step, slot, v0):
        part, i = step // 12, step % 12
        return ['s_add_u32 m0, s78, %d\ns_mul_i32 s76, s%d, 80\n%sbuffer_load_dwordx4 v%d, %s, s76 offen lds' % (slot * 8192, 4 + i, 's_add_u32 s76, s76, 40960\n' if part else '', v0, W2_),
                'buffer_load_dwordx4 v%d, %s, s76 offen offset:1024 lds' % (v0 + 1, W2_)]
    def w2_round(self, units, v0, thr=None):
        l = []
        for st, sl in units:
            d = self.w2_dma(st, sl, v0)
            if thr is not None: d[0] = 's_waitcnt vmcnt(%d)\n' % thr + d[0]
            l += d
        return l
    def gwave(self):
        a = self.a
        NT = 4
        VX, VW, RX, RW = 16, 20, 24, 26
        RX, RW = 24, 28
        FR = 32
        CS, BS = 64, 72
        AUG = 76
        VB1 = 92
        VCW, VCR, VSR, VBA = 94, 95, 96, 97
        VXR = 99
        TM = 100
        VB2, VXI = 12, 240
        T, P, KC = 208, 224, 232
        TR, RF, A2, HR = 4, 16, 144, 208
        ACC = [[144, 160], [176, 192]]
        acc = lambda t, nt: A2 + 32 * (t >> 1) + 8 * nt + 4 * (t & 1)
        self.g12_ids()
        a("""s_and_b32 s60, s34, 1
        s_lshr_b32 s61, s34, 1""")
        a("""s_lshl_b32 s76, s37, 7
        s_lshl_b32 s77, s34, 5
        s_add_u32 s76, s76, s77
        s_mul_i32 s76, s76, 1280
        v_lshrrev_b32 v2, 3, v1
        v_mul_u32_u24 v3, 1280, v2
        v_lshrrev_b32 v4, 4, v1
        v_xor_b32 v5, v4, v1
        v_and_b32 v5, 7, v5
        v_lshl_add_u32 v6, v5, 4, v3
        v_xor_b32 v5, 4, v5
        v_lshl_add_u32 v7, v5, 4, v3
        v_add_u32 v%d, s76, v6
        v_add_u32 v7, s76, v7
        v_add_u32 v%d, %d, v7
        v_add_u32 v%d, %d, v%d
        v_add_u32 v%d, %d, v7""" % (VX, VX + 1, 8 * 1280 - 1024, VX + 2, 16 * 1280 - 2048, VX, VX + 3, 24 * 1280 - 3072))
        a("""s_mul_i32 s76, s34, %d
        s_lshl_b32 s77, s38, 8
        s_add_u32 s76, s76, s77
        v_mul_u32_u24 v3, 3072, v4
        v_lshlrev_b32 v5, 2, v4
        v_xor_b32 v5, v5, v1
        v_and_b32 v5, 15, v5
        v_lshl_add_u32 v3, v5, 4, v3
        v_add_u32 v%d, s76, v3""" % (16 * 3072, VW))
        for i in range(1, 4): a('v_add_u32 v%d, %d, v%d' % (VW + i, i * (4 * 3072 - 1024), VW))
        a('s_lshl_b32 s67, s34, 12')
        self.srds()
        self.nonce0()
        def dma(stage, wfirst=False):
            idx = stage % 3
            lx, lw = [], []
            for i in range(4):
                pre = 's_add_u32 m0, s67, %d\ns_lshl_b32 s76, s39, 7\n' % (idx * 16384) if i == 0 else ''
                lx.append(pre + 'buffer_load_dwordx4 v%d, %s, s76 offen offset:%d lds' % (VX + i, X_, 1024 * i))
                pre = 's_add_u32 m0, s67, %d\ns_mul_i32 s77, s39, %d\n' % (49152 + idx * 16384, 64 * 3072) if i == 0 else ''
                lw.append(pre + 'buffer_load_dwordx4 v%d, %s, s77 offen offset:%d lds' % (VW + i, W1_, 1024 * i))
            l = lw + lx if wfirst else lx + lw
            l[7] += '\ns_add_u32 s39, s39, 1\ns_cmp_eq_u32 s39, 10\ns_cselect_b32 s39, 0, s39'
            return l
        a('s_barrier')
        for x in dma(0): a(x)
        self.stamp('d0')
        a("""v_and_b32 v8, 31, v1
        v_lshrrev_b32 v9, 5, v1
        v_and_b32 v10, 15, v1
        v_lshrrev_b32 v11, 4, v1
        v_bfe_u32 v12, v1, 4, 1
        v_bfe_u32 v13, v1, 2, 2
        v_and_b32 v14, 3, v1""")
        a("""v_bfe_u32 v4, v1, 1, 3
        v_xor_b32 v4, v4, v9
        s_lshl_b32 s76, s61, 2
        v_xor_b32 v4, s76, v4
        v_lshlrev_b32 v4, 4, v4
        v_lshl_add_u32 v4, v8, 7, v4
        s_lshl_b32 s76, s61, 13
        v_add_u32 v%d, s76, v4""" % RX)
        for s in range(1, 4): a('v_xor_b32 v%d, %d, v%d' % (RX + s, 32 * s, RX))
        a("""v_lshl_add_u32 v5, v9, 3, v13
        v_lshlrev_b32 v5, 8, v5
        s_lshl_b32 s77, s60, 1
        v_xor_b32 v4, s77, v13
        v_lshl_add_u32 v5, v4, 6, v5
        v_lshl_add_u32 v5, v12, 5, v5
        v_lshl_add_u32 v5, v14, 3, v5
        s_add_u32 s76, s76, 49152
        v_add_u32 v%d, s76, v5
        v_xor_b32 v%d, 64, v%d
        v_xor_b32 v%d, 0x2000, v%d
        v_xor_b32 v%d, 0x2040, v%d""" % (RW, RW + 1, RW, RW + 2, RW, RW + 3, RW))
        a("""v_xor_b32 v4, v11, v1
        v_and_b32 v4, 1, v4
        v_cmp_eq_u32 vcc, 0, v4
        v_mov_b32 v5, 0x3f803f80
        v_cmp_gt_u32 s[64:65], 32, v1
        v_cmp_gt_u32 s[74:75], 2, v10
        v_cndmask_b32 v%d, 0, v5, vcc
        v_cndmask_b32 v%d, 0, v5, vcc
        v_cndmask_b32 v%d, 0, v5, vcc
        v_cndmask_b32 v%d, 0, v5, vcc""" % (BS, BS + 1, BS + 2, BS + 3))
        a("""s_lshl_b32 s76, s61, 9
        s_lshl_b32 s77, s60, 8
        s_add_u32 s77, s77, {cs}
        s_add_u32 s76, s76, s77
        v_lshlrev_b32 v5, 4, v11
        v_lshl_add_u32 v5, v10, 6, v5
        v_add_u32 v{cw}, s76, v5
        v_lshl_add_u32 v{cr}, v8, 2, s77
        s_lshl_b32 s76, s37, 1
        s_add_u32 s76, s76, s61
        s_lshl_b32 s76, s76, 10
        s_add_u32 s76, s76, {st}
        v_lshl_add_u32 v{sr}, v8, 4, s76
        s_lshl_b32 s76, s38, 8
        s_lshl_b32 s77, s60, 7
        s_add_u32 s76, s76, s77
        v_lshl_add_u32 v{ba}, v8, 1, s76
        v_mov_b32 v{b1}, 0
        v_mov_b32 v{b11}, 0""".format(cs=L_CS, st=ST, cw=VCW, cr=VCR, sr=VSR, ba=VBA, b1=VB1, b11=VB1 + 1))
        a("""v_mul_u32_u24 v4, 49152, v12
        v_lshl_add_u32 v4, v9, 8, v4
        v_lshl_add_u32 v2, v10, 4, v4
        s_lshl_b32 s76, s37, 1
        s_add_u32 s76, s76, s61
        s_mul_i32 s68, s76, {b4}
        s_mul_i32 s3, s76, 3072
        s_lshl_b32 s76, s38, 1
        s_add_u32 s76, s76, s60
        s_lshl_b32 s77, s76, 10
        s_add_u32 s68, s68, s77
        s_add_u32 s68, s68, {hh}
        s_add_u32 s69, s68, {b2}
        s_add_u32 s70, s68, 24576
        s_add_u32 s71, s69, 24576
        s_lshl_b32 s76, s76, 7
        s_add_u32 s3, s3, s76
        s_add_u32 s3, s3, {fh}""".format(b4=4 * 49152, b2=2 * 49152, hh=HH, fh=FH))
        a("""s_lshl_b32 s76, s62, 1
        s_add_u32 s76, s76, s61
        s_mul_i32 s72, s76, {r64}
        s_mul_i32 s73, s76, {b4}
        s_mul_i32 s66, s76, 3072
        s_mul_i32 s77, s60, 12288
        s_add_u32 s73, s73, s77
        s_add_u32 s73, s73, {hh}
        s_mul_i32 s77, s60, 1536
        s_add_u32 s66, s66, s77
        s_add_u32 s66, s66, {fh}
        s_min_u32 s76, s63, 9
        s_lshl_b32 s76, s76, 7
        s_lshl_b32 s77, s60, 6
        s_add_u32 s76, s76, s77
        s_add_u32 s72, s72, s76
        v_lshlrev_b32 v4, 5, v12
        v_lshl_add_u32 v4, v9, 4, v4
        v_mul_u32_u24 v5, 1280, v10
        v_add_u32 v3, v4, v5
        v_add_u32 v{ba}, s76, v4""".format(r64=64 * 1280, b4=4 * 49152, hh=HH, fh=FH, ba=VBA + 1))
        a("""v_lshl_add_u32 v4, v12, 1, v9
        s_lshl_b32 s76, s60, 2
        v_lshrrev_b32 v5, 1, v10
        v_xor_b32 v4, v4, v5
        v_xor_b32 v4, s76, v4
        v_lshlrev_b32 v4, 4, v4
        v_lshl_add_u32 v4, v10, 7, v4
        s_lshl_b32 s76, s61, 13
        s_add_u32 s76, s76, 98304
        v_add_u32 v%d, s76, v4""" % VXR)
        a("""v_lshl_add_u32 v15, v12, 2, v13
        v_lshrrev_b32 v5, 1, v15
        v_lshl_add_u32 v15, v9, 4, v15
        v_lshlrev_b32 v15, 7, v15
        s_lshl_b32 s76, s60, 1
        v_xor_b32 v5, s76, v5
        v_lshl_add_u32 v15, v5, 5, v15
        v_lshl_add_u32 v15, v14, 3, v15
        s_lshl_b32 s76, s60, 12
        s_add_u32 s76, s76, 0x10000
        v_add_u32 v4, s76, v15
        v_xor_b32 v5, 32, v4
        v_xor_b32 v6, 64, v4
        v_xor_b32 v7, 96, v4""")
        self.w2_voff(8, sWV, 10)
        self.g2_offsets()
        a('global_load_short_d16_hi v%d, v%d, s[22:23]\nglobal_load_short_d16_hi v%d, v%d, s[22:23] offset:64' % (VB1, VBA, VB1 + 1, VBA))
        a('global_load_dwordx4 v[%d:%d], v%d, s[26:27]' % (VB2, VB2 + 3, VBA + 1))
        for x in dma(1, WFIRST): a(x)
        self.stamp('d1')
        d2 = dma(2)
        for x in d2[:PRE2]: a(x)
        self.stamp('d2')
        def reads(stage, s):
            idx = stage % 3; f = FR + 16 * (s & 1)
            l = []
            for mt in range(2):
                for e in range(2):
                    l.append('ds_read_b64_tr_b16 v[%d:%d], v%d offset:%d' % (f + 4 * mt + 2 * e, f + 4 * mt + 2 * e + 1, RW + 2 * (s >> 1) + mt, idx * 16384 + (s & 1) * 4096 + 1024 * e))
            for nt in range(2):
                l.append('ds_read_b128 v[%d:%d], v%d offset:%d' % (f + 8 + 4 * nt, f + 11 + 4 * nt, RX + s, idx * 16384 + 4096 * nt))
            return [l[4], l[0], l[1], l[5], l[2], l[3]]
        def mfmas(s, first):
            f = FR + 16 * (s & 1); n16 = []; n32 = []
            if s < 2:
                for mt in range(2):
                    c = 'v[%d:%d]' % (CS + 4 * mt, CS + 4 * mt + 3)
                    n16.append('v_mfma_f32_16x16x32_bf16 %s, v[%d:%d], v[%d:%d], %s' % (c, f + 4 * mt, f + 4 * mt + 3, BS, BS + 3, '0' if first else c))
            for mt in range(2):
                for nt in range(2):
                    c = 'v[%d:%d]' % (ACC[mt][nt], ACC[mt][nt] + 15)
                    n32.append('v_mfma_f32_32x32x16_bf16 %s, v[%d:%d], v[%d:%d], %s' % (c, f + 4 * mt, f + 4 * mt + 3, f + 8 + 4 * nt, f + 11 + 4 * nt, '0' if first else c))
            return n32, n16
        C1 = -2.0 * LOG2E * math.sqrt(2.0 / math.pi)
        augA0, augB, augA = [], [], []
        for mt in range(2):
            A = AUG + 4 * mt; c = TM + 2 * mt
            augA0 += ['v_cndmask_b32 v%d, 0, v%d, s[64:65]' % (VB1 + mt, VB1 + mt), 'v_lshrrev_b32 v%d, 16, v%d' % (A + 2, VB1 + mt), 'v_mov_b32 v%d, 0' % (A + 3), 'v_mov_b32 v%d, 0' % (A + 11)]
            augA.append(['v_add_f32 v%d, v%d, v%d' % (c, c, c + 1), 'v_cndmask_b32 v%d, 0, v%d, s[64:65]' % (c, c),
                    'v_cvt_pk_bf16_f32 v%d, v%d, v%d' % (A + 1, c, VB1 + mt), 'v_lshlrev_b32 v%d, 16, v%d' % (c + 1, A + 1), 'v_sub_f32 v%d, v%d, v%d' % (c + 1, c, c + 1),
                    'v_cvt_pk_bf16_f32 v%d, v%d, v%d' % (A, c, c + 1)])
        augA = interleave(augA[0], augA[1])
        for nt in range(2):
            B = AUG + 8 + 4 * nt; g = TM + 4 + 4 * nt; k = KC + 4 * nt; t = TM + 12 + 2 * nt
            augB.append(['v_rcp_f32 v%d, v%d' % (t + 1, g + 2), 'v_cvt_pk_bf16_f32 v%d, v%d, v%d' % (B, g, g), 'v_and_b32 v%d, 0xffff0000, v%d' % (t, B), 'v_sub_f32 v%d, v%d, v%d' % (t, g, t),
                    'v_cvt_pk_bf16_f32 v%d, v%d, v%d' % (B + 1, t, g + 2), 'v_and_b32 v%d, 0xffff0000, v%d' % (t, B + 1), 'v_sub_f32 v%d, v%d, v%d' % (t, g + 2, t),
                    'v_cvt_pk_bf16_f32 v%d, v%d, 0' % (B + 2, t), 'v_mov_b32 v%d, v%d' % (k + 2, g + 2), 'v_mul_f32 v%d, %s, v%d' % (k + 1, f32(C1), t + 1),
                    'v_mul_f32 v%d, v%d, v%d' % (t + 1, t + 1, t + 1), 'v_mul_f32 v%d, %s, v%d' % (t + 1, f32(0.044715), t + 1), 'v_mul_f32 v%d, v%d, v%d' % (k, t + 1, k + 1)])
        augB = interleave(augB[0], augB[1])
        xst = lambda st: XST <= st < XST + NT
        for st in range(10):
            self.stamp('a%d' % st)
            a('s_waitcnt vmcnt(%d) lgkmcnt(0)' % (11 + PRE2 if st == 0 else 2 if st == 9 else 10 if st == 8 else 8))
            self.stamp('w%d' % st)
            a('s_barrier')
            self.stamp('b%d' % st)
            d = d2[PRE2:] if st == 0 else dma(st + 2) if st + 2 < 10 else []
            if st == 0: a(self.nonce2())
            stl = 'buffer_load_dwordx4 v[%d:%d], v%d, %s, 0 offen sc1\nbuffer_load_dwordx4 v[%d:%d], v%d, %s, 0 offen offset:512 sc1' % (TM + 4, TM + 7, VSR, WS_, TM + 8, TM + 11, VSR, WS_)
            if st == 7: d[7] += '\n' + stl
            for s in range(4):
                rd = reads(st, s)
                dd = d[2 * s:2 * s + 2]
                if st == 7 and FRONT: dd = [['\n'.join(d[0:2]), '\n'.join(d[2:4])], ['\n'.join(d[4:6]), '\n'.join(d[6:8])], [], []][s]
                if s == 0 and st == 0:
                    for x in rd + dd: a(x)
                    continue
                n32, n16 = mfmas((s - 1) & 3, st == 0 and s == 1)
                if s > 0: a('s_waitcnt lgkmcnt(0)')
                fill = [rd[0:3], rd[3:6], dd[:1], dd[1:]]
                post = []
                if st == 7 and s < NT: fill[1] = fill[1] + ['ds_read_b128 v[%d:%d], v%d offset:%d' % (VXI + 4 * s, VXI + 4 * s + 3, VXR, 2048 * s)]
                if st == 8 and s == 1: fill[2:] = [augA0[:4], augA0[4:]]
                if st == 9:
                    if s == 2:
                        Lok = self.lab('OK')
                        chk = 'v_cmp_ne_u32 vcc, s21, v%d\nv_cmp_ne_u32 s[76:77], s21, v%d\nv_cmp_ne_u32 s[16:17], s21, v%d\nv_cmp_ne_u32 s[18:19], s21, v%d\ns_or_b64 vcc, vcc, s[76:77]\ns_or_b64 vcc, vcc, s[16:17]\ns_or_b64 vcc, vcc, s[18:19]' % (TM + 5, TM + 7, TM + 9, TM + 11)
                        for x in n16: a(x)
                        n16 = []
                        a(n32[0])
                        for x in fill[0]: a(x)
                        a(n32[1])
                        for x in fill[1]: a(x)
                        a(n32[2])
                        a('s_waitcnt vmcnt(0)\n' + chk + '\ns_cbranch_vccz %s' % Lok)
                        self.poll(stl, chk)
                        a('%s:' % Lok)
                        n32 = n32[3:]
                        fill = [['s_mov_b64 exec, s[74:75]\nds_write_b128 v%d, v[%d:%d]\nds_write_b128 v%d, v[%d:%d] offset:128\ns_mov_b64 exec, -1' % (VCW, CS, CS + 3, VCW, CS + 4, CS + 7)] + augB[:6]]
                    if s == 3:
                        a('s_barrier')
                        fill[2:] = [['ds_read2_b32 v[%d:%d], v%d offset0:0 offset1:128' % (TM, TM + 1, VCR), 'ds_read2_b32 v[%d:%d], v%d offset0:32 offset1:160' % (TM + 2, TM + 3, VCR)] + augB[6:10], augB[10:16]]
                for m, f in zip(n32, fill):
                    a(m)
                    for x in f: a(x)
                for x in interleave(n16, post): a(x)
        n32, _ = mfmas(3, False)
        a('s_waitcnt lgkmcnt(0)')
        for m, f in zip(n32, [augA[:5], augA[5:10], augA[10:], augB[16:21]]):
            a(m)
            for x in f: a(x)
        for mt in range(2):
            for nt in range(2):
                c = 'v[%d:%d]' % (ACC[mt][nt], ACC[mt][nt] + 15)
                a('v_mfma_f32_32x32x16_bf16 %s, v[%d:%d], v[%d:%d], %s' % (c, AUG + 4 * mt, AUG + 4 * mt + 3, AUG + 8 + 4 * nt, AUG + 11 + 4 * nt, c))
                if mt + nt == 0:
                    for x in augB[21:]: a(x)
        self.stamp(5)
        def gelu(mt, nt):
            q = ACC[mt][nt]; k = KC + 4 * nt; p = P; l = []
            pr = lambda b, i: 'v[%d:%d]' % (b + 2 * i, b + 2 * i + 1)
            A = ['v_pk_mul_f32 %s, %s, %s' % (pr(T, i), pr(q, i), pr(q, i)) for i in range(8)]
            B = ['v_pk_fma_f32 %s, %s, v[%d:%d], v[%d:%d] op_sel:[0,0,1] op_sel_hi:[1,0,1]' % (pr(T, i), pr(T, i), k, k + 1, k, k + 1) for i in range(8)]
            C = ['v_pk_mul_f32 %s, %s, %s' % (pr(T, i), pr(T, i), pr(q, i)) for i in range(8)]
            E = ['v_exp_f32 v%d, v%d' % (T + i, T + i) for i in range(16)]
            D = ['v_pk_fma_f32 %s, %s, v[%d:%d], v[%d:%d] op_sel_hi:[1,0,0]' % (pr(T, i), pr(T, i), k + 2, k + 3, k + 2, k + 3) for i in range(8)]
            R = ['v_rcp_f32 v%d, v%d' % (T + i, T + i) for i in range(16)]
            Gc = ['v_cvt_pk_bf16_f32 v%d, v%d, v%d' % (p + i, T + 2 * i, T + 2 * i + 1) for i in range(8)]
            for s in range(2): Gc[4 * s + 3] += '\nbuffer_store_dwordx4 v[%d:%d], v2, %s, s%d offen offset:%d sc1' % (p + 4 * s, p + 4 * s + 3, WS_, 68 + nt + 2 * mt, 512 * s)
            return A, B, C, E, D, R, C, Gc
        def gelu_stream(tiles):
            A, B, C, E, D, R, F, Gc = [sum((gelu(*t)[i] for t in tiles), []) for i in range(8)]
            g = lambda L, j: [L[j]] if 0 <= j < len(L) else []
            return [g(A, i + 2) + g(E, 2 * i) + g(B, i + 2) + g(E, 2 * i + 1) + g(C, i + 2) + g(D, i - 1) + g(R, 2 * i - 4) + g(F, i - 3) + g(R, 2 * i - 3) + g(Gc, i - 4)
                    for i in range(-2, 8 * len(tiles) + 4)]
        def trreads(buf, slot):
            return ['ds_read_b64_tr_b16 v[%d:%d], v%d offset:%d' % (RF + 16 * buf + 4 * t + 2 * e, RF + 16 * buf + 4 * t + 2 * e + 1, TR + t, (slot % 8) * 8192 + 1024 * e) for t in range(4) for e in range(2)]
        FV = ACC[0][0]
        flag = self.flag(FV, 3) + '\ns_add_u32 s3, s3, %d' % (32 * 3072)
        rr = []
        for b in range(8): rr += trreads(b, b)
        nst = 0
        for i, grp in enumerate(gelu_stream([(0, 0), (0, 1), (1, 0), (1, 1)])):
            if i == B1P:
                self.stamp('t2')
                a('s_barrier')
            if i == FLAG0:
                assert nst >= 4
                for x in self.flag_regs(FV): a(x)
                self.stamp('t3')
                a('s_waitcnt vmcnt(%d)' % (nst - 4)); a(flag); self.stamp('f0')
            if i == 10: self.stamp('t1')
            if i >= B1P:
                for x in rr[:RBU]: a(x)
                rr = rr[RBU:]
            for x in grp:
                a(x); nst += 'buffer_store' in x
        assert not rr
        self.stamp(6)
        a('s_waitcnt lgkmcnt(0)\ns_barrier')
        self.stamp(7)
        a("""s_cmp_lt_u32 s36, 20
        s_cbranch_scc1 L_G2
        s_waitcnt vmcnt(0)
        {flag}
        s_branch L_FIN
        L_G2:""".format(flag=flag))
        ini = []
        for r in [VB2] + [VXI + 4 * nt for nt in range(NT)]:
            ini += ['v_permlane16_swap_b32 v%d, v%d' % (r, r + 2), 'v_permlane16_swap_b32 v%d, v%d' % (r + 1, r + 3)]
        for i in range(4):
            ini += ['v_lshlrev_b32 v%d, 16, v%d' % (T + 2 * i, VB2 + i), 'v_and_b32 v%d, 0xffff0000, v%d' % (T + 2 * i + 1, VB2 + i)]
        for nt in range(NT):
            for i in range(4):
                s = VXI + 4 * nt + i; o = acc(0, nt) + 2 * i
                ini += ['v_lshlrev_b32 v%d, 16, v%d' % (o, s), 'v_and_b32 v%d, 0xffff0000, v%d' % (o + 1, s),
                        'v_add_f32 v%d, v%d, v%d' % (o, o, T + 2 * i), 'v_add_f32 v%d, v%d, v%d' % (o + 1, o + 1, T + 2 * i + 1)]
        hpl = 'buffer_load_dword v2, v10, %s, s66 offen sc1' % WS_; hchk = 'v_cmp_ne_u32 vcc, s21, v2'
        a('v_min_u32 v10, 11, v1\nv_lshlrev_b32 v10, 7, v10')
        FV = ACC[1][0]; flag = self.flag(FV, 3)
        for x in self.flag_regs(FV): a(x)
        dm = self.w2_round([(2 + k, k) for k in LORD[NL1:]] + [(10 + k, 8 + k) for k in range(8)], 8)
        d1 = dm[:NPH]
        d1.insert(PPOS, hpl)
        d1.insert(FLAG1, 's_waitcnt vmcnt(%d)\n' % FLAG1 + flag)
        for x in interleave(d1, ini, per=6): a(x)
        Lok = self.lab('OK')
        self.stamp('f1')
        a('s_waitcnt vmcnt(%d)\n%s\ns_cbranch_vccz %s' % (len(d1) - 1 - d1.index(hpl), hchk, Lok))
        self.poll(hpl, hchk)
        a('%s:' % Lok)
        self.stamp(10)
        a("""v_lshl_add_u32 v12, v1, 4, s73
        v_add_u32 v13, 49152, v12
        v_add_u32 v14, %d, v12
        v_add_u32 v15, %d, v12""" % (2 * 49152, 3 * 49152))
        RING = 3 * NT; NJ = 24 * NT
        def hload(j):
            s, nt = j // NT, j % NT
            r = HR + 16 * (s % 3) + 4 * nt
            if 'noh' in self.opts and j >= RING: return 's_nop 0'
            if 'hsame' in self.opts: return 'buffer_load_dwordx4 v[%d:%d], v%d, %s, s%d offen sc1' % (r, r + 3, 12 + nt, WS_, 4 + s % 3)
            return ('v_add_u32 v%d, 24576, v%d\n' % (12 + nt, 12 + nt) if s == 12 else '') + 'buffer_load_dwordx4 v[%d:%d], v%d, %s, s%d offen %s' % (r, r + 3, 12 + nt, WS_, 4 + s % 12, '' if 'hplain' in self.opts else 'sc1')
        RING = 3 * NT; NJ = 24 * NT
        for j in range(RING): a(hload(j))
        for x in dm[NPH:]: a(x)
        self.stamp(8)
        a("""s_lshl_b32 s76, s34, 13
        v_lshl_add_u32 v2, v1, 4, s76
        v_bfe_u32 v10, v1, 2, 3
        s_lshl_b32 s76, s61, 2
        v_xor_b32 v10, s76, v10
        v_lshlrev_b32 v10, 5, v10
        v_lshrrev_b32 v11, 2, v1
        v_lshl_add_u32 v10, v11, 8, v10
        v_and_b32 v11, 3, v1
        v_lshl_add_u32 v10, v11, 3, v10
        s_mul_i32 s16, s60, 8320
        s_add_u32 s16, s16, %d
        s_barrier""" % L_TAB)
        self.stamp(9)
        def wbuf(s): return s if s < 2 else (s - 16 if s >= 18 else (s & 1))
        vm = list(range(RING)) + ['D'] * (len(dm) - NPH)
        assert NL1 == 8
        AZ = RF
        JF = 12 * NT - RING + 1
        extra = []
        for s in range(24):
            wb = RF + 16 * wbuf(s); nxt = s + 1; rd = []
            if 2 <= nxt < 18:
                if nxt in (2, 10): extra += ['v_add_u32 v%d, %s, v%d' % (r, '0x10000' if nxt == 10 else '0xffff0000', r) for r in range(4, 8)]
                rd = trreads(wbuf(nxt), nxt - 2)
            if s == 18: extra += ['v_xor_b32 v%d, %d, v10' % (4 + nt, 32 * nt) for nt in range(NT)] + ['v_add_u32 v%d, s16, v%d' % (4 + nt, 4 + nt) for nt in range(NT)]
            if s == 9:
                assert 'D' not in vm and JF >= 9 * NT
                a('s_barrier')
            if nxt in (2, 10):
                for x in extra: a(x)
                extra = []
            wl = 2 <= s < 18
            order = [(nt, t) for nt in range(NT) for t in range(4)]
            if s == 23: order = [(nt, t) for nt in range(NT) for t in (2, 3)] + [(nt, t) for nt in range(NT) for t in (0, 1)]
            wr = []
            for k, (nt, t) in enumerate(order):
                j = s * NT + nt
                if j in vm:
                    n = len(vm) - 1 - vm.index(j); vm = vm[vm.index(j) + 1:]
                    a('s_waitcnt vmcnt(%d)' % n + (' lgkmcnt(0)' if wl else '')); wl = False
                r = HR + 16 * (s % 3) + 4 * nt
                c = 'v[%d:%d]' % (acc(t, nt), acc(t, nt) + 3)
                a('v_mfma_f32_16x16x32_bf16 %s, v[%d:%d], v[%d:%d], %s' % (c, wb + 4 * t, wb + 4 * t + 3, r, r + 3, '0' if (s == 0 and t >= 2) else c))
                if s == 23:
                    if k >= 8: a('ds_write_b128 v2, v[%d:%d] offset:%d' % (acc(2 + (k & 1), (k - 8) // 2), acc(2 + (k & 1), (k - 8) // 2) + 3, 1024 * (k - 8)))
                    elif extra: a(extra.pop(0))
                    continue
                if t == 1 and j >= 1 and j - 1 + RING < NJ:
                    a(hload(j - 1 + RING)); vm.append(j - 1 + RING)
                    if j == SA: a('s_barrier')
                elif rd and t != 3: a(rd.pop(0))
                elif rd and nt < 2: a(rd.pop(0))
                elif extra and t != 3:
                    a(extra.pop(0))
                    if extra: a(extra.pop(0))
            assert not rd
            if s == B3B: a('s_barrier')
            if s == 0: self.stamp(11)
            self.stamp('s%d' % s)
        self.stamp(12)
        for x in extra: a(x)
        a('v_xor_b32 v2, 0x2000, v2')
        a('s_waitcnt lgkmcnt(0)\ns_barrier')
        self.stamp(13)
        for nt in range(NT):
            for t in range(2):
                a('ds_read_b64_tr_b16 v[%d:%d], v%d offset:%d' % (AZ + 32 + 4 * nt + 2 * t, AZ + 33 + 4 * nt + 2 * t, 4 + nt, 4160 * (1 - t)))
                a('ds_read_b128 v[%d:%d], v2 offset:%d' % (acc(2 + t, nt), acc(2 + t, nt) + 3, 1024 * (2 * nt + t)))
        for nt in range(NT):
            a('s_waitcnt lgkmcnt(%d)' % (4 * (NT - 1 - nt)))
            o = HR + 4 * nt; k = acc(0, nt)
            for d in range(4): a('v_lshlrev_b32 v%d, 16, v%d\nv_and_b32 v%d, 0xffff0000, v%d' % (AZ + 2 * d, AZ + 32 + 4 * nt + d, AZ + 2 * d + 1, AZ + 32 + 4 * nt + d))
            for d in range(4): a('v_pk_add_f32 v[%d:%d], v[%d:%d], v[%d:%d]' % (k + 2 * d, k + 2 * d + 1, k + 2 * d, k + 2 * d + 1, k + 32 + 2 * d, k + 33 + 2 * d))
            for d in range(4): a('v_pk_add_f32 v[%d:%d], v[%d:%d], v[%d:%d]' % (k + 2 * d, k + 2 * d + 1, k + 2 * d, k + 2 * d + 1, AZ + 2 * d, AZ + 2 * d + 1))
            for d in range(4): a('v_cvt_pk_bf16_f32 v%d, v%d, v%d' % (o + d, k + 2 * d, k + 2 * d + 1))
            a('s_add_u32 s76, s72, %d' % (nt * 16 * 1280))
            a('v_permlane16_swap_b32 v%d, v%d\nv_permlane16_swap_b32 v%d, v%d' % (o, o + 2, o + 1, o + 3))
            a('buffer_store_dwordx4 v[%d:%d], v3, %s, s76 offen %s' % (o, o + 3, OUT_, OUTAUX))
        self.stamp(14)
        a('s_branch L_FIN')

    def s_param_pre(self):
        self.a("""s_mul_i32 s76, s61, 384
        v_and_b32 v2, 31, v1
        v_mul_u32_u24 v2, 12, v2
        v_add_u32 v2, s76, v2
        s_lshl_b32 s66, s61, 1
        s_and_b32 s66, s66, 0xfffc""")
    def s_param_loads(self):
        a = self.a
        for k, p in enumerate((6, 8, 10, 12)):
            a('global_load_dwordx3 v[%d:%d], v2, s[%d:%d]' % (16 + 4 * k, 18 + 4 * k, p, p + 1))
        self.nonce0()
        a('s_load_dword s72, s[14:15], s66\ns_load_dword s73, s[16:17], s66')
        self.stamp('pl')
    def cmul(self, d, x, w):
        return ['v_pk_mul_f32 v[%d:%d], v[%d:%d], v[%d:%d] op_sel:[1,1] op_sel_hi:[0,1] neg_lo:[0,1]' % (d[0], d[1], x[0], x[1], w[0], w[1]),
                'v_pk_fma_f32 v[%d:%d], v[%d:%d], v[%d:%d], v[%d:%d] op_sel_hi:[1,0,1]' % (d[0], d[1], x[0], x[1], w[0], w[1], d[0], d[1])]
    def scode(self):
        a = self.a
        tag = 'S'
        SELB, SELA, KA = 32, 40, 52
        FRG = 68
        PB, PA = 68, 84
        DB, DA = 100, 132
        FB, FA2 = 164, 180
        VV = 196
        DT, D2, SC1, SC2 = 48, 49, 50, 51
        a('L_SC:')
        a("""v_lshrrev_b32 v3, 5, v1
        v_cmp_eq_u32 s[74:75], 1, v3
        v_bfe_u32 v4, v1, 4, 1
        v_and_b32 v5, 15, v1
        v_cmp_eq_u32 vcc, v3, v4
        v_cndmask_b32 v5, 64, v5, vcc
        v_and_b32 v6, 3, v1
        v_bfe_u32 v7, v1, 3, 2
        v_lshl_add_u32 v6, v7, 2, v6
        v_add_u32 v7, 1, v6
        v_and_b32 v7, 12, v7
        v_and_b32 v8, 9, v6
        v_cmp_eq_u32 vcc, 1, v8
        s_and_b64 vcc, vcc, s[74:75]
        v_cndmask_b32 v6, v6, v7, vcc
        v_bfe_u32 v4, v1, 2, 1
        v_cmp_eq_u32 vcc, v3, v4
        v_cndmask_b32 v6, 64, v6, vcc
        v_mov_b32 v9, 0x3f80""")
        for v, sel in ((5, SELB), (6, SELA)):
            a('v_and_b32 v7, 1, v{v}\nv_lshlrev_b32 v7, 4, v7\nv_lshlrev_b32 v7, v7, v9\nv_lshrrev_b32 v8, 1, v{v}'.format(v=v))
            for d in range(0, 8, 2):
                a('v_cmp_eq_u32 vcc, %d, v8\nv_cmp_eq_u32 s[76:77], %d, v8\nv_nop\nv_cndmask_b32 v%d, 0, v7, vcc\nv_cndmask_b32 v%d, 0, v7, s[76:77]' % (d, d + 1, sel + d, sel + d + 1))
        EX = VV + 6
        a("""s_xor_b32 s76, s60, 1
        s_mul_i32 s76, s76, 4160
        s_add_u32 s76, s76, s38
        v_lshl_add_u32 v{e0}, v1, 4, s76
        s_mul_i32 s76, s60, 4160
        s_add_u32 s76, s76, s38
        v_lshl_add_u32 v{e1}, v1, 4, s76
        v_mov_b32 v{e3}, s76
        s_add_u32 s76, s76, 1008
        v_lshlrev_b32 v5, 4, v1
        v_sub_u32 v{e2}, s76, v5
        v_mov_b32 v8, 0
        v_mov_b32 v9, 0
        v_mov_b32 v10, 0
        v_mov_b32 v11, 0
        v_lshl_add_u32 v6, v1, 3, s39
        ds_write_b64 v6, v[8:9]
        s_mov_b64 exec, 7
        ds_write_b128 v{e1}, v[8:11] offset:4096
        s_mov_b64 exec, -1""".format(e0=EX, e1=EX + 1, e2=EX + 2, e3=EX + 3))
        a("""v_mov_b32 v4, 0x41000000
        v_mov_b32 v5, 0x43000000
        v_cndmask_b32 v{s1}, v4, v5, s[74:75]
        v_mov_b32 v5, 0x43800000
        v_cndmask_b32 v{s2}, 1.0, v5, s[74:75]
        s_and_b32 s76, s61, 1
        s_xor_b32 s76, s76, 1
        s_lshl_b32 s76, s76, 4
        s_mul_i32 s77, s60, 0x02020000
        s_add_u32 s77, s77, 0x01000c0c
        s_waitcnt lgkmcnt(0)
        {bp}
        s_lshl_b32 s72, s72, s76
        s_and_b32 s72, s72, 0xffff0000
        s_lshl_b32 s73, s73, s76
        s_and_b32 s73, s73, 0xffff0000
        v_mov_b32 v{dt}, s72
        v_mul_f32 v{dt}, {l2e}, v{dt}
        v_exp_f32 v{dt}, v{dt}
        v_mov_b32 v31, s73
        v_cvt_pk_bf16_f32 v{dt}, v{dt}, v{dt}
        v_lshlrev_b32 v{dt}, 16, v{dt}
        v_add_f32 v{d2}, v{dt}, v{dt}""".format(bp='s_barrier\n' + self.nonce2(), s1=SC1, s2=SC2, dt=DT, d2=D2, l2e=f32(LOG2E)))
        a('v_cmp_eq_u32 vcc, 0, v1\nv_cndmask_b32 v31, 0, v31, vcc')
        self.stamp('a0')
        Ls = self.lab('NG'); Lx = self.lab('NX')
        Ly = self.lab('NY')
        a('''s_setprio {p}
        s_cmp_eq_u32 s37, 0
        s_cbranch_scc1 {Lx}'''.format(Lx=Lx, p=KPRIO))
        if W1T == 1: a('buffer_load_dword v255, v226, %s, s19 offen' % W1_)
        for i in range(5): a('buffer_load_dwordx4 v[%d:%d], v248, %s, s64 offen offset:%d' % (XI + 4 * i, XI + 4 * i + 3, X_, 256 * i))
        a('s_waitcnt vmcnt(%d)' % (5 + (W1T == 1)))
        a('s_nop 0\ns_branch %s\n%s:\ns_waitcnt vmcnt(0)\n%s:' % (Ls, Lx, Ls))
        self.stamp(2)
        for k in range(4):
            for p in range(3):
                r = 16 + 4 * k + p
                a('v_perm_b32 v%d, v%d, v%d, s77' % (r, r, r))
        W8, W1, W5 = (VV, VV + 1), (VV + 2, VV + 3), (VV + 4, VV + 5)
        U = VV + 12
        XA = VV + 16
        def setup(p):
            l = """v_mul_f32 v4, {l2e}, v{la}
            v_exp_f32 v4, v4
            v_mul_f32 v5, v{ai}, v{dt}
            v_cvt_pk_bf16_f32 v4, v4, v4
            v_mul_f32 v5, {ci}, v5
            v_lshlrev_b32 v4, 16, v4
            v_mul_f32 v7, v5, v{s1}
            v_mul_f32 v4, v4, v{dt}
            v_mul_f32 v9, v5, v{s2}
            v_mul_f32 v4, {cr}, v4
            v_rndne_f32 v10, v7
            v_rndne_f32 v11, v9
            v_mul_f32 v6, v4, v{s1}
            v_mul_f32 v8, v4, v{s2}
            v_sub_f32 v7, v7, v10
            v_sub_f32 v9, v11, v9
            v_exp_f32 v6, v6
            v_exp_f32 v8, v8
            v_sin_f32 v10, v7
            v_cos_f32 v11, v7
            v_sin_f32 v12, v9
            v_cos_f32 v13, v9
            v_mul_f32 v{w8i}, v10, v6
            v_mul_f32 v{w8r}, v11, v6
            v_mul_f32 v{w1i}, v12, v8
            v_mul_f32 v{w1r}, v13, v8
            v_mul_f32 v{u1}, v10, v6
            v_mul_f32 v{u0}, v11, v6
            v_mul_f32 v{u3}, v12, v8
            v_mul_f32 v{u2}, v13, v8
            v_mul_f32 v4, v{cre}, v{d2}
            v_mul_f32 v5, v{cim}, v{d2}
            v_permlane32_swap_b32 v{w8i}, v{u1}
            v_permlane32_swap_b32 v{w8r}, v{u0}
            v_permlane32_swap_b32 v{w1i}, v{u3}
            v_permlane32_swap_b32 v{w1r}, v{u2}
            v_cndmask_b32 v{e0}, 1.0, v{u0}, s[74:75]
            v_cndmask_b32 v{e1}, 0, v{u1}, s[74:75]
            v_cndmask_b32 v6, 1.0, v{u2}, s[74:75]
            v_cndmask_b32 v7, 0, v{u3}, s[74:75]
            v_mul_f32 v{w5r}, v{u2}, v{u2}
            v_add_f32 v8, v{u2}, v{u2}
            v_fma_f32 v{w5r}, -v{u3}, v{u3}, v{w5r}
            v_mul_f32 v{w5i}, v8, v{u3}
            v_mul_f32 v{g0}, v4, v6
            v_mul_f32 v{g1}, v4, v7
            v_fmac_f32 v{g0}, v5, v7
            v_fma_f32 v{g1}, -v5, v6, v{g1}""".format(l2e=f32(LOG2E), la=16 + p, ai=20 + p, cre=24 + p, cim=28 + p, dt=DT, d2=D2, s1=SC1, s2=SC2,
                ci=f32(1 / (2 * math.pi)), cr=f32(-LOG2E), w8i=W8[1], w8r=W8[0], w1i=W1[1], w1r=W1[0], w5i=W5[1], w5r=W5[0],
                u0=U, u1=U + 1, u2=U + 2, u3=U + 3, e0=XA, e1=XA + 1, g0=XA + 4, g1=XA + 5)
            return [x.strip() for x in l.split('\n')]
        def pack(P, v, x0, x1):
            return ['v_cvt_pk_bf16_f32 v%d, v%d, v%d' % (P + v // 2, x0[0], x1[0]), 'v_cvt_pk_bf16_f32 v%d, v%d, v%d' % (P + 8 + v // 2, x0[1], x1[1])]
        def chainB():
            l = []; r = [(XA, XA + 1), (XA + 2, XA + 3)]
            for v in range(1, 16):
                l += self.cmul(r[v & 1], r[(v - 1) & 1], W8)
                if v & 1: l += pack(PB, v, r[0], r[1])
            return l
        def chainA():
            l = []; reg = {v: (XA + 4 + 2 * k, XA + 5 + 2 * k) for v, k in enumerate([0, 3, 4, 3, 1, 3, 4, 3, 2, 3, 4, 0, 1, 2, 3, 4])}
            src = {9: 0, 10: 4, 11: 8, 12: 9, 13: 11, 14: 12, 15: 13}
            for v in range(1, 16):
                l += self.cmul(reg[v], reg[v - 1] if v < 9 else reg[src[v]], W1 if v < 9 else W5)
                if v & 1: l += pack(PA, v, reg[v - 1], reg[v])
            return l
        def transp(D, P, SEL_):
            l = []
            for sg in range(2):
                for c in range(2):
                    d = 'v[%d:%d]' % (D + 16 * c, D + 16 * c + 15)
                    l.append('v_mfma_f32_32x32x16_bf16 %s, v[%d:%d], v[%d:%d], %s' % (d, P + 8 * c + 4 * sg, P + 8 * c + 4 * sg + 3, SEL_ + 4 * sg, SEL_ + 4 * sg + 3, '0' if sg == 0 else d))
            return l
        def repack(F, D): return ['v_cvt_pk_bf16_f32 v%d, v%d, v%d' % (F + i, D + 2 * i, D + 2 * i + 1) for i in range(16)]
        def mf2(first):
            k = 'v[%d:%d]' % (KA, KA + 15)
            return ['v_mfma_f32_32x32x16_bf16 %s, v[%d:%d], v[%d:%d], %s' % (k, FA2 + 4 * i, FA2 + 4 * i + 3, FB + 4 * i, FB + 4 * i + 3, '0' if (first and i == 0) else k) for i in range(4)]
        hook = 's_cmp_eq_u32 s37, 0\ns_cbranch_scc0 L_LN\nL_LNR:'
        if PK:
            seq = setup(0)
            for p in range(3):
                seq += interleave(chainB(), chainA())
                if p == LNP: seq.append(hook); iln = len(seq)
                nx = setup(p + 1) if p < 2 else []
                tb, ta, rb, ra, m2 = transp(DB, PB, SELB), transp(DA, PA, SELA), repack(FB, DB), repack(FA2, DA), mf2(p == 0)
                order = [tb[0], tb[2], ta[0], ta[2], tb[1], tb[3], ta[1], ta[3]]
                h = len(nx) // 2
                seq += interleave(order[:5], nx[:h], per=6)
                seq += interleave(order[5:], rb[:8] + ra[:8], per=6)
                seq += interleave(m2[:2], nx[h:h + 6] + rb[8:] + ra[8:], per=6)
                seq += interleave(m2[2:], nx[h + 6:], per=6)
        if 'nok' in self.opts: a('s_cmp_eq_u32 s37, 0\ns_cbranch_scc1 L_NOK')
        nb = 0; n = len(seq); xh = False
        for i, x in enumerate(seq):
            if not xh and i >= iln + XHOOK * (n - iln):
                self.xhook(); xh = True
            for tp in TOUCH:
                if i == iln + int(tp * (n - iln)):
                    L = self.lab('TC')
                    a('s_cmp_eq_u32 s37, 0\ns_cbranch_scc1 %s' % L); self.touch(); a('%s:' % L)
            a(x)
        if 'nok' in self.opts: a('s_nop 15\nL_NOK:')
        self.stamp(3)
        for k in range(4): a('ds_write_b128 v%d, v[%d:%d] offset:%d' % (EX, KA + 4 * k, KA + 4 * k + 3, 1024 * k))
        a('s_mov_b64 exec, 1\nds_write_b32 v%d, v%d offset:4128\ns_mov_b64 exec, -1' % (EX, SC1))
        V = lambda r: KA + r
        a('v_add_f32 v{v0}, v{v0}, v31\nv_and_b32 v5, 1, v1\nv_cmp_eq_u32 vcc, 0, v5'.format(v0=V(0)))
        Lp = self.lab('XP'); Lq = self.lab('XQ')
        a('s_mov_b32 s79, 0\n%s:\nds_read_b32 v4, v%d offset:4128' % (Lp, EX + 3))
        for k in range(4): a('ds_read_b128 v[%d:%d], v%d offset:%d' % (FRG + 4 * k, FRG + 4 * k + 3, EX + 1, 1024 * k))
        a('s_add_u32 s79, s79, 1\ns_waitcnt lgkmcnt(4)\nv_readfirstlane_b32 s76, v4\ns_cmp_lg_u32 s76, 0\ns_cbranch_scc1 %s\ns_cmp_gt_u32 s79, %d\ns_cbranch_scc0 %s\n%s:' % (Lq, 64 * POLLMAX, Lp, Lq))
        self.stamp(4)
        for k in range(4):
            a('s_waitcnt lgkmcnt(%d)' % (3 - k))
            for r in (4 * k, 4 * k + 2): a('v_pk_add_f32 v[%d:%d], v[%d:%d], v[%d:%d]' % (KA + r, KA + r + 1, KA + r, KA + r + 1, FRG + r, FRG + r + 1))
        a("""v_cndmask_b32 v{m0}, v{v13}, v{v12}, vcc
        v_cndmask_b32 v{m1}, v{v15}, v{v14}, vcc
        s_cmp_eq_u32 s60, 0
        s_cbranch_scc0 L{t}_T1""".format(m0=FRG + 16, m1=FRG + 17, v12=V(12), v13=V(13), v14=V(14), v15=V(15), t=tag))
        def table(c):
            lv = [([V(o) for o in range(9)], 3072), ([V(9)] * 3 + [V(10)] * 3 + [V(11)] * 3, 2048),
                  ([V(12)] * 4 + [FRG + 16] + [V(13)] * 4, 1024), ([V(14)] * 4 + [FRG + 17] + [V(15)] * 4, 0)]
            for n, (t, off) in enumerate(lv):
                for d in range(4):
                    a('v_cvt_pk_bf16_f32 v%d, v%d, v%d' % (FRG + 4 * n + d, t[7 + c - 2 * d], t[6 + c - 2 * d]))
                a('ds_write_b128 v%d, v[%d:%d] offset:%d' % (EX + 2, FRG + 4 * n, FRG + 4 * n + 3, off))
        table(0)
        a('s_branch L%s_T2\nL%s_T1:' % (tag, tag))
        table(1)
        a('v_cvt_pk_bf16_f32 v8, v%d, 0\ns_mov_b64 exec, 1\nds_write_b32 v%d, v8 offset:4096\ns_mov_b64 exec, -1\nL%s_T2:' % (V(0), EX + 1, tag))
        self.stamp(5)
        Ln = self.lab('NN')
        a('s_cmp_eq_u32 s37, 0\ns_cbranch_scc0 %s\ns_waitcnt lgkmcnt(0)\ns_barrier\n%s:' % (Ln, Ln))
        CA, CB = 176, 180
        a("""v_and_b32 v9, 15, v1
        v_lshrrev_b32 v10, 4, v1
        v_and_b32 v11, 1, v1
        v_xor_b32 v11, 1, v11
        v_mul_u32_u24 v11, 4162, v11
        v_lshl_add_u32 v11, v10, 4, v11
        v_lshlrev_b32 v12, 1, v9
        v_sub_u32 v11, v11, v12
        s_lshl_b32 s76, s60, 8
        s_sub_u32 s76, s38, s76
        s_add_u32 s76, s76, %d
        v_add_u32 v%d, s76, v11""" % (2 * (2047 - 16) - 512 - 192, CA))
        for p in range(1, 4): a('v_add_u32 v%d, %d, v%d' % (CA + p, -1024 * p, CA))
        a("""v_lshlrev_b32 v9, 5, v9
        v_lshl_add_u32 v9, v10, 4, v9
        s_lshl_b32 s76, s60, 8
        s_sub_u32 s76, s39, s76
        s_add_u32 s76, s76, %d
        v_add_u32 v%d, s76, v9""" % (512 - 32 - 192, CB))
        a("""s_lshr_b32 s76, s61, 2
        s_lshl_b32 s76, s76, 14
        s_and_b32 s77, s61, 3
        s_lshl_b32 s77, s77, 4
        s_add_u32 s76, s76, s77
        s_lshl_b32 s77, s60, 13
        s_add_u32 s26, s76, s77
        v_lshlrev_b32 v181, 6, v1
        s_lshl_b32 s77, s60, 11
        s_add_u32 s77, s77, s39
        s_add_u32 s27, s77, 512
        s_and_b32 s3, s34, 3
        v_lshlrev_b32 v182, 4, v1
        s_mov_b32 s20, %d""" % FX)
        xld = 'buffer_load_dword v183, v182, %s, s20 offen sc1' % WS_; xchk = 'v_cmp_ne_u32 vcc, s21, v183'
        udma = """s_mov_b32 m0, s27
        s_add_u32 s77, s26, 3072
        buffer_load_dwordx4 v181, {ws}, s26 offen sc1 lds
        buffer_load_dwordx4 v181, {ws}, s77 offen offset:1024 sc1 lds""".format(ws=WS_)
        Lg = self.lab('NG'); Lw = self.lab('NW'); Lx = self.lab('NX')
        a('s_cmp_eq_u32 s37, 0\ns_cbranch_scc1 %s' % Lg)
        self.poll(xld, xchk)
        self.stamp(6)
        a(udma); a('s_waitcnt vmcnt(0)\ns_branch %s\n%s:' % (Lx, Lg))
        self.g2_offsets_s()
        self.w2_voff(14, 3, 13)
        a("""s_lshl_b32 s76, s62, 7
        s_lshl_b32 s77, s3, 5
        s_add_u32 s76, s76, s77
        s_mul_i32 s16, s76, 1280
        s_min_u32 s76, s63, 9
        s_lshl_b32 s76, s76, 7
        s_add_u32 s16, s16, s76
        v_lshrrev_b32 v9, 3, v1
        v_mul_u32_u24 v9, 1280, v9
        v_lshrrev_b32 v10, 4, v1
        v_xor_b32 v10, v10, v1
        v_and_b32 v10, 7, v10
        v_lshl_add_u32 v9, v10, 4, v9
        v_xor_b32 v10, 64, v9
        s_lshl_b32 s76, s3, 12
        s_add_u32 m0, s76, 98304""")
        for k in range(1, 9):
            if k == 7: a('s_waitcnt vmcnt(0)')
            a('s_barrier')
            i = k - XST
            if 0 <= i < 4: a('s_add_u32 s76, s16, %d\nbuffer_load_dwordx4 v%d, %s, s76 offen offset:%d lds' % (i * (8 * 1280 - 1024), 9 + (i & 1), X_, 1024 * i))
        a('s_setprio %d\ns_cmp_lt_u32 s36, 20\ns_cbranch_scc0 %s' % (SPRIO, Lw))
        Rn = [(s, 8 + k) for k, s in enumerate([0, 1, 18, 19, 20, 21, 22, 23])]
        Rn = Rn[4:] + Rn[:4]
        dm = self.w2_round(Rn, 14)
        for x in dm[:RB8]: a(x)
        a('s_barrier')
        for x in dm[RB8:RB9]: a(x)
        a(xld)
        a('s_barrier')
        for x in dm[RB9:]: a(x)
        Lok = self.lab('OK')
        a('s_waitcnt vmcnt(%d)\n%s\ns_cbranch_vccz %s' % (16 - RB9, xchk, Lok))
        self.poll(xld, xchk)
        a('%s:' % Lok)
        self.stamp(6)
        a(udma)
        for x in self.w2_round([(2 + k, k) for k in LORD[:NL0]], 14, thr=THR): a(x)
        self.stamp('r1')
        a('s_waitcnt vmcnt(%d)' % (2 * NL0 + 2))
        self.stamp('u')
        a('s_barrier')
        for x in self.w2_round([(2 + k, k) for k in LORD[NL0:NL1]], 14, thr=THR): a(x)
        a('s_waitcnt vmcnt(%d)\ns_branch %s\n%s:\ns_barrier\ns_barrier' % (2 * NL1, Lx, Lw))
        self.poll(xld, xchk)
        a(udma); a('s_barrier\ns_waitcnt vmcnt(0)\n%s:' % Lx)
        self.stamp('R')
        a('s_setprio 0\ns_waitcnt lgkmcnt(0)\ns_barrier')
        self.stamp(7)
        YA = 16; FA_ = [48, 112]
        def creads(tt):
            f = FA_[tt & 1]; l = []
            for i in range(8):
                o = (128 if i % 2 == 0 else 0) + 16 * (3 - tt)
                ra = ['ds_read2_b32 v[%d:%d], v%d offset0:%d offset1:%d' % (f + 4 * i + 2 * e, f + 4 * i + 2 * e + 1, CA + i // 2, o + 2 * e, o + 2 * e + 1) for e in range(2)]
                rb = 'ds_read_b128 v[%d:%d], v%d offset:%d' % (f + 32 + 4 * i, f + 35 + 4 * i, CB, 512 * i + 64 * (3 - tt))
                l += ra + [rb]
            return l
        def cm(tt, i, j, first):
            f = FA_[tt & 1]; c = 'v[%d:%d]' % (YA + 4 * (i + j), YA + 4 * (i + j) + 3)
            return 'v_mfma_f32_16x16x32_bf16 %s, v[%d:%d], v[%d:%d], %s' % (c, f + 4 * i, f + 4 * i + 3, f + 32 + 4 * j, f + 35 + 4 * j, '0' if first else c)
        r0 = creads(0)
        for x in r0[:12]: a(x)
        for tt in range(4):
            order = []
            for k in range(8):
                order += [(k, i, j) for i in range(k + 1) for j in range(k + 1) if max(i, j) == k and i + j <= 7]
            seen = set()
            nxt = (r0[12:] if tt == 0 else []) + (creads(tt + 1) if tt < 3 else [])
            issued = 12 if tt == 0 else 24
            extra = 0
            lastk = -1
            if tt > 0: a('s_waitcnt lgkmcnt(0)')
            for (k, i, j) in order:
                if tt == 0 and k != lastk:
                    while issued < 3 * (k + 1): a(nxt.pop(0)); issued += 1
                    a('s_waitcnt lgkmcnt(%d)' % min(15, issued + extra - 3 * (k + 1)))
                    lastk = k
                a(cm(tt, i, j, tt == 0 and (i + j) not in seen)); seen.add(i + j)
                if nxt:
                    a(nxt.pop(0))
                    if issued < 24: issued += 1
                    else: extra += 1
            for x in nxt: a(x)
        self.stamp(8)
        a('''s_mul_i32 s76, s60, 4160
        s_add_u32 s76, s76, s38
        v_lshl_add_u32 v4, v1, 4, s76
        s_xor_b32 s76, s60, 1
        s_mul_i32 s76, s76, 4160
        s_add_u32 s76, s76, s38
        v_lshl_add_u32 v5, v1, 4, s76
        s_waitcnt vmcnt(0)
        s_barrier
        s_cmp_eq_u32 s60, 0
        s_cbranch_scc0 L{t}_R1'''.format(t=tag))
        for k in range(4): a('ds_write_b128 v4, v[%d:%d] offset:%d' % (YA + 16 + 4 * k, YA + 19 + 4 * k, 1024 * k))
        a('s_branch L%s_R2\nL%s_R1:' % (tag, tag))
        for k in range(4): a('ds_write_b128 v4, v[%d:%d] offset:%d' % (YA + 4 * k, YA + 3 + 4 * k, 1024 * k))
        a('s_waitcnt lgkmcnt(0)')
        for k in range(16): a('v_mov_b32 v%d, v%d' % (YA + k, YA + 16 + k))
        a('L%s_R2:\ns_waitcnt lgkmcnt(0)\ns_barrier' % tag)
        for k in range(4): a('ds_read_b128 v[%d:%d], v5 offset:%d' % (48 + 4 * k, 51 + 4 * k, 1024 * k))
        a('''s_lshl_b32 s76, s61, 12
        s_lshl_b32 s77, s60, 11
        s_add_u32 s76, s76, s77
        s_add_u32 s76, s76, %d
        v_lshlrev_b32 v4, 4, v1''' % AA)
        for p in range(2):
            a('s_waitcnt lgkmcnt(%d)' % (2 - 2 * p))
            for k in range(8 * p, 8 * p + 8): a('v_add_f32 v%d, v%d, v%d' % (YA + k, YA + k, 48 + k))
            o = 64 + 4 * p
            for d in range(4): a('v_cvt_pk_bf16_f32 v%d, v%d, v%d' % (o + d, YA + 8 * p + 2 * d, YA + 8 * p + 2 * d + 1))
            a('v_permlane16_swap_b32 v%d, v%d\nv_permlane16_swap_b32 v%d, v%d' % (o, o + 2, o + 1, o + 3))
            a('buffer_store_dwordx4 v[%d:%d], v4, %s, s76 offen offset:%d sc1' % (o, o + 3, WS_, 1024 * p))
        self.stamp(9)
        a('s_mul_i32 s76, s60, 640\ns_add_u32 s76, s76, s61\ns_lshl_b32 s76, s76, 7\ns_add_u32 s76, s76, %d' % FA)
        for x in self.flag_regs(8): a(x)
        a('s_waitcnt vmcnt(0)'); a(self.flag(8, 76))
        self.stamp(10)
        Le = self.lab('EP')
        a('''s_lshl_b32 s76, s34, 8
        s_add_u32 s76, s76, s2
        s_cmp_eq_u32 s76, 192
        s_cbranch_scc0 {L}
        v_lshrrev_b32 v2, 2, v1
        v_mul_u32_u24 v2, 6144, v2
        v_and_b32 v3, 3, v1
        v_lshl_add_u32 v2, v3, 8, v2
        s_mov_b32 s20, {fh}'''.format(L=Le, fh=FH))
        ld = '\n'.join('buffer_load_dword v%d, v2, %s, s20 offen offset:%d sc1' % (3 + i, WS_, 1024 * i) for i in range(3))
        self.poll(ld, 'v_cmp_ne_u32 vcc, s21, v3\nv_cmp_ne_u32 s[76:77], s21, v4\nv_cmp_ne_u32 s[16:17], s21, v5\ns_or_b64 vcc, vcc, s[76:77]\ns_or_b64 vcc, vcc, s[16:17]')
        a('''s_mov_b32 s20, {ep}
        s_mov_b64 exec, 1
        buffer_store_dword v8, off, {ws}, s20 sc1
        s_branch L_FIN
        {L}:'''.format(L=Le, ep=EP, ws=WS_))
        a('s_cmp_lt_u32 s36, 20\ns_cbranch_scc0 L_FIN')
        a('''s_lshl_b32 s76, s62, 1
        s_lshr_b32 s77, s3, 1
        s_add_u32 s76, s76, s77
        s_mul_i32 s20, s76, 3072
        s_and_b32 s77, s3, 1
        s_mul_i32 s77, s77, 1536
        s_add_u32 s20, s20, s77
        s_add_u32 s20, s20, %d''' % (FH + 32 * 3072))
        self.spoll(12, 20)
        self.stamp('h1')
        a('s_barrier')
        a('''s_lshl_b32 s60, s63, 6
        s_lshl_b32 s76, s3, 4
        s_add_u32 s60, s60, s76
        s_lshr_b32 s76, s35, 2
        s_mul_i32 s76, s76, 640
        s_add_u32 s76, s76, s60
        s_lshl_b32 s76, s76, 7
        s_add_u32 s61, s76, {fa}
        v_and_b32 v4, 15, v1
        v_lshrrev_b32 v7, 4, v1
        v_lshlrev_b32 v8, 1, v7
        v_xor_b32 v8, v8, v4
        v_lshrrev_b32 v9, 1, v8
        v_lshlrev_b32 v9, 4, v9
        v_and_b32 v8, 1, v8
        v_lshl_add_u32 v9, v8, 9, v9
        v_lshl_add_u32 v9, v7, 12, v9
        v_xor_b32 v10, 64, v9
        s_lshl_b32 s60, s60, 12
        s_lshr_b32 s76, s35, 1
        s_lshl_b32 s76, s76, 10
        s_add_u32 s60, s60, s76
        s_and_b32 s76, s35, 1
        s_lshl_b32 s76, s76, 8
        s_add_u32 s60, s60, s76
        s_and_b32 s76, s62, 1
        s_lshl_b32 s76, s76, 7
        s_add_u32 s60, s60, s76
        s_add_u32 s60, s60, {aa}
        s_and_b32 s76, s3, 1
        s_xor_b32 s76, s76, 1
        s_mul_i32 s76, s76, 4160
        s_add_u32 m0, s76, s38'''.format(fa=FA, aa=AA))
        self.spoll(16, 61)
        self.stamp(11)
        a('s_barrier')
        for i in range(4):
            a('s_add_u32 s76, s60, %d\nbuffer_load_dwordx4 v%d, %s, s76 offen offset:%d sc1 lds' % (i * (16384 - 1024), 9 + (i & 1), WS_, 1024 * i))
        a('s_waitcnt vmcnt(0)')
        self.stamp(12)
        a('s_barrier\ns_branch L_FIN')
    def touch(self):
        self.a('s_and_b32 s76, s71, 3\ns_mul_i32 s76, s76, %d\ns_add_u32 s76, s76, s70\nbuffer_load_dword v255, v249, %s, s76 offen\ns_add_u32 s71, s71, 1' % (64 * 7680, W2_))
    def xhook(self):
        a = self.a
        L = self.lab('NH')
        a('s_cmp_eq_u32 s37, 0\ns_cbranch_scc1 %s' % L)
        a("""s_waitcnt vmcnt(0)
        s_barrier
        s_cmp_eq_u32 s34, 0
        s_cbranch_scc0 {L}
        s_lshl_b32 s76, s62, 4
        s_add_u32 s76, s76, {fx}""".format(L=L, fx=FX))
        for x in self.flag_regs(250): a(x)
        a(self.flag(250, 76).replace('0xff', '1')); a('%s:' % L)
        self.stamp('xf')
    def g2_offsets_s(self):
        self.a('''s_cmp_ge_u32 s36, 10
        s_cselect_b32 s62, 1, 0
        s_mul_i32 s63, s62, 10
        s_sub_u32 s63, s36, s63
        s_lshl_b32 s66, s35, 1
        s_add_u32 s62, s62, s66''')
        self.g2_offsets()
    def swave(self):
        a = self.a
        self.stamp('in')
        a("""s_setprio 3
        s_and_b32 s60, s34, 1
        s_bfe_u32 s76, s34, 0x10001
        s_mul_i32 s61, s35, 80
        s_lshl_b32 s77, s36, 1
        s_add_u32 s61, s61, s77
        s_add_u32 s61, s61, s76
        s_mov_b32 s37, 0
        v_mov_b32 v248, 0
        v_mov_b32 v226, 0
        v_mov_b32 v249, 0
        s_mul_i32 s38, s76, 8320
        s_add_u32 s38, s38, %d
        s_mul_i32 s39, s76, 4608
        s_add_u32 s39, s39, %d
        s_mov_b32 s78, 0""" % (L_TAB, L_U))
        self.s_param_pre()
        self.srds()
        self.s_param_loads()
        self.scode()
    def nwave(self):
        a = self.a
        self.stamp('in')
        a('''s_and_b32 s60, s34, 1
        s_lshr_b32 s76, s34, 1
        s_mul_i32 s61, s35, 80
        s_lshl_b32 s77, s36, 2
        s_add_u32 s61, s61, s77
        s_add_u32 s61, s61, s76
        s_sub_u32 s61, s61, 48
        s_mov_b32 s37, 1
        s_mul_i32 s38, s76, 8320
        s_add_u32 s38, s38, %d
        s_mul_i32 s39, s76, 4608
        s_add_u32 s39, s39, %d
        s_lshl_b32 s62, s35, 3
        s_add_u32 s62, s62, s36
        s_sub_u32 s62, s62, 24
        s_lshl_b32 s63, s62, 5
        s_lshl_b32 s76, s34, 2
        s_add_u32 s63, s63, s76
        s_mul_i32 s64, s63, 1280
        s_mov_b32 s78, 0
        v_mov_b32 v14, 0
        v_mov_b32 v15, 0
        v_min_u32 v249, 59, v1
        v_lshlrev_b32 v249, 7, v249
        v_lshrrev_b32 v4, 4, v1
        v_and_b32 v5, 15, v1
        v_mul_u32_u24 v6, 1280, v4
        v_lshl_add_u32 v248, v5, 4, v6''' % (N_TAB, N_U))
        self.s_param_pre()
        if 'nocp' not in self.opts:
            L = self.lab('CP')
            a('''s_cmp_eq_u32 s34, 0
            s_cbranch_scc0 {L}
            s_getpc_b64 s[68:69]
            {L}pc:
            s_sub_u32 s68, s68, {L}pc-{n}
            s_subb_u32 s69, s69, 0
            s_sub_u32 s76, s36, 24
            s_lshl_b32 s76, s76, 12
            v_and_b32 v7, 31, v1
            v_lshl_add_u32 v7, v7, 7, s76
            v_min_u32 v7, L_END-{n}, v7
            global_load_dword v255, v7, s[68:69]
            {L}:'''.format(L=L, n=NAME))
        self.srds()
        self.s_param_loads()
        a('''s_sub_u32 s76, s36, 24
        s_lshl_b32 s76, s76, 3
        s_add_u32 s76, s76, s34
        s_mul_i32 s76, s76, 24
        v_min_u32 v7, 23, v1
        v_add_u32 v7, s76, v7
        v_lshrrev_b32 v8, 8, v7
        v_mul_u32_u24 v9, {rc}, v8
        v_lshrrev_b32 v9, 4, v9
        v_bfe_u32 v10, v7, 7, 1
        v_mul_u32_u24 v10, 5, v10
        s_lshr_b32 s76, s35, 1
        s_mul_i32 s76, s76, {rR}
        s_lshr_b32 s76, s76, 4
        s_and_b32 s19, s35, 1
        s_mul_i32 s77, s19, {rC}
        s_lshr_b32 s77, s77, 4
        s_add_u32 s76, s76, s77
        s_add_u32 s76, s76, 4
        v_add3_u32 v9, v9, v10, s76
        v_mul_u32_u24 v10, 26, v9
        v_lshrrev_b32 v10, 8, v10
        v_mul_u32_u24 v10, 10, v10
        v_sub_u32 v9, v9, v10
        v_bfe_u32 v10, v7, 1, 6
        v_lshl_add_u32 v9, v9, 6, v10
        v_mul_u32_u24 v9, 3072, v9
        v_lshl_add_u32 v9, v8, 8, v9
        v_and_b32 v10, 1, v7
        v_lshl_add_u32 v226, v10, 7, v9
        s_mul_i32 s19, s19, 1536'''.format(rc=ROT[1], rR=ROT[2], rC=ROT[3]))
        a('s_branch L_SC')
        XF = 100; T0 = 140
        a('L_LN:')
        self.stamp('ln')
        a('''s_sub_u32 s70, s36, 24
        s_lshl_b32 s70, s70, 3
        s_add_u32 s70, s70, s34
        s_mul_i32 s70, s70, 7680
        s_mov_b32 s71, s35''')
        self.touch()
        a('''        v_lshrrev_b32 v4, 4, v1
        v_and_b32 v5, 15, v1
        s_and_b32 s76, s34, 1
        s_lshl_b32 s76, s76, 4
        s_lshr_b32 s77, s34, 1
        s_lshl_b32 s77, s77, 2
        s_add_u32 s76, s76, s77
        v_add_u32 v6, s76, v4
        v_mul_u32_u24 v6, {ts}, v6
        v_lshl_add_u32 v6, v5, 4, v6
        v_and_b32 v7, 3, v1
        v_bfe_u32 v8, v1, 2, 2
        v_lshl_add_u32 v7, v7, 2, v8
        v_mul_u32_u24 v7, {ts}, v7
        v_lshl_add_u32 v7, v4, 3, v7
        s_mul_i32 s76, s34, 160
        v_add_u32 v7, s76, v7
        v_lshlrev_b32 v8, 14, v4
        v_lshl_add_u32 v8, v5, 4, v8
        s_mul_i32 s65, s34, {cq}
        s_lshl_b32 s76, s62, 8
        s_add_u32 s65, s65, s76
        v_mov_b32 v10, 0
        v_mov_b32 v11, 0
        v_mov_b32 v12, 0
        v_mov_b32 v13, 0'''.format(ts=TSTR, cq=20 * 16384, t8=T0 + 8, t9=T0 + 9))
        for i in range(5):
            a('s_waitcnt vmcnt(%d)' % (5 - i))
            for d in range(4):
                s = XI + 4 * i + d; f = XF + 8 * i + 2 * d
                a('''v_lshlrev_b32 v{f}, 16, v{s}
                v_and_b32 v{f1}, 0xffff0000, v{s}
                v_pk_add_f32 v[10:11], v[10:11], v[{f}:{f1}]
                v_pk_fma_f32 v[12:13], v[{f}:{f1}], v[{f}:{f1}], v[12:13]'''.format(f=f, f1=f + 1, s=s))
        self.stamp(1)
        a('v_add_f32 v10, v10, v11\nv_add_f32 v12, v12, v13')
        for sh in (8, 4, 2, 1):
            a('v_add_f32 v10, v10, v10 row_ror:%d\nv_add_f32 v12, v12, v12 row_ror:%d' % (sh, sh))
        rb = lambda d, s: 'v_cvt_pk_bf16_f32 v%d, v%d, v%d\nv_lshlrev_b32 v%d, 16, v%d' % (d, s, s, d, d)
        EPS = f32(1e-5)
        a('v_mul_f32 v10, {c}, v10\nv_mul_f32 v12, {c}, v12\nv_fma_f32 v12, -v10, v10, v12\nv_max_f32 v12, 0, v12'.format(c=f32(1.0 / 640)))
        a(rb(11, 10))
        a(rb(13, 12)); a('v_add_f32 v13, %s, v13' % EPS); a(rb(13, 13)); a('v_sqrt_f32 v13, v13'); a(rb(13, 13))
        a('v_rcp_f32 v14, v13\nv_mul_f32 v15, v11, v14\nv_sub_f32 v15, 0, v15')
        for i in range(5):
            for d in range(4):
                s = XI + 4 * i + d; f = XF + 8 * i + 2 * d
                a('v_pk_fma_f32 v[{f}:{f1}], v[{f}:{f1}], v[14:15], v[14:15] op_sel:[0,0,1] op_sel_hi:[1,0,1]\nv_cvt_pk_bf16_f32 v{s}, v{f}, v{f1}'.format(f=f, f1=f + 1, s=s))
            a('ds_write_b128 v6, v[%d:%d] offset:%d' % (XI + 4 * i, XI + 4 * i + 3, 256 * i))
        a('v_sub_f32 v10, v10, v11\nv_mul_f32 v10, v10, v14'); a(rb(10, 10))
        a('v_mul_f32 v12, v12, v14\nv_mul_f32 v12, v12, v14'); a(rb(12, 12)); a('v_add_f32 v12, %s, v12' % EPS); a(rb(12, 12)); a('v_sqrt_f32 v12, v12'); a(rb(12, 12))
        a('v_fma_f32 v10, -v10, v13, -v11\nv_mul_f32 v12, v13, v12')
        a('''s_lshl_b32 s67, s63, 4
        s_add_u32 s67, s67, {st}
        v_lshlrev_b32 v14, 4, v4
        v_mov_b32 v11, s21
        v_mov_b32 v13, s21
        v_cmp_eq_u32 vcc, 0, v5
        s_and_saveexec_b64 s[68:69], vcc
        buffer_store_dwordx4 v[10:13], v14, {ws}, s67 offen sc1
        s_mov_b64 exec, s[68:69]'''.format(st=ST, ws=WS_))
        self.stamp('l4')
        a('s_waitcnt lgkmcnt(0)\ns_barrier')
        for i in range(5):
            for e in range(2):
                a('ds_read_b64_tr_b16 v[%d:%d], v7 offset:%d' % (XI + 4 * i + 2 * e, XI + 4 * i + 2 * e + 1, 32 * i + 16 * TSTR * e))
        for i in range(5):
            a('s_waitcnt lgkmcnt(%d)\ns_add_u32 s76, s65, %d\nbuffer_store_dwordx4 v[%d:%d], v8, %s, s76 offen sc1' % (8 - 2 * i, XT + i * 4 * 16384, XI + 4 * i, XI + 4 * i + 3, WS_))
        self.stamp('xs')
        a('s_branch L_LNR')

    def build(self):
        a = self.a
        self.prologue()
        a('s_cmp_ge_u32 s36, 24\ns_cbranch_scc1 L_N\ns_cmp_ge_u32 s34, 4\ns_cbranch_scc1 L_S')
        self.sel = SEL['G']; self.gwave()
        self.sel = SEL['S']; a('L_S:'); self.swave()
        self.sel = SEL['N']; a('L_N:'); self.nwave()
        a('L_FIN:')
        self.dump_stamps()
        for o_ in self.opts:
            if o_.startswith('pad='):
                a('''s_cmp_eq_u32 s34, 0
                s_cbranch_scc0 L_END
                s_cmp_lt_u32 s36, 20
                s_cbranch_scc0 L_END''')
                for q_ in self.opts:
                    if q_.startswith('padwg='): a('s_cmp_eq_u32 s2, %d\ns_cbranch_scc0 L_END' % int(q_[6:]))
                a('''L_PAD:
                s_memrealtime s[98:99]
                s_waitcnt lgkmcnt(0)
                s_sub_u32 s77, s98, s96
                s_cmp_lt_u32 s77, %d
                s_cbranch_scc1 L_PAD''' % int(o_[4:]))
        if 'span' in self.opts:
            a('''s_cmp_eq_u32 s34, 0
            s_cbranch_scc0 L_END
            s_waitcnt vmcnt(0)
            s_memrealtime s[98:99]
            s_memtime s[76:77]
            s_waitcnt lgkmcnt(0)
            s_not_b32 s97, s96
            s_sub_u32 s76, s76, s100
            s_sub_u32 s77, s98, s96
            s_mov_b64 exec, 1
            v_mov_b32 v0, 0
            v_mov_b32 v1, s97
            v_mov_b32 v2, s98
            v_mov_b32 v3, s96
            v_mov_b32 v4, s76
            v_mov_b32 v5, s77
            global_atomic_umax v0, v1, s[30:31]
            global_atomic_umax v0, v2, s[30:31] offset:4
            global_atomic_umax v0, v3, s[30:31] offset:8
            global_atomic_umax v0, v4, s[30:31] offset:12
            global_atomic_umax v0, v5, s[30:31] offset:16''')
        a('L_END:')
        body = a.finish()
        ref = open('parallel_sum__ssm_conv_s4d__mixer_channel_mlp__prompt.s.ref').read()
        head = ''.join(l + '\n' for l in ref.split('\n') if l.startswith(';') and '@launch' not in l)
        return head + '''; @launch grid=(256,1,1) block=(512,1,1) lds=163840
.amdgcn_target "amdgcn-amd-amdhsa--gfx950"
.text
.globl {n}
.p2align 8
.type {n},@function
{n}:
{body}    s_endpgm
.section .rodata,"a"
.p2align 6
.amdhsa_kernel {n}
  .amdhsa_next_free_vgpr 256
  .amdhsa_next_free_sgpr 102
  .amdhsa_accum_offset 256
  .amdhsa_group_segment_fixed_size 0
  .amdhsa_kernarg_size 120
  .amdhsa_user_sgpr_count 2
  .amdhsa_user_sgpr_kernarg_segment_ptr 1
  .amdhsa_system_sgpr_workgroup_id_x 1
  .amdhsa_float_denorm_mode_32 3
.end_amdhsa_kernel
'''.format(n=NAME, body=body)
if __name__ == '__main__':
    out = sys.argv[1]; opts = sys.argv[2:]
    g = G('stamps' in opts, opts); s = g.build(); open(out, 'w').write(s)
    print('wrote', out, len(s), 'bytes; nops inserted', g.a.nops)
```

```python
import sys, math, struct
sys.path.insert(0, 'work')
from asmdsl import Asm, interleave
NAME = 'parallel_sum__ssm_conv_s4d__mixer_channel_mlp__prompt_kernel'
def f32(x): return '0x%08x' % struct.unpack('<I', struct.pack('<f', x))[0]
LOG2E = math.log2(math.e)
XT, HH, AA, FL, DBG = 0x000000, 0x400000, 0xA00000, 0xD00000, 0xE00000
ST, FX, EP, FH, FA = FL, FL + 0x8000, FL + 0xC000, FL + 0x10000, FL + 0x40000
WS_BYTES = 0x1000000
XR = 131072
L_TAB, L_U, L_CS, L_ST = XR, XR + 2 * 8320, XR + 2 * 8320 + 2 * 4608, XR + 2 * 8320 + 2 * 4608 + 1024
L_NON = L_ST + 1024
VN = 27
L_AT = XR
L_RED = 0
N_T, N_TAB, N_U = 0, 49152, 49152 + 4 * 8320
TSTR = 1296
sWV, sXCD, sJ = 34, 35, 36
X_, W1_, W2_, WS_, OUT_ = 's[40:43]', 's[44:47]', 's[48:51]', 's[52:55]', 's[56:59]'
POLLMAX = 0x8000
BARPOS = [.45, .7, .9, 1.0, 1.0, 1.0, 1.0]
PPOS, NPH, B1P, RBU, B3B = 8, 16, 22, 4, 0
RB8, RB9 = 8, 10
FLAG0 = 30
ROT = [40, 27, 0, 0]
SPRIO = 0
FLAG1 = 14
THR = 4
NOBP = 0
KPRIO = 1
LORD = [2, 3, 4, 5, 0, 1, 6, 7]
XHOOK = 0.3
TOUCH = [0.32, 0.45, 0.7]
SLP = 4
XST = 2
XI = 228
NL0, NL1 = 4, 8
THR0 = None
FRONT = 0
PK = 1
LNP = 1
PRE2 = 8
W1T = 0
WFIRST = 1
SA = 84
OUTAUX = ''
import os
SELS = {
 'main': {'G': [0, 'b0', 'b9', 5, 6, 7, 10, 11, 12], 'S': [0, 2, 3, 'st', 5, 6, 'R', 8, 10]},
 'start': {'G': [0, 'd0', 'd1', 'd2', 'w0', 'b0', 'b1', 'b2', 'b3'], 'S': [0, 'pl', 'a0', 2, 'ln', 'xs', 3, 4, 5]},
 'g1': {'G': [0, 'b0', 'b1', 'b2', 'b3', 'b4', 'b6', 'b8', 'b9'], 'S': [0, 2, 'xf', 3, 'st', 4, 5, 6, 'R']},
 'mid': {'G': [0, 'b9', 5, 't1', 't2', 't3', 'f0', 6, 7], 'S': [0, 3, 4, 5, 6, 'r1', 'u', 'R', 7]},
 'ln': {'G': [0, 'b5', 'b6', 'b7', 'a8', 'b8', 'a9', 'w9', 'b9'], 'S': [0, 2, 'ln', 1, 'l4', 'xs', 'xf', 3, 'st']},
 'g2': {'G': [0, 's0', 's2', 's5', 's8', 's11', 's14', 's17', 's23'], 'S': [0, 7, 8, 9, 10, 11, 12]},
 'none': {'G': [0, 'b0', 'b2', 'b9', 7, 11, 12], 'S': [0, 2, 'xs', 3, 7, 9]},
 'end': {'G': [0, 7, 'f1', 10, 8, 9, 11, 12, 13], 'S': [0, 7, 8, 9, 10, 'h1', 11, 12]},
}
CLK = 's_memtime' if os.environ.get('CYC') else 's_memrealtime'
SEL = SELS[os.environ.get('SEL', 'main')]
SEL['N'] = SEL['S']
for _k in ('BARPOS', 'XHOOK', 'XST', 'NL0', 'NL1', 'FLAG0', 'FLAG1', 'THR', 'SLP', 'TOUCH', 'SA', 'OUTAUX', 'RB8', 'RB9', 'PPOS', 'NPH', 'B1P', 'RBU', 'ROT', 'NOBP', 'THR0', 'FRONT', 'PK', 'LNP', 'PRE2', 'W1T', 'WFIRST', 'KPRIO', 'SPRIO', 'B3B'):
    if os.environ.get(_k): globals()[_k] = eval(os.environ[_k])
class G:
    def __init__(self, stamps=False, opts=()):
        self.a = Asm(); self.stamps = stamps; self.nlab = 0; self.opts = set(opts); self.sel = None
    def lab(self, p='L'):
        self.nlab += 1; return '%s%d' % (p, self.nlab)
    def stamp(self, k):
        if 'padat=%s' % k in self.opts: self.a('s_memrealtime s[96:97]')
        if self.stamps and k in self.sel:
            i = self.sel.index(k); self.a('%s s[%d:%d]' % (CLK, 80 + 2 * i, 81 + 2 * i))
    def dump_stamps(self):
        if not self.stamps: return
        a = self.a
        a('s_lshl_b32 s60, s2, 3\ns_add_u32 s60, s60, s%d\ns_lshl_b32 s60, s60, 6\ns_add_u32 s60, s60, %d' % (sWV, DBG))
        a('s_mov_b64 exec, -1\nv_mov_b32 v0, 0')
        a('s_memtime s[76:77]\n' + CLK + ' s[98:99]\ns_waitcnt lgkmcnt(0)\ns_sub_u32 s100, s76, s100')
        for k in range(11):
            a('v_mov_b32 v1, s%d\nbuffer_store_dword v1, v0, %s, s60 offen offset:%d' % (80 + 2 * k, WS_, 4 * k))
    def poll(self, load, check):
        L = self.lab('P'); E = self.lab('PE')
        self.a('s_mov_b32 s79, 0\n%s:\n%s\ns_add_u32 s79, s79, 1\ns_waitcnt vmcnt(0)\n%s\ns_cbranch_vccz %s\ns_sleep %d\ns_cmp_gt_u32 s79, %d\ns_cbranch_scc0 %s\n%s:' % (L, load, check, E, SLP, POLLMAX, L, E))
    def spoll(self, n, off):
        a = self.a
        D = list(range(64, 76)) + [16, 17, 18, 19]
        L = self.lab('SP'); E = self.lab('SE')
        a('s_add_u32 s22, s32, s%d\ns_addc_u32 s23, s33, 0\ns_mov_b32 s79, 0\n%s:' % (off, L))
        for i in range(n): a('s_load_dword s%d, s[22:23], %d glc' % (D[i], 128 * i))
        a('s_add_u32 s79, s79, 1\ns_waitcnt lgkmcnt(0)\ns_xor_b32 s76, s%d, s21' % D[0])
        for i in range(1, n): a('s_xor_b32 s77, s%d, s21\ns_or_b32 s76, s76, s77' % D[i])
        a('s_cbranch_scc0 %s\ns_sleep %d\ns_cmp_gt_u32 s79, %d\ns_cbranch_scc0 %s\n%s:' % (E, SLP, POLLMAX, L, E))
    def nonce0(self): self.a('s_mov_b32 s76, %d\ns_load_dword s21, s[32:33], s76' % EP)
    def nonce2(self): return 's_mul_i32 s21, s21, 0x9e3779b1\ns_add_u32 s21, s21, 0x7f4a7c15'
    def flag(self, v, soff):
        return 's_mov_b64 exec, 0xff\nbuffer_store_dwordx4 v[%d:%d], v%d, %s, s%d offen sc1\ns_mov_b64 exec, -1' % (v, v + 3, v + 4, WS_, soff)
    def flag_regs(self, v):
        return ['v_mov_b32 v%d, s21' % (v + i) for i in range(4)] + ['v_lshlrev_b32 v%d, 4, v1' % (v + 4)]
    def prologue(self):
        a = self.a
        a('''s_cmp_ge_u32 s2, 256
        s_cbranch_scc1 L_END
        s_load_dwordx16 s[4:19], s[0:1], 0
        s_load_dwordx8 s[20:27], s[0:1], 64
        s_load_dwordx4 s[28:31], s[0:1], 96
        s_load_dwordx2 s[32:33], s[0:1], 112''')
        if self.stamps:
            a('s_memtime s[100:101]\n' + CLK + ' s[80:81]')
            for k in range(1, 10): a('s_mov_b32 s%d, 0' % (80 + 2 * k))
        if 'span' in self.opts or any(o.startswith('pad=') for o in self.opts): a('s_memrealtime s[96:97]\ns_memtime s[100:101]')
        a('''v_lshrrev_b32 v2, 6, v0
        v_and_b32 v1, 63, v0
        s_and_b32 s35, s2, 7
        v_readfirstlane_b32 s34, v2
        s_lshr_b32 s36, s2, 3
        s_mov_b32 s42, %d
        s_mov_b32 s43, 0x20000
        s_mov_b32 s46, %d
        s_mov_b32 s47, 0x20000
        s_mov_b32 s50, %d
        s_mov_b32 s51, 0x20000
        s_mov_b32 s54, %d
        s_mov_b32 s55, 0x20000
        s_mov_b32 s58, %d
        s_mov_b32 s59, 0x20000''' % (2048 * 1280, 640 * 3072, 1536 * 1280, WS_BYTES, 2048 * 1280))
    def srds(self):
        self.a('''s_waitcnt lgkmcnt(0)
        s_mov_b32 s40, s4
        s_mov_b32 s41, s5
        s_mov_b32 s44, s20
        s_mov_b32 s45, s21
        s_mov_b32 s48, s24
        s_mov_b32 s49, s25
        s_mov_b32 s52, s32
        s_mov_b32 s53, s33
        s_mov_b32 s56, s28
        s_mov_b32 s57, s29''')
        self.stamp('srd')
    def g12_ids(self):
        self.a('''s_mul_i32 s60, s36, 43
        s_lshr_b32 s60, s60, 8
        s_mul_i32 s61, s60, 6
        s_sub_u32 s61, s36, s61
        s_lshr_b32 s64, s35, 1
        s_and_b32 s65, s35, 1
        s_lshl_b32 s37, s64, 2
        s_add_u32 s37, s37, s60
        s_mul_i32 s38, s65, 6
        s_add_u32 s38, s38, s61
        s_mul_i32 s39, s60, %d
        s_lshr_b32 s39, s39, 4
        s_mul_i32 s66, s61, %d
        s_lshr_b32 s66, s66, 4
        s_add_u32 s39, s39, s66
        s_mul_i32 s66, s64, %d
        s_lshr_b32 s66, s66, 4
        s_add_u32 s39, s39, s66
        s_mul_i32 s66, s65, %d
        s_lshr_b32 s66, s66, 4
        s_add_u32 s39, s39, s66
        s_cmp_ge_u32 s39, 10
        s_cselect_b32 s66, 10, 0
        s_sub_u32 s39, s39, s66''' % tuple(ROT))
        self.a('''        s_cmp_ge_u32 s36, 10
        s_cselect_b32 s62, 1, 0
        s_mul_i32 s63, s62, 10
        s_sub_u32 s63, s36, s63
        s_lshl_b32 s66, s35, 1
        s_add_u32 s62, s62, s66''')
    def g2_offsets(self):
        a = self.a
        a('s_lshl_b32 s4, s63, 10')
        for i in range(1, 12):
            a('s_add_u32 s%d, s%d, 1024\ns_cmp_eq_u32 s%d, 12288\ns_cselect_b32 s%d, 0, s%d' % (4 + i, 3 + i, 4 + i, 4 + i, 4 + i))
    def w2_voff(self, v0, wv, t):
        self.a("""s_lshr_b32 s76, s{wv}, 1
        s_mul_i32 s76, s76, {khs}
        s_and_b32 s77, s{wv}, 1
        s_mul_i32 s77, s77, {r16}
        s_add_u32 s76, s76, s77
        s_lshl_b32 s77, s63, 7
        s_add_u32 s76, s76, s77
        v_lshrrev_b32 v{t}, 3, v1
        v_mul_u32_u24 v{v0}, 1280, v{t}
        v_lshrrev_b32 v{t}, 4, v1
        v_lshlrev_b32 v{t}, 1, v{t}
        v_xor_b32 v{t}, v{t}, v1
        v_and_b32 v{t}, 7, v{t}
        v_lshl_add_u32 v{v0}, v{t}, 4, v{v0}
        v_add_u32 v{v0}, s76, v{v0}
        v_add_u32 v{v1}, {d}, v{v0}
        s_lshl_b32 s78, s{wv}, 11""".format(wv=wv, khs=24 * 32 * 1280, r16=16 * 1280, t=t, v0=v0, v1=v0 + 1, d=8 * 1280 - 1024))
    def w2_dma(self, step, slot, v0):
        part, i = step // 12, step % 12
        return ['s_add_u32 m0, s78, %d\ns_mul_i32 s76, s%d, 80\n%sbuffer_load_dwordx4 v%d, %s, s76 offen lds' % (slot * 8192, 4 + i, 's_add_u32 s76, s76, 40960\n' if part else '', v0, W2_),
                'buffer_load_dwordx4 v%d, %s, s76 offen offset:1024 lds' % (v0 + 1, W2_)]
    def w2_round(self, units, v0, thr=None):
        l = []
        for st, sl in units:
            d = self.w2_dma(st, sl, v0)
            if thr is not None: d[0] = 's_waitcnt vmcnt(%d)\n' % thr + d[0]
            l += d
        return l
    def gwave(self):
        a = self.a
        NT = 4
        VX, VW, RX, RW = 16, 20, 24, 26
        RX, RW = 24, 28
        FR = 32
        CS, BS = 64, 72
        AUG = 76
        VB1 = 92
        VCW, VCR, VSR, VBA = 94, 95, 96, 97
        VXR = 99
        TM = 100
        VB2, VXI = 12, 240
        T, P, KC = 208, 224, 232
        TR, RF, A2, HR = 4, 16, 144, 208
        ACC = [[144, 160], [176, 192]]
        acc = lambda t, nt: A2 + 32 * (t >> 1) + 8 * nt + 4 * (t & 1)
        self.g12_ids()
        a("""s_and_b32 s60, s34, 1
        s_lshr_b32 s61, s34, 1""")
        a("""s_lshl_b32 s76, s37, 7
        s_lshl_b32 s77, s34, 5
        s_add_u32 s76, s76, s77
        s_mul_i32 s76, s76, 1280
        v_lshrrev_b32 v2, 3, v1
        v_mul_u32_u24 v3, 1280, v2
        v_lshrrev_b32 v4, 4, v1
        v_xor_b32 v5, v4, v1
        v_and_b32 v5, 7, v5
        v_lshl_add_u32 v6, v5, 4, v3
        v_xor_b32 v5, 4, v5
        v_lshl_add_u32 v7, v5, 4, v3
        v_add_u32 v%d, s76, v6
        v_add_u32 v7, s76, v7
        v_add_u32 v%d, %d, v7
        v_add_u32 v%d, %d, v%d
        v_add_u32 v%d, %d, v7""" % (VX, VX + 1, 8 * 1280 - 1024, VX + 2, 16 * 1280 - 2048, VX, VX + 3, 24 * 1280 - 3072))
        a("""s_mul_i32 s76, s34, %d
        s_lshl_b32 s77, s38, 8
        s_add_u32 s76, s76, s77
        v_mul_u32_u24 v3, 3072, v4
        v_lshlrev_b32 v5, 2, v4
        v_xor_b32 v5, v5, v1
        v_and_b32 v5, 15, v5
        v_lshl_add_u32 v3, v5, 4, v3
        v_add_u32 v%d, s76, v3""" % (16 * 3072, VW))
        for i in range(1, 4): a('v_add_u32 v%d, %d, v%d' % (VW + i, i * (4 * 3072 - 1024), VW))
        a('s_lshl_b32 s67, s34, 12')
        self.srds()
        self.nonce0()
        def dma(stage, wfirst=False):
            idx = stage % 3
            lx, lw = [], []
            for i in range(4):
                pre = 's_add_u32 m0, s67, %d\ns_lshl_b32 s76, s39, 7\n' % (idx * 16384) if i == 0 else ''
                lx.append(pre + 'buffer_load_dwordx4 v%d, %s, s76 offen offset:%d lds' % (VX + i, X_, 1024 * i))
                pre = 's_add_u32 m0, s67, %d\ns_mul_i32 s77, s39, %d\n' % (49152 + idx * 16384, 64 * 3072) if i == 0 else ''
                lw.append(pre + 'buffer_load_dwordx4 v%d, %s, s77 offen offset:%d lds' % (VW + i, W1_, 1024 * i))
            l = lw + lx if wfirst else lx + lw
            l[7] += '\ns_add_u32 s39, s39, 1\ns_cmp_eq_u32 s39, 10\ns_cselect_b32 s39, 0, s39'
            return l
        a('s_barrier')
        for x in dma(0): a(x)
        self.stamp('d0')
        a("""v_and_b32 v8, 31, v1
        v_lshrrev_b32 v9, 5, v1
        v_and_b32 v10, 15, v1
        v_lshrrev_b32 v11, 4, v1
        v_bfe_u32 v12, v1, 4, 1
        v_bfe_u32 v13, v1, 2, 2
        v_and_b32 v14, 3, v1""")
        a("""v_bfe_u32 v4, v1, 1, 3
        v_xor_b32 v4, v4, v9
        s_lshl_b32 s76, s61, 2
        v_xor_b32 v4, s76, v4
        v_lshlrev_b32 v4, 4, v4
        v_lshl_add_u32 v4, v8, 7, v4
        s_lshl_b32 s76, s61, 13
        v_add_u32 v%d, s76, v4""" % RX)
        for s in range(1, 4): a('v_xor_b32 v%d, %d, v%d' % (RX + s, 32 * s, RX))
        a("""v_lshl_add_u32 v5, v9, 3, v13
        v_lshlrev_b32 v5, 8, v5
        s_lshl_b32 s77, s60, 1
        v_xor_b32 v4, s77, v13
        v_lshl_add_u32 v5, v4, 6, v5
        v_lshl_add_u32 v5, v12, 5, v5
        v_lshl_add_u32 v5, v14, 3, v5
        s_add_u32 s76, s76, 49152
        v_add_u32 v%d, s76, v5
        v_xor_b32 v%d, 64, v%d
        v_xor_b32 v%d, 0x2000, v%d
        v_xor_b32 v%d, 0x2040, v%d""" % (RW, RW + 1, RW, RW + 2, RW, RW + 3, RW))
        a("""v_xor_b32 v4, v11, v1
        v_and_b32 v4, 1, v4
        v_cmp_eq_u32 vcc, 0, v4
        v_mov_b32 v5, 0x3f803f80
        v_cmp_gt_u32 s[64:65], 32, v1
        v_cmp_gt_u32 s[74:75], 2, v10
        v_cndmask_b32 v%d, 0, v5, vcc
        v_cndmask_b32 v%d, 0, v5, vcc
        v_cndmask_b32 v%d, 0, v5, vcc
        v_cndmask_b32 v%d, 0, v5, vcc""" % (BS, BS + 1, BS + 2, BS + 3))
        a("""s_lshl_b32 s76, s61, 9
        s_lshl_b32 s77, s60, 8
        s_add_u32 s77, s77, {cs}
        s_add_u32 s76, s76, s77
        v_lshlrev_b32 v5, 4, v11
        v_lshl_add_u32 v5, v10, 6, v5
        v_add_u32 v{cw}, s76, v5
        v_lshl_add_u32 v{cr}, v8, 2, s77
        s_lshl_b32 s76, s37, 1
        s_add_u32 s76, s76, s61
        s_lshl_b32 s76, s76, 10
        s_add_u32 s76, s76, {st}
        v_lshl_add_u32 v{sr}, v8, 4, s76
        s_lshl_b32 s76, s38, 8
        s_lshl_b32 s77, s60, 7
        s_add_u32 s76, s76, s77
        v_lshl_add_u32 v{ba}, v8, 1, s76
        v_mov_b32 v{b1}, 0
        v_mov_b32 v{b11}, 0""".format(cs=L_CS, st=ST, cw=VCW, cr=VCR, sr=VSR, ba=VBA, b1=VB1, b11=VB1 + 1))
        a("""v_mul_u32_u24 v4, 49152, v12
        v_lshl_add_u32 v4, v9, 8, v4
        v_lshl_add_u32 v2, v10, 4, v4
        s_lshl_b32 s76, s37, 1
        s_add_u32 s76, s76, s61
        s_mul_i32 s68, s76, {b4}
        s_mul_i32 s3, s76, 3072
        s_lshl_b32 s76, s38, 1
        s_add_u32 s76, s76, s60
        s_lshl_b32 s77, s76, 10
        s_add_u32 s68, s68, s77
        s_add_u32 s68, s68, {hh}
        s_add_u32 s69, s68, {b2}
        s_add_u32 s70, s68, 24576
        s_add_u32 s71, s69, 24576
        s_lshl_b32 s76, s76, 7
        s_add_u32 s3, s3, s76
        s_add_u32 s3, s3, {fh}""".format(b4=4 * 49152, b2=2 * 49152, hh=HH, fh=FH))
        a("""s_lshl_b32 s76, s62, 1
        s_add_u32 s76, s76, s61
        s_mul_i32 s72, s76, {r64}
        s_mul_i32 s73, s76, {b4}
        s_mul_i32 s66, s76, 3072
        s_mul_i32 s77, s60, 12288
        s_add_u32 s73, s73, s77
        s_add_u32 s73, s73, {hh}
        s_mul_i32 s77, s60, 1536
        s_add_u32 s66, s66, s77
        s_add_u32 s66, s66, {fh}
        s_min_u32 s76, s63, 9
        s_lshl_b32 s76, s76, 7
        s_lshl_b32 s77, s60, 6
        s_add_u32 s76, s76, s77
        s_add_u32 s72, s72, s76
        v_lshlrev_b32 v4, 5, v12
        v_lshl_add_u32 v4, v9, 4, v4
        v_mul_u32_u24 v5, 1280, v10
        v_add_u32 v3, v4, v5
        v_add_u32 v{ba}, s76, v4""".format(r64=64 * 1280, b4=4 * 49152, hh=HH, fh=FH, ba=VBA + 1))
        a("""v_lshl_add_u32 v4, v12, 1, v9
        s_lshl_b32 s76, s60, 2
        v_lshrrev_b32 v5, 1, v10
        v_xor_b32 v4, v4, v5
        v_xor_b32 v4, s76, v4
        v_lshlrev_b32 v4, 4, v4
        v_lshl_add_u32 v4, v10, 7, v4
        s_lshl_b32 s76, s61, 13
        s_add_u32 s76, s76, 98304
        v_add_u32 v%d, s76, v4""" % VXR)
        a("""v_lshl_add_u32 v15, v12, 2, v13
        v_lshrrev_b32 v5, 1, v15
        v_lshl_add_u32 v15, v9, 4, v15
        v_lshlrev_b32 v15, 7, v15
        s_lshl_b32 s76, s60, 1
        v_xor_b32 v5, s76, v5
        v_lshl_add_u32 v15, v5, 5, v15
        v_lshl_add_u32 v15, v14, 3, v15
        s_lshl_b32 s76, s60, 12
        s_add_u32 s76, s76, 0x10000
        v_add_u32 v4, s76, v15
        v_xor_b32 v5, 32, v4
        v_xor_b32 v6, 64, v4
        v_xor_b32 v7, 96, v4""")
        self.w2_voff(8, sWV, 10)
        self.g2_offsets()
        a('global_load_short_d16_hi v%d, v%d, s[22:23]\nglobal_load_short_d16_hi v%d, v%d, s[22:23] offset:64' % (VB1, VBA, VB1 + 1, VBA))
        a('global_load_dwordx4 v[%d:%d], v%d, s[26:27]' % (VB2, VB2 + 3, VBA + 1))
        for x in dma(1, WFIRST): a(x)
        self.stamp('d1')
        d2 = dma(2)
        for x in d2[:PRE2]: a(x)
        self.stamp('d2')
        def reads(stage, s):
            idx = stage % 3; f = FR + 16 * (s & 1)
            l = []
            for mt in range(2):
                for e in range(2):
                    l.append('ds_read_b64_tr_b16 v[%d:%d], v%d offset:%d' % (f + 4 * mt + 2 * e, f + 4 * mt + 2 * e + 1, RW + 2 * (s >> 1) + mt, idx * 16384 + (s & 1) * 4096 + 1024 * e))
            for nt in range(2):
                l.append('ds_read_b128 v[%d:%d], v%d offset:%d' % (f + 8 + 4 * nt, f + 11 + 4 * nt, RX + s, idx * 16384 + 4096 * nt))
            return [l[4], l[0], l[1], l[5], l[2], l[3]]
        def mfmas(s, first):
            f = FR + 16 * (s & 1); n16 = []; n32 = []
            if s < 2:
                for mt in range(2):
                    c = 'v[%d:%d]' % (CS + 4 * mt, CS + 4 * mt + 3)
                    n16.append('v_mfma_f32_16x16x32_bf16 %s, v[%d:%d], v[%d:%d], %s' % (c, f + 4 * mt, f + 4 * mt + 3, BS, BS + 3, '0' if first else c))
            for mt in range(2):
                for nt in range(2):
                    c = 'v[%d:%d]' % (ACC[mt][nt], ACC[mt][nt] + 15)
                    n32.append('v_mfma_f32_32x32x16_bf16 %s, v[%d:%d], v[%d:%d], %s' % (c, f + 4 * mt, f + 4 * mt + 3, f + 8 + 4 * nt, f + 11 + 4 * nt, '0' if first else c))
            return n32, n16
        C1 = -2.0 * LOG2E * math.sqrt(2.0 / math.pi)
        augA0, augB, augA = [], [], []
        for mt in range(2):
            A = AUG + 4 * mt; c = TM + 2 * mt
            augA0 += ['v_cndmask_b32 v%d, 0, v%d, s[64:65]' % (VB1 + mt, VB1 + mt), 'v_lshrrev_b32 v%d, 16, v%d' % (A + 2, VB1 + mt), 'v_mov_b32 v%d, 0' % (A + 3), 'v_mov_b32 v%d, 0' % (A + 11)]
            augA.append(['v_add_f32 v%d, v%d, v%d' % (c, c, c + 1), 'v_cndmask_b32 v%d, 0, v%d, s[64:65]' % (c, c),
                    'v_cvt_pk_bf16_f32 v%d, v%d, v%d' % (A + 1, c, VB1 + mt), 'v_lshlrev_b32 v%d, 16, v%d' % (c + 1, A + 1), 'v_sub_f32 v%d, v%d, v%d' % (c + 1, c, c + 1),
                    'v_cvt_pk_bf16_f32 v%d, v%d, v%d' % (A, c, c + 1)])
        augA = interleave(augA[0], augA[1])
        for nt in range(2):
            B = AUG + 8 + 4 * nt; g = TM + 4 + 4 * nt; k = KC + 4 * nt; t = TM + 12 + 2 * nt
            augB.append(['v_rcp_f32 v%d, v%d' % (t + 1, g + 2), 'v_cvt_pk_bf16_f32 v%d, v%d, v%d' % (B, g, g), 'v_and_b32 v%d, 0xffff0000, v%d' % (t, B), 'v_sub_f32 v%d, v%d, v%d' % (t, g, t),
                    'v_cvt_pk_bf16_f32 v%d, v%d, v%d' % (B + 1, t, g + 2), 'v_and_b32 v%d, 0xffff0000, v%d' % (t, B + 1), 'v_sub_f32 v%d, v%d, v%d' % (t, g + 2, t),
                    'v_cvt_pk_bf16_f32 v%d, v%d, 0' % (B + 2, t), 'v_mov_b32 v%d, v%d' % (k + 2, g + 2), 'v_mul_f32 v%d, %s, v%d' % (k + 1, f32(C1), t + 1),
                    'v_mul_f32 v%d, v%d, v%d' % (t + 1, t + 1, t + 1), 'v_mul_f32 v%d, %s, v%d' % (t + 1, f32(0.044715), t + 1), 'v_mul_f32 v%d, v%d, v%d' % (k, t + 1, k + 1)])
        augB = interleave(augB[0], augB[1])
        xst = lambda st: XST <= st < XST + NT
        for st in range(10):
            self.stamp('a%d' % st)
            a('s_waitcnt vmcnt(%d) lgkmcnt(0)' % (11 + PRE2 if st == 0 else 2 if st == 9 else 10 if st == 8 else 8))
            self.stamp('w%d' % st)
            a('s_barrier')
            self.stamp('b%d' % st)
            d = d2[PRE2:] if st == 0 else dma(st + 2) if st + 2 < 10 else []
            if st == 0: a(self.nonce2())
            stl = 'buffer_load_dwordx4 v[%d:%d], v%d, %s, 0 offen sc1\nbuffer_load_dwordx4 v[%d:%d], v%d, %s, 0 offen offset:512 sc1' % (TM + 4, TM + 7, VSR, WS_, TM + 8, TM + 11, VSR, WS_)
            if st == 7: d[7] += '\n' + stl
            for s in range(4):
                rd = reads(st, s)
                dd = d[2 * s:2 * s + 2]
                if st == 7 and FRONT: dd = [['\n'.join(d[0:2]), '\n'.join(d[2:4])], ['\n'.join(d[4:6]), '\n'.join(d[6:8])], [], []][s]
                if s == 0 and st == 0:
                    for x in rd + dd: a(x)
                    continue
                n32, n16 = mfmas((s - 1) & 3, st == 0 and s == 1)
                if s > 0: a('s_waitcnt lgkmcnt(0)')
                fill = [rd[0:3], rd[3:6], dd[:1], dd[1:]]
                post = []
                if st == 7 and s < NT: fill[1] = fill[1] + ['ds_read_b128 v[%d:%d], v%d offset:%d' % (VXI + 4 * s, VXI + 4 * s + 3, VXR, 2048 * s)]
                if st == 8 and s == 1: fill[2:] = [augA0[:4], augA0[4:]]
                if st == 9:
                    if s == 2:
                        Lok = self.lab('OK')
                        chk = 'v_cmp_ne_u32 vcc, s21, v%d\nv_cmp_ne_u32 s[76:77], s21, v%d\nv_cmp_ne_u32 s[16:17], s21, v%d\nv_cmp_ne_u32 s[18:19], s21, v%d\ns_or_b64 vcc, vcc, s[76:77]\ns_or_b64 vcc, vcc, s[16:17]\ns_or_b64 vcc, vcc, s[18:19]' % (TM + 5, TM + 7, TM + 9, TM + 11)
                        for x in n16: a(x)
                        n16 = []
                        a(n32[0])
                        for x in fill[0]: a(x)
                        a(n32[1])
                        for x in fill[1]: a(x)
                        a(n32[2])
                        a('s_waitcnt vmcnt(0)\n' + chk + '\ns_cbranch_vccz %s' % Lok)
                        self.poll(stl, chk)
                        a('%s:' % Lok)
                        n32 = n32[3:]
                        fill = [['s_mov_b64 exec, s[74:75]\nds_write_b128 v%d, v[%d:%d]\nds_write_b128 v%d, v[%d:%d] offset:128\ns_mov_b64 exec, -1' % (VCW, CS, CS + 3, VCW, CS + 4, CS + 7)] + augB[:6]]
                    if s == 3:
                        a('s_barrier')
                        fill[2:] = [['ds_read2_b32 v[%d:%d], v%d offset0:0 offset1:128' % (TM, TM + 1, VCR), 'ds_read2_b32 v[%d:%d], v%d offset0:32 offset1:160' % (TM + 2, TM + 3, VCR)] + augB[6:10], augB[10:16]]
                for m, f in zip(n32, fill):
                    a(m)
                    for x in f: a(x)
                for x in interleave(n16, post): a(x)
        n32, _ = mfmas(3, False)
        a('s_waitcnt lgkmcnt(0)')
        for m, f in zip(n32, [augA[:5], augA[5:10], augA[10:], augB[16:21]]):
            a(m)
            for x in f: a(x)
        for mt in range(2):
            for nt in range(2):
                c = 'v[%d:%d]' % (ACC[mt][nt], ACC[mt][nt] + 15)
                a('v_mfma_f32_32x32x16_bf16 %s, v[%d:%d], v[%d:%d], %s' % (c, AUG + 4 * mt, AUG + 4 * mt + 3, AUG + 8 + 4 * nt, AUG + 11 + 4 * nt, c))
                if mt + nt == 0:
                    for x in augB[21:]: a(x)
        self.stamp(5)
        def gelu(mt, nt):
            q = ACC[mt][nt]; k = KC + 4 * nt; p = P; l = []
            pr = lambda b, i: 'v[%d:%d]' % (b + 2 * i, b + 2 * i + 1)
            A = ['v_pk_mul_f32 %s, %s, %s' % (pr(T, i), pr(q, i), pr(q, i)) for i in range(8)]
            B = ['v_pk_fma_f32 %s, %s, v[%d:%d], v[%d:%d] op_sel:[0,0,1] op_sel_hi:[1,0,1]' % (pr(T, i), pr(T, i), k, k + 1, k, k + 1) for i in range(8)]
            C = ['v_pk_mul_f32 %s, %s, %s' % (pr(T, i), pr(T, i), pr(q, i)) for i in range(8)]
            E = ['v_exp_f32 v%d, v%d' % (T + i, T + i) for i in range(16)]
            D = ['v_pk_fma_f32 %s, %s, v[%d:%d], v[%d:%d] op_sel_hi:[1,0,0]' % (pr(T, i), pr(T, i), k + 2, k + 3, k + 2, k + 3) for i in range(8)]
            R = ['v_rcp_f32 v%d, v%d' % (T + i, T + i) for i in range(16)]
            Gc = ['v_cvt_pk_bf16_f32 v%d, v%d, v%d' % (p + i, T + 2 * i, T + 2 * i + 1) for i in range(8)]
            for s in range(2): Gc[4 * s + 3] += '\nbuffer_store_dwordx4 v[%d:%d], v2, %s, s%d offen offset:%d sc1' % (p + 4 * s, p + 4 * s + 3, WS_, 68 + nt + 2 * mt, 512 * s)
            return A, B, C, E, D, R, C, Gc
        def gelu_stream(tiles):
            A, B, C, E, D, R, F, Gc = [sum((gelu(*t)[i] for t in tiles), []) for i in range(8)]
            g = lambda L, j: [L[j]] if 0 <= j < len(L) else []
            return [g(A, i + 2) + g(E, 2 * i) + g(B, i + 2) + g(E, 2 * i + 1) + g(C, i + 2) + g(D, i - 1) + g(R, 2 * i - 4) + g(F, i - 3) + g(R, 2 * i - 3) + g(Gc, i - 4)
                    for i in range(-2, 8 * len(tiles) + 4)]
        def trreads(buf, slot):
            return ['ds_read_b64_tr_b16 v[%d:%d], v%d offset:%d' % (RF + 16 * buf + 4 * t + 2 * e, RF + 16 * buf + 4 * t + 2 * e + 1, TR + t, (slot % 8) * 8192 + 1024 * e) for t in range(4) for e in range(2)]
        FV = ACC[0][0]
        flag = self.flag(FV, 3) + '\ns_add_u32 s3, s3, %d' % (32 * 3072)
        rr = []
        for b in range(8): rr += trreads(b, b)
        nst = 0
        for i, grp in enumerate(gelu_stream([(0, 0), (0, 1), (1, 0), (1, 1)])):
            if i == B1P:
                self.stamp('t2')
                a('s_barrier')
            if i == FLAG0:
                assert nst >= 4
                for x in self.flag_regs(FV): a(x)
                self.stamp('t3')
                a('s_waitcnt vmcnt(%d)' % (nst - 4)); a(flag); self.stamp('f0')
            if i == 10: self.stamp('t1')
            if i >= B1P:
                for x in rr[:RBU]: a(x)
                rr = rr[RBU:]
            for x in grp:
                a(x); nst += 'buffer_store' in x
        assert not rr
        self.stamp(6)
        a('s_waitcnt lgkmcnt(0)\ns_barrier')
        self.stamp(7)
        a("""s_cmp_lt_u32 s36, 20
        s_cbranch_scc1 L_G2
        s_waitcnt vmcnt(0)
        {flag}
        s_branch L_FIN
        L_G2:""".format(flag=flag))
        ini = []
        for r in [VB2] + [VXI + 4 * nt for nt in range(NT)]:
            ini += ['v_permlane16_swap_b32 v%d, v%d' % (r, r + 2), 'v_permlane16_swap_b32 v%d, v%d' % (r + 1, r + 3)]
        for i in range(4):
            ini += ['v_lshlrev_b32 v%d, 16, v%d' % (T + 2 * i, VB2 + i), 'v_and_b32 v%d, 0xffff0000, v%d' % (T + 2 * i + 1, VB2 + i)]
        for nt in range(NT):
            for i in range(4):
                s = VXI + 4 * nt + i; o = acc(0, nt) + 2 * i
                ini += ['v_lshlrev_b32 v%d, 16, v%d' % (o, s), 'v_and_b32 v%d, 0xffff0000, v%d' % (o + 1, s),
                        'v_add_f32 v%d, v%d, v%d' % (o, o, T + 2 * i), 'v_add_f32 v%d, v%d, v%d' % (o + 1, o + 1, T + 2 * i + 1)]
        hpl = 'buffer_load_dword v2, v10, %s, s66 offen sc1' % WS_; hchk = 'v_cmp_ne_u32 vcc, s21, v2'
        a('v_min_u32 v10, 11, v1\nv_lshlrev_b32 v10, 7, v10')
        FV = ACC[1][0]; flag = self.flag(FV, 3)
        for x in self.flag_regs(FV): a(x)
        dm = self.w2_round([(2 + k, k) for k in LORD[NL1:]] + [(10 + k, 8 + k) for k in range(8)], 8)
        d1 = dm[:NPH]
        d1.insert(PPOS, hpl)
        d1.insert(FLAG1, 's_waitcnt vmcnt(%d)\n' % FLAG1 + flag)
        for x in interleave(d1, ini, per=6): a(x)
        Lok = self.lab('OK')
        self.stamp('f1')
        a('s_waitcnt vmcnt(%d)\n%s\ns_cbranch_vccz %s' % (len(d1) - 1 - d1.index(hpl), hchk, Lok))
        self.poll(hpl, hchk)
        a('%s:' % Lok)
        self.stamp(10)
        a("""v_lshl_add_u32 v12, v1, 4, s73
        v_add_u32 v13, 49152, v12
        v_add_u32 v14, %d, v12
        v_add_u32 v15, %d, v12""" % (2 * 49152, 3 * 49152))
        RING = 3 * NT; NJ = 24 * NT
        def hload(j):
            s, nt = j // NT, j % NT
            r = HR + 16 * (s % 3) + 4 * nt
            if 'noh' in self.opts and j >= RING: return 's_nop 0'
            if 'hsame' in self.opts: return 'buffer_load_dwordx4 v[%d:%d], v%d, %s, s%d offen sc1' % (r, r + 3, 12 + nt, WS_, 4 + s % 3)
            return ('v_add_u32 v%d, 24576, v%d\n' % (12 + nt, 12 + nt) if s == 12 else '') + 'buffer_load_dwordx4 v[%d:%d], v%d, %s, s%d offen %s' % (r, r + 3, 12 + nt, WS_, 4 + s % 12, '' if 'hplain' in self.opts else 'sc1')
        RING = 3 * NT; NJ = 24 * NT
        for j in range(RING): a(hload(j))
        for x in dm[NPH:]: a(x)
        self.stamp(8)
        a("""s_lshl_b32 s76, s34, 13
        v_lshl_add_u32 v2, v1, 4, s76
        v_bfe_u32 v10, v1, 2, 3
        s_lshl_b32 s76, s61, 2
        v_xor_b32 v10, s76, v10
        v_lshlrev_b32 v10, 5, v10
        v_lshrrev_b32 v11, 2, v1
        v_lshl_add_u32 v10, v11, 8, v10
        v_and_b32 v11, 3, v1
        v_lshl_add_u32 v10, v11, 3, v10
        s_mul_i32 s16, s60, 8320
        s_add_u32 s16, s16, %d
        s_barrier""" % L_TAB)
        self.stamp(9)
        def wbuf(s): return s if s < 2 else (s - 16 if s >= 18 else (s & 1))
        vm = list(range(RING)) + ['D'] * (len(dm) - NPH)
        assert NL1 == 8
        AZ = RF
        JF = 12 * NT - RING + 1
        extra = []
        for s in range(24):
            wb = RF + 16 * wbuf(s); nxt = s + 1; rd = []
            if 2 <= nxt < 18:
                if nxt in (2, 10): extra += ['v_add_u32 v%d, %s, v%d' % (r, '0x10000' if nxt == 10 else '0xffff0000', r) for r in range(4, 8)]
                rd = trreads(wbuf(nxt), nxt - 2)
            if s == 18: extra += ['v_xor_b32 v%d, %d, v10' % (4 + nt, 32 * nt) for nt in range(NT)] + ['v_add_u32 v%d, s16, v%d' % (4 + nt, 4 + nt) for nt in range(NT)]
            if s == 9:
                assert 'D' not in vm and JF >= 9 * NT
                a('s_barrier')
            if nxt in (2, 10):
                for x in extra: a(x)
                extra = []
            wl = 2 <= s < 18
            order = [(nt, t) for nt in range(NT) for t in range(4)]
            if s == 23: order = [(nt, t) for nt in range(NT) for t in (2, 3)] + [(nt, t) for nt in range(NT) for t in (0, 1)]
            wr = []
            for k, (nt, t) in enumerate(order):
                j = s * NT + nt
                if j in vm:
                    n = len(vm) - 1 - vm.index(j); vm = vm[vm.index(j) + 1:]
                    a('s_waitcnt vmcnt(%d)' % n + (' lgkmcnt(0)' if wl else '')); wl = False
                r = HR + 16 * (s % 3) + 4 * nt
                c = 'v[%d:%d]' % (acc(t, nt), acc(t, nt) + 3)
                a('v_mfma_f32_16x16x32_bf16 %s, v[%d:%d], v[%d:%d], %s' % (c, wb + 4 * t, wb + 4 * t + 3, r, r + 3, '0' if (s == 0 and t >= 2) else c))
                if s == 23:
                    if k >= 8: a('ds_write_b128 v2, v[%d:%d] offset:%d' % (acc(2 + (k & 1), (k - 8) // 2), acc(2 + (k & 1), (k - 8) // 2) + 3, 1024 * (k - 8)))
                    elif extra: a(extra.pop(0))
                    continue
                if t == 1 and j >= 1 and j - 1 + RING < NJ:
                    a(hload(j - 1 + RING)); vm.append(j - 1 + RING)
                    if j == SA: a('s_barrier')
                elif rd and t != 3: a(rd.pop(0))
                elif rd and nt < 2: a(rd.pop(0))
                elif extra and t != 3:
                    a(extra.pop(0))
                    if extra: a(extra.pop(0))
            assert not rd
            if s == B3B: a('s_barrier')
            if s == 0: self.stamp(11)
            self.stamp('s%d' % s)
        self.stamp(12)
        for x in extra: a(x)
        a('v_xor_b32 v2, 0x2000, v2')
        a('s_waitcnt lgkmcnt(0)\ns_barrier')
        self.stamp(13)
        for nt in range(NT):
            for t in range(2):
                a('ds_read_b64_tr_b16 v[%d:%d], v%d offset:%d' % (AZ + 32 + 4 * nt + 2 * t, AZ + 33 + 4 * nt + 2 * t, 4 + nt, 4160 * (1 - t)))
                a('ds_read_b128 v[%d:%d], v2 offset:%d' % (acc(2 + t, nt), acc(2 + t, nt) + 3, 1024 * (2 * nt + t)))
        for nt in range(NT):
            a('s_waitcnt lgkmcnt(%d)' % (4 * (NT - 1 - nt)))
            o = HR + 4 * nt; k = acc(0, nt)
            for d in range(4): a('v_lshlrev_b32 v%d, 16, v%d\nv_and_b32 v%d, 0xffff0000, v%d' % (AZ + 2 * d, AZ + 32 + 4 * nt + d, AZ + 2 * d + 1, AZ + 32 + 4 * nt + d))
            for d in range(4): a('v_pk_add_f32 v[%d:%d], v[%d:%d], v[%d:%d]' % (k + 2 * d, k + 2 * d + 1, k + 2 * d, k + 2 * d + 1, k + 32 + 2 * d, k + 33 + 2 * d))
            for d in range(4): a('v_pk_add_f32 v[%d:%d], v[%d:%d], v[%d:%d]' % (k + 2 * d, k + 2 * d + 1, k + 2 * d, k + 2 * d + 1, AZ + 2 * d, AZ + 2 * d + 1))
            for d in range(4): a('v_cvt_pk_bf16_f32 v%d, v%d, v%d' % (o + d, k + 2 * d, k + 2 * d + 1))
            a('s_add_u32 s76, s72, %d' % (nt * 16 * 1280))
            a('v_permlane16_swap_b32 v%d, v%d\nv_permlane16_swap_b32 v%d, v%d' % (o, o + 2, o + 1, o + 3))
            a('buffer_store_dwordx4 v[%d:%d], v3, %s, s76 offen %s' % (o, o + 3, OUT_, OUTAUX))
        self.stamp(14)
        a('s_branch L_FIN')

    def s_param_pre(self):
        self.a("""s_mul_i32 s76, s61, 384
        v_and_b32 v2, 31, v1
        v_mul_u32_u24 v2, 12, v2
        v_add_u32 v2, s76, v2
        s_lshl_b32 s66, s61, 1
        s_and_b32 s66, s66, 0xfffc""")
    def s_param_loads(self):
        a = self.a
        for k, p in enumerate((6, 8, 10, 12)):
            a('global_load_dwordx3 v[%d:%d], v2, s[%d:%d]' % (16 + 4 * k, 18 + 4 * k, p, p + 1))
        self.nonce0()
        a('s_load_dword s72, s[14:15], s66\ns_load_dword s73, s[16:17], s66')
        self.stamp('pl')
    def cmul(self, d, x, w):
        return ['v_pk_mul_f32 v[%d:%d], v[%d:%d], v[%d:%d] op_sel:[1,1] op_sel_hi:[0,1] neg_lo:[0,1]' % (d[0], d[1], x[0], x[1], w[0], w[1]),
                'v_pk_fma_f32 v[%d:%d], v[%d:%d], v[%d:%d], v[%d:%d] op_sel_hi:[1,0,1]' % (d[0], d[1], x[0], x[1], w[0], w[1], d[0], d[1])]
    def scode(self):
        a = self.a
        tag = 'S'
        SELB, SELA, KA = 32, 40, 52
        FRG = 68
        PB, PA = 68, 84
        DB, DA = 100, 132
        FB, FA2 = 164, 180
        VV = 196
        DT, D2, SC1, SC2 = 48, 49, 50, 51
        a('L_SC:')
        a("""v_lshrrev_b32 v3, 5, v1
        v_cmp_eq_u32 s[74:75], 1, v3
        v_bfe_u32 v4, v1, 4, 1
        v_and_b32 v5, 15, v1
        v_cmp_eq_u32 vcc, v3, v4
        v_cndmask_b32 v5, 64, v5, vcc
        v_and_b32 v6, 3, v1
        v_bfe_u32 v7, v1, 3, 2
        v_lshl_add_u32 v6, v7, 2, v6
        v_add_u32 v7, 1, v6
        v_and_b32 v7, 12, v7
        v_and_b32 v8, 9, v6
        v_cmp_eq_u32 vcc, 1, v8
        s_and_b64 vcc, vcc, s[74:75]
        v_cndmask_b32 v6, v6, v7, vcc
        v_bfe_u32 v4, v1, 2, 1
        v_cmp_eq_u32 vcc, v3, v4
        v_cndmask_b32 v6, 64, v6, vcc
        v_mov_b32 v9, 0x3f80""")
        for v, sel in ((5, SELB), (6, SELA)):
            a('v_and_b32 v7, 1, v{v}\nv_lshlrev_b32 v7, 4, v7\nv_lshlrev_b32 v7, v7, v9\nv_lshrrev_b32 v8, 1, v{v}'.format(v=v))
            for d in range(0, 8, 2):
                a('v_cmp_eq_u32 vcc, %d, v8\nv_cmp_eq_u32 s[76:77], %d, v8\nv_nop\nv_cndmask_b32 v%d, 0, v7, vcc\nv_cndmask_b32 v%d, 0, v7, s[76:77]' % (d, d + 1, sel + d, sel + d + 1))
        EX = VV + 6
        a("""s_xor_b32 s76, s60, 1
        s_mul_i32 s76, s76, 4160
        s_add_u32 s76, s76, s38
        v_lshl_add_u32 v{e0}, v1, 4, s76
        s_mul_i32 s76, s60, 4160
        s_add_u32 s76, s76, s38
        v_lshl_add_u32 v{e1}, v1, 4, s76
        v_mov_b32 v{e3}, s76
        s_add_u32 s76, s76, 1008
        v_lshlrev_b32 v5, 4, v1
        v_sub_u32 v{e2}, s76, v5
        v_mov_b32 v8, 0
        v_mov_b32 v9, 0
        v_mov_b32 v10, 0
        v_mov_b32 v11, 0
        v_lshl_add_u32 v6, v1, 3, s39
        ds_write_b64 v6, v[8:9]
        s_mov_b64 exec, 7
        ds_write_b128 v{e1}, v[8:11] offset:4096
        s_mov_b64 exec, -1""".format(e0=EX, e1=EX + 1, e2=EX + 2, e3=EX + 3))
        a("""v_mov_b32 v4, 0x41000000
        v_mov_b32 v5, 0x43000000
        v_cndmask_b32 v{s1}, v4, v5, s[74:75]
        v_mov_b32 v5, 0x43800000
        v_cndmask_b32 v{s2}, 1.0, v5, s[74:75]
        s_and_b32 s76, s61, 1
        s_xor_b32 s76, s76, 1
        s_lshl_b32 s76, s76, 4
        s_mul_i32 s77, s60, 0x02020000
        s_add_u32 s77, s77, 0x01000c0c
        s_waitcnt lgkmcnt(0)
        {bp}
        s_lshl_b32 s72, s72, s76
        s_and_b32 s72, s72, 0xffff0000
        s_lshl_b32 s73, s73, s76
        s_and_b32 s73, s73, 0xffff0000
        v_mov_b32 v{dt}, s72
        v_mul_f32 v{dt}, {l2e}, v{dt}
        v_exp_f32 v{dt}, v{dt}
        v_mov_b32 v31, s73
        v_cvt_pk_bf16_f32 v{dt}, v{dt}, v{dt}
        v_lshlrev_b32 v{dt}, 16, v{dt}
        v_add_f32 v{d2}, v{dt}, v{dt}""".format(bp='s_barrier\n' + self.nonce2(), s1=SC1, s2=SC2, dt=DT, d2=D2, l2e=f32(LOG2E)))
        a('v_cmp_eq_u32 vcc, 0, v1\nv_cndmask_b32 v31, 0, v31, vcc')
        self.stamp('a0')
        Ls = self.lab('NG'); Lx = self.lab('NX')
        Ly = self.lab('NY')
        a('''s_setprio {p}
        s_cmp_eq_u32 s37, 0
        s_cbranch_scc1 {Lx}'''.format(Lx=Lx, p=KPRIO))
        if W1T == 1: a('buffer_load_dword v255, v226, %s, s19 offen' % W1_)
        for i in range(5): a('buffer_load_dwordx4 v[%d:%d], v248, %s, s64 offen offset:%d' % (XI + 4 * i, XI + 4 * i + 3, X_, 256 * i))
        a('s_waitcnt vmcnt(%d)' % (5 + (W1T == 1)))
        a('s_nop 0\ns_branch %s\n%s:\ns_waitcnt vmcnt(0)\n%s:' % (Ls, Lx, Ls))
        self.stamp(2)
        for k in range(4):
            for p in range(3):
                r = 16 + 4 * k + p
                a('v_perm_b32 v%d, v%d, v%d, s77' % (r, r, r))
        W8, W1, W5 = (VV, VV + 1), (VV + 2, VV + 3), (VV + 4, VV + 5)
        U = VV + 12
        XA = VV + 16
        def setup(p):
            l = """v_mul_f32 v4, {l2e}, v{la}
            v_exp_f32 v4, v4
            v_mul_f32 v5, v{ai}, v{dt}
            v_cvt_pk_bf16_f32 v4, v4, v4
            v_mul_f32 v5, {ci}, v5
            v_lshlrev_b32 v4, 16, v4
            v_mul_f32 v7, v5, v{s1}
            v_mul_f32 v4, v4, v{dt}
            v_mul_f32 v9, v5, v{s2}
            v_mul_f32 v4, {cr}, v4
            v_rndne_f32 v10, v7
            v_rndne_f32 v11, v9
            v_mul_f32 v6, v4, v{s1}
            v_mul_f32 v8, v4, v{s2}
            v_sub_f32 v7, v7, v10
            v_sub_f32 v9, v11, v9
            v_exp_f32 v6, v6
            v_exp_f32 v8, v8
            v_sin_f32 v10, v7
            v_cos_f32 v11, v7
            v_sin_f32 v12, v9
            v_cos_f32 v13, v9
            v_mul_f32 v{w8i}, v10, v6
            v_mul_f32 v{w8r}, v11, v6
            v_mul_f32 v{w1i}, v12, v8
            v_mul_f32 v{w1r}, v13, v8
            v_mul_f32 v{u1}, v10, v6
            v_mul_f32 v{u0}, v11, v6
            v_mul_f32 v{u3}, v12, v8
            v_mul_f32 v{u2}, v13, v8
            v_mul_f32 v4, v{cre}, v{d2}
            v_mul_f32 v5, v{cim}, v{d2}
            v_permlane32_swap_b32 v{w8i}, v{u1}
            v_permlane32_swap_b32 v{w8r}, v{u0}
            v_permlane32_swap_b32 v{w1i}, v{u3}
            v_permlane32_swap_b32 v{w1r}, v{u2}
            v_cndmask_b32 v{e0}, 1.0, v{u0}, s[74:75]
            v_cndmask_b32 v{e1}, 0, v{u1}, s[74:75]
            v_cndmask_b32 v6, 1.0, v{u2}, s[74:75]
            v_cndmask_b32 v7, 0, v{u3}, s[74:75]
            v_mul_f32 v{w5r}, v{u2}, v{u2}
            v_add_f32 v8, v{u2}, v{u2}
            v_fma_f32 v{w5r}, -v{u3}, v{u3}, v{w5r}
            v_mul_f32 v{w5i}, v8, v{u3}
            v_mul_f32 v{g0}, v4, v6
            v_mul_f32 v{g1}, v4, v7
            v_fmac_f32 v{g0}, v5, v7
            v_fma_f32 v{g1}, -v5, v6, v{g1}""".format(l2e=f32(LOG2E), la=16 + p, ai=20 + p, cre=24 + p, cim=28 + p, dt=DT, d2=D2, s1=SC1, s2=SC2,
                ci=f32(1 / (2 * math.pi)), cr=f32(-LOG2E), w8i=W8[1], w8r=W8[0], w1i=W1[1], w1r=W1[0], w5i=W5[1], w5r=W5[0],
                u0=U, u1=U + 1, u2=U + 2, u3=U + 3, e0=XA, e1=XA + 1, g0=XA + 4, g1=XA + 5)
            return [x.strip() for x in l.split('\n')]
        def pack(P, v, x0, x1):
            return ['v_cvt_pk_bf16_f32 v%d, v%d, v%d' % (P + v // 2, x0[0], x1[0]), 'v_cvt_pk_bf16_f32 v%d, v%d, v%d' % (P + 8 + v // 2, x0[1], x1[1])]
        def chainB():
            l = []; r = [(XA, XA + 1), (XA + 2, XA + 3)]
            for v in range(1, 16):
                l += self.cmul(r[v & 1], r[(v - 1) & 1], W8)
                if v & 1: l += pack(PB, v, r[0], r[1])
            return l
        def chainA():
            l = []; reg = {v: (XA + 4 + 2 * k, XA + 5 + 2 * k) for v, k in enumerate([0, 3, 4, 3, 1, 3, 4, 3, 2, 3, 4, 0, 1, 2, 3, 4])}
            src = {9: 0, 10: 4, 11: 8, 12: 9, 13: 11, 14: 12, 15: 13}
            for v in range(1, 16):
                l += self.cmul(reg[v], reg[v - 1] if v < 9 else reg[src[v]], W1 if v < 9 else W5)
                if v & 1: l += pack(PA, v, reg[v - 1], reg[v])
            return l
        def transp(D, P, SEL_):
            l = []
            for sg in range(2):
                for c in range(2):
                    d = 'v[%d:%d]' % (D + 16 * c, D + 16 * c + 15)
                    l.append('v_mfma_f32_32x32x16_bf16 %s, v[%d:%d], v[%d:%d], %s' % (d, P + 8 * c + 4 * sg, P + 8 * c + 4 * sg + 3, SEL_ + 4 * sg, SEL_ + 4 * sg + 3, '0' if sg == 0 else d))
            return l
        def repack(F, D): return ['v_cvt_pk_bf16_f32 v%d, v%d, v%d' % (F + i, D + 2 * i, D + 2 * i + 1) for i in range(16)]
        def mf2(first):
            k = 'v[%d:%d]' % (KA, KA + 15)
            return ['v_mfma_f32_32x32x16_bf16 %s, v[%d:%d], v[%d:%d], %s' % (k, FA2 + 4 * i, FA2 + 4 * i + 3, FB + 4 * i, FB + 4 * i + 3, '0' if (first and i == 0) else k) for i in range(4)]
        hook = 's_cmp_eq_u32 s37, 0\ns_cbranch_scc0 L_LN\nL_LNR:'
        if PK:
            seq = setup(0)
            for p in range(3):
                seq += interleave(chainB(), chainA())
                if p == LNP: seq.append(hook); iln = len(seq)
                nx = setup(p + 1) if p < 2 else []
                tb, ta, rb, ra, m2 = transp(DB, PB, SELB), transp(DA, PA, SELA), repack(FB, DB), repack(FA2, DA), mf2(p == 0)
                order = [tb[0], tb[2], ta[0], ta[2], tb[1], tb[3], ta[1], ta[3]]
                h = len(nx) // 2
                seq += interleave(order[:5], nx[:h], per=6)
                seq += interleave(order[5:], rb[:8] + ra[:8], per=6)
                seq += interleave(m2[:2], nx[h:h + 6] + rb[8:] + ra[8:], per=6)
                seq += interleave(m2[2:], nx[h + 6:], per=6)
        if 'nok' in self.opts: a('s_cmp_eq_u32 s37, 0\ns_cbranch_scc1 L_NOK')
        nb = 0; n = len(seq); xh = False
        for i, x in enumerate(seq):
            if not xh and i >= iln + XHOOK * (n - iln):
                self.xhook(); xh = True
            for tp in TOUCH:
                if i == iln + int(tp * (n - iln)):
                    L = self.lab('TC')
                    a('s_cmp_eq_u32 s37, 0\ns_cbranch_scc1 %s' % L); self.touch(); a('%s:' % L)
            a(x)
        if 'nok' in self.opts: a('s_nop 15\nL_NOK:')
        self.stamp(3)
        for k in range(4): a('ds_write_b128 v%d, v[%d:%d] offset:%d' % (EX, KA + 4 * k, KA + 4 * k + 3, 1024 * k))
        a('s_mov_b64 exec, 1\nds_write_b32 v%d, v%d offset:4128\ns_mov_b64 exec, -1' % (EX, SC1))
        V = lambda r: KA + r
        a('v_add_f32 v{v0}, v{v0}, v31\nv_and_b32 v5, 1, v1\nv_cmp_eq_u32 vcc, 0, v5'.format(v0=V(0)))
        Lp = self.lab('XP'); Lq = self.lab('XQ')
        a('s_mov_b32 s79, 0\n%s:\nds_read_b32 v4, v%d offset:4128' % (Lp, EX + 3))
        for k in range(4): a('ds_read_b128 v[%d:%d], v%d offset:%d' % (FRG + 4 * k, FRG + 4 * k + 3, EX + 1, 1024 * k))
        a('s_add_u32 s79, s79, 1\ns_waitcnt lgkmcnt(4)\nv_readfirstlane_b32 s76, v4\ns_cmp_lg_u32 s76, 0\ns_cbranch_scc1 %s\ns_cmp_gt_u32 s79, %d\ns_cbranch_scc0 %s\n%s:' % (Lq, 64 * POLLMAX, Lp, Lq))
        self.stamp(4)
        for k in range(4):
            a('s_waitcnt lgkmcnt(%d)' % (3 - k))
            for r in (4 * k, 4 * k + 2): a('v_pk_add_f32 v[%d:%d], v[%d:%d], v[%d:%d]' % (KA + r, KA + r + 1, KA + r, KA + r + 1, FRG + r, FRG + r + 1))
        a("""v_cndmask_b32 v{m0}, v{v13}, v{v12}, vcc
        v_cndmask_b32 v{m1}, v{v15}, v{v14}, vcc
        s_cmp_eq_u32 s60, 0
        s_cbranch_scc0 L{t}_T1""".format(m0=FRG + 16, m1=FRG + 17, v12=V(12), v13=V(13), v14=V(14), v15=V(15), t=tag))
        def table(c):
            lv = [([V(o) for o in range(9)], 3072), ([V(9)] * 3 + [V(10)] * 3 + [V(11)] * 3, 2048),
                  ([V(12)] * 4 + [FRG + 16] + [V(13)] * 4, 1024), ([V(14)] * 4 + [FRG + 17] + [V(15)] * 4, 0)]
            for n, (t, off) in enumerate(lv):
                for d in range(4):
                    a('v_cvt_pk_bf16_f32 v%d, v%d, v%d' % (FRG + 4 * n + d, t[7 + c - 2 * d], t[6 + c - 2 * d]))
                a('ds_write_b128 v%d, v[%d:%d] offset:%d' % (EX + 2, FRG + 4 * n, FRG + 4 * n + 3, off))
        table(0)
        a('s_branch L%s_T2\nL%s_T1:' % (tag, tag))
        table(1)
        a('v_cvt_pk_bf16_f32 v8, v%d, 0\ns_mov_b64 exec, 1\nds_write_b32 v%d, v8 offset:4096\ns_mov_b64 exec, -1\nL%s_T2:' % (V(0), EX + 1, tag))
        self.stamp(5)
        Ln = self.lab('NN')
        a('s_cmp_eq_u32 s37, 0\ns_cbranch_scc0 %s\ns_waitcnt lgkmcnt(0)\ns_barrier\n%s:' % (Ln, Ln))
        CA, CB = 176, 180
        a("""v_and_b32 v9, 15, v1
        v_lshrrev_b32 v10, 4, v1
        v_and_b32 v11, 1, v1
        v_xor_b32 v11, 1, v11
        v_mul_u32_u24 v11, 4162, v11
        v_lshl_add_u32 v11, v10, 4, v11
        v_lshlrev_b32 v12, 1, v9
        v_sub_u32 v11, v11, v12
        s_lshl_b32 s76, s60, 8
        s_sub_u32 s76, s38, s76
        s_add_u32 s76, s76, %d
        v_add_u32 v%d, s76, v11""" % (2 * (2047 - 16) - 512 - 192, CA))
        for p in range(1, 4): a('v_add_u32 v%d, %d, v%d' % (CA + p, -1024 * p, CA))
        a("""v_lshlrev_b32 v9, 5, v9
        v_lshl_add_u32 v9, v10, 4, v9
        s_lshl_b32 s76, s60, 8
        s_sub_u32 s76, s39, s76
        s_add_u32 s76, s76, %d
        v_add_u32 v%d, s76, v9""" % (512 - 32 - 192, CB))
        a("""s_lshr_b32 s76, s61, 2
        s_lshl_b32 s76, s76, 14
        s_and_b32 s77, s61, 3
        s_lshl_b32 s77, s77, 4
        s_add_u32 s76, s76, s77
        s_lshl_b32 s77, s60, 13
        s_add_u32 s26, s76, s77
        v_lshlrev_b32 v181, 6, v1
        s_lshl_b32 s77, s60, 11
        s_add_u32 s77, s77, s39
        s_add_u32 s27, s77, 512
        s_and_b32 s3, s34, 3
        v_lshlrev_b32 v182, 4, v1
        s_mov_b32 s20, %d""" % FX)
        xld = 'buffer_load_dword v183, v182, %s, s20 offen sc1' % WS_; xchk = 'v_cmp_ne_u32 vcc, s21, v183'
        udma = """s_mov_b32 m0, s27
        s_add_u32 s77, s26, 3072
        buffer_load_dwordx4 v181, {ws}, s26 offen sc1 lds
        buffer_load_dwordx4 v181, {ws}, s77 offen offset:1024 sc1 lds""".format(ws=WS_)
        Lg = self.lab('NG'); Lw = self.lab('NW'); Lx = self.lab('NX')
        a('s_cmp_eq_u32 s37, 0\ns_cbranch_scc1 %s' % Lg)
        self.poll(xld, xchk)
        self.stamp(6)
        a(udma); a('s_waitcnt vmcnt(0)\ns_branch %s\n%s:' % (Lx, Lg))
        self.g2_offsets_s()
        self.w2_voff(14, 3, 13)
        a("""s_lshl_b32 s76, s62, 7
        s_lshl_b32 s77, s3, 5
        s_add_u32 s76, s76, s77
        s_mul_i32 s16, s76, 1280
        s_min_u32 s76, s63, 9
        s_lshl_b32 s76, s76, 7
        s_add_u32 s16, s16, s76
        v_lshrrev_b32 v9, 3, v1
        v_mul_u32_u24 v9, 1280, v9
        v_lshrrev_b32 v10, 4, v1
        v_xor_b32 v10, v10, v1
        v_and_b32 v10, 7, v10
        v_lshl_add_u32 v9, v10, 4, v9
        v_xor_b32 v10, 64, v9
        s_lshl_b32 s76, s3, 12
        s_add_u32 m0, s76, 98304""")
        for k in range(1, 9):
            if k == 7: a('s_waitcnt vmcnt(0)')
            a('s_barrier')
            i = k - XST
            if 0 <= i < 4: a('s_add_u32 s76, s16, %d\nbuffer_load_dwordx4 v%d, %s, s76 offen offset:%d lds' % (i * (8 * 1280 - 1024), 9 + (i & 1), X_, 1024 * i))
        a('s_setprio %d\ns_cmp_lt_u32 s36, 20\ns_cbranch_scc0 %s' % (SPRIO, Lw))
        Rn = [(s, 8 + k) for k, s in enumerate([0, 1, 18, 19, 20, 21, 22, 23])]
        Rn = Rn[4:] + Rn[:4]
        dm = self.w2_round(Rn, 14)
        for x in dm[:RB8]: a(x)
        a('s_barrier')
        for x in dm[RB8:RB9]: a(x)
        a(xld)
        a('s_barrier')
        for x in dm[RB9:]: a(x)
        Lok = self.lab('OK')
        a('s_waitcnt vmcnt(%d)\n%s\ns_cbranch_vccz %s' % (16 - RB9, xchk, Lok))
        self.poll(xld, xchk)
        a('%s:' % Lok)
        self.stamp(6)
        a(udma)
        for x in self.w2_round([(2 + k, k) for k in LORD[:NL0]], 14, thr=THR): a(x)
        self.stamp('r1')
        a('s_waitcnt vmcnt(%d)' % (2 * NL0 + 2))
        self.stamp('u')
        a('s_barrier')
        for x in self.w2_round([(2 + k, k) for k in LORD[NL0:NL1]], 14, thr=THR): a(x)
        a('s_waitcnt vmcnt(%d)\ns_branch %s\n%s:\ns_barrier\ns_barrier' % (2 * NL1, Lx, Lw))
        self.poll(xld, xchk)
        a(udma); a('s_barrier\ns_waitcnt vmcnt(0)\n%s:' % Lx)
        self.stamp('R')
        a('s_setprio 0\ns_waitcnt lgkmcnt(0)\ns_barrier')
        self.stamp(7)
        YA = 16; FA_ = [48, 112]
        def creads(tt):
            f = FA_[tt & 1]; l = []
            for i in range(8):
                o = (128 if i % 2 == 0 else 0) + 16 * (3 - tt)
                ra = ['ds_read2_b32 v[%d:%d], v%d offset0:%d offset1:%d' % (f + 4 * i + 2 * e, f + 4 * i + 2 * e + 1, CA + i // 2, o + 2 * e, o + 2 * e + 1) for e in range(2)]
                rb = 'ds_read_b128 v[%d:%d], v%d offset:%d' % (f + 32 + 4 * i, f + 35 + 4 * i, CB, 512 * i + 64 * (3 - tt))
                l += ra + [rb]
            return l
        def cm(tt, i, j, first):
            f = FA_[tt & 1]; c = 'v[%d:%d]' % (YA + 4 * (i + j), YA + 4 * (i + j) + 3)
            return 'v_mfma_f32_16x16x32_bf16 %s, v[%d:%d], v[%d:%d], %s' % (c, f + 4 * i, f + 4 * i + 3, f + 32 + 4 * j, f + 35 + 4 * j, '0' if first else c)
        r0 = creads(0)
        for x in r0[:12]: a(x)
        for tt in range(4):
            order = []
            for k in range(8):
                order += [(k, i, j) for i in range(k + 1) for j in range(k + 1) if max(i, j) == k and i + j <= 7]
            seen = set()
            nxt = (r0[12:] if tt == 0 else []) + (creads(tt + 1) if tt < 3 else [])
            issued = 12 if tt == 0 else 24
            extra = 0
            lastk = -1
            if tt > 0: a('s_waitcnt lgkmcnt(0)')
            for (k, i, j) in order:
                if tt == 0 and k != lastk:
                    while issued < 3 * (k + 1): a(nxt.pop(0)); issued += 1
                    a('s_waitcnt lgkmcnt(%d)' % min(15, issued + extra - 3 * (k + 1)))
                    lastk = k
                a(cm(tt, i, j, tt == 0 and (i + j) not in seen)); seen.add(i + j)
                if nxt:
                    a(nxt.pop(0))
                    if issued < 24: issued += 1
                    else: extra += 1
            for x in nxt: a(x)
        self.stamp(8)
        a('''s_mul_i32 s76, s60, 4160
        s_add_u32 s76, s76, s38
        v_lshl_add_u32 v4, v1, 4, s76
        s_xor_b32 s76, s60, 1
        s_mul_i32 s76, s76, 4160
        s_add_u32 s76, s76, s38
        v_lshl_add_u32 v5, v1, 4, s76
        s_waitcnt vmcnt(0)
        s_barrier
        s_cmp_eq_u32 s60, 0
        s_cbranch_scc0 L{t}_R1'''.format(t=tag))
        for k in range(4): a('ds_write_b128 v4, v[%d:%d] offset:%d' % (YA + 16 + 4 * k, YA + 19 + 4 * k, 1024 * k))
        a('s_branch L%s_R2\nL%s_R1:' % (tag, tag))
        for k in range(4): a('ds_write_b128 v4, v[%d:%d] offset:%d' % (YA + 4 * k, YA + 3 + 4 * k, 1024 * k))
        a('s_waitcnt lgkmcnt(0)')
        for k in range(16): a('v_mov_b32 v%d, v%d' % (YA + k, YA + 16 + k))
        a('L%s_R2:\ns_waitcnt lgkmcnt(0)\ns_barrier' % tag)
        for k in range(4): a('ds_read_b128 v[%d:%d], v5 offset:%d' % (48 + 4 * k, 51 + 4 * k, 1024 * k))
        a('''s_lshl_b32 s76, s61, 12
        s_lshl_b32 s77, s60, 11
        s_add_u32 s76, s76, s77
        s_add_u32 s76, s76, %d
        v_lshlrev_b32 v4, 4, v1''' % AA)
        for p in range(2):
            a('s_waitcnt lgkmcnt(%d)' % (2 - 2 * p))
            for k in range(8 * p, 8 * p + 8): a('v_add_f32 v%d, v%d, v%d' % (YA + k, YA + k, 48 + k))
            o = 64 + 4 * p
            for d in range(4): a('v_cvt_pk_bf16_f32 v%d, v%d, v%d' % (o + d, YA + 8 * p + 2 * d, YA + 8 * p + 2 * d + 1))
            a('v_permlane16_swap_b32 v%d, v%d\nv_permlane16_swap_b32 v%d, v%d' % (o, o + 2, o + 1, o + 3))
            a('buffer_store_dwordx4 v[%d:%d], v4, %s, s76 offen offset:%d sc1' % (o, o + 3, WS_, 1024 * p))
        self.stamp(9)
        a('s_mul_i32 s76, s60, 640\ns_add_u32 s76, s76, s61\ns_lshl_b32 s76, s76, 7\ns_add_u32 s76, s76, %d' % FA)
        for x in self.flag_regs(8): a(x)
        a('s_waitcnt vmcnt(0)'); a(self.flag(8, 76))
        self.stamp(10)
        Le = self.lab('EP')
        a('''s_lshl_b32 s76, s34, 8
        s_add_u32 s76, s76, s2
        s_cmp_eq_u32 s76, 192
        s_cbranch_scc0 {L}
        v_lshrrev_b32 v2, 2, v1
        v_mul_u32_u24 v2, 6144, v2
        v_and_b32 v3, 3, v1
        v_lshl_add_u32 v2, v3, 8, v2
        s_mov_b32 s20, {fh}'''.format(L=Le, fh=FH))
        ld = '\n'.join('buffer_load_dword v%d, v2, %s, s20 offen offset:%d sc1' % (3 + i, WS_, 1024 * i) for i in range(3))
        self.poll(ld, 'v_cmp_ne_u32 vcc, s21, v3\nv_cmp_ne_u32 s[76:77], s21, v4\nv_cmp_ne_u32 s[16:17], s21, v5\ns_or_b64 vcc, vcc, s[76:77]\ns_or_b64 vcc, vcc, s[16:17]')
        a('''s_mov_b32 s20, {ep}
        s_mov_b64 exec, 1
        buffer_store_dword v8, off, {ws}, s20 sc1
        s_branch L_FIN
        {L}:'''.format(L=Le, ep=EP, ws=WS_))
        a('s_cmp_lt_u32 s36, 20\ns_cbranch_scc0 L_FIN')
        a('''s_lshl_b32 s76, s62, 1
        s_lshr_b32 s77, s3, 1
        s_add_u32 s76, s76, s77
        s_mul_i32 s20, s76, 3072
        s_and_b32 s77, s3, 1
        s_mul_i32 s77, s77, 1536
        s_add_u32 s20, s20, s77
        s_add_u32 s20, s20, %d''' % (FH + 32 * 3072))
        self.spoll(12, 20)
        self.stamp('h1')
        a('s_barrier')
        a('''s_lshl_b32 s60, s63, 6
        s_lshl_b32 s76, s3, 4
        s_add_u32 s60, s60, s76
        s_lshr_b32 s76, s35, 2
        s_mul_i32 s76, s76, 640
        s_add_u32 s76, s76, s60
        s_lshl_b32 s76, s76, 7
        s_add_u32 s61, s76, {fa}
        v_and_b32 v4, 15, v1
        v_lshrrev_b32 v7, 4, v1
        v_lshlrev_b32 v8, 1, v7
        v_xor_b32 v8, v8, v4
        v_lshrrev_b32 v9, 1, v8
        v_lshlrev_b32 v9, 4, v9
        v_and_b32 v8, 1, v8
        v_lshl_add_u32 v9, v8, 9, v9
        v_lshl_add_u32 v9, v7, 12, v9
        v_xor_b32 v10, 64, v9
        s_lshl_b32 s60, s60, 12
        s_lshr_b32 s76, s35, 1
        s_lshl_b32 s76, s76, 10
        s_add_u32 s60, s60, s76
        s_and_b32 s76, s35, 1
        s_lshl_b32 s76, s76, 8
        s_add_u32 s60, s60, s76
        s_and_b32 s76, s62, 1
        s_lshl_b32 s76, s76, 7
        s_add_u32 s60, s60, s76
        s_add_u32 s60, s60, {aa}
        s_and_b32 s76, s3, 1
        s_xor_b32 s76, s76, 1
        s_mul_i32 s76, s76, 4160
        s_add_u32 m0, s76, s38'''.format(fa=FA, aa=AA))
        self.spoll(16, 61)
        self.stamp(11)
        a('s_barrier')
        for i in range(4):
            a('s_add_u32 s76, s60, %d\nbuffer_load_dwordx4 v%d, %s, s76 offen offset:%d sc1 lds' % (i * (16384 - 1024), 9 + (i & 1), WS_, 1024 * i))
        a('s_waitcnt vmcnt(0)')
        self.stamp(12)
        a('s_barrier\ns_branch L_FIN')
    def touch(self):
        self.a('s_and_b32 s76, s71, 3\ns_mul_i32 s76, s76, %d\ns_add_u32 s76, s76, s70\nbuffer_load_dword v255, v249, %s, s76 offen\ns_add_u32 s71, s71, 1' % (64 * 7680, W2_))
    def xhook(self):
        a = self.a
        L = self.lab('NH')
        a('s_cmp_eq_u32 s37, 0\ns_cbranch_scc1 %s' % L)
        a("""s_waitcnt vmcnt(0)
        s_barrier
        s_cmp_eq_u32 s34, 0
        s_cbranch_scc0 {L}
        s_lshl_b32 s76, s62, 4
        s_add_u32 s76, s76, {fx}""".format(L=L, fx=FX))
        for x in self.flag_regs(250): a(x)
        a(self.flag(250, 76).replace('0xff', '1')); a('%s:' % L)
        self.stamp('xf')
    def g2_offsets_s(self):
        self.a('''s_cmp_ge_u32 s36, 10
        s_cselect_b32 s62, 1, 0
        s_mul_i32 s63, s62, 10
        s_sub_u32 s63, s36, s63
        s_lshl_b32 s66, s35, 1
        s_add_u32 s62, s62, s66''')
        self.g2_offsets()
    def swave(self):
        a = self.a
        self.stamp('in')
        a("""s_setprio 3
        s_and_b32 s60, s34, 1
        s_bfe_u32 s76, s34, 0x10001
        s_mul_i32 s61, s35, 80
        s_lshl_b32 s77, s36, 1
        s_add_u32 s61, s61, s77
        s_add_u32 s61, s61, s76
        s_mov_b32 s37, 0
        v_mov_b32 v248, 0
        v_mov_b32 v226, 0
        v_mov_b32 v249, 0
        s_mul_i32 s38, s76, 8320
        s_add_u32 s38, s38, %d
        s_mul_i32 s39, s76, 4608
        s_add_u32 s39, s39, %d
        s_mov_b32 s78, 0""" % (L_TAB, L_U))
        self.s_param_pre()
        self.srds()
        self.s_param_loads()
        self.scode()
    def nwave(self):
        a = self.a
        self.stamp('in')
        a('''s_and_b32 s60, s34, 1
        s_lshr_b32 s76, s34, 1
        s_mul_i32 s61, s35, 80
        s_lshl_b32 s77, s36, 2
        s_add_u32 s61, s61, s77
        s_add_u32 s61, s61, s76
        s_sub_u32 s61, s61, 48
        s_mov_b32 s37, 1
        s_mul_i32 s38, s76, 8320
        s_add_u32 s38, s38, %d
        s_mul_i32 s39, s76, 4608
        s_add_u32 s39, s39, %d
        s_lshl_b32 s62, s35, 3
        s_add_u32 s62, s62, s36
        s_sub_u32 s62, s62, 24
        s_lshl_b32 s63, s62, 5
        s_lshl_b32 s76, s34, 2
        s_add_u32 s63, s63, s76
        s_mul_i32 s64, s63, 1280
        s_mov_b32 s78, 0
        v_mov_b32 v14, 0
        v_mov_b32 v15, 0
        v_min_u32 v249, 59, v1
        v_lshlrev_b32 v249, 7, v249
        v_lshrrev_b32 v4, 4, v1
        v_and_b32 v5, 15, v1
        v_mul_u32_u24 v6, 1280, v4
        v_lshl_add_u32 v248, v5, 4, v6''' % (N_TAB, N_U))
        self.s_param_pre()
        if 'nocp' not in self.opts:
            L = self.lab('CP')
            a('''s_cmp_eq_u32 s34, 0
            s_cbranch_scc0 {L}
            s_getpc_b64 s[68:69]
            {L}pc:
            s_sub_u32 s68, s68, {L}pc-{n}
            s_subb_u32 s69, s69, 0
            s_sub_u32 s76, s36, 24
            s_lshl_b32 s76, s76, 12
            v_and_b32 v7, 31, v1
            v_lshl_add_u32 v7, v7, 7, s76
            v_min_u32 v7, L_END-{n}, v7
            global_load_dword v255, v7, s[68:69]
            {L}:'''.format(L=L, n=NAME))
        self.srds()
        self.s_param_loads()
        a('''s_sub_u32 s76, s36, 24
        s_lshl_b32 s76, s76, 3
        s_add_u32 s76, s76, s34
        s_mul_i32 s76, s76, 24
        v_min_u32 v7, 23, v1
        v_add_u32 v7, s76, v7
        v_lshrrev_b32 v8, 8, v7
        v_mul_u32_u24 v9, {rc}, v8
        v_lshrrev_b32 v9, 4, v9
        v_bfe_u32 v10, v7, 7, 1
        v_mul_u32_u24 v10, 5, v10
        s_lshr_b32 s76, s35, 1
        s_mul_i32 s76, s76, {rR}
        s_lshr_b32 s76, s76, 4
        s_and_b32 s19, s35, 1
        s_mul_i32 s77, s19, {rC}
        s_lshr_b32 s77, s77, 4
        s_add_u32 s76, s76, s77
        s_add_u32 s76, s76, 4
        v_add3_u32 v9, v9, v10, s76
        v_mul_u32_u24 v10, 26, v9
        v_lshrrev_b32 v10, 8, v10
        v_mul_u32_u24 v10, 10, v10
        v_sub_u32 v9, v9, v10
        v_bfe_u32 v10, v7, 1, 6
        v_lshl_add_u32 v9, v9, 6, v10
        v_mul_u32_u24 v9, 3072, v9
        v_lshl_add_u32 v9, v8, 8, v9
        v_and_b32 v10, 1, v7
        v_lshl_add_u32 v226, v10, 7, v9
        s_mul_i32 s19, s19, 1536'''.format(rc=ROT[1], rR=ROT[2], rC=ROT[3]))
        a('s_branch L_SC')
        XF = 100; T0 = 140
        a('L_LN:')
        self.stamp('ln')
        a('''s_sub_u32 s70, s36, 24
        s_lshl_b32 s70, s70, 3
        s_add_u32 s70, s70, s34
        s_mul_i32 s70, s70, 7680
        s_mov_b32 s71, s35''')
        self.touch()
        a('''        v_lshrrev_b32 v4, 4, v1
        v_and_b32 v5, 15, v1
        s_and_b32 s76, s34, 1
        s_lshl_b32 s76, s76, 4
        s_lshr_b32 s77, s34, 1
        s_lshl_b32 s77, s77, 2
        s_add_u32 s76, s76, s77
        v_add_u32 v6, s76, v4
        v_mul_u32_u24 v6, {ts}, v6
        v_lshl_add_u32 v6, v5, 4, v6
        v_and_b32 v7, 3, v1
        v_bfe_u32 v8, v1, 2, 2
        v_lshl_add_u32 v7, v7, 2, v8
        v_mul_u32_u24 v7, {ts}, v7
        v_lshl_add_u32 v7, v4, 3, v7
        s_mul_i32 s76, s34, 160
        v_add_u32 v7, s76, v7
        v_lshlrev_b32 v8, 14, v4
        v_lshl_add_u32 v8, v5, 4, v8
        s_mul_i32 s65, s34, {cq}
        s_lshl_b32 s76, s62, 8
        s_add_u32 s65, s65, s76
        v_mov_b32 v10, 0
        v_mov_b32 v11, 0
        v_mov_b32 v12, 0
        v_mov_b32 v13, 0'''.format(ts=TSTR, cq=20 * 16384, t8=T0 + 8, t9=T0 + 9))
        for i in range(5):
            a('s_waitcnt vmcnt(%d)' % (5 - i))
            for d in range(4):
                s = XI + 4 * i + d; f = XF + 8 * i + 2 * d
                a('''v_lshlrev_b32 v{f}, 16, v{s}
                v_and_b32 v{f1}, 0xffff0000, v{s}
                v_pk_add_f32 v[10:11], v[10:11], v[{f}:{f1}]
                v_pk_fma_f32 v[12:13], v[{f}:{f1}], v[{f}:{f1}], v[12:13]'''.format(f=f, f1=f + 1, s=s))
        self.stamp(1)
        a('v_add_f32 v10, v10, v11\nv_add_f32 v12, v12, v13')
        for sh in (8, 4, 2, 1):
            a('v_add_f32 v10, v10, v10 row_ror:%d\nv_add_f32 v12, v12, v12 row_ror:%d' % (sh, sh))
        rb = lambda d, s: 'v_cvt_pk_bf16_f32 v%d, v%d, v%d\nv_lshlrev_b32 v%d, 16, v%d' % (d, s, s, d, d)
        EPS = f32(1e-5)
        a('v_mul_f32 v10, {c}, v10\nv_mul_f32 v12, {c}, v12\nv_fma_f32 v12, -v10, v10, v12\nv_max_f32 v12, 0, v12'.format(c=f32(1.0 / 640)))
        a(rb(11, 10))
        a(rb(13, 12)); a('v_add_f32 v13, %s, v13' % EPS); a(rb(13, 13)); a('v_sqrt_f32 v13, v13'); a(rb(13, 13))
        a('v_rcp_f32 v14, v13\nv_mul_f32 v15, v11, v14\nv_sub_f32 v15, 0, v15')
        for i in range(5):
            for d in range(4):
                s = XI + 4 * i + d; f = XF + 8 * i + 2 * d
                a('v_pk_fma_f32 v[{f}:{f1}], v[{f}:{f1}], v[14:15], v[14:15] op_sel:[0,0,1] op_sel_hi:[1,0,1]\nv_cvt_pk_bf16_f32 v{s}, v{f}, v{f1}'.format(f=f, f1=f + 1, s=s))
            a('ds_write_b128 v6, v[%d:%d] offset:%d' % (XI + 4 * i, XI + 4 * i + 3, 256 * i))
        a('v_sub_f32 v10, v10, v11\nv_mul_f32 v10, v10, v14'); a(rb(10, 10))
        a('v_mul_f32 v12, v12, v14\nv_mul_f32 v12, v12, v14'); a(rb(12, 12)); a('v_add_f32 v12, %s, v12' % EPS); a(rb(12, 12)); a('v_sqrt_f32 v12, v12'); a(rb(12, 12))
        a('v_fma_f32 v10, -v10, v13, -v11\nv_mul_f32 v12, v13, v12')
        a('''s_lshl_b32 s67, s63, 4
        s_add_u32 s67, s67, {st}
        v_lshlrev_b32 v14, 4, v4
        v_mov_b32 v11, s21
        v_mov_b32 v13, s21
        v_cmp_eq_u32 vcc, 0, v5
        s_and_saveexec_b64 s[68:69], vcc
        buffer_store_dwordx4 v[10:13], v14, {ws}, s67 offen sc1
        s_mov_b64 exec, s[68:69]'''.format(st=ST, ws=WS_))
        self.stamp('l4')
        a('s_waitcnt lgkmcnt(0)\ns_barrier')
        for i in range(5):
            for e in range(2):
                a('ds_read_b64_tr_b16 v[%d:%d], v7 offset:%d' % (XI + 4 * i + 2 * e, XI + 4 * i + 2 * e + 1, 32 * i + 16 * TSTR * e))
        for i in range(5):
            a('s_waitcnt lgkmcnt(%d)\ns_add_u32 s76, s65, %d\nbuffer_store_dwordx4 v[%d:%d], v8, %s, s76 offen sc1' % (8 - 2 * i, XT + i * 4 * 16384, XI + 4 * i, XI + 4 * i + 3, WS_))
        self.stamp('xs')
        a('s_branch L_LNR')

    def build(self):
        a = self.a
        self.prologue()
        a('s_cmp_ge_u32 s36, 24\ns_cbranch_scc1 L_N\ns_cmp_ge_u32 s34, 4\ns_cbranch_scc1 L_S')
        self.sel = SEL['G']; self.gwave()
        self.sel = SEL['S']; a('L_S:'); self.swave()
        self.sel = SEL['N']; a('L_N:'); self.nwave()
        a('L_FIN:')
        self.dump_stamps()
        for o_ in self.opts:
            if o_.startswith('pad='):
                a('''s_cmp_eq_u32 s34, 0
                s_cbranch_scc0 L_END
                s_cmp_lt_u32 s36, 20
                s_cbranch_scc0 L_END''')
                for q_ in self.opts:
                    if q_.startswith('padwg='): a('s_cmp_eq_u32 s2, %d\ns_cbranch_scc0 L_END' % int(q_[6:]))
                a('''L_PAD:
                s_memrealtime s[98:99]
                s_waitcnt lgkmcnt(0)
                s_sub_u32 s77, s98, s96
                s_cmp_lt_u32 s77, %d
                s_cbranch_scc1 L_PAD''' % int(o_[4:]))
        if 'span' in self.opts:
            a('''s_cmp_eq_u32 s34, 0
            s_cbranch_scc0 L_END
            s_waitcnt vmcnt(0)
            s_memrealtime s[98:99]
            s_memtime s[76:77]
            s_waitcnt lgkmcnt(0)
            s_not_b32 s97, s96
            s_sub_u32 s76, s76, s100
            s_sub_u32 s77, s98, s96
            s_mov_b64 exec, 1
            v_mov_b32 v0, 0
            v_mov_b32 v1, s97
            v_mov_b32 v2, s98
            v_mov_b32 v3, s96
            v_mov_b32 v4, s76
            v_mov_b32 v5, s77
            global_atomic_umax v0, v1, s[30:31]
            global_atomic_umax v0, v2, s[30:31] offset:4
            global_atomic_umax v0, v3, s[30:31] offset:8
            global_atomic_umax v0, v4, s[30:31] offset:12
            global_atomic_umax v0, v5, s[30:31] offset:16''')
        a('L_END:')
        body = a.finish()
        ref = open('parallel_sum__ssm_conv_s4d__mixer_channel_mlp__prompt.s.ref').read()
        head = ''.join(l + '\n' for l in ref.split('\n') if l.startswith(';') and '@launch' not in l)
        return head + '''; @launch grid=(256,1,1) block=(512,1,1) lds=163840
.amdgcn_target "amdgcn-amd-amdhsa--gfx950"
.text
.globl {n}
.p2align 8
.type {n},@function
{n}:
{body}    s_endpgm
.section .rodata,"a"
.p2align 6
.amdhsa_kernel {n}
  .amdhsa_next_free_vgpr 256
  .amdhsa_next_free_sgpr 102
  .amdhsa_accum_offset 256
  .amdhsa_group_segment_fixed_size 0
  .amdhsa_kernarg_size 120
  .amdhsa_user_sgpr_count 2
  .amdhsa_user_sgpr_kernarg_segment_ptr 1
  .amdhsa_system_sgpr_workgroup_id_x 1
  .amdhsa_float_denorm_mode_32 3
.end_amdhsa_kernel
'''.format(n=NAME, body=body)
if __name__ == '__main__':
    out = sys.argv[1]; opts = sys.argv[2:]
    g = G('stamps' in opts, opts); s = g.build(); open(out, 'w').write(s)
    print('wrote', out, len(s), 'bytes; nops inserted', g.a.nops)
```

```python
import sys, math, struct
sys.path.insert(0, 'work')
from asmdsl import Asm, interleave
NAME = 'parallel_sum__ssm_conv_s4d__mixer_channel_mlp__prompt_kernel'
def f32(x): return '0x%08x' % struct.unpack('<I', struct.pack('<f', x))[0]
LOG2E = math.log2(math.e)
XT, HH, AA, FL, DBG = 0x000000, 0x400000, 0xA00000, 0xD00000, 0xE00000
ST, FX, EP, FH, FA = FL, FL + 0x8000, FL + 0xC000, FL + 0x10000, FL + 0x40000
WS_BYTES = 0x1000000
XR = 131072
L_TAB, L_U, L_CS, L_ST = XR, XR + 2 * 8320, XR + 2 * 8320 + 2 * 4608, XR + 2 * 8320 + 2 * 4608 + 1024
L_NON = L_ST + 1024
VN = 27
L_AT = XR
L_RED = 0
N_T, N_TAB, N_U = 0, 49152, 49152 + 4 * 8320
TSTR = 1296
sWV, sXCD, sJ = 34, 35, 36
X_, W1_, W2_, WS_, OUT_ = 's[40:43]', 's[44:47]', 's[48:51]', 's[52:55]', 's[56:59]'
POLLMAX = 0x8000
BARPOS = [.45, .7, .9, 1.0, 1.0, 1.0, 1.0]
PPOS, NPH, B1P, RBU, B3B = 8, 16, 26, 6, 0
RB8, RB9, B1E = 10, 20, 2
FLAG0 = 30
ROT = [40, 27, 0, 0]
SPRIO = 0
FLAG1 = 14
THR = None
NOBP = 2
KPRIO = 1
LORD = [2, 3, 4, 5, 0, 1, 6, 7]
XHOOK = 0.2
TOUCH = [0.22, 0.3, 0.5]
TLN = [1, 0]
SLP = 4
XST = 3
XI = 228
NL0, NL1 = 0, 8
THR0 = None
FRONT = 0
PK = 1
LNP = [0, 0]
NLATE = 0
NFIN = 2
CPRIO = 1
PRE2 = 4
W1T = 0
SB = [1]
RWAIT = 4
TPRIO = 1
SWAP = 1
XEARLY = 1
WFIRST = 1
SA = 84
OUTAUX = ''
import os
SELS = {
 'main': {'G': [0, 'b0', 'b9', 5, 6, 7, 10, 11, 12], 'S': [0, 2, 3, 'st', 5, 6, 'R', 8, 10]},
 'start': {'G': [0, 'd0', 'd1', 'd2', 'w0', 'b0', 'b1', 'b2', 'b3'], 'S': [0, 'pl', 'a0', 2, 'ln', 'xs', 3, 4, 5]},
 'g1': {'G': [0, 'b0', 'b1', 'b2', 'b3', 'b4', 'b6', 'b8', 'b9'], 'S': [0, 2, 'xf', 3, 'st', 4, 5, 6, 'R']},
 'mid': {'G': [0, 'b9', 5, 't1', 't2', 't3', 'f0', 6, 7], 'S': [0, 3, 'r0', 4, 5, 6, 'r1', 'R', 7]},
 'ln': {'G': [0, 'b5', 'b6', 'b7', 'a8', 'b8', 'a9', 'w9', 'b9'], 'S': [0, 2, 'ln', 1, 'l4', 'xs', 'xf', 3, 'st']},
 'g2': {'G': [0, 's0', 's2', 's5', 's8', 's11', 's14', 's17', 's21'], 'S': [0, 7, 8, 9, 10, 11, 12]},
 'none': {'G': [0, 'b0', 'b2', 'b9', 7, 11, 12], 'S': [0, 2, 'xs', 3, 7, 9]},
 'end': {'G': [0, 7, 'f1', 10, 8, 9, 11, 12, 13], 'S': [0, 7, 8, 9, 10, 'h1', 11, 12]},
}
CLK = 's_memtime' if os.environ.get('CYC') else 's_memrealtime'
SEL = SELS[os.environ.get('SEL', 'main')]
SEL['N'] = SEL['S']
for _k in ('BARPOS', 'XHOOK', 'XST', 'NL0', 'NL1', 'FLAG0', 'FLAG1', 'THR', 'SLP', 'TOUCH', 'TLN', 'SA', 'OUTAUX', 'RB8', 'RB9', 'PPOS', 'NPH', 'B1P', 'RBU', 'ROT', 'NOBP', 'THR0', 'FRONT', 'PK', 'LNP', 'PRE2', 'W1T', 'SB', 'RWAIT', 'B1E', 'NLATE', 'NFIN', 'CPRIO', 'TPRIO', 'SWAP', 'XEARLY', 'WFIRST', 'KPRIO', 'SPRIO', 'B3B'):
    if os.environ.get(_k): globals()[_k] = eval(os.environ[_k])
class G:
    def __init__(self, stamps=False, opts=()):
        self.a = Asm(); self.stamps = stamps; self.nlab = 0; self.opts = set(opts); self.sel = None
    def lab(self, p='L'):
        self.nlab += 1; return '%s%d' % (p, self.nlab)
    def stamp(self, k):
        if 'padat=%s' % k in self.opts: self.a('s_memrealtime s[96:97]')
        if self.stamps and k in self.sel:
            i = self.sel.index(k); self.a('%s s[%d:%d]' % (CLK, 80 + 2 * i, 81 + 2 * i))
    def dump_stamps(self):
        if not self.stamps: return
        a = self.a
        a('s_lshl_b32 s60, s2, 3\ns_add_u32 s60, s60, s%d\ns_lshl_b32 s60, s60, 6\ns_add_u32 s60, s60, %d' % (sWV, DBG))
        a('s_mov_b64 exec, -1\nv_mov_b32 v0, 0')
        a('s_memtime s[76:77]\n' + CLK + ' s[98:99]\ns_waitcnt lgkmcnt(0)\ns_sub_u32 s100, s76, s100')
        for k in range(11):
            a('v_mov_b32 v1, s%d\nbuffer_store_dword v1, v0, %s, s60 offen offset:%d' % (80 + 2 * k, WS_, 4 * k))
    def poll(self, load, check):
        L = self.lab('P'); E = self.lab('PE')
        self.a('s_mov_b32 s79, 0\n%s:\n%s\ns_add_u32 s79, s79, 1\ns_waitcnt vmcnt(0)\n%s\ns_cbranch_vccz %s\ns_sleep %d\ns_cmp_gt_u32 s79, %d\ns_cbranch_scc0 %s\n%s:' % (L, load, check, E, SLP, POLLMAX, L, E))
    def spoll(self, n, off):
        a = self.a
        D = list(range(64, 76)) + [16, 17, 18, 19]
        L = self.lab('SP'); E = self.lab('SE')
        a('s_add_u32 s22, s32, s%d\ns_addc_u32 s23, s33, 0\ns_mov_b32 s79, 0\n%s:' % (off, L))
        for i in range(n): a('s_load_dword s%d, s[22:23], %d glc' % (D[i], 128 * i))
        a('s_add_u32 s79, s79, 1\ns_waitcnt lgkmcnt(0)\ns_xor_b32 s76, s%d, s21' % D[0])
        for i in range(1, n): a('s_xor_b32 s77, s%d, s21\ns_or_b32 s76, s76, s77' % D[i])
        a('s_cbranch_scc0 %s\ns_sleep %d\ns_cmp_gt_u32 s79, %d\ns_cbranch_scc0 %s\n%s:' % (E, SLP, POLLMAX, L, E))
    def nonce0(self): self.a('s_mov_b32 s76, %d\ns_load_dword s21, s[32:33], s76' % EP)
    def nonce2(self): return 's_mul_i32 s21, s21, 0x9e3779b1\ns_add_u32 s21, s21, 0x7f4a7c15'
    def flag(self, v, soff):
        return 's_mov_b64 exec, 0xff\nbuffer_store_dwordx4 v[%d:%d], v%d, %s, s%d offen sc1\ns_mov_b64 exec, -1' % (v, v + 3, v + 4, WS_, soff)
    def flag_regs(self, v):
        return ['v_mov_b32 v%d, s21' % (v + i) for i in range(4)] + ['v_lshlrev_b32 v%d, 4, v1' % (v + 4)]
    def prologue(self):
        a = self.a
        a('''s_cmp_ge_u32 s2, 256
        s_cbranch_scc1 L_END
        s_load_dwordx16 s[4:19], s[0:1], 0
        s_load_dwordx8 s[20:27], s[0:1], 64
        s_load_dwordx4 s[28:31], s[0:1], 96
        s_load_dwordx2 s[32:33], s[0:1], 112''')
        if self.stamps:
            a('s_memtime s[100:101]\n' + CLK + ' s[80:81]')
            for k in range(1, 10): a('s_mov_b32 s%d, 0' % (80 + 2 * k))
        if 'span' in self.opts or any(o.startswith('pad=') for o in self.opts): a('s_memrealtime s[96:97]\ns_memtime s[100:101]')
        a('''v_lshrrev_b32 v2, 6, v0
        v_and_b32 v1, 63, v0
        s_and_b32 s35, s2, 7
        v_readfirstlane_b32 s34, v2
        s_lshr_b32 s36, s2, 3
        s_xor_b32 s34, s34, %d''' % (4 if SWAP else 0))
    def srds(self, wait=True):
        self.a('''s_mov_b32 s42, %d
        s_mov_b32 s43, 0x20000
        s_mov_b32 s46, %d
        s_mov_b32 s47, 0x20000
        s_mov_b32 s50, %d
        s_mov_b32 s51, 0x20000
        s_mov_b32 s54, %d
        s_mov_b32 s55, 0x20000
        s_mov_b32 s58, %d
        s_mov_b32 s59, 0x20000''' % (2048 * 1280, 640 * 3072, 1536 * 1280, WS_BYTES, 2048 * 1280))
        if wait: self.a('s_waitcnt lgkmcnt(0)')
        self.a('''s_mov_b32 s40, s4
        s_mov_b32 s41, s5
        s_mov_b32 s44, s20
        s_mov_b32 s45, s21
        s_mov_b32 s48, s24
        s_mov_b32 s49, s25
        s_mov_b32 s52, s32
        s_mov_b32 s53, s33
        s_mov_b32 s56, s28
        s_mov_b32 s57, s29''')
        self.stamp('srd')
    def g12_ids(self):
        self.a('''s_mul_i32 s60, s36, 43
        s_lshr_b32 s60, s60, 8
        s_mul_i32 s61, s60, 6
        s_sub_u32 s61, s36, s61
        s_lshr_b32 s64, s35, 1
        s_and_b32 s65, s35, 1
        s_lshl_b32 s37, s64, 2
        s_add_u32 s37, s37, s60
        s_mul_i32 s38, s65, 6
        s_add_u32 s38, s38, s61
        s_mul_i32 s39, s60, %d
        s_lshr_b32 s39, s39, 4
        s_mul_i32 s66, s61, %d
        s_lshr_b32 s66, s66, 4
        s_add_u32 s39, s39, s66
        s_mul_i32 s66, s64, %d
        s_lshr_b32 s66, s66, 4
        s_add_u32 s39, s39, s66
        s_mul_i32 s66, s65, %d
        s_lshr_b32 s66, s66, 4
        s_add_u32 s39, s39, s66
        s_cmp_ge_u32 s39, 10
        s_cselect_b32 s66, 10, 0
        s_sub_u32 s39, s39, s66''' % tuple(ROT))
        self.a('''        s_cmp_ge_u32 s36, 10
        s_cselect_b32 s62, 1, 0
        s_mul_i32 s63, s62, 10
        s_sub_u32 s63, s36, s63
        s_lshl_b32 s66, s35, 1
        s_add_u32 s62, s62, s66''')
    def g2_offsets(self):
        a = self.a
        a('s_lshl_b32 s4, s63, 10')
        for i in range(1, 12):
            a('s_add_u32 s%d, s%d, 1024\ns_cmp_eq_u32 s%d, 12288\ns_cselect_b32 s%d, 0, s%d' % (4 + i, 3 + i, 4 + i, 4 + i, 4 + i))
    def w2_voff(self, v0, wv, t):
        self.a("""s_lshr_b32 s76, s{wv}, 1
        s_mul_i32 s76, s76, {khs}
        s_and_b32 s77, s{wv}, 1
        s_mul_i32 s77, s77, {r16}
        s_add_u32 s76, s76, s77
        s_lshl_b32 s77, s63, 7
        s_add_u32 s76, s76, s77
        v_lshrrev_b32 v{t}, 3, v1
        v_mul_u32_u24 v{v0}, 1280, v{t}
        v_lshrrev_b32 v{t}, 4, v1
        v_lshlrev_b32 v{t}, 1, v{t}
        v_xor_b32 v{t}, v{t}, v1
        v_and_b32 v{t}, 7, v{t}
        v_lshl_add_u32 v{v0}, v{t}, 4, v{v0}
        v_add_u32 v{v0}, s76, v{v0}
        v_add_u32 v{v1}, {d}, v{v0}
        s_lshl_b32 s78, s{wv}, 11""".format(wv=wv, khs=24 * 32 * 1280, r16=32 * 1280, t=t, v0=v0, v1=v0 + 1, d=8 * 1280 - 1024))
    def w2_dma(self, step, slot, v0):
        part, i = step // 12, step % 12
        return ['s_add_u32 m0, s78, %d\ns_mul_i32 s76, s%d, 80\n%sbuffer_load_dwordx4 v%d, %s, s76 offen lds' % (slot * 8192, 4 + i, 's_add_u32 s76, s76, 20480\n' if part else '', v0, W2_),
                'buffer_load_dwordx4 v%d, %s, s76 offen offset:1024 lds' % (v0 + 1, W2_)]
    def w2_round(self, units, v0, thr=None):
        l = []
        for st, sl in units:
            d = self.w2_dma(st, sl, v0)
            if thr is not None: d[0] = 's_waitcnt vmcnt(%d)\n' % thr + d[0]
            l += d
        return l
    def gwave(self):
        a = self.a
        NT = 4
        VX, VW, RX, RW = 16, 20, 24, 28
        VSR, VBA, VXR = 29, 30, 120
        FR = 32
        CS, BS = 72, 76
        AUG = 80
        VB1 = 96
        TM = 100
        VB2, VXI = 12, 240
        T, P, KC = 208, 224, 228
        TR, RF, A2, HR = 4, 16, 144, 208
        ACC = [144, 160, 176, 192]
        acc = lambda t, nt: A2 + 32 * (t >> 1) + 8 * nt + 4 * (t & 1)
        a('s_setprio 1')
        self.g12_ids()
        a("""s_and_b32 s60, s34, 1
        s_lshr_b32 s61, s34, 1""")
        a("""s_lshl_b32 s76, s37, 7
        s_lshl_b32 s77, s34, 5
        s_add_u32 s76, s76, s77
        s_mul_i32 s76, s76, 1280
        v_lshrrev_b32 v2, 3, v1
        v_mul_u32_u24 v3, 1280, v2
        v_lshrrev_b32 v4, 4, v1
        v_xor_b32 v5, v4, v1
        v_and_b32 v5, 7, v5
        v_lshl_add_u32 v6, v5, 4, v3
        v_xor_b32 v5, 4, v5
        v_lshl_add_u32 v7, v5, 4, v3
        v_add_u32 v%d, s76, v6
        v_add_u32 v7, s76, v7
        v_add_u32 v%d, %d, v7
        v_add_u32 v%d, %d, v%d
        v_add_u32 v%d, %d, v7""" % (VX, VX + 1, 8 * 1280 - 1024, VX + 2, 16 * 1280 - 2048, VX, VX + 3, 24 * 1280 - 3072))
        a("""s_mul_i32 s76, s34, %d
        s_lshl_b32 s77, s38, 8
        s_add_u32 s76, s76, s77
        v_mul_u32_u24 v3, 3072, v4
        v_lshlrev_b32 v5, 2, v4
        v_xor_b32 v5, v5, v1
        v_and_b32 v5, 15, v5
        v_lshl_add_u32 v3, v5, 4, v3
        v_add_u32 v%d, s76, v3""" % (16 * 3072, VW))
        for i in range(1, 4): a('v_add_u32 v%d, %d, v%d' % (VW + i, i * (4 * 3072 - 1024), VW))
        a('s_lshl_b32 s67, s34, 12')
        self.srds()
        self.nonce0()
        def dma(stage, wfirst=False):
            idx = stage % 3
            lx, lw = [], []
            for i in range(4):
                pre = 's_add_u32 m0, s67, %d\ns_lshl_b32 s76, s39, 7\n' % (idx * 16384) if i == 0 else ''
                lx.append(pre + 'buffer_load_dwordx4 v%d, %s, s76 offen offset:%d lds' % (VX + i, X_, 1024 * i))
                pre = 's_add_u32 m0, s67, %d\ns_mul_i32 s77, s39, %d\n' % (49152 + idx * 16384, 64 * 3072) if i == 0 else ''
                lw.append(pre + 'buffer_load_dwordx4 v%d, %s, s77 offen offset:%d lds' % (VW + i, W1_, 1024 * i))
            l = lw + lx if wfirst else lx + lw
            l[7] += '\ns_add_u32 s39, s39, 1\ns_cmp_eq_u32 s39, 10\ns_cselect_b32 s39, 0, s39'
            return l
        for x in dma(0): a(x)
        self.stamp('d0')
        a("""v_and_b32 v8, 31, v1
        v_lshrrev_b32 v9, 5, v1
        v_and_b32 v10, 15, v1
        v_lshrrev_b32 v11, 4, v1
        v_bfe_u32 v12, v1, 4, 1
        v_bfe_u32 v13, v1, 2, 2
        v_and_b32 v14, 3, v1""")
        a("""v_bfe_u32 v4, v1, 1, 3
        v_xor_b32 v4, v4, v9
        v_lshlrev_b32 v4, 4, v4
        v_lshl_add_u32 v%d, v8, 7, v4""" % RX)
        for s in range(1, 4): a('v_xor_b32 v%d, %d, v%d' % (RX + s, 32 * s, RX))
        a("""v_lshl_add_u32 v5, v9, 3, v13
        v_lshlrev_b32 v5, 8, v5
        v_xor_b32 v4, s34, v13
        v_lshl_add_u32 v5, v4, 6, v5
        v_lshl_add_u32 v5, v12, 5, v5
        v_lshl_add_u32 v5, v14, 3, v5
        v_add_u32 v%d, 49152, v5""" % RW)
        a("""v_xor_b32 v4, v11, v13
        v_and_b32 v4, 1, v4
        v_cmp_eq_u32 vcc, 0, v4
        v_mov_b32 v5, 0x3f803f80
        v_cmp_gt_u32 s[64:65], 32, v1
        v_cndmask_b32 v%d, 0, v5, vcc
        v_cndmask_b32 v%d, 0, v5, vcc
        v_cndmask_b32 v%d, 0, v5, vcc
        v_cndmask_b32 v%d, 0, v5, vcc""" % (BS, BS + 1, BS + 2, BS + 3))
        a("""s_lshl_b32 s76, s37, 11
        s_add_u32 s76, s76, {st}
        v_lshl_add_u32 v{sr}, v1, 4, s76
        s_lshl_b32 s76, s38, 8
        s_lshl_b32 s77, s34, 6
        s_add_u32 s76, s76, s77
        v_lshl_add_u32 v{ba}, v8, 1, s76
        v_mov_b32 v{b1}, 0""".format(st=ST, sr=VSR, ba=VBA, b1=VB1))
        a("""v_mul_u32_u24 v4, 49152, v12
        v_lshl_add_u32 v4, v9, 8, v4
        v_lshl_add_u32 v2, v10, 4, v4
        s_mul_i32 s68, s37, {b8}
        s_mul_i32 s3, s37, 6144
        s_lshl_b32 s76, s38, 2
        s_add_u32 s76, s76, s34
        s_lshl_b32 s77, s76, 9
        s_add_u32 s68, s68, s77
        s_add_u32 s68, s68, {hh}
        s_lshl_b32 s76, s76, 7
        s_add_u32 s3, s3, s76
        s_add_u32 s3, s3, {fh}""".format(b8=8 * 49152, hh=HH, fh=FH))
        a("""s_lshl_b32 s76, s62, 1
        s_add_u32 s76, s76, s61
        s_mul_i32 s72, s76, {r64}
        s_mul_i32 s73, s76, {b4}
        s_mul_i32 s66, s62, 6144
        s_mul_i32 s77, s60, 12288
        s_add_u32 s73, s73, s77
        s_add_u32 s73, s73, {hh}
        s_mul_i32 s77, s60, 3072
        s_add_u32 s66, s66, s77
        s_add_u32 s66, s66, {fh}
        s_min_u32 s76, s63, 9
        s_lshl_b32 s76, s76, 7
        s_lshl_b32 s77, s60, 6
        s_add_u32 s76, s76, s77
        s_add_u32 s72, s72, s76
        v_lshlrev_b32 v4, 5, v12
        v_lshl_add_u32 v4, v9, 4, v4
        v_mul_u32_u24 v5, 1280, v10
        v_add_u32 v3, v4, v5
        v_add_u32 v{ba}, s76, v4""".format(r64=64 * 1280, b4=4 * 49152, hh=HH, fh=FH, ba=VBA + 1))
        a("""v_lshl_add_u32 v4, v12, 1, v9
        s_lshl_b32 s76, s60, 2
        v_lshrrev_b32 v5, 1, v10
        v_xor_b32 v4, v4, v5
        v_xor_b32 v4, s76, v4
        v_lshlrev_b32 v4, 4, v4
        v_lshl_add_u32 v4, v10, 7, v4
        s_lshl_b32 s76, s61, 13
        s_add_u32 s76, s76, 98304
        v_add_u32 v%d, s76, v4""" % VXR)
        a("""v_lshl_add_u32 v15, v12, 2, v13
        v_lshrrev_b32 v5, 1, v15
        v_lshl_add_u32 v15, v9, 4, v15
        v_lshlrev_b32 v15, 7, v15
        s_lshl_b32 s76, s60, 1
        v_xor_b32 v5, s76, v5
        v_lshl_add_u32 v15, v5, 5, v15
        v_lshl_add_u32 v15, v14, 3, v15
        s_lshl_b32 s76, s60, 12
        s_add_u32 s76, s76, 0x10000
        v_add_u32 v4, s76, v15
        v_xor_b32 v5, 32, v4
        v_xor_b32 v6, 64, v4
        v_xor_b32 v7, 96, v4""")
        self.w2_voff(8, sWV, 10)
        self.g2_offsets()
        a('global_load_short_d16_hi v%d, v%d, s[22:23]' % (VB1, VBA))
        a('global_load_dwordx4 v[%d:%d], v%d, s[26:27]' % (VB2, VB2 + 3, VBA + 1))
        for x in dma(1, WFIRST): a(x)
        self.stamp('d1')
        d2 = dma(2)
        for x in d2[:PRE2]: a(x)
        self.stamp('d2')
        def reads(stage, s):
            idx = stage % 3; f = FR + 20 * (s & 1)
            l = ['ds_read_b64_tr_b16 v[%d:%d], v%d offset:%d' % (f + 2 * e, f + 2 * e + 1, RW, idx * 16384 + s * 4096 + 1024 * e) for e in range(2)]
            l += ['ds_read_b128 v[%d:%d], v%d offset:%d' % (f + 4 + 4 * nt, f + 7 + 4 * nt, RX + s, idx * 16384 + 4096 * nt) for nt in range(4)]
            return l
        def mfmas(s, first):
            f = FR + 20 * (s & 1); n32 = []
            c = 'v[%d:%d]' % (CS, CS + 3)
            n16 = 'v_mfma_f32_16x16x32_bf16 %s, v[%d:%d], v[%d:%d], %s' % (c, BS, BS + 3, f, f + 3, '0' if first else c)
            for nt in range(4):
                c = 'v[%d:%d]' % (ACC[nt], ACC[nt] + 15)
                n32.append('v_mfma_f32_32x32x16_bf16 %s, v[%d:%d], v[%d:%d], %s' % (c, f, f + 3, f + 4 + 4 * nt, f + 7 + 4 * nt, '0' if first else c))
            return n32, n16
        C1 = -2.0 * LOG2E * math.sqrt(2.0 / math.pi)
        augA0 = ['v_lshrrev_b32 v%d, 16, v%d' % (TM, VB1), 'v_cndmask_b32 v%d, 0, v%d, s[64:65]' % (AUG + 2, TM), 'v_cndmask_b32 v%d, v%d, 0, s[64:65]' % (AUG + 6, TM)] + \
                ['v_mov_b32 v%d, 0' % (AUG + 3 + 4 * i) for i in range(4)]
        augA = ['v_cvt_pk_bf16_f32 v%d, v%d, v%d' % (TM + 1, CS, VB1), 'v_lshlrev_b32 v%d, 16, v%d' % (TM, TM + 1), 'v_sub_f32 v%d, v%d, v%d' % (TM, CS, TM),
                'v_cndmask_b32 v%d, 0, v%d, s[64:65]' % (AUG + 1, TM + 1), 'v_cvt_pk_bf16_f32 v%d, v%d, v%d' % (TM, CS, TM), 'v_cndmask_b32 v%d, v%d, 0, s[64:65]' % (AUG + 5, TM + 1),
                'v_cndmask_b32 v%d, 0, v%d, s[64:65]' % (AUG, TM), 'v_cndmask_b32 v%d, v%d, 0, s[64:65]' % (AUG + 4, TM)]
        augB = []
        for i in range(2):
            B = AUG + 8 + 4 * i; g = TM + 4 + 4 * i; k = KC + 4 * i; dl = KC + 8 + 2 * i; t = TM + 12 + 2 * i
            augB.append(['v_rcp_f32 v%d, v%d' % (t + 1, g + 2), 'v_cvt_pk_bf16_f32 v%d, v%d, v%d' % (B, g, g), 'v_and_b32 v%d, 0xffff0000, v%d' % (t, B), 'v_sub_f32 v%d, v%d, v%d' % (t, g, t),
                    'v_cvt_pk_bf16_f32 v%d, v%d, v%d' % (B + 1, t, g + 2), 'v_and_b32 v%d, 0xffff0000, v%d' % (t, B + 1), 'v_sub_f32 v%d, v%d, v%d' % (t, g + 2, t),
                    'v_cvt_pk_bf16_f32 v%d, v%d, 0' % (B + 2, t), 'v_mov_b32 v%d, v%d' % (dl, g + 2), 'v_mov_b32 v%d, v%d' % (dl + 1, g + 2),
                    'v_mul_f32 v%d, %s, v%d' % (k + 1, f32(C1), t + 1), 'v_mul_f32 v%d, %s, v%d' % (k + 3, f32(C1), t + 1),
                    'v_mul_f32 v%d, v%d, v%d' % (t + 1, t + 1, t + 1), 'v_mul_f32 v%d, %s, v%d' % (t + 1, f32(0.044715), t + 1),
                    'v_mul_f32 v%d, v%d, v%d' % (k, t + 1, k + 1), 'v_mul_f32 v%d, v%d, v%d' % (k + 2, t + 1, k + 1),
                    'v_permlane32_swap_b32 v%d, v%d' % (dl, dl + 1), 'v_permlane32_swap_b32 v%d, v%d' % (k + 1, k + 3), 'v_permlane32_swap_b32 v%d, v%d' % (k, k + 2)])
        augB = interleave(augB[0], augB[1])
        stl = 'buffer_load_dwordx4 v[%d:%d], v%d, %s, 0 offen sc1\nbuffer_load_dwordx4 v[%d:%d], v%d, %s, 0 offen offset:1024 sc1' % (TM + 4, TM + 7, VSR, WS_, TM + 8, TM + 11, VSR, WS_)
        for st in range(11):
            self.stamp('a%d' % st)
            a('s_waitcnt %slgkmcnt(0)' % ('' if st == 10 else 'vmcnt(%d) ' % (10 + PRE2 if st == 0 else 2 if st == 9 else 10 if st == 8 else 8)))
            self.stamp('w%d' % st)
            a('s_barrier')
            self.stamp('b%d' % st)
            if st == 10: break
            d = d2[PRE2:] if st == 0 else dma(st + 2) if st + 2 < 10 else []
            if st == 0: a(self.nonce2())
            if st == 7: d[7] += '\n' + stl
            for s in range(4):
                rd = reads(st, s)
                dd = d[2 * s:2 * s + 2]
                if s == 0 and st == 0:
                    for x in rd + dd: a(x)
                    continue
                n32, n16 = mfmas((s - 1) & 3, st == 0 and s == 1)
                if s > 0: a('s_waitcnt lgkmcnt(0)')
                fill = [rd[0:3], rd[3:6], dd[:1], dd[1:]]
                if st == 7 and s < NT: fill[2] = ['ds_read_b128 v[%d:%d], v%d offset:%d' % (VXI + 4 * s, VXI + 4 * s + 3, VXR, 2048 * s)] + fill[2]
                if st == 8 and s == 1: fill[2:] = [augA0[:4], augA0[4:]]
                if st == 9 and s >= 2: fill[2:] = [augB[12 * s - 19:12 * s - 13], augB[12 * s - 13:12 * s - 7]]
                for i, (m, f) in enumerate(zip(n32, fill)):
                    a(m)
                    for x in f: a(x)
                    if st == 9 and s == 1 and i == 2:
                        Lok = self.lab('OK')
                        chk = 'v_cmp_ne_u32 vcc, s21, v%d\nv_cmp_ne_u32 s[76:77], s21, v%d\nv_cmp_ne_u32 s[16:17], s21, v%d\nv_cmp_ne_u32 s[18:19], s21, v%d\ns_or_b64 vcc, vcc, s[76:77]\ns_or_b64 vcc, vcc, s[16:17]\ns_or_b64 vcc, vcc, s[18:19]' % (TM + 5, TM + 7, TM + 9, TM + 11)
                        a('s_waitcnt vmcnt(0)\n' + chk + '\ns_cbranch_vccz %s' % Lok)
                        self.poll(stl, chk)
                        a('%s:' % Lok)
                    if st == 9 and s == 1 and i == 3:
                        for x in augB[:5]: a(x)
                a(n16)
        n32, n16 = mfmas(3, False)
        a(n16)
        for m, f in zip(n32, [augB[29:35], augB[35:] + augA[:3], augA[3:], []]):
            a(m)
            for x in f: a(x)
        for nt in range(4):
            c = 'v[%d:%d]' % (ACC[nt], ACC[nt] + 15); A = AUG + 4 * (nt & 1); B = AUG + 8 + 4 * (nt >> 1)
            a('v_mfma_f32_32x32x16_bf16 %s, v[%d:%d], v[%d:%d], %s' % (c, A, A + 3, B, B + 3, c))
        self.stamp(5)
        def gelu(part, nt):
            q = ACC[nt] + 8 * part; k = KC + 2 * nt; dl = KC + 8 + (nt & 2); o = nt & 1; t = T + 8 * (nt & 1)
            pr = lambda b, i: 'v[%d:%d]' % (b + 2 * i, b + 2 * i + 1)
            A = ['v_pk_mul_f32 %s, %s, %s' % (pr(t, i), pr(q, i), pr(q, i)) for i in range(4)]
            B = ['v_pk_fma_f32 %s, %s, v[%d:%d], v[%d:%d] op_sel:[0,0,1] op_sel_hi:[1,0,1]' % (pr(t, i), pr(t, i), k, k + 1, k, k + 1) for i in range(4)]
            C = ['v_pk_mul_f32 %s, %s, %s' % (pr(t, i), pr(t, i), pr(q, i)) for i in range(4)]
            E = ['v_exp_f32 v%d, v%d' % (t + i, t + i) for i in range(8)]
            D = ['v_pk_fma_f32 %s, %s, v[%d:%d], v[%d:%d] op_sel:[0,%d,%d] op_sel_hi:[1,%d,%d]' % (pr(t, i), pr(t, i), dl, dl + 1, dl, dl + 1, o, o, o, o) for i in range(4)]
            R = ['v_rcp_f32 v%d, v%d' % (t + i, t + i) for i in range(8)]
            Gc = ['v_cvt_pk_bf16_f32 v%d, v%d, v%d' % (P + i, t + 2 * i, t + 2 * i + 1) for i in range(4)]
            Gc[2] += '\ns_add_u32 s69, s68, %d' % (nt * 98304 + part * 24576)
            Gc[3] += '\nbuffer_store_dwordx4 v[%d:%d], v2, %s, s69 offen sc1' % (P, P + 3, WS_) if 'nost' not in self.opts else '\ns_nop 0 ; buffer_store'
            return A, B, C, E, D, R, C, Gc
        def gelu_stream(tiles):
            A, B, C, E, D, R, F, Gc = [sum((gelu(*t)[i] for t in tiles), []) for i in range(8)]
            g = lambda L, j: [L[j]] if 0 <= j < len(L) else []
            return [g(A, i + 2) + g(E, 2 * i) + g(B, i + 2) + g(E, 2 * i + 1) + g(C, i + 2) + g(D, i - 1) + g(R, 2 * i - 4) + g(F, i - 3) + g(R, 2 * i - 3) + g(Gc, i - 4)
                    for i in range(-2, 4 * len(tiles) + 4)]
        def trreads(buf, slot):
            return ['ds_read_b64_tr_b16 v[%d:%d], v%d offset:%d' % (RF + 16 * buf + 4 * t + 2 * e, RF + 16 * buf + 4 * t + 2 * e + 1, TR + t, (slot % 8) * 8192 + 1024 * e) for t in range(4) for e in range(2)]
        FV = ACC[2]
        flag = self.flag(FV, 3) + '\ns_add_u32 s3, s3, %d' % (32 * 3072)
        rr = []
        for b in range(8): rr += trreads(b, b)
        nst = 0
        for i, grp in enumerate(gelu_stream([(p, nt) for p in range(2) for nt in range(4)])):
            if i == B1P:
                self.stamp('t2')
                a('s_barrier')
            if i == FLAG0:
                assert nst >= 4
                for x in self.flag_regs(FV): a(x)
                self.stamp('t3')
                a('s_waitcnt vmcnt(%d)' % (nst - 4)); a(flag); self.stamp('f0')
            if i == 10: self.stamp('t1')
            if i >= B1P:
                for x in rr[:RBU]:
                    if 'norr' not in self.opts: a(x)
                rr = rr[RBU:]
            for x in grp:
                a(x); nst += 'buffer_store' in x
        assert not rr
        self.stamp(6)
        a('s_waitcnt lgkmcnt(0)\ns_barrier')
        self.stamp(7)
        a("""s_cmp_lt_u32 s36, 20
        s_cbranch_scc1 L_G2
        s_waitcnt vmcnt(0)
        {flag}
        s_branch L_FIN
        L_G2:""".format(flag=flag))
        ini = []
        for r in [VB2] + [VXI + 4 * nt for nt in range(NT)]:
            ini += ['v_permlane16_swap_b32 v%d, v%d' % (r, r + 2), 'v_permlane16_swap_b32 v%d, v%d' % (r + 1, r + 3)]
        for i in range(4):
            ini += ['v_lshlrev_b32 v%d, 16, v%d' % (T + 2 * i, VB2 + i), 'v_and_b32 v%d, 0xffff0000, v%d' % (T + 2 * i + 1, VB2 + i)]
        for nt in range(NT):
            for i in range(4):
                s = VXI + 4 * nt + i; o = acc(0, nt) + 2 * i
                ini += ['v_lshlrev_b32 v%d, 16, v%d' % (o, s), 'v_and_b32 v%d, 0xffff0000, v%d' % (o + 1, s),
                        'v_add_f32 v%d, v%d, v%d' % (o, o, T + 2 * i), 'v_add_f32 v%d, v%d, v%d' % (o + 1, o + 1, T + 2 * i + 1)]
        hpl = 'buffer_load_dword v2, v10, %s, s66 offen sc1' % WS_; hchk = 'v_cmp_ne_u32 vcc, s21, v2'
        a('v_min_u32 v10, 23, v1\nv_lshlrev_b32 v10, 7, v10')
        dm = self.w2_round([(2 + k, k) for k in LORD[NL1:]] + [(10 + k, 8 + k) for k in range(8)], 8)
        d1 = dm[:NPH]
        d1.insert(PPOS, hpl)
        d1.insert(FLAG1, 's_waitcnt vmcnt(%d)\n' % FLAG1 + flag)
        for x in interleave(d1, ini, per=6): a(x)
        Lok = self.lab('OK')
        self.stamp('f1')
        a('s_waitcnt vmcnt(%d)\n%s\ns_cbranch_vccz %s' % (len(d1) - 1 - d1.index(hpl), hchk, Lok))
        self.poll(hpl, hchk)
        a('%s:' % Lok)
        self.stamp(10)
        a("""v_lshl_add_u32 v12, v1, 4, s73
        v_add_u32 v13, 49152, v12
        v_add_u32 v14, %d, v12
        v_add_u32 v15, %d, v12""" % (2 * 49152, 3 * 49152))
        RING = 3 * NT; NJ = 24 * NT
        def hload(j):
            s, nt = j // NT, j % NT
            r = HR + 16 * (s % 3) + 4 * nt
            if 'noh' in self.opts and j >= RING: return 's_nop 0'
            if 'hsame' in self.opts: return 'buffer_load_dwordx4 v[%d:%d], v%d, %s, s%d offen sc1' % (r, r + 3, 12 + nt, WS_, 4 + s % 3)
            return ('v_add_u32 v%d, 24576, v%d\n' % (12 + nt, 12 + nt) if s == 12 else '') + 'buffer_load_dwordx4 v[%d:%d], v%d, %s, s%d offen %s' % (r, r + 3, 12 + nt, WS_, 4 + s % 12, '' if 'hplain' in self.opts else 'sc1')
        RING = 3 * NT; NJ = 24 * NT
        for j in range(RING): a(hload(j))
        for x in dm[NPH:]: a(x)
        self.stamp(8)
        a("""s_lshl_b32 s76, s34, 13
        v_lshl_add_u32 v2, v1, 4, s76
        v_bfe_u32 v10, v1, 2, 3
        s_lshl_b32 s76, s61, 2
        v_xor_b32 v10, s76, v10
        v_lshlrev_b32 v10, 5, v10
        v_lshrrev_b32 v11, 2, v1
        v_lshl_add_u32 v10, v11, 8, v10
        v_and_b32 v11, 3, v1
        v_lshl_add_u32 v10, v11, 3, v10
        s_mul_i32 s16, s60, 8320
        s_add_u32 s16, s16, %d""" % L_TAB)
        self.stamp(9)
        def wbuf(s): return s if s < 2 else (s - 16 if s >= 18 else (s & 1))
        vm = list(range(RING)) + ['D'] * (len(dm) - NPH)
        assert NL1 == 8
        AZ = RF
        JF = 12 * NT - RING + 1
        extra = []
        for s in range(24):
            wb = RF + 16 * wbuf(s); nxt = s + 1; rd = []
            if 2 <= nxt < 18:
                if nxt in (2, 10): extra += ['v_add_u32 v%d, %s, v%d' % (r, '0x10000' if nxt == 10 else '0xffff0000', r) for r in range(4, 8)]
                rd = trreads(wbuf(nxt), nxt - 2)
            if s == 18: extra += ['v_xor_b32 v%d, %d, v10' % (4 + nt, 32 * nt) for nt in range(NT)] + ['v_add_u32 v%d, s16, v%d' % (4 + nt, 4 + nt) for nt in range(NT)]
            if s == 9:
                assert 'D' not in vm and JF >= 9 * NT
                a('s_barrier')
            if nxt in (2, 10):
                for x in extra: a(x)
                extra = []
            wl = 2 <= s < 18
            order = [(s, nt, t) for nt in range(NT) for t in range(4)]
            if s > 24 - NFIN: continue
            if s == 24 - NFIN: order = [(z, nt, t) for tt in ((2, 3), (0, 1)) for z in range(s, 24) for nt in range(NT) for t in tt]
            nw = 0
            for k, (z, nt, t) in enumerate(order):
                j = z * NT + nt; wb = RF + 16 * wbuf(z)
                if j in vm:
                    n = len(vm) - 1 - vm.index(j); vm = vm[vm.index(j) + 1:]
                    a('s_waitcnt vmcnt(%d)' % n + (' lgkmcnt(0)' if wl else '')); wl = False
                r = HR + 16 * (z % 3) + 4 * nt
                c = 'v[%d:%d]' % (acc(t, nt), acc(t, nt) + 3)
                a('v_mfma_f32_16x16x32_bf16 %s, v[%d:%d], v[%d:%d], %s' % (c, wb + 4 * t, wb + 4 * t + 3, r, r + 3, '0' if (s == 0 and t >= 2) else c))
                if s == 24 - NFIN:
                    k2 = k - len(order) // 2
                    if k2 >= 0 and k2 % NFIN == 0:
                        a('ds_write_b128 v2, v[%d:%d] offset:%d' % (acc(2 + (nw & 1), nw // 2), acc(2 + (nw & 1), nw // 2) + 3, 1024 * nw)); nw += 1
                    continue
                if t == 1 and j >= 1 and j - 1 + RING < NJ:
                    a(hload(j - 1 + RING)); vm.append(j - 1 + RING)
                    if j == SA: a('s_barrier')
                elif rd and t != 3: a(rd.pop(0))
                elif rd and nt < 2: a(rd.pop(0))
                elif extra and t != 3:
                    a(extra.pop(0))
                    if extra: a(extra.pop(0))
            assert not rd
            if s == 0: self.stamp(11)
            self.stamp('s%d' % s)
        self.stamp(12)
        for x in extra: a(x)
        a('v_xor_b32 v2, 0x2000, v2')
        a('s_waitcnt lgkmcnt(0)\ns_barrier')
        self.stamp(13)
        for nt in range(NT):
            for t in range(2):
                a('ds_read_b64_tr_b16 v[%d:%d], v%d offset:%d' % (AZ + 32 + 4 * nt + 2 * t, AZ + 33 + 4 * nt + 2 * t, 4 + nt, 4160 * t))
                a('ds_read_b128 v[%d:%d], v2 offset:%d' % (acc(2 + t, nt), acc(2 + t, nt) + 3, 1024 * (2 * nt + t)))
        for nt in range(NT):
            a('s_waitcnt lgkmcnt(%d)' % (4 * (NT - 1 - nt)))
            o = HR + 4 * nt; k = acc(0, nt)
            for d in range(4): a('v_lshlrev_b32 v%d, 16, v%d\nv_and_b32 v%d, 0xffff0000, v%d' % (AZ + 2 * d, AZ + 32 + 4 * nt + d, AZ + 2 * d + 1, AZ + 32 + 4 * nt + d))
            for d in range(4): a('v_pk_add_f32 v[%d:%d], v[%d:%d], v[%d:%d]' % (k + 2 * d, k + 2 * d + 1, k + 2 * d, k + 2 * d + 1, k + 32 + 2 * d, k + 33 + 2 * d))
            for d in range(4): a('v_pk_add_f32 v[%d:%d], v[%d:%d], v[%d:%d]' % (k + 2 * d, k + 2 * d + 1, k + 2 * d, k + 2 * d + 1, AZ + 2 * d, AZ + 2 * d + 1))
            for d in range(4): a('v_cvt_pk_bf16_f32 v%d, v%d, v%d' % (o + d, k + 2 * d, k + 2 * d + 1))
            a('s_add_u32 s76, s72, %d' % (nt * 16 * 1280))
            a('v_permlane16_swap_b32 v%d, v%d\nv_permlane16_swap_b32 v%d, v%d' % (o, o + 2, o + 1, o + 3))
            a('buffer_store_dwordx4 v[%d:%d], v3, %s, s76 offen %s' % (o, o + 3, OUT_, OUTAUX))
        self.stamp(14)
        a('s_branch L_FIN')

    def sn_entry(self):
        a = self.a
        a("""s_setprio 3
        s_cmp_ge_u32 s36, 24
        s_cselect_b32 s37, 1, 0
        s_cselect_b32 s76, 3, 1
        s_cselect_b32 s77, -48, 0
        s_lshr_b32 s78, s34, 1
        s_and_b32 s78, s78, s76
        s_add_u32 s76, s37, 1
        s_lshl_b32 s76, s36, s76
        s_mul_i32 s61, s35, 80
        s_add_u32 s61, s61, s76
        s_add_u32 s61, s61, s77
        s_add_u32 s61, s61, s78
        s_mul_i32 s76, s61, 384
        v_and_b32 v7, 31, v1
        v_mul_u32_u24 v2, 12, v7
        v_add_u32 v2, s76, v2
        s_lshl_b32 s66, s61, 1
        s_and_b32 s66, s66, 0xfffc""")
        if 'nocp' not in self.opts:
            L = self.lab('CP')
            a("""s_lshl_b32 s76, s37, 3
            s_add_u32 s76, s76, s34
            s_cmp_eq_u32 s76, 12
            s_cbranch_scc0 {L}
            s_getpc_b64 s[68:69]
            {L}pc:
            s_sub_u32 s68, s68, {L}pc-{n}
            s_subb_u32 s69, s69, 0
            s_sub_u32 s76, s36, 24
            s_lshl_b32 s76, s76, 12
            v_lshl_add_u32 v7, v7, 7, s76
            v_min_u32 v7, L_END-{n}, v7
            global_load_dword v255, v7, s[68:69]
            {L}:""".format(L=L, n=NAME))
        a('s_waitcnt lgkmcnt(0)')
        for k, p in enumerate((6, 8, 10, 12)):
            a('global_load_dwordx3 v[%d:%d], v2, s[%d:%d]' % (16 + 4 * k, 18 + 4 * k, p, p + 1))
        a('s_load_dword s72, s[14:15], s66\ns_load_dword s73, s[16:17], s66')
        self.stamp('pl')
        self.srds(False)
        self.nonce0()
        a("""s_and_b32 s60, s34, 1
        s_mov_b32 s38, {t1}
        s_mov_b32 s39, {u1}
        s_cmp_eq_u32 s37, 0
        s_cselect_b32 s38, {t0}, s38
        s_cselect_b32 s39, {u0}, s39
        s_mul_i32 s76, s78, 8320
        s_add_u32 s38, s38, s76
        s_mul_i32 s76, s78, 4608
        s_add_u32 s39, s39, s76
        s_lshl_b32 s62, s35, 3
        s_add_u32 s62, s62, s36
        s_sub_u32 s62, s62, 24
        s_lshl_b32 s63, s62, 5
        s_lshl_b32 s76, s34, 2
        s_add_u32 s63, s63, s76
        s_mul_i32 s64, s63, 1280
        v_mov_b32 v14, 0
        v_mov_b32 v15, 0
        v_min_u32 v249, 59, v1
        v_lshlrev_b32 v249, 7, v249
        v_lshrrev_b32 v4, 4, v1
        v_and_b32 v5, 15, v1
        v_mul_u32_u24 v6, 1280, v4
        v_lshl_add_u32 v248, v5, 4, v6""".format(t0=L_TAB, t1=N_TAB, u0=L_U, u1=N_U))
        a('s_cmp_lt_u32 s34, 4\ns_cselect_b32 s19, %d, %d\ns_cmp_eq_u32 s37, 0\ns_cselect_b32 s19, 3, s19' % tuple(LNP))
        if XEARLY: self.xloads()
        EX = 196 + 6; a = self.a
        a("""s_xor_b32 s76, s60, 1
        s_mul_i32 s76, s76, 4160
        s_add_u32 s76, s76, s38
        v_lshl_add_u32 v{e0}, v1, 4, s76
        s_mul_i32 s76, s60, 4160
        s_add_u32 s76, s76, s38
        v_lshl_add_u32 v{e1}, v1, 4, s76
        v_mov_b32 v{e3}, s76
        s_add_u32 s76, s76, 1008
        v_lshlrev_b32 v5, 4, v1
        v_sub_u32 v{e2}, s76, v5
        v_mov_b32 v8, 0
        v_mov_b32 v9, 0
        v_mov_b32 v10, 0
        v_mov_b32 v11, 0
        v_lshl_add_u32 v6, v1, 3, s39
        ds_write_b64 v6, v[8:9]
        s_mov_b64 exec, 7
        ds_write_b128 v{e1}, v[8:11] offset:4096
        s_mov_b64 exec, -1""".format(e0=EX, e1=EX + 1, e2=EX + 2, e3=EX + 3))
    def xloads(self):
        a = self.a
        Lx = self.lab('NX')
        a('s_cmp_eq_u32 s37, 0\ns_cbranch_scc1 %s' % Lx)
        for i in range(5): a('buffer_load_dwordx4 v[%d:%d], v248, %s, s64 offen offset:%d' % (XI + 4 * i, XI + 4 * i + 3, X_, 256 * i))
        a('%s:' % Lx)
    def cmul(self, d, x, w):
        return ['v_pk_mul_f32 v[%d:%d], v[%d:%d], v[%d:%d] op_sel:[1,1] op_sel_hi:[0,1] neg_lo:[0,1]' % (d[0], d[1], x[0], x[1], w[0], w[1]),
                'v_pk_fma_f32 v[%d:%d], v[%d:%d], v[%d:%d], v[%d:%d] op_sel_hi:[1,0,1]' % (d[0], d[1], x[0], x[1], w[0], w[1], d[0], d[1])]
    def scode(self):
        a = self.a
        tag = 'S'
        SELB, SELA, KA = 32, 40, 52
        FRG = 68
        PB, PA = 68, 84
        DB, DA = 100, 132
        FB, FA2 = 164, 180
        VV = 196
        DT, D2, SC1, SC2 = 48, 49, 50, 51
        a("""v_lshrrev_b32 v3, 5, v1
        v_cmp_eq_u32 s[74:75], 1, v3
        v_bfe_u32 v4, v1, 4, 1
        v_and_b32 v5, 15, v1
        v_cmp_eq_u32 vcc, v3, v4
        v_cndmask_b32 v5, 64, v5, vcc
        v_and_b32 v6, 3, v1
        v_bfe_u32 v7, v1, 3, 2
        v_lshl_add_u32 v6, v7, 2, v6
        v_add_u32 v7, 1, v6
        v_and_b32 v7, 12, v7
        v_and_b32 v8, 9, v6
        v_cmp_eq_u32 vcc, 1, v8
        s_and_b64 vcc, vcc, s[74:75]
        v_cndmask_b32 v6, v6, v7, vcc
        v_bfe_u32 v4, v1, 2, 1
        v_cmp_eq_u32 vcc, v3, v4
        v_cndmask_b32 v6, 64, v6, vcc
        v_mov_b32 v9, 0x3f80""")
        for v, sel in ((5, SELB), (6, SELA)):
            a('v_and_b32 v7, 1, v{v}\nv_lshlrev_b32 v7, 4, v7\nv_lshlrev_b32 v7, v7, v9\nv_lshrrev_b32 v8, 1, v{v}'.format(v=v))
            for d in range(0, 8, 2):
                a('v_cmp_eq_u32 vcc, %d, v8\nv_cmp_eq_u32 s[76:77], %d, v8\nv_nop\nv_cndmask_b32 v%d, 0, v7, vcc\nv_cndmask_b32 v%d, 0, v7, s[76:77]' % (d, d + 1, sel + d, sel + d + 1))
        EX = VV + 6
        a("""v_mov_b32 v4, 0x41000000
        v_mov_b32 v5, 0x43000000
        v_cndmask_b32 v{s1}, v4, v5, s[74:75]
        v_mov_b32 v5, 0x43800000
        v_cndmask_b32 v{s2}, 1.0, v5, s[74:75]
        s_and_b32 s76, s61, 1
        s_xor_b32 s76, s76, 1
        s_lshl_b32 s76, s76, 4
        s_mul_i32 s77, s60, 0x02020000
        s_add_u32 s77, s77, 0x01000c0c
        s_waitcnt lgkmcnt(0)
        {bp}
        s_lshl_b32 s72, s72, s76
        s_and_b32 s72, s72, 0xffff0000
        s_lshl_b32 s73, s73, s76
        s_and_b32 s73, s73, 0xffff0000
        v_mov_b32 v{dt}, s72
        v_mul_f32 v{dt}, {l2e}, v{dt}
        v_exp_f32 v{dt}, v{dt}
        v_mov_b32 v31, s73
        v_cvt_pk_bf16_f32 v{dt}, v{dt}, v{dt}
        v_lshlrev_b32 v{dt}, 16, v{dt}
        v_add_f32 v{d2}, v{dt}, v{dt}""".format(bp=self.nonce2(), s1=SC1, s2=SC2, dt=DT, d2=D2, l2e=f32(LOG2E)))
        a('v_cmp_eq_u32 vcc, 0, v1\nv_cndmask_b32 v31, 0, v31, vcc')
        self.stamp('a0')
        Ls = self.lab('NG'); Lx = self.lab('NX')
        if not XEARLY: self.xloads()
        a('s_setprio %d\ns_cmp_eq_u32 s37, 0\ns_cbranch_scc1 %s\ns_waitcnt vmcnt(5)\ns_branch %s\n%s:\ns_waitcnt vmcnt(0)\n%s:' % (2 * KPRIO, Lx, Ls, Lx, Ls))
        self.stamp(2)
        for k in range(4):
            for p in range(3):
                r = 16 + 4 * k + p
                a('v_perm_b32 v%d, v%d, v%d, s77' % (r, r, r))
        W8, W1, W5 = (VV, VV + 1), (VV + 2, VV + 3), (VV + 4, VV + 5)
        U = VV + 12
        XA = VV + 16
        def setup(p):
            l = """v_mul_f32 v4, {l2e}, v{la}
            v_exp_f32 v4, v4
            v_mul_f32 v5, v{ai}, v{dt}
            v_cvt_pk_bf16_f32 v4, v4, v4
            v_mul_f32 v5, {ci}, v5
            v_lshlrev_b32 v4, 16, v4
            v_mul_f32 v7, v5, v{s1}
            v_mul_f32 v4, v4, v{dt}
            v_mul_f32 v9, v5, v{s2}
            v_mul_f32 v4, {cr}, v4
            v_rndne_f32 v10, v7
            v_rndne_f32 v11, v9
            v_mul_f32 v6, v4, v{s1}
            v_mul_f32 v8, v4, v{s2}
            v_sub_f32 v7, v7, v10
            v_sub_f32 v9, v11, v9
            v_exp_f32 v6, v6
            v_exp_f32 v8, v8
            v_sin_f32 v10, v7
            v_cos_f32 v11, v7
            v_sin_f32 v12, v9
            v_cos_f32 v13, v9
            v_mul_f32 v{w8i}, v10, v6
            v_mul_f32 v{w8r}, v11, v6
            v_mul_f32 v{w1i}, v12, v8
            v_mul_f32 v{w1r}, v13, v8
            v_mul_f32 v{u1}, v10, v6
            v_mul_f32 v{u0}, v11, v6
            v_mul_f32 v{u3}, v12, v8
            v_mul_f32 v{u2}, v13, v8
            v_mul_f32 v4, v{cre}, v{d2}
            v_mul_f32 v5, v{cim}, v{d2}
            v_permlane32_swap_b32 v{w8i}, v{u1}
            v_permlane32_swap_b32 v{w8r}, v{u0}
            v_permlane32_swap_b32 v{w1i}, v{u3}
            v_permlane32_swap_b32 v{w1r}, v{u2}
            v_cndmask_b32 v{e0}, 1.0, v{u0}, s[74:75]
            v_cndmask_b32 v{e1}, 0, v{u1}, s[74:75]
            v_cndmask_b32 v6, 1.0, v{u2}, s[74:75]
            v_cndmask_b32 v7, 0, v{u3}, s[74:75]
            v_mul_f32 v{w5r}, v{u2}, v{u2}
            v_add_f32 v8, v{u2}, v{u2}
            v_fma_f32 v{w5r}, -v{u3}, v{u3}, v{w5r}
            v_mul_f32 v{w5i}, v8, v{u3}
            v_mul_f32 v{g0}, v4, v6
            v_mul_f32 v{g1}, v4, v7
            v_fmac_f32 v{g0}, v5, v7
            v_fma_f32 v{g1}, -v5, v6, v{g1}""".format(l2e=f32(LOG2E), la=16 + p, ai=20 + p, cre=24 + p, cim=28 + p, dt=DT, d2=D2, s1=SC1, s2=SC2,
                ci=f32(1 / (2 * math.pi)), cr=f32(-LOG2E), w8i=W8[1], w8r=W8[0], w1i=W1[1], w1r=W1[0], w5i=W5[1], w5r=W5[0],
                u0=U, u1=U + 1, u2=U + 2, u3=U + 3, e0=XA, e1=XA + 1, g0=XA + 4, g1=XA + 5)
            return [x.strip() for x in l.split('\n')]
        def pack(P, v, x0, x1):
            return ['v_cvt_pk_bf16_f32 v%d, v%d, v%d' % (P + v // 2, x0[0], x1[0]), 'v_cvt_pk_bf16_f32 v%d, v%d, v%d' % (P + 8 + v // 2, x0[1], x1[1])]
        def chainB():
            l = []; r = [(XA, XA + 1), (XA + 2, XA + 3)]
            for v in range(1, 16):
                l += self.cmul(r[v & 1], r[(v - 1) & 1], W8)
                if v & 1: l += pack(PB, v, r[0], r[1])
            return l
        def chainA():
            l = []; reg = {v: (XA + 4 + 2 * k, XA + 5 + 2 * k) for v, k in enumerate([0, 3, 4, 3, 1, 3, 4, 3, 2, 3, 4, 0, 1, 2, 3, 4])}
            src = {9: 0, 10: 4, 11: 8, 12: 9, 13: 11, 14: 12, 15: 13}
            for v in range(1, 16):
                l += self.cmul(reg[v], reg[v - 1] if v < 9 else reg[src[v]], W1 if v < 9 else W5)
                if v & 1: l += pack(PA, v, reg[v - 1], reg[v])
            return l
        def transp(D, P, SEL_):
            l = []
            for sg in range(2):
                for c in range(2):
                    d = 'v[%d:%d]' % (D + 16 * c, D + 16 * c + 15)
                    l.append('v_mfma_f32_32x32x16_bf16 %s, v[%d:%d], v[%d:%d], %s' % (d, P + 8 * c + 4 * sg, P + 8 * c + 4 * sg + 3, SEL_ + 4 * sg, SEL_ + 4 * sg + 3, '0' if sg == 0 else d))
            return l
        def repack(F, D): return ['v_cvt_pk_bf16_f32 v%d, v%d, v%d' % (F + i, D + 2 * i, D + 2 * i + 1) for i in range(16)]
        def mf2(first):
            k = 'v[%d:%d]' % (KA, KA + 15)
            return ['v_mfma_f32_32x32x16_bf16 %s, v[%d:%d], v[%d:%d], %s' % (k, FA2 + 4 * i, FA2 + 4 * i + 3, FB + 4 * i, FB + 4 * i + 3, '0' if (first and i == 0) else k) for i in range(4)]
        hook = 's_cmp_eq_u32 s37, 0\ns_cbranch_scc0 L_LN\nL_LNR:'
        if PK:
            seq = setup(0)
            for p in range(3):
                seq += interleave(chainB(), chainA())
                if p in LNP: seq.append('s_cmp_eq_u32 s19, %d\ns_cbranch_scc1 L_LN\nL_LNR%d:' % (p, p)); iln = len(seq)
                if p == 2 and 0 in SB: seq.append('s_cmp_eq_u32 s37, 0\ns_cbranch_scc0 {L}\ns_barrier\n{L}:'.format(L=self.lab('NB')))
                nx = setup(p + 1) if p < 2 else []
                tb, ta, rb, ra, m2 = transp(DB, PB, SELB), transp(DA, PA, SELA), repack(FB, DB), repack(FA2, DA), mf2(p == 0)
                order = [tb[0], tb[2], ta[0], ta[2], tb[1], tb[3], ta[1], ta[3]]
                h = len(nx) // 2
                seq += interleave(order[:5], nx[:h], per=6)
                seq += interleave(order[5:], rb[:8] + ra[:8], per=6)
                seq += interleave(m2[:2], nx[h:h + 6] + rb[8:] + ra[8:], per=6)
                seq += interleave(m2[2:], nx[h + 6:], per=6)
        if 'nok' in self.opts: a('s_cmp_eq_u32 s37, 0\ns_cbranch_scc1 L_NOK')
        nb = 0; n = len(seq); xh = False
        for i, x in enumerate(seq):
            if not xh and i >= iln + XHOOK * (n - iln):
                self.xhook(); xh = True
            for tp in TOUCH:
                if i == iln + int(tp * (n - iln)):
                    L = self.lab('TC')
                    a('s_cmp_eq_u32 s37, 0\ns_cbranch_scc1 %s' % L); self.touch(); a('%s:' % L)
            a(x)
        if 'nok' in self.opts: a('s_nop 15\nL_NOK:')
        self.stamp(3)
        if 1 in SB: a('s_cmp_eq_u32 s37, 0\ns_cbranch_scc0 {L}\ns_barrier\n{L}:'.format(L=self.lab('NB')))
        CA, CB = 176, 180
        a("""v_and_b32 v9, 15, v1
        v_lshrrev_b32 v10, 4, v1
        v_and_b32 v11, 1, v1
        v_xor_b32 v11, 1, v11
        v_mul_u32_u24 v11, 4162, v11
        v_lshl_add_u32 v11, v10, 4, v11
        v_lshlrev_b32 v12, 1, v9
        v_sub_u32 v11, v11, v12
        s_lshl_b32 s76, s60, 8
        s_sub_u32 s76, s38, s76
        s_add_u32 s76, s76, %d
        v_add_u32 v%d, s76, v11""" % (2 * (2047 - 16) - 512 - 192, CA))
        for p in range(1, 4): a('v_add_u32 v%d, %d, v%d' % (CA + p, -1024 * p, CA))
        a("""v_lshlrev_b32 v9, 5, v9
        v_lshl_add_u32 v9, v10, 4, v9
        s_lshl_b32 s76, s60, 8
        s_sub_u32 s76, s39, s76
        s_add_u32 s76, s76, %d
        v_add_u32 v%d, s76, v9""" % (512 - 32 - 192, CB))
        a("""s_lshr_b32 s76, s61, 2
        s_lshl_b32 s76, s76, 14
        s_and_b32 s77, s61, 3
        s_lshl_b32 s77, s77, 4
        s_add_u32 s76, s76, s77
        s_lshl_b32 s77, s60, 13
        s_add_u32 s26, s76, s77
        v_lshlrev_b32 v181, 6, v1
        s_lshl_b32 s77, s60, 11
        s_add_u32 s77, s77, s39
        s_add_u32 s27, s77, 512
        s_and_b32 s3, s34, 3
        v_lshlrev_b32 v182, 4, v1
        s_mov_b32 s20, %d""" % FX)
        xld = 'buffer_load_dword v183, v182, %s, s20 offen sc1' % WS_; xchk = 'v_cmp_ne_u32 vcc, s21, v183'
        udma = """s_mov_b32 m0, s27
        s_add_u32 s77, s26, 3072
        buffer_load_dwordx4 v181, {ws}, s26 offen sc1 lds
        buffer_load_dwordx4 v181, {ws}, s77 offen offset:1024 sc1 lds""".format(ws=WS_)
        Lg = self.lab('NG'); Lw = self.lab('NW'); Lx = self.lab('NX'); Lv = self.lab('NV')
        a('s_cmp_eq_u32 s37, 0\ns_cbranch_scc0 %s\ns_setprio 0' % Lg)
        self.g2_offsets_s()
        self.w2_voff(14, 3, 13)
        a("""s_lshl_b32 s76, s62, 7
        s_lshl_b32 s77, s3, 5
        s_add_u32 s76, s76, s77
        s_mul_i32 s16, s76, 1280
        s_min_u32 s76, s63, 9
        s_lshl_b32 s76, s76, 7
        s_add_u32 s16, s16, s76
        v_lshrrev_b32 v9, 3, v1
        v_mul_u32_u24 v9, 1280, v9
        v_lshrrev_b32 v10, 4, v1
        v_xor_b32 v10, v10, v1
        v_and_b32 v10, 7, v10
        v_lshl_add_u32 v9, v10, 4, v9
        v_xor_b32 v10, 64, v9
        s_lshl_b32 s76, s3, 12
        s_add_u32 m0, s76, 98304""")
        for k in range(len(SB), 9):
            if k == 7: a('s_waitcnt vmcnt(0)')
            a('s_barrier')
            i = k - XST
            if 0 <= i < 4: a('s_add_u32 s76, s16, %d\nbuffer_load_dwordx4 v%d, %s, s76 offen offset:%d lds' % (i * (8 * 1280 - 1024), 9 + (i & 1), X_, 1024 * i))
        a('s_cmp_lt_u32 s36, 20\ns_cbranch_scc0 %s' % Lv)
        slot_step = dict([(8 + k, s) for k, s in enumerate([0, 1, 18, 19, 20, 21, 22, 23])] + [(k, 2 + k) for k in range(8)])
        dm = self.w2_round([(slot_step[k], k) for k in [12, 13, 14, 15, 8, 9, 10, 11, 2, 3, 4, 5, 0, 1, 6, 7]], 14)
        assert RB8 <= 12 and RB9 <= 24
        if 'nodma' in self.opts: dm = ['s_nop 0'] * 32
        for x in dm[:RB8]: a(x)
        a('s_barrier')
        for x in dm[RB8:RB9]: a(x)
        a('s_barrier')
        for x in dm[RB9:32 - NLATE]: a(x)
        assert RWAIT <= 16 - NLATE
        a('s_waitcnt vmcnt(%d)\ns_branch %s\n%s:\ns_barrier\ns_barrier\n%s:' % (RWAIT, Lg, Lv, Lg))
        self.stamp('r0')
        if B1E == 1: a('s_barrier')
        a('s_setprio %d' % (2 * TPRIO))
        a(xld)
        for k in range(4): a('ds_write_b128 v%d, v[%d:%d] offset:%d' % (EX, KA + 4 * k, KA + 4 * k + 3, 1024 * k))
        a('s_mov_b64 exec, 1\nds_write_b32 v%d, v%d offset:4128\ns_mov_b64 exec, -1' % (EX, SC1))
        V = lambda r: KA + r
        a('v_add_f32 v{v0}, v{v0}, v31\nv_and_b32 v5, 1, v1\nv_cmp_eq_u32 vcc, 0, v5'.format(v0=V(0)))
        Lp = self.lab('XP'); Lq = self.lab('XQ')
        a('s_mov_b32 s79, 0\n%s:\nds_read_b32 v4, v%d offset:4128' % (Lp, EX + 3))
        for k in range(4): a('ds_read_b128 v[%d:%d], v%d offset:%d' % (FRG + 4 * k, FRG + 4 * k + 3, EX + 1, 1024 * k))
        a('s_add_u32 s79, s79, 1\ns_waitcnt lgkmcnt(4)\nv_readfirstlane_b32 s76, v4\ns_cmp_lg_u32 s76, 0\ns_cbranch_scc1 %s\ns_cmp_gt_u32 s79, %d\ns_cbranch_scc0 %s\n%s:' % (Lq, 64 * POLLMAX, Lp, Lq))
        self.stamp(4)
        for k in range(4):
            a('s_waitcnt lgkmcnt(%d)' % (3 - k))
            for r in range(4 * k, 4 * k + 4): a('v_add_f32 v%d, v%d, v%d' % (KA + r, KA + r, FRG + r))
        a("""v_cndmask_b32 v{m0}, v{v13}, v{v12}, vcc
        v_cndmask_b32 v{m1}, v{v15}, v{v14}, vcc
        s_cmp_eq_u32 s60, 0
        s_cbranch_scc0 L{t}_T1""".format(m0=FRG + 16, m1=FRG + 17, v12=V(12), v13=V(13), v14=V(14), v15=V(15), t=tag))
        def table(c):
            lv = [([V(o) for o in range(9)], 3072), ([V(9)] * 3 + [V(10)] * 3 + [V(11)] * 3, 2048),
                  ([V(12)] * 4 + [FRG + 16] + [V(13)] * 4, 1024), ([V(14)] * 4 + [FRG + 17] + [V(15)] * 4, 0)]
            for n, (t, off) in enumerate(lv):
                for d in range(4):
                    a('v_cvt_pk_bf16_f32 v%d, v%d, v%d' % (FRG + 4 * n + d, t[7 + c - 2 * d], t[6 + c - 2 * d]))
                a('ds_write_b128 v%d, v[%d:%d] offset:%d' % (EX + 2, FRG + 4 * n, FRG + 4 * n + 3, off))
        table(0)
        a('s_branch L%s_T2\nL%s_T1:' % (tag, tag))
        table(1)
        a('v_cvt_pk_bf16_f32 v8, v%d, 0\ns_mov_b64 exec, 1\nds_write_b32 v%d, v8 offset:4096\ns_mov_b64 exec, -1\nL%s_T2:' % (V(0), EX + 1, tag))
        self.stamp(5)
        Lok = self.lab('OK')
        if B1E == 0: a('s_barrier')
        a('s_setprio 0\ns_waitcnt vmcnt(0)\n%s\ns_cbranch_vccz %s' % (xchk, Lok))
        self.poll(xld, xchk)
        a('%s:' % Lok)
        self.stamp(6)
        a(udma)
        if B1E == 2: a('s_barrier')
        if NLATE:
            a('s_cmp_lt_u32 s36, 20\ns_cbranch_scc0 %s' % Lw)
            for i, x in enumerate(dm[32 - NLATE:]):
                if THR is not None and i % 2 == 0: a('s_waitcnt vmcnt(%d)' % THR)
                a(x)
            a('s_waitcnt vmcnt(%d)\ns_branch %s\n%s:' % (NLATE, Lx, Lw))
        a('s_waitcnt vmcnt(0)\n%s:' % Lx)
        self.stamp('R')
        assert NLATE == 0
        a('s_setprio %d\ns_waitcnt lgkmcnt(0)\ns_barrier' % (2 * CPRIO))
        self.stamp(7)
        YA = 16; FA_ = [48, 112]
        def creads(tt):
            f = FA_[tt & 1]; l = []
            for i in range(8):
                o = (128 if i % 2 == 0 else 0) + 16 * (3 - tt)
                ra = ['ds_read2_b32 v[%d:%d], v%d offset0:%d offset1:%d' % (f + 4 * i + 2 * e, f + 4 * i + 2 * e + 1, CA + i // 2, o + 2 * e, o + 2 * e + 1) for e in range(2)]
                rb = 'ds_read_b128 v[%d:%d], v%d offset:%d' % (f + 32 + 4 * i, f + 35 + 4 * i, CB, 512 * i + 64 * (3 - tt))
                l += ra + [rb]
            return l
        def cm(tt, i, j, first):
            f = FA_[tt & 1]; c = 'v[%d:%d]' % (YA + 4 * (i + j), YA + 4 * (i + j) + 3)
            return 'v_mfma_f32_16x16x32_bf16 %s, v[%d:%d], v[%d:%d], %s' % (c, f + 4 * i, f + 4 * i + 3, f + 32 + 4 * j, f + 35 + 4 * j, '0' if first else c)
        r0 = creads(0)
        for x in r0[:12]: a(x)
        for tt in range(4):
            order = []
            for k in range(8):
                order += [(k, i, j) for i in range(k + 1) for j in range(k + 1) if max(i, j) == k and i + j <= 7]
            seen = set()
            nxt = (r0[12:] if tt == 0 else []) + (creads(tt + 1) if tt < 3 else [])
            issued = 12 if tt == 0 else 24
            extra = 0
            lastk = -1
            if tt > 0: a('s_waitcnt lgkmcnt(0)')
            if tt == 3: a('s_mov_b64 exec, 1\nds_write_b32 v%d, v%d offset:4132\ns_mov_b64 exec, -1\ns_nop 3' % (EX, EX))
            for (k, i, j) in order:
                if tt == 0 and k != lastk:
                    while issued < 3 * (k + 1): a(nxt.pop(0)); issued += 1
                    a('s_waitcnt lgkmcnt(%d)' % min(15, issued + extra - 3 * (k + 1)))
                    lastk = k
                a(cm(tt, i, j, tt == 0 and (i + j) not in seen)); seen.add(i + j)
                if nxt:
                    a(nxt.pop(0))
                    if issued < 24: issued += 1
                    else: extra += 1
            for x in nxt: a(x)
        self.stamp(8)
        def lflag(off): a('s_mov_b64 exec, 1\nds_write_b32 v%d, v%d offset:%d\ns_mov_b64 exec, -1' % (EX, EX, off))
        def lwait(off, extra):
            Lp = self.lab('XP'); Lq = self.lab('XQ')
            a('s_mov_b32 s79, 0\n%s:\nds_read_b32 v4, v%d offset:%d' % (Lp, EX + 3, off))
            for x in extra: a(x)
            a('s_add_u32 s79, s79, 1\ns_waitcnt lgkmcnt(%d)\nv_readfirstlane_b32 s76, v4\ns_cmp_lg_u32 s76, 0\ns_cbranch_scc1 %s\ns_cmp_gt_u32 s79, %d\ns_cbranch_scc0 %s\n%s:' % (len(extra), Lq, 64 * POLLMAX, Lp, Lq))
        lwait(4132, [])
        a('s_nop 3\ns_cmp_eq_u32 s60, 0\ns_cbranch_scc0 L%s_R1' % tag)
        for k in range(4): a('ds_write_b128 v%d, v[%d:%d] offset:%d' % (EX, YA + 16 + 4 * k, YA + 19 + 4 * k, 1024 * k))
        lflag(4136)
        a('s_branch L%s_R2\nL%s_R1:' % (tag, tag))
        for k in range(4): a('ds_write_b128 v%d, v[%d:%d] offset:%d' % (EX, YA + 4 * k, YA + 3 + 4 * k, 1024 * k))
        lflag(4136)
        for k in range(16): a('v_mov_b32 v%d, v%d' % (YA + k, YA + 16 + k))
        a('L%s_R2:' % tag)
        lwait(4136, ['ds_read_b128 v[%d:%d], v%d offset:%d' % (48 + 4 * k, 51 + 4 * k, EX + 1, 1024 * k) for k in range(4)])
        a('''s_lshl_b32 s76, s61, 12
        s_lshl_b32 s77, s60, 11
        s_add_u32 s76, s76, s77
        s_add_u32 s76, s76, %d
        v_lshlrev_b32 v4, 4, v1''' % AA)
        for p in range(2):
            a('s_waitcnt lgkmcnt(%d)' % (2 - 2 * p))
            for k in range(8 * p, 8 * p + 8): a('v_add_f32 v%d, v%d, v%d' % (YA + k, YA + k, 48 + k))
            o = 64 + 4 * p
            for d in range(4): a('v_cvt_pk_bf16_f32 v%d, v%d, v%d' % (o + d, YA + 8 * p + 2 * d, YA + 8 * p + 2 * d + 1))
            a('v_permlane16_swap_b32 v%d, v%d\nv_permlane16_swap_b32 v%d, v%d' % (o, o + 2, o + 1, o + 3))
            a('buffer_store_dwordx4 v[%d:%d], v4, %s, s76 offen offset:%d sc1' % (o, o + 3, WS_, 1024 * p))
        self.stamp(9)
        a('s_setprio 0')
        a('s_mul_i32 s76, s60, 640\ns_add_u32 s76, s76, s61\ns_lshl_b32 s76, s76, 7\ns_add_u32 s76, s76, %d' % FA)
        for x in self.flag_regs(8): a(x)
        a('s_waitcnt vmcnt(0)'); a(self.flag(8, 76))
        self.stamp(10)
        Le = self.lab('EP')
        a('''s_lshl_b32 s76, s34, 8
        s_add_u32 s76, s76, s2
        s_cmp_eq_u32 s76, 192
        s_cbranch_scc0 {L}
        v_lshrrev_b32 v2, 2, v1
        v_mul_u32_u24 v2, 6144, v2
        v_and_b32 v3, 3, v1
        v_mul_u32_u24 v3, 1536, v3
        v_add_u32 v2, v3, v2
        s_mov_b32 s20, {fh}'''.format(L=Le, fh=FH))
        ld = '\n'.join('buffer_load_dword v%d, v2, %s, s20 offen offset:%d sc1' % (3 + i, WS_, 512 * i) for i in range(3))
        self.poll(ld, 'v_cmp_ne_u32 vcc, s21, v3\nv_cmp_ne_u32 s[76:77], s21, v4\nv_cmp_ne_u32 s[16:17], s21, v5\ns_or_b64 vcc, vcc, s[76:77]\ns_or_b64 vcc, vcc, s[16:17]')
        a('''s_mov_b32 s20, {ep}
        s_mov_b64 exec, 1
        buffer_store_dword v8, off, {ws}, s20 sc1
        s_branch L_FIN
        {L}:'''.format(L=Le, ep=EP, ws=WS_))
        a('s_cmp_lt_u32 s36, 20\ns_cbranch_scc0 L_FIN')
        a('s_mul_i32 s20, s62, 6144\ns_mul_i32 s77, s3, 1536\ns_add_u32 s20, s20, s77\ns_add_u32 s20, s20, %d' % (FH + 32 * 3072))
        self.spoll(12, 20)
        self.stamp('h1')
        a('s_barrier')
        a('''s_lshl_b32 s60, s63, 6
        s_lshl_b32 s76, s3, 4
        s_add_u32 s60, s60, s76
        s_lshr_b32 s76, s35, 2
        s_mul_i32 s76, s76, 640
        s_add_u32 s76, s76, s60
        s_lshl_b32 s76, s76, 7
        s_add_u32 s61, s76, {fa}
        v_and_b32 v4, 15, v1
        v_lshrrev_b32 v7, 4, v1
        v_lshlrev_b32 v8, 1, v7
        v_xor_b32 v8, v8, v4
        v_lshrrev_b32 v9, 1, v8
        v_lshlrev_b32 v9, 4, v9
        v_and_b32 v8, 1, v8
        v_lshl_add_u32 v9, v8, 9, v9
        v_lshl_add_u32 v9, v7, 12, v9
        v_xor_b32 v10, 64, v9
        s_lshl_b32 s60, s60, 12
        s_lshr_b32 s76, s35, 1
        s_lshl_b32 s76, s76, 10
        s_add_u32 s60, s60, s76
        s_and_b32 s76, s35, 1
        s_lshl_b32 s76, s76, 8
        s_add_u32 s60, s60, s76
        s_and_b32 s76, s62, 1
        s_lshl_b32 s76, s76, 7
        s_add_u32 s60, s60, s76
        s_add_u32 s60, s60, {aa}
        s_and_b32 s76, s3, 1
        s_mul_i32 s76, s76, 4160
        s_add_u32 m0, s76, s38'''.format(fa=FA, aa=AA))
        self.spoll(16, 61)
        self.stamp(11)
        a('s_barrier')
        for i in range(4):
            a('s_add_u32 s76, s60, %d\nbuffer_load_dwordx4 v%d, %s, s76 offen offset:%d sc1 lds' % (i * (16384 - 1024), 9 + (i & 1), WS_, 1024 * i))
        a('s_waitcnt vmcnt(0)')
        self.stamp(12)
        a('s_barrier\ns_branch L_FIN')
    def touch(self):
        self.a('s_and_b32 s76, s71, 3\ns_mul_i32 s76, s76, %d\ns_add_u32 s76, s76, s70\nbuffer_load_dword v255, v249, %s, s76 offen\ns_add_u32 s71, s71, 1' % (64 * 7680, W2_))
    def xhook(self):
        a = self.a
        L = self.lab('NH')
        a('s_cmp_eq_u32 s37, 0\ns_cbranch_scc1 %s' % L)
        a("""s_waitcnt vmcnt(0)
        s_barrier
        s_cmp_eq_u32 s34, 0
        s_cbranch_scc0 {L}
        s_lshl_b32 s76, s62, 4
        s_add_u32 s76, s76, {fx}""".format(L=L, fx=FX))
        for x in self.flag_regs(250): a(x)
        a(self.flag(250, 76).replace('0xff', '1')); a('%s:' % L)
        self.stamp('xf')
    def g2_offsets_s(self):
        self.a('''s_cmp_ge_u32 s36, 10
        s_cselect_b32 s62, 1, 0
        s_mul_i32 s63, s62, 10
        s_sub_u32 s63, s36, s63
        s_lshl_b32 s66, s35, 1
        s_add_u32 s62, s62, s66''')
        self.g2_offsets()
    def lnblock(self):
        a = self.a
        XF = 100; T0 = 140
        a('L_LN:')
        self.stamp('ln')
        a('''s_sub_u32 s70, s36, 24
        s_lshl_b32 s70, s70, 3
        s_add_u32 s70, s70, s34
        s_mul_i32 s70, s70, 7680
        s_mov_b32 s71, s35''')
        for k in range(TLN[0]): self.touch()
        a('''        v_lshrrev_b32 v4, 4, v1
        v_and_b32 v5, 15, v1
        s_and_b32 s76, s34, 1
        s_lshl_b32 s76, s76, 4
        s_lshr_b32 s77, s34, 1
        s_lshl_b32 s77, s77, 2
        s_add_u32 s76, s76, s77
        v_add_u32 v6, s76, v4
        v_mul_u32_u24 v6, {ts}, v6
        v_lshl_add_u32 v6, v5, 4, v6
        v_and_b32 v7, 3, v1
        v_bfe_u32 v8, v1, 2, 2
        v_lshl_add_u32 v7, v7, 2, v8
        v_mul_u32_u24 v7, {ts}, v7
        v_lshl_add_u32 v7, v4, 3, v7
        s_mul_i32 s76, s34, 160
        v_add_u32 v7, s76, v7
        v_lshlrev_b32 v8, 14, v4
        v_lshl_add_u32 v8, v5, 4, v8
        s_mul_i32 s65, s34, {cq}
        s_lshl_b32 s76, s62, 8
        s_add_u32 s65, s65, s76
        v_mov_b32 v10, 0
        v_mov_b32 v11, 0
        v_mov_b32 v12, 0
        v_mov_b32 v13, 0'''.format(ts=TSTR, cq=20 * 16384, t8=T0 + 8, t9=T0 + 9))
        for i in range(5):
            a('s_waitcnt vmcnt(%d)' % (4 + TLN[0] - i))
            for d in range(4):
                s = XI + 4 * i + d; f = XF + 8 * i + 2 * d
                a('''v_lshlrev_b32 v{f}, 16, v{s}
                v_and_b32 v{f1}, 0xffff0000, v{s}
                v_pk_add_f32 v[10:11], v[10:11], v[{f}:{f1}]
                v_pk_fma_f32 v[12:13], v[{f}:{f1}], v[{f}:{f1}], v[12:13]'''.format(f=f, f1=f + 1, s=s))
        self.stamp(1)
        a('v_add_f32 v10, v10, v11\nv_add_f32 v12, v12, v13')
        for sh in (8, 4, 2, 1):
            a('v_add_f32 v10, v10, v10 row_ror:%d\nv_add_f32 v12, v12, v12 row_ror:%d' % (sh, sh))
        rb = lambda d, s: 'v_cvt_pk_bf16_f32 v%d, v%d, v%d\nv_lshlrev_b32 v%d, 16, v%d' % (d, s, s, d, d)
        EPS = f32(1e-5)
        a('v_mul_f32 v10, {c}, v10\nv_mul_f32 v12, {c}, v12\nv_fma_f32 v12, -v10, v10, v12\nv_max_f32 v12, 0, v12'.format(c=f32(1.0 / 640)))
        a(rb(11, 10))
        a(rb(13, 12)); a('v_add_f32 v13, %s, v13' % EPS); a(rb(13, 13)); a('v_sqrt_f32 v13, v13'); a(rb(13, 13))
        a('v_rcp_f32 v14, v13\nv_mul_f32 v15, v11, v14\nv_sub_f32 v15, 0, v15')
        for i in range(5):
            for d in range(4):
                s = XI + 4 * i + d; f = XF + 8 * i + 2 * d
                a('v_pk_fma_f32 v[{f}:{f1}], v[{f}:{f1}], v[14:15], v[14:15] op_sel:[0,0,1] op_sel_hi:[1,0,1]\nv_cvt_pk_bf16_f32 v{s}, v{f}, v{f1}'.format(f=f, f1=f + 1, s=s))
            a('ds_write_b128 v6, v[%d:%d] offset:%d' % (XI + 4 * i, XI + 4 * i + 3, 256 * i))
        a('v_sub_f32 v10, v10, v11\nv_mul_f32 v10, v10, v14'); a(rb(10, 10))
        a('v_mul_f32 v12, v12, v14\nv_mul_f32 v12, v12, v14'); a(rb(12, 12)); a('v_add_f32 v12, %s, v12' % EPS); a(rb(12, 12)); a('v_sqrt_f32 v12, v12'); a(rb(12, 12))
        a('v_fma_f32 v10, -v10, v13, -v11\nv_mul_f32 v12, v13, v12')
        a('''s_lshl_b32 s67, s63, 4
        s_add_u32 s67, s67, {st}
        v_lshlrev_b32 v14, 4, v4
        v_mov_b32 v11, s21
        v_mov_b32 v13, s21
        v_cmp_eq_u32 vcc, 0, v5
        s_and_saveexec_b64 s[68:69], vcc
        buffer_store_dwordx4 v[10:13], v14, {ws}, s67 offen sc1
        s_mov_b64 exec, s[68:69]'''.format(st=ST, ws=WS_))
        for k in range(TLN[1]): self.touch()
        self.stamp('l4')
        a('s_waitcnt lgkmcnt(0)\ns_barrier')
        for i in range(5):
            for e in range(2):
                a('ds_read_b64_tr_b16 v[%d:%d], v7 offset:%d' % (XI + 4 * i + 2 * e, XI + 4 * i + 2 * e + 1, 32 * i + 16 * TSTR * e))
        for i in range(5):
            a('s_waitcnt lgkmcnt(%d)\ns_add_u32 s76, s65, %d\nbuffer_store_dwordx4 v[%d:%d], v8, %s, s76 offen sc1' % (8 - 2 * i, XT + i * 4 * 16384, XI + 4 * i, XI + 4 * i + 3, WS_))
        self.stamp('xs')
        if LNP[0] != LNP[1]: a('s_cmp_eq_u32 s19, %d\ns_cbranch_scc1 L_LNR%d' % (LNP[0], LNP[0]))
        a('s_branch L_LNR%d' % LNP[1])

    def build(self):
        a = self.a
        self.prologue()
        a('s_cmp_lt_u32 s36, 24\ns_cselect_b32 s76, 4, 0\ns_cmp_lt_u32 s34, s76\ns_cbranch_scc1 L_G')
        self.sel = SEL['S']; self.sn_entry(); self.scode(); self.lnblock()
        self.sel = SEL['G']; a('L_G:'); self.gwave()
        a('L_FIN:')
        self.dump_stamps()
        for o_ in self.opts:
            if o_.startswith('pad='):
                a('''s_cmp_eq_u32 s34, 0
                s_cbranch_scc0 L_END
                s_cmp_lt_u32 s36, 20
                s_cbranch_scc0 L_END''')
                for q_ in self.opts:
                    if q_.startswith('padwg='): a('s_cmp_eq_u32 s2, %d\ns_cbranch_scc0 L_END' % int(q_[6:]))
                a('''L_PAD:
                s_memrealtime s[98:99]
                s_waitcnt lgkmcnt(0)
                s_sub_u32 s77, s98, s96
                s_cmp_lt_u32 s77, %d
                s_cbranch_scc1 L_PAD''' % int(o_[4:]))
        if 'span' in self.opts:
            a('''s_cmp_eq_u32 s34, 0
            s_cbranch_scc0 L_END
            s_waitcnt vmcnt(0)
            s_memrealtime s[98:99]
            s_memtime s[76:77]
            s_waitcnt lgkmcnt(0)
            s_not_b32 s97, s96
            s_sub_u32 s76, s76, s100
            s_sub_u32 s77, s98, s96
            s_mov_b64 exec, 1
            v_mov_b32 v0, 0
            v_mov_b32 v1, s97
            v_mov_b32 v2, s98
            v_mov_b32 v3, s96
            v_mov_b32 v4, s76
            v_mov_b32 v5, s77
            global_atomic_umax v0, v1, s[30:31]
            global_atomic_umax v0, v2, s[30:31] offset:4
            global_atomic_umax v0, v3, s[30:31] offset:8
            global_atomic_umax v0, v4, s[30:31] offset:12
            global_atomic_umax v0, v5, s[30:31] offset:16''')
        a('L_END:')
        body = a.finish()
        ref = open('parallel_sum__ssm_conv_s4d__mixer_channel_mlp__prompt.s.ref').read()
        head = ''.join(l + '\n' for l in ref.split('\n') if l.startswith(';') and '@launch' not in l)
        return head + '''; @launch grid=(256,1,1) block=(512,1,1) lds=163840
.amdgcn_target "amdgcn-amd-amdhsa--gfx950"
.text
.globl {n}
.p2align 8
.type {n},@function
{n}:
{body}    s_endpgm
.section .rodata,"a"
.p2align 6
.amdhsa_kernel {n}
  .amdhsa_next_free_vgpr 256
  .amdhsa_next_free_sgpr 102
  .amdhsa_accum_offset 256
  .amdhsa_group_segment_fixed_size 0
  .amdhsa_kernarg_size 120
  .amdhsa_user_sgpr_count 2
  .amdhsa_user_sgpr_kernarg_segment_ptr 1
  .amdhsa_system_sgpr_workgroup_id_x 1
  .amdhsa_float_denorm_mode_32 3
.end_amdhsa_kernel
'''.format(n=NAME, body=body)
if __name__ == '__main__':
    out = sys.argv[1]; opts = sys.argv[2:]
    g = G('stamps' in opts, opts); s = g.build(); open(out, 'w').write(s)
    print('wrote', out, len(s), 'bytes; nops inserted', g.a.nops)
```

```python
import sys, math, struct
sys.path.insert(0, 'work')
from asmdsl import Asm, interleave
NAME = 'parallel_sum__ssm_conv_s4d__mixer_channel_mlp__prompt_kernel'
def f32(x): return '0x%08x' % struct.unpack('<I', struct.pack('<f', x))[0]
LOG2E = math.log2(math.e)
XT, HH, AA, FL, DBG = 0x000000, 0x400000, 0xA00000, 0xD00000, 0xE00000
ST, FX, EP, FH, FA = FL, FL + 0x8000, FL + 0xC000, FL + 0x10000, FL + 0x40000
WS_BYTES = 0x1000000
XR = 131072
L_TAB, L_U, L_CS, L_ST = XR, XR + 2 * 8320, XR + 2 * 8320 + 2 * 4608, XR + 2 * 8320 + 2 * 4608 + 1024
L_NON = L_ST + 1024
VN = 27
L_AT = XR
L_RED = 0
N_T, N_TAB, N_U = 0, 49152, 49152 + 4 * 8320
TSTR = 1296
sWV, sXCD, sJ = 34, 35, 36
X_, W1_, W2_, WS_, OUT_ = 's[40:43]', 's[44:47]', 's[48:51]', 's[52:55]', 's[56:59]'
POLLMAX = 0x8000
BARPOS = [.45, .7, .9, 1.0, 1.0, 1.0, 1.0]
PPOS, NPH, B1P, RBU, B3B = 8, 16, 26, 6, 0
RB8, RB9, B1E = 10, 20, 2
FLAG0 = 30
ROT = [40, 27, 0, 0]
SPRIO = 0
FLAG1 = 14
THR = None
NOBP = 2
KPRIO = 1
LORD = [2, 3, 4, 5, 0, 1, 6, 7]
XHOOK = 0.2
TOUCH = [0.22, 0.3, 0.5]
TLN = [1, 0]
SLP = 4
XST = 3
XI = 228
NL0, NL1 = 0, 8
THR0 = None
FRONT = 0
PK = 1
LNP = [0, 0]
NLATE = 0
NFIN = 2
CPRIO = 1
PRE2 = 4
W1T = 0
SB = [1]
RWAIT = 4
TPRIO = 1
SWAP = 1
XEARLY = 1
WFIRST = 1
SA = 84
OUTAUX = ''
import os
SELS = {
 'main': {'G': [0, 'b0', 'b9', 5, 6, 7, 10, 11, 12], 'S': [0, 2, 3, 'st', 5, 6, 'R', 8, 10]},
 'start': {'G': [0, 'd0', 'd1', 'd2', 'w0', 'b0', 'b1', 'b2', 'b3'], 'S': [0, 'pl', 'a0', 2, 'ln', 'xs', 3, 4, 5]},
 'g1': {'G': [0, 'b0', 'b1', 'b2', 'b3', 'b4', 'b6', 'b8', 'b9'], 'S': [0, 2, 'xf', 3, 'st', 4, 5, 6, 'R']},
 'mid': {'G': [0, 'b9', 5, 't1', 't2', 't3', 'f0', 6, 7], 'S': [0, 3, 'r0', 4, 5, 6, 'r1', 'R', 7]},
 'ln': {'G': [0, 'b5', 'b6', 'b7', 'a8', 'b8', 'a9', 'w9', 'b9'], 'S': [0, 2, 'ln', 1, 'l4', 'xs', 'xf', 3, 'st']},
 'g2': {'G': [0, 's0', 's2', 's5', 's8', 's11', 's14', 's17', 's21'], 'S': [0, 7, 8, 9, 10, 11, 12]},
 'none': {'G': [0, 'b0', 'b2', 'b9', 7, 11, 12], 'S': [0, 2, 'xs', 3, 7, 9]},
 'end': {'G': [0, 7, 'f1', 10, 8, 9, 11, 12, 13], 'S': [0, 7, 8, 9, 10, 'h1', 11, 12]},
}
CLK = 's_memtime' if os.environ.get('CYC') else 's_memrealtime'
SEL = SELS[os.environ.get('SEL', 'main')]
SEL['N'] = SEL['S']
for _k in ('BARPOS', 'XHOOK', 'XST', 'NL0', 'NL1', 'FLAG0', 'FLAG1', 'THR', 'SLP', 'TOUCH', 'TLN', 'SA', 'OUTAUX', 'RB8', 'RB9', 'PPOS', 'NPH', 'B1P', 'RBU', 'ROT', 'NOBP', 'THR0', 'FRONT', 'PK', 'LNP', 'PRE2', 'W1T', 'SB', 'RWAIT', 'B1E', 'NLATE', 'NFIN', 'CPRIO', 'TPRIO', 'SWAP', 'XEARLY', 'WFIRST', 'KPRIO', 'SPRIO', 'B3B'):
    if os.environ.get(_k): globals()[_k] = eval(os.environ[_k])
class G:
    def __init__(self, stamps=False, opts=()):
        self.a = Asm(); self.stamps = stamps; self.nlab = 0; self.opts = set(opts); self.sel = None
        self.AMP = ([o[4:].split(',') for o in opts if o.startswith('amp=')] or [None])[0]
    def lab(self, p='L'):
        self.nlab += 1; return '%s%d' % (p, self.nlab)
    def stamp(self, k):
        if self.AMP and str(k) == self.AMP[0]: self.a('s_memrealtime s[94:95]')
        if self.AMP and str(k) == self.AMP[1]: self.a('s_memrealtime s[92:93]')
        if 'padat=%s' % k in self.opts: self.a('s_memrealtime s[96:97]')
        if self.stamps and k in self.sel:
            i = self.sel.index(k); self.a('%s s[%d:%d]' % (CLK, 80 + 2 * i, 81 + 2 * i))
    def dump_stamps(self):
        if not self.stamps: return
        a = self.a
        a('s_lshl_b32 s60, s2, 3\ns_add_u32 s60, s60, s%d\ns_lshl_b32 s60, s60, 6\ns_add_u32 s60, s60, %d' % (sWV, DBG))
        a('s_mov_b64 exec, -1\nv_mov_b32 v0, 0')
        a('s_memtime s[76:77]\n' + CLK + ' s[98:99]\ns_waitcnt lgkmcnt(0)\ns_sub_u32 s100, s76, s100')
        for k in range(11):
            a('v_mov_b32 v1, s%d\nbuffer_store_dword v1, v0, %s, s60 offen offset:%d' % (80 + 2 * k, WS_, 4 * k))
    def poll(self, load, check):
        L = self.lab('P'); E = self.lab('PE')
        self.a('s_mov_b32 s79, 0\n%s:\n%s\ns_add_u32 s79, s79, 1\ns_waitcnt vmcnt(0)\n%s\ns_cbranch_vccz %s\ns_sleep %d\ns_cmp_gt_u32 s79, %d\ns_cbranch_scc0 %s\n%s:' % (L, load, check, E, SLP, POLLMAX, L, E))
    def spoll(self, n, off):
        a = self.a
        D = list(range(64, 76)) + [16, 17, 18, 19]
        L = self.lab('SP'); E = self.lab('SE')
        a('s_add_u32 s22, s32, s%d\ns_addc_u32 s23, s33, 0\ns_mov_b32 s79, 0\n%s:' % (off, L))
        for i in range(n): a('s_load_dword s%d, s[22:23], %d glc' % (D[i], 128 * i))
        a('s_add_u32 s79, s79, 1\ns_waitcnt lgkmcnt(0)\ns_xor_b32 s76, s%d, s21' % D[0])
        for i in range(1, n): a('s_xor_b32 s77, s%d, s21\ns_or_b32 s76, s76, s77' % D[i])
        a('s_cbranch_scc0 %s\ns_sleep %d\ns_cmp_gt_u32 s79, %d\ns_cbranch_scc0 %s\n%s:' % (E, SLP, POLLMAX, L, E))
    def nonce0(self): self.a('s_mov_b32 s76, %d\ns_load_dword s21, s[32:33], s76' % EP)
    def nonce2(self): return 's_mul_i32 s21, s21, 0x9e3779b1\ns_add_u32 s21, s21, 0x7f4a7c15'
    def flag(self, v, soff):
        return 's_mov_b64 exec, 0xff\nbuffer_store_dwordx4 v[%d:%d], v%d, %s, s%d offen sc1\ns_mov_b64 exec, -1' % (v, v + 3, v + 4, WS_, soff)
    def flag_regs(self, v):
        return ['v_mov_b32 v%d, s21' % (v + i) for i in range(4)] + ['v_lshlrev_b32 v%d, 4, v1' % (v + 4)]
    def prologue(self):
        a = self.a
        a('''s_cmp_ge_u32 s2, 256
        s_cbranch_scc1 L_END
        s_load_dwordx16 s[4:19], s[0:1], 0
        s_load_dwordx8 s[20:27], s[0:1], 64
        s_load_dwordx4 s[28:31], s[0:1], 96
        s_load_dwordx2 s[32:33], s[0:1], 112''')
        if self.stamps:
            a('s_memtime s[100:101]\n' + CLK + ' s[80:81]')
            for k in range(1, 10): a('s_mov_b32 s%d, 0' % (80 + 2 * k))
        if self.AMP: a('s_memrealtime s[96:97]\ns_memrealtime s[94:95]\ns_memrealtime s[92:93]')
        if 'span' in self.opts or any(o.startswith('pad=') for o in self.opts): a('s_memrealtime s[96:97]\ns_memtime s[100:101]')
        a('''v_lshrrev_b32 v2, 6, v0
        v_and_b32 v1, 63, v0
        s_and_b32 s35, s2, 7
        v_readfirstlane_b32 s34, v2
        s_lshr_b32 s36, s2, 3
        s_xor_b32 s34, s34, %d''' % (4 if SWAP else 0))
    def srds(self, wait=True):
        self.a('''s_mov_b32 s42, %d
        s_mov_b32 s43, 0x20000
        s_mov_b32 s46, %d
        s_mov_b32 s47, 0x20000
        s_mov_b32 s50, %d
        s_mov_b32 s51, 0x20000
        s_mov_b32 s54, %d
        s_mov_b32 s55, 0x20000
        s_mov_b32 s58, %d
        s_mov_b32 s59, 0x20000''' % (2048 * 1280, 640 * 3072, 1536 * 1280, WS_BYTES, 2048 * 1280))
        if wait: self.a('s_waitcnt lgkmcnt(0)')
        self.a('''s_mov_b32 s40, s4
        s_mov_b32 s41, s5
        s_mov_b32 s44, s20
        s_mov_b32 s45, s21
        s_mov_b32 s48, s24
        s_mov_b32 s49, s25
        s_mov_b32 s52, s32
        s_mov_b32 s53, s33
        s_mov_b32 s56, s28
        s_mov_b32 s57, s29''')
        self.stamp('srd')
    def g12_ids(self):
        self.a('''s_mul_i32 s60, s36, 43
        s_lshr_b32 s60, s60, 8
        s_mul_i32 s61, s60, 6
        s_sub_u32 s61, s36, s61
        s_lshr_b32 s64, s35, 1
        s_and_b32 s65, s35, 1
        s_lshl_b32 s37, s64, 2
        s_add_u32 s37, s37, s60
        s_mul_i32 s38, s65, 6
        s_add_u32 s38, s38, s61
        s_mul_i32 s39, s60, %d
        s_lshr_b32 s39, s39, 4
        s_mul_i32 s66, s61, %d
        s_lshr_b32 s66, s66, 4
        s_add_u32 s39, s39, s66
        s_mul_i32 s66, s64, %d
        s_lshr_b32 s66, s66, 4
        s_add_u32 s39, s39, s66
        s_mul_i32 s66, s65, %d
        s_lshr_b32 s66, s66, 4
        s_add_u32 s39, s39, s66
        s_cmp_ge_u32 s39, 10
        s_cselect_b32 s66, 10, 0
        s_sub_u32 s39, s39, s66''' % tuple(ROT))
        self.a('''        s_cmp_ge_u32 s36, 10
        s_cselect_b32 s62, 1, 0
        s_mul_i32 s63, s62, 10
        s_sub_u32 s63, s36, s63
        s_lshl_b32 s66, s35, 1
        s_add_u32 s62, s62, s66''')
    def g2_offsets(self):
        a = self.a
        a('s_lshl_b32 s4, s63, 10')
        for i in range(1, 12):
            a('s_add_u32 s%d, s%d, 1024\ns_cmp_eq_u32 s%d, 12288\ns_cselect_b32 s%d, 0, s%d' % (4 + i, 3 + i, 4 + i, 4 + i, 4 + i))
    def w2_voff(self, v0, wv, t):
        self.a("""s_lshr_b32 s76, s{wv}, 1
        s_mul_i32 s76, s76, {khs}
        s_and_b32 s77, s{wv}, 1
        s_mul_i32 s77, s77, {r16}
        s_add_u32 s76, s76, s77
        s_lshl_b32 s77, s63, 7
        s_add_u32 s76, s76, s77
        v_lshrrev_b32 v{t}, 3, v1
        v_mul_u32_u24 v{v0}, 1280, v{t}
        v_lshrrev_b32 v{t}, 4, v1
        v_lshlrev_b32 v{t}, 1, v{t}
        v_xor_b32 v{t}, v{t}, v1
        v_and_b32 v{t}, 7, v{t}
        v_lshl_add_u32 v{v0}, v{t}, 4, v{v0}
        v_add_u32 v{v0}, s76, v{v0}
        v_add_u32 v{v1}, {d}, v{v0}
        s_lshl_b32 s78, s{wv}, 11""".format(wv=wv, khs=24 * 32 * 1280, r16=32 * 1280, t=t, v0=v0, v1=v0 + 1, d=8 * 1280 - 1024))
    def w2_dma(self, step, slot, v0):
        part, i = step // 12, step % 12
        return ['s_add_u32 m0, s78, %d\ns_mul_i32 s76, s%d, 80\n%sbuffer_load_dwordx4 v%d, %s, s76 offen lds' % (slot * 8192, 4 + i, 's_add_u32 s76, s76, 20480\n' if part else '', v0, W2_),
                'buffer_load_dwordx4 v%d, %s, s76 offen offset:1024 lds' % (v0 + 1, W2_)]
    def w2_round(self, units, v0, thr=None):
        l = []
        for st, sl in units:
            d = self.w2_dma(st, sl, v0)
            if thr is not None: d[0] = 's_waitcnt vmcnt(%d)\n' % thr + d[0]
            l += d
        return l
    def gwave(self):
        a = self.a
        NT = 4
        VX, VW, RX, RW = 16, 20, 24, 28
        VSR, VBA, VXR = 29, 30, 120
        FR = 32
        CS, BS = 72, 76
        AUG = 80
        VB1 = 96
        TM = 100
        VB2, VXI = 12, 240
        T, P, KC = 208, 224, 228
        TR, RF, A2, HR = 4, 16, 144, 208
        ACC = [144, 160, 176, 192]
        acc = lambda t, nt: A2 + 32 * (t >> 1) + 8 * nt + 4 * (t & 1)
        a('s_setprio 1')
        self.g12_ids()
        a("""s_and_b32 s60, s34, 1
        s_lshr_b32 s61, s34, 1""")
        a("""s_lshl_b32 s76, s37, 7
        s_lshl_b32 s77, s34, 5
        s_add_u32 s76, s76, s77
        s_mul_i32 s76, s76, 1280
        v_lshrrev_b32 v2, 3, v1
        v_mul_u32_u24 v3, 1280, v2
        v_lshrrev_b32 v4, 4, v1
        v_xor_b32 v5, v4, v1
        v_and_b32 v5, 7, v5
        v_lshl_add_u32 v6, v5, 4, v3
        v_xor_b32 v5, 4, v5
        v_lshl_add_u32 v7, v5, 4, v3
        v_add_u32 v%d, s76, v6
        v_add_u32 v7, s76, v7
        v_add_u32 v%d, %d, v7
        v_add_u32 v%d, %d, v%d
        v_add_u32 v%d, %d, v7""" % (VX, VX + 1, 8 * 1280 - 1024, VX + 2, 16 * 1280 - 2048, VX, VX + 3, 24 * 1280 - 3072))
        a("""s_mul_i32 s76, s34, %d
        s_lshl_b32 s77, s38, 8
        s_add_u32 s76, s76, s77
        v_mul_u32_u24 v3, 3072, v4
        v_lshlrev_b32 v5, 2, v4
        v_xor_b32 v5, v5, v1
        v_and_b32 v5, 15, v5
        v_lshl_add_u32 v3, v5, 4, v3
        v_add_u32 v%d, s76, v3""" % (16 * 3072, VW))
        for i in range(1, 4): a('v_add_u32 v%d, %d, v%d' % (VW + i, i * (4 * 3072 - 1024), VW))
        a('s_lshl_b32 s67, s34, 12')
        self.srds()
        self.nonce0()
        def dma(stage, wfirst=False):
            idx = stage % 3
            lx, lw = [], []
            for i in range(4):
                pre = 's_add_u32 m0, s67, %d\ns_lshl_b32 s76, s39, 7\n' % (idx * 16384) if i == 0 else ''
                lx.append(pre + 'buffer_load_dwordx4 v%d, %s, s76 offen offset:%d lds' % (VX + i, X_, 1024 * i))
                pre = 's_add_u32 m0, s67, %d\ns_mul_i32 s77, s39, %d\n' % (49152 + idx * 16384, 64 * 3072) if i == 0 else ''
                lw.append(pre + 'buffer_load_dwordx4 v%d, %s, s77 offen offset:%d lds' % (VW + i, W1_, 1024 * i))
            l = lw + lx if wfirst else lx + lw
            l[7] += '\ns_add_u32 s39, s39, 1\ns_cmp_eq_u32 s39, 10\ns_cselect_b32 s39, 0, s39'
            return l
        for x in dma(0): a(x)
        self.stamp('d0')
        a("""v_and_b32 v8, 31, v1
        v_lshrrev_b32 v9, 5, v1
        v_and_b32 v10, 15, v1
        v_lshrrev_b32 v11, 4, v1
        v_bfe_u32 v12, v1, 4, 1
        v_bfe_u32 v13, v1, 2, 2
        v_and_b32 v14, 3, v1""")
        a("""v_bfe_u32 v4, v1, 1, 3
        v_xor_b32 v4, v4, v9
        v_lshlrev_b32 v4, 4, v4
        v_lshl_add_u32 v%d, v8, 7, v4""" % RX)
        for s in range(1, 4): a('v_xor_b32 v%d, %d, v%d' % (RX + s, 32 * s, RX))
        a("""v_lshl_add_u32 v5, v9, 3, v13
        v_lshlrev_b32 v5, 8, v5
        v_xor_b32 v4, s34, v13
        v_lshl_add_u32 v5, v4, 6, v5
        v_lshl_add_u32 v5, v12, 5, v5
        v_lshl_add_u32 v5, v14, 3, v5
        v_add_u32 v%d, 49152, v5""" % RW)
        a("""v_xor_b32 v4, v11, v13
        v_and_b32 v4, 1, v4
        v_cmp_eq_u32 vcc, 0, v4
        v_mov_b32 v5, 0x3f803f80
        v_cmp_gt_u32 s[64:65], 32, v1
        v_cndmask_b32 v%d, 0, v5, vcc
        v_cndmask_b32 v%d, 0, v5, vcc
        v_cndmask_b32 v%d, 0, v5, vcc
        v_cndmask_b32 v%d, 0, v5, vcc""" % (BS, BS + 1, BS + 2, BS + 3))
        a("""s_lshl_b32 s76, s37, 11
        s_add_u32 s76, s76, {st}
        v_lshl_add_u32 v{sr}, v1, 4, s76
        s_lshl_b32 s76, s38, 8
        s_lshl_b32 s77, s34, 6
        s_add_u32 s76, s76, s77
        v_lshl_add_u32 v{ba}, v8, 1, s76
        v_mov_b32 v{b1}, 0""".format(st=ST, sr=VSR, ba=VBA, b1=VB1))
        a("""v_mul_u32_u24 v4, 49152, v12
        v_lshl_add_u32 v4, v9, 8, v4
        v_lshl_add_u32 v2, v10, 4, v4
        s_mul_i32 s68, s37, {b8}
        s_mul_i32 s3, s37, 6144
        s_lshl_b32 s76, s38, 2
        s_add_u32 s76, s76, s34
        s_lshl_b32 s77, s76, 9
        s_add_u32 s68, s68, s77
        s_add_u32 s68, s68, {hh}
        s_lshl_b32 s76, s76, 7
        s_add_u32 s3, s3, s76
        s_add_u32 s3, s3, {fh}""".format(b8=8 * 49152, hh=HH, fh=FH))
        a("""s_lshl_b32 s76, s62, 1
        s_add_u32 s76, s76, s61
        s_mul_i32 s72, s76, {r64}
        s_mul_i32 s73, s76, {b4}
        s_mul_i32 s66, s62, 6144
        s_mul_i32 s77, s60, 12288
        s_add_u32 s73, s73, s77
        s_add_u32 s73, s73, {hh}
        s_mul_i32 s77, s60, 3072
        s_add_u32 s66, s66, s77
        s_add_u32 s66, s66, {fh}
        s_min_u32 s76, s63, 9
        s_lshl_b32 s76, s76, 7
        s_lshl_b32 s77, s60, 6
        s_add_u32 s76, s76, s77
        s_add_u32 s72, s72, s76
        v_lshlrev_b32 v4, 5, v12
        v_lshl_add_u32 v4, v9, 4, v4
        v_mul_u32_u24 v5, 1280, v10
        v_add_u32 v3, v4, v5
        v_add_u32 v{ba}, s76, v4""".format(r64=64 * 1280, b4=4 * 49152, hh=HH, fh=FH, ba=VBA + 1))
        a("""v_lshl_add_u32 v4, v12, 1, v9
        s_lshl_b32 s76, s60, 2
        v_lshrrev_b32 v5, 1, v10
        v_xor_b32 v4, v4, v5
        v_xor_b32 v4, s76, v4
        v_lshlrev_b32 v4, 4, v4
        v_lshl_add_u32 v4, v10, 7, v4
        s_lshl_b32 s76, s61, 13
        s_add_u32 s76, s76, 98304
        v_add_u32 v%d, s76, v4""" % VXR)
        a("""v_lshl_add_u32 v15, v12, 2, v13
        v_lshrrev_b32 v5, 1, v15
        v_lshl_add_u32 v15, v9, 4, v15
        v_lshlrev_b32 v15, 7, v15
        s_lshl_b32 s76, s60, 1
        v_xor_b32 v5, s76, v5
        v_lshl_add_u32 v15, v5, 5, v15
        v_lshl_add_u32 v15, v14, 3, v15
        s_lshl_b32 s76, s60, 12
        s_add_u32 s76, s76, 0x10000
        v_add_u32 v4, s76, v15
        v_xor_b32 v5, 32, v4
        v_xor_b32 v6, 64, v4
        v_xor_b32 v7, 96, v4""")
        self.w2_voff(8, sWV, 10)
        self.g2_offsets()
        a('global_load_short_d16_hi v%d, v%d, s[22:23]' % (VB1, VBA))
        a('global_load_dwordx4 v[%d:%d], v%d, s[26:27]' % (VB2, VB2 + 3, VBA + 1))
        for x in dma(1, WFIRST): a(x)
        self.stamp('d1')
        d2 = dma(2)
        for x in d2[:PRE2]: a(x)
        self.stamp('d2')
        def reads(stage, s):
            idx = stage % 3; f = FR + 20 * (s & 1)
            l = ['ds_read_b64_tr_b16 v[%d:%d], v%d offset:%d' % (f + 2 * e, f + 2 * e + 1, RW, idx * 16384 + s * 4096 + 1024 * e) for e in range(2)]
            l += ['ds_read_b128 v[%d:%d], v%d offset:%d' % (f + 4 + 4 * nt, f + 7 + 4 * nt, RX + s, idx * 16384 + 4096 * nt) for nt in range(4)]
            return l
        def mfmas(s, first):
            f = FR + 20 * (s & 1); n32 = []
            c = 'v[%d:%d]' % (CS, CS + 3)
            n16 = 'v_mfma_f32_16x16x32_bf16 %s, v[%d:%d], v[%d:%d], %s' % (c, BS, BS + 3, f, f + 3, '0' if first else c)
            for nt in range(4):
                c = 'v[%d:%d]' % (ACC[nt], ACC[nt] + 15)
                n32.append('v_mfma_f32_32x32x16_bf16 %s, v[%d:%d], v[%d:%d], %s' % (c, f, f + 3, f + 4 + 4 * nt, f + 7 + 4 * nt, '0' if first else c))
            return n32, n16
        C1 = -2.0 * LOG2E * math.sqrt(2.0 / math.pi)
        augA0 = ['v_lshrrev_b32 v%d, 16, v%d' % (TM, VB1), 'v_cndmask_b32 v%d, 0, v%d, s[64:65]' % (AUG + 2, TM), 'v_cndmask_b32 v%d, v%d, 0, s[64:65]' % (AUG + 6, TM)] + \
                ['v_mov_b32 v%d, 0' % (AUG + 3 + 4 * i) for i in range(4)]
        augA = ['v_cvt_pk_bf16_f32 v%d, v%d, v%d' % (TM + 1, CS, VB1), 'v_lshlrev_b32 v%d, 16, v%d' % (TM, TM + 1), 'v_sub_f32 v%d, v%d, v%d' % (TM, CS, TM),
                'v_cndmask_b32 v%d, 0, v%d, s[64:65]' % (AUG + 1, TM + 1), 'v_cvt_pk_bf16_f32 v%d, v%d, v%d' % (TM, CS, TM), 'v_cndmask_b32 v%d, v%d, 0, s[64:65]' % (AUG + 5, TM + 1),
                'v_cndmask_b32 v%d, 0, v%d, s[64:65]' % (AUG, TM), 'v_cndmask_b32 v%d, v%d, 0, s[64:65]' % (AUG + 4, TM)]
        augB = []
        for i in range(2):
            B = AUG + 8 + 4 * i; g = TM + 4 + 4 * i; k = KC + 4 * i; dl = KC + 8 + 2 * i; t = TM + 12 + 2 * i
            augB.append(['v_rcp_f32 v%d, v%d' % (t + 1, g + 2), 'v_cvt_pk_bf16_f32 v%d, v%d, v%d' % (B, g, g), 'v_and_b32 v%d, 0xffff0000, v%d' % (t, B), 'v_sub_f32 v%d, v%d, v%d' % (t, g, t),
                    'v_cvt_pk_bf16_f32 v%d, v%d, v%d' % (B + 1, t, g + 2), 'v_and_b32 v%d, 0xffff0000, v%d' % (t, B + 1), 'v_sub_f32 v%d, v%d, v%d' % (t, g + 2, t),
                    'v_cvt_pk_bf16_f32 v%d, v%d, 0' % (B + 2, t), 'v_mov_b32 v%d, v%d' % (dl, g + 2), 'v_mov_b32 v%d, v%d' % (dl + 1, g + 2),
                    'v_mul_f32 v%d, %s, v%d' % (k + 1, f32(C1), t + 1), 'v_mul_f32 v%d, %s, v%d' % (k + 3, f32(C1), t + 1),
                    'v_mul_f32 v%d, v%d, v%d' % (t + 1, t + 1, t + 1), 'v_mul_f32 v%d, %s, v%d' % (t + 1, f32(0.044715), t + 1),
                    'v_mul_f32 v%d, v%d, v%d' % (k, t + 1, k + 1), 'v_mul_f32 v%d, v%d, v%d' % (k + 2, t + 1, k + 1),
                    'v_permlane32_swap_b32 v%d, v%d' % (dl, dl + 1), 'v_permlane32_swap_b32 v%d, v%d' % (k + 1, k + 3), 'v_permlane32_swap_b32 v%d, v%d' % (k, k + 2)])
        augB = interleave(augB[0], augB[1])
        stl = 'buffer_load_dwordx4 v[%d:%d], v%d, %s, 0 offen sc1\nbuffer_load_dwordx4 v[%d:%d], v%d, %s, 0 offen offset:1024 sc1' % (TM + 4, TM + 7, VSR, WS_, TM + 8, TM + 11, VSR, WS_)
        for st in range(11):
            self.stamp('a%d' % st)
            a('s_waitcnt %slgkmcnt(0)' % ('' if st == 10 else 'vmcnt(%d) ' % (10 + PRE2 if st == 0 else 2 if st == 9 else 10 if st == 8 else 8)))
            self.stamp('w%d' % st)
            a('s_barrier')
            self.stamp('b%d' % st)
            if st == 10: break
            d = d2[PRE2:] if st == 0 else dma(st + 2) if st + 2 < 10 else []
            if st == 0: a(self.nonce2())
            if st == 7: d[7] += '\n' + stl
            for s in range(4):
                rd = reads(st, s)
                dd = d[2 * s:2 * s + 2]
                if s == 0 and st == 0:
                    for x in rd + dd: a(x)
                    continue
                n32, n16 = mfmas((s - 1) & 3, st == 0 and s == 1)
                if s > 0: a('s_waitcnt lgkmcnt(0)')
                fill = [rd[0:3], rd[3:6], dd[:1], dd[1:]]
                if st == 7 and s < NT: fill[2] = ['ds_read_b128 v[%d:%d], v%d offset:%d' % (VXI + 4 * s, VXI + 4 * s + 3, VXR, 2048 * s)] + fill[2]
                if st == 8 and s == 1: fill[2:] = [augA0[:4], augA0[4:]]
                if st == 9 and s >= 2: fill[2:] = [augB[12 * s - 19:12 * s - 13], augB[12 * s - 13:12 * s - 7]]
                for i, (m, f) in enumerate(zip(n32, fill)):
                    a(m)
                    for x in f: a(x)
                    if st == 9 and s == 1 and i == 2:
                        Lok = self.lab('OK')
                        chk = 'v_cmp_ne_u32 vcc, s21, v%d\nv_cmp_ne_u32 s[76:77], s21, v%d\nv_cmp_ne_u32 s[16:17], s21, v%d\nv_cmp_ne_u32 s[18:19], s21, v%d\ns_or_b64 vcc, vcc, s[76:77]\ns_or_b64 vcc, vcc, s[16:17]\ns_or_b64 vcc, vcc, s[18:19]' % (TM + 5, TM + 7, TM + 9, TM + 11)
                        a('s_waitcnt vmcnt(0)\n' + chk + '\ns_cbranch_vccz %s' % Lok)
                        self.poll(stl, chk)
                        a('%s:' % Lok)
                    if st == 9 and s == 1 and i == 3:
                        for x in augB[:5]: a(x)
                a(n16)
        n32, n16 = mfmas(3, False)
        a(n16)
        for m, f in zip(n32, [augB[29:35], augB[35:] + augA[:3], augA[3:], []]):
            a(m)
            for x in f: a(x)
        for nt in range(4):
            c = 'v[%d:%d]' % (ACC[nt], ACC[nt] + 15); A = AUG + 4 * (nt & 1); B = AUG + 8 + 4 * (nt >> 1)
            a('v_mfma_f32_32x32x16_bf16 %s, v[%d:%d], v[%d:%d], %s' % (c, A, A + 3, B, B + 3, c))
        self.stamp(5)
        def gelu(part, nt):
            q = ACC[nt] + 8 * part; k = KC + 2 * nt; dl = KC + 8 + (nt & 2); o = nt & 1; t = T + 8 * (nt & 1)
            pr = lambda b, i: 'v[%d:%d]' % (b + 2 * i, b + 2 * i + 1)
            A = ['v_pk_mul_f32 %s, %s, %s' % (pr(t, i), pr(q, i), pr(q, i)) for i in range(4)]
            B = ['v_pk_fma_f32 %s, %s, v[%d:%d], v[%d:%d] op_sel:[0,0,1] op_sel_hi:[1,0,1]' % (pr(t, i), pr(t, i), k, k + 1, k, k + 1) for i in range(4)]
            C = ['v_pk_mul_f32 %s, %s, %s' % (pr(t, i), pr(t, i), pr(q, i)) for i in range(4)]
            E = ['v_exp_f32 v%d, v%d' % (t + i, t + i) for i in range(8)]
            D = ['v_pk_fma_f32 %s, %s, v[%d:%d], v[%d:%d] op_sel:[0,%d,%d] op_sel_hi:[1,%d,%d]' % (pr(t, i), pr(t, i), dl, dl + 1, dl, dl + 1, o, o, o, o) for i in range(4)]
            R = ['v_rcp_f32 v%d, v%d' % (t + i, t + i) for i in range(8)]
            Gc = ['v_cvt_pk_bf16_f32 v%d, v%d, v%d' % (P + i, t + 2 * i, t + 2 * i + 1) for i in range(4)]
            Gc[2] += '\ns_add_u32 s69, s68, %d' % (nt * 98304 + part * 24576)
            Gc[3] += '\nbuffer_store_dwordx4 v[%d:%d], v2, %s, s69 offen sc1' % (P, P + 3, WS_) if 'nost' not in self.opts else '\ns_nop 0 ; buffer_store'
            return A, B, C, E, D, R, C, Gc
        def gelu_stream(tiles):
            A, B, C, E, D, R, F, Gc = [sum((gelu(*t)[i] for t in tiles), []) for i in range(8)]
            g = lambda L, j: [L[j]] if 0 <= j < len(L) else []
            return [g(A, i + 2) + g(E, 2 * i) + g(B, i + 2) + g(E, 2 * i + 1) + g(C, i + 2) + g(D, i - 1) + g(R, 2 * i - 4) + g(F, i - 3) + g(R, 2 * i - 3) + g(Gc, i - 4)
                    for i in range(-2, 4 * len(tiles) + 4)]
        def trreads(buf, slot):
            return ['ds_read_b64_tr_b16 v[%d:%d], v%d offset:%d' % (RF + 16 * buf + 4 * t + 2 * e, RF + 16 * buf + 4 * t + 2 * e + 1, TR + t, (slot % 8) * 8192 + 1024 * e) for t in range(4) for e in range(2)]
        FV = ACC[2]
        flag = self.flag(FV, 3) + '\ns_add_u32 s3, s3, %d' % (32 * 3072)
        rr = []
        for b in range(8): rr += trreads(b, b)
        nst = 0
        for i, grp in enumerate(gelu_stream([(p, nt) for p in range(2) for nt in range(4)])):
            if i == B1P:
                self.stamp('t2')
                a('s_barrier')
            if i == FLAG0:
                assert nst >= 4
                for x in self.flag_regs(FV): a(x)
                self.stamp('t3')
                a('s_waitcnt vmcnt(%d)' % (nst - 4)); a(flag); self.stamp('f0')
            if i == 10: self.stamp('t1')
            if i >= B1P:
                for x in rr[:RBU]:
                    if 'norr' not in self.opts: a(x)
                rr = rr[RBU:]
            for x in grp:
                a(x); nst += 'buffer_store' in x
        assert not rr
        self.stamp(6)
        a('s_waitcnt lgkmcnt(0)\ns_barrier')
        self.stamp(7)
        a("""s_cmp_lt_u32 s36, 20
        s_cbranch_scc1 L_G2
        s_waitcnt vmcnt(0)
        {flag}
        s_branch L_FIN
        L_G2:""".format(flag=flag))
        ini = []
        for r in [VB2] + [VXI + 4 * nt for nt in range(NT)]:
            ini += ['v_permlane16_swap_b32 v%d, v%d' % (r, r + 2), 'v_permlane16_swap_b32 v%d, v%d' % (r + 1, r + 3)]
        for i in range(4):
            ini += ['v_lshlrev_b32 v%d, 16, v%d' % (T + 2 * i, VB2 + i), 'v_and_b32 v%d, 0xffff0000, v%d' % (T + 2 * i + 1, VB2 + i)]
        for nt in range(NT):
            for i in range(4):
                s = VXI + 4 * nt + i; o = acc(0, nt) + 2 * i
                ini += ['v_lshlrev_b32 v%d, 16, v%d' % (o, s), 'v_and_b32 v%d, 0xffff0000, v%d' % (o + 1, s),
                        'v_add_f32 v%d, v%d, v%d' % (o, o, T + 2 * i), 'v_add_f32 v%d, v%d, v%d' % (o + 1, o + 1, T + 2 * i + 1)]
        hpl = 'buffer_load_dword v2, v10, %s, s66 offen sc1' % WS_; hchk = 'v_cmp_ne_u32 vcc, s21, v2'
        a('v_min_u32 v10, 23, v1\nv_lshlrev_b32 v10, 7, v10')
        dm = self.w2_round([(2 + k, k) for k in LORD[NL1:]] + [(10 + k, 8 + k) for k in range(8)], 8)
        d1 = dm[:NPH]
        d1.insert(PPOS, hpl)
        d1.insert(FLAG1, 's_waitcnt vmcnt(%d)\n' % FLAG1 + flag)
        for x in interleave(d1, ini, per=6): a(x)
        Lok = self.lab('OK')
        self.stamp('f1')
        a('s_waitcnt vmcnt(%d)\n%s\ns_cbranch_vccz %s' % (len(d1) - 1 - d1.index(hpl), hchk, Lok))
        self.poll(hpl, hchk)
        a('%s:' % Lok)
        self.stamp(10)
        a("""v_lshl_add_u32 v12, v1, 4, s73
        v_add_u32 v13, 49152, v12
        v_add_u32 v14, %d, v12
        v_add_u32 v15, %d, v12""" % (2 * 49152, 3 * 49152))
        RING = 3 * NT; NJ = 24 * NT
        def hload(j):
            s, nt = j // NT, j % NT
            r = HR + 16 * (s % 3) + 4 * nt
            if 'noh' in self.opts and j >= RING: return 's_nop 0'
            if 'hsame' in self.opts: return 'buffer_load_dwordx4 v[%d:%d], v%d, %s, s%d offen sc1' % (r, r + 3, 12 + nt, WS_, 4 + s % 3)
            return ('v_add_u32 v%d, 24576, v%d\n' % (12 + nt, 12 + nt) if s == 12 else '') + 'buffer_load_dwordx4 v[%d:%d], v%d, %s, s%d offen %s' % (r, r + 3, 12 + nt, WS_, 4 + s % 12, '' if 'hplain' in self.opts else 'sc1')
        RING = 3 * NT; NJ = 24 * NT
        for j in range(RING): a(hload(j))
        for x in dm[NPH:]: a(x)
        self.stamp(8)
        a("""s_lshl_b32 s76, s34, 13
        v_lshl_add_u32 v2, v1, 4, s76
        v_bfe_u32 v10, v1, 2, 3
        s_lshl_b32 s76, s61, 2
        v_xor_b32 v10, s76, v10
        v_lshlrev_b32 v10, 5, v10
        v_lshrrev_b32 v11, 2, v1
        v_lshl_add_u32 v10, v11, 8, v10
        v_and_b32 v11, 3, v1
        v_lshl_add_u32 v10, v11, 3, v10
        s_mul_i32 s16, s60, 8320
        s_add_u32 s16, s16, %d""" % L_TAB)
        self.stamp(9)
        def wbuf(s): return s if s < 2 else (s - 16 if s >= 18 else (s & 1))
        vm = list(range(RING)) + ['D'] * (len(dm) - NPH)
        assert NL1 == 8
        AZ = RF
        JF = 12 * NT - RING + 1
        extra = []
        for s in range(24):
            wb = RF + 16 * wbuf(s); nxt = s + 1; rd = []
            if 2 <= nxt < 18:
                if nxt in (2, 10): extra += ['v_add_u32 v%d, %s, v%d' % (r, '0x10000' if nxt == 10 else '0xffff0000', r) for r in range(4, 8)]
                rd = trreads(wbuf(nxt), nxt - 2)
            if s == 18: extra += ['v_xor_b32 v%d, %d, v10' % (4 + nt, 32 * nt) for nt in range(NT)] + ['v_add_u32 v%d, s16, v%d' % (4 + nt, 4 + nt) for nt in range(NT)]
            if s == 9:
                assert 'D' not in vm and JF >= 9 * NT
                a('s_barrier')
            if nxt in (2, 10):
                for x in extra: a(x)
                extra = []
            wl = 2 <= s < 18
            order = [(s, nt, t) for nt in range(NT) for t in range(4)]
            if s > 24 - NFIN: continue
            if s == 24 - NFIN: order = [(z, nt, t) for tt in ((2, 3), (0, 1)) for z in range(s, 24) for nt in range(NT) for t in tt]
            nw = 0
            for k, (z, nt, t) in enumerate(order):
                j = z * NT + nt; wb = RF + 16 * wbuf(z)
                if j in vm:
                    n = len(vm) - 1 - vm.index(j); vm = vm[vm.index(j) + 1:]
                    a('s_waitcnt vmcnt(%d)' % n + (' lgkmcnt(0)' if wl else '')); wl = False
                r = HR + 16 * (z % 3) + 4 * nt
                c = 'v[%d:%d]' % (acc(t, nt), acc(t, nt) + 3)
                a('v_mfma_f32_16x16x32_bf16 %s, v[%d:%d], v[%d:%d], %s' % (c, wb + 4 * t, wb + 4 * t + 3, r, r + 3, '0' if (s == 0 and t >= 2) else c))
                if s == 24 - NFIN:
                    k2 = k - len(order) // 2
                    if k2 >= 0 and k2 % NFIN == 0:
                        a('ds_write_b128 v2, v[%d:%d] offset:%d' % (acc(2 + (nw & 1), nw // 2), acc(2 + (nw & 1), nw // 2) + 3, 1024 * nw)); nw += 1
                    continue
                if t == 1 and j >= 1 and j - 1 + RING < NJ:
                    a(hload(j - 1 + RING)); vm.append(j - 1 + RING)
                    if j == SA: a('s_barrier')
                elif rd and t != 3: a(rd.pop(0))
                elif rd and nt < 2: a(rd.pop(0))
                elif extra and t != 3:
                    a(extra.pop(0))
                    if extra: a(extra.pop(0))
            assert not rd
            if s == 0: self.stamp(11)
            self.stamp('s%d' % s)
        self.stamp(12)
        for x in extra: a(x)
        a('v_xor_b32 v2, 0x2000, v2')
        a('s_waitcnt lgkmcnt(0)\ns_barrier')
        self.stamp(13)
        for nt in range(NT):
            for t in range(2):
                a('ds_read_b64_tr_b16 v[%d:%d], v%d offset:%d' % (AZ + 32 + 4 * nt + 2 * t, AZ + 33 + 4 * nt + 2 * t, 4 + nt, 4160 * t))
                a('ds_read_b128 v[%d:%d], v2 offset:%d' % (acc(2 + t, nt), acc(2 + t, nt) + 3, 1024 * (2 * nt + t)))
        for nt in range(NT):
            a('s_waitcnt lgkmcnt(%d)' % (4 * (NT - 1 - nt)))
            o = HR + 4 * nt; k = acc(0, nt)
            for d in range(4): a('v_lshlrev_b32 v%d, 16, v%d\nv_and_b32 v%d, 0xffff0000, v%d' % (AZ + 2 * d, AZ + 32 + 4 * nt + d, AZ + 2 * d + 1, AZ + 32 + 4 * nt + d))
            for d in range(4): a('v_pk_add_f32 v[%d:%d], v[%d:%d], v[%d:%d]' % (k + 2 * d, k + 2 * d + 1, k + 2 * d, k + 2 * d + 1, k + 32 + 2 * d, k + 33 + 2 * d))
            for d in range(4): a('v_pk_add_f32 v[%d:%d], v[%d:%d], v[%d:%d]' % (k + 2 * d, k + 2 * d + 1, k + 2 * d, k + 2 * d + 1, AZ + 2 * d, AZ + 2 * d + 1))
            for d in range(4): a('v_cvt_pk_bf16_f32 v%d, v%d, v%d' % (o + d, k + 2 * d, k + 2 * d + 1))
            a('s_add_u32 s76, s72, %d' % (nt * 16 * 1280))
            a('v_permlane16_swap_b32 v%d, v%d\nv_permlane16_swap_b32 v%d, v%d' % (o, o + 2, o + 1, o + 3))
            a('buffer_store_dwordx4 v[%d:%d], v3, %s, s76 offen %s' % (o, o + 3, OUT_, OUTAUX))
        self.stamp(14)
        a('s_branch L_FIN')

    def sn_entry(self):
        a = self.a
        a("""s_setprio 3
        s_cmp_ge_u32 s36, 24
        s_cselect_b32 s37, 1, 0
        s_cselect_b32 s76, 3, 1
        s_cselect_b32 s77, -48, 0
        s_lshr_b32 s78, s34, 1
        s_and_b32 s78, s78, s76
        s_add_u32 s76, s37, 1
        s_lshl_b32 s76, s36, s76
        s_mul_i32 s61, s35, 80
        s_add_u32 s61, s61, s76
        s_add_u32 s61, s61, s77
        s_add_u32 s61, s61, s78
        s_mul_i32 s76, s61, 384
        v_and_b32 v7, 31, v1
        v_mul_u32_u24 v2, 12, v7
        v_add_u32 v2, s76, v2
        s_lshl_b32 s66, s61, 1
        s_and_b32 s66, s66, 0xfffc""")
        if 'nocp' not in self.opts:
            L = self.lab('CP')
            a("""s_lshl_b32 s76, s37, 3
            s_add_u32 s76, s76, s34
            s_cmp_eq_u32 s76, 12
            s_cbranch_scc0 {L}
            s_getpc_b64 s[68:69]
            {L}pc:
            s_sub_u32 s68, s68, {L}pc-{n}
            s_subb_u32 s69, s69, 0
            s_sub_u32 s76, s36, 24
            s_lshl_b32 s76, s76, 12
            v_lshl_add_u32 v7, v7, 7, s76
            v_min_u32 v7, L_END-{n}, v7
            global_load_dword v255, v7, s[68:69]
            {L}:""".format(L=L, n=NAME))
        a('s_waitcnt lgkmcnt(0)')
        for k, p in enumerate((6, 8, 10, 12)):
            a('global_load_dwordx3 v[%d:%d], v2, s[%d:%d]' % (16 + 4 * k, 18 + 4 * k, p, p + 1))
        a('s_load_dword s72, s[14:15], s66\ns_load_dword s73, s[16:17], s66')
        self.stamp('pl')
        self.srds(False)
        self.nonce0()
        a("""s_and_b32 s60, s34, 1
        s_mov_b32 s38, {t1}
        s_mov_b32 s39, {u1}
        s_cmp_eq_u32 s37, 0
        s_cselect_b32 s38, {t0}, s38
        s_cselect_b32 s39, {u0}, s39
        s_mul_i32 s76, s78, 8320
        s_add_u32 s38, s38, s76
        s_mul_i32 s76, s78, 4608
        s_add_u32 s39, s39, s76
        s_lshl_b32 s62, s35, 3
        s_add_u32 s62, s62, s36
        s_sub_u32 s62, s62, 24
        s_lshl_b32 s63, s62, 5
        s_lshl_b32 s76, s34, 2
        s_add_u32 s63, s63, s76
        s_mul_i32 s64, s63, 1280
        v_mov_b32 v14, 0
        v_mov_b32 v15, 0
        v_min_u32 v249, 59, v1
        v_lshlrev_b32 v249, 7, v249
        v_lshrrev_b32 v4, 4, v1
        v_and_b32 v5, 15, v1
        v_mul_u32_u24 v6, 1280, v4
        v_lshl_add_u32 v248, v5, 4, v6""".format(t0=L_TAB, t1=N_TAB, u0=L_U, u1=N_U))
        a('s_cmp_lt_u32 s34, 4\ns_cselect_b32 s19, %d, %d\ns_cmp_eq_u32 s37, 0\ns_cselect_b32 s19, 3, s19' % tuple(LNP))
        if XEARLY: self.xloads()
        EX = 196 + 6; a = self.a
        a("""s_xor_b32 s76, s60, 1
        s_mul_i32 s76, s76, 4160
        s_add_u32 s76, s76, s38
        v_lshl_add_u32 v{e0}, v1, 4, s76
        s_mul_i32 s76, s60, 4160
        s_add_u32 s76, s76, s38
        v_lshl_add_u32 v{e1}, v1, 4, s76
        v_mov_b32 v{e3}, s76
        s_add_u32 s76, s76, 1008
        v_lshlrev_b32 v5, 4, v1
        v_sub_u32 v{e2}, s76, v5
        v_mov_b32 v8, 0
        v_mov_b32 v9, 0
        v_mov_b32 v10, 0
        v_mov_b32 v11, 0
        v_lshl_add_u32 v6, v1, 3, s39
        ds_write_b64 v6, v[8:9]
        s_mov_b64 exec, 7
        ds_write_b128 v{e1}, v[8:11] offset:4096
        s_mov_b64 exec, -1""".format(e0=EX, e1=EX + 1, e2=EX + 2, e3=EX + 3))
    def xloads(self):
        a = self.a
        Lx = self.lab('NX')
        a('s_cmp_eq_u32 s37, 0\ns_cbranch_scc1 %s' % Lx)
        for i in range(5): a('buffer_load_dwordx4 v[%d:%d], v248, %s, s64 offen offset:%d' % (XI + 4 * i, XI + 4 * i + 3, X_, 256 * i))
        a('%s:' % Lx)
    def cmul(self, d, x, w):
        return ['v_pk_mul_f32 v[%d:%d], v[%d:%d], v[%d:%d] op_sel:[1,1] op_sel_hi:[0,1] neg_lo:[0,1]' % (d[0], d[1], x[0], x[1], w[0], w[1]),
                'v_pk_fma_f32 v[%d:%d], v[%d:%d], v[%d:%d], v[%d:%d] op_sel_hi:[1,0,1]' % (d[0], d[1], x[0], x[1], w[0], w[1], d[0], d[1])]
    def scode(self):
        a = self.a
        tag = 'S'
        SELB, SELA, KA = 32, 40, 52
        FRG = 68
        PB, PA = 68, 84
        DB, DA = 100, 132
        FB, FA2 = 164, 180
        VV = 196
        DT, D2, SC1, SC2 = 48, 49, 50, 51
        a("""v_lshrrev_b32 v3, 5, v1
        v_cmp_eq_u32 s[74:75], 1, v3
        v_bfe_u32 v4, v1, 4, 1
        v_and_b32 v5, 15, v1
        v_cmp_eq_u32 vcc, v3, v4
        v_cndmask_b32 v5, 64, v5, vcc
        v_and_b32 v6, 3, v1
        v_bfe_u32 v7, v1, 3, 2
        v_lshl_add_u32 v6, v7, 2, v6
        v_add_u32 v7, 1, v6
        v_and_b32 v7, 12, v7
        v_and_b32 v8, 9, v6
        v_cmp_eq_u32 vcc, 1, v8
        s_and_b64 vcc, vcc, s[74:75]
        v_cndmask_b32 v6, v6, v7, vcc
        v_bfe_u32 v4, v1, 2, 1
        v_cmp_eq_u32 vcc, v3, v4
        v_cndmask_b32 v6, 64, v6, vcc
        v_mov_b32 v9, 0x3f80""")
        for v, sel in ((5, SELB), (6, SELA)):
            a('v_and_b32 v7, 1, v{v}\nv_lshlrev_b32 v7, 4, v7\nv_lshlrev_b32 v7, v7, v9\nv_lshrrev_b32 v8, 1, v{v}'.format(v=v))
            for d in range(0, 8, 2):
                a('v_cmp_eq_u32 vcc, %d, v8\nv_cmp_eq_u32 s[76:77], %d, v8\nv_nop\nv_cndmask_b32 v%d, 0, v7, vcc\nv_cndmask_b32 v%d, 0, v7, s[76:77]' % (d, d + 1, sel + d, sel + d + 1))
        EX = VV + 6
        a("""v_mov_b32 v4, 0x41000000
        v_mov_b32 v5, 0x43000000
        v_cndmask_b32 v{s1}, v4, v5, s[74:75]
        v_mov_b32 v5, 0x43800000
        v_cndmask_b32 v{s2}, 1.0, v5, s[74:75]
        s_and_b32 s76, s61, 1
        s_xor_b32 s76, s76, 1
        s_lshl_b32 s76, s76, 4
        s_mul_i32 s77, s60, 0x02020000
        s_add_u32 s77, s77, 0x01000c0c
        s_waitcnt lgkmcnt(0)
        {bp}
        s_lshl_b32 s72, s72, s76
        s_and_b32 s72, s72, 0xffff0000
        s_lshl_b32 s73, s73, s76
        s_and_b32 s73, s73, 0xffff0000
        v_mov_b32 v{dt}, s72
        v_mul_f32 v{dt}, {l2e}, v{dt}
        v_exp_f32 v{dt}, v{dt}
        v_mov_b32 v31, s73
        v_cvt_pk_bf16_f32 v{dt}, v{dt}, v{dt}
        v_lshlrev_b32 v{dt}, 16, v{dt}
        v_add_f32 v{d2}, v{dt}, v{dt}""".format(bp=self.nonce2(), s1=SC1, s2=SC2, dt=DT, d2=D2, l2e=f32(LOG2E)))
        a('v_cmp_eq_u32 vcc, 0, v1\nv_cndmask_b32 v31, 0, v31, vcc')
        self.stamp('a0')
        Ls = self.lab('NG'); Lx = self.lab('NX')
        if not XEARLY: self.xloads()
        a('s_setprio %d\ns_cmp_eq_u32 s37, 0\ns_cbranch_scc1 %s\ns_waitcnt vmcnt(5)\ns_branch %s\n%s:\ns_waitcnt vmcnt(0)\n%s:' % (2 * KPRIO, Lx, Ls, Lx, Ls))
        self.stamp(2)
        for k in range(4):
            for p in range(3):
                r = 16 + 4 * k + p
                a('v_perm_b32 v%d, v%d, v%d, s77' % (r, r, r))
        W8, W1, W5 = (VV, VV + 1), (VV + 2, VV + 3), (VV + 4, VV + 5)
        U = VV + 12
        XA = VV + 16
        def setup(p):
            l = """v_mul_f32 v4, {l2e}, v{la}
            v_exp_f32 v4, v4
            v_mul_f32 v5, v{ai}, v{dt}
            v_cvt_pk_bf16_f32 v4, v4, v4
            v_mul_f32 v5, {ci}, v5
            v_lshlrev_b32 v4, 16, v4
            v_mul_f32 v7, v5, v{s1}
            v_mul_f32 v4, v4, v{dt}
            v_mul_f32 v9, v5, v{s2}
            v_mul_f32 v4, {cr}, v4
            v_rndne_f32 v10, v7
            v_rndne_f32 v11, v9
            v_mul_f32 v6, v4, v{s1}
            v_mul_f32 v8, v4, v{s2}
            v_sub_f32 v7, v7, v10
            v_sub_f32 v9, v11, v9
            v_exp_f32 v6, v6
            v_exp_f32 v8, v8
            v_sin_f32 v10, v7
            v_cos_f32 v11, v7
            v_sin_f32 v12, v9
            v_cos_f32 v13, v9
            v_mul_f32 v{w8i}, v10, v6
            v_mul_f32 v{w8r}, v11, v6
            v_mul_f32 v{w1i}, v12, v8
            v_mul_f32 v{w1r}, v13, v8
            v_mul_f32 v{u1}, v10, v6
            v_mul_f32 v{u0}, v11, v6
            v_mul_f32 v{u3}, v12, v8
            v_mul_f32 v{u2}, v13, v8
            v_mul_f32 v4, v{cre}, v{d2}
            v_mul_f32 v5, v{cim}, v{d2}
            v_permlane32_swap_b32 v{w8i}, v{u1}
            v_permlane32_swap_b32 v{w8r}, v{u0}
            v_permlane32_swap_b32 v{w1i}, v{u3}
            v_permlane32_swap_b32 v{w1r}, v{u2}
            v_cndmask_b32 v{e0}, 1.0, v{u0}, s[74:75]
            v_cndmask_b32 v{e1}, 0, v{u1}, s[74:75]
            v_cndmask_b32 v6, 1.0, v{u2}, s[74:75]
            v_cndmask_b32 v7, 0, v{u3}, s[74:75]
            v_mul_f32 v{w5r}, v{u2}, v{u2}
            v_add_f32 v8, v{u2}, v{u2}
            v_fma_f32 v{w5r}, -v{u3}, v{u3}, v{w5r}
            v_mul_f32 v{w5i}, v8, v{u3}
            v_mul_f32 v{g0}, v4, v6
            v_mul_f32 v{g1}, v4, v7
            v_fmac_f32 v{g0}, v5, v7
            v_fma_f32 v{g1}, -v5, v6, v{g1}""".format(l2e=f32(LOG2E), la=16 + p, ai=20 + p, cre=24 + p, cim=28 + p, dt=DT, d2=D2, s1=SC1, s2=SC2,
                ci=f32(1 / (2 * math.pi)), cr=f32(-LOG2E), w8i=W8[1], w8r=W8[0], w1i=W1[1], w1r=W1[0], w5i=W5[1], w5r=W5[0],
                u0=U, u1=U + 1, u2=U + 2, u3=U + 3, e0=XA, e1=XA + 1, g0=XA + 4, g1=XA + 5)
            return [x.strip() for x in l.split('\n')]
        def pack(P, v, x0, x1):
            return ['v_cvt_pk_bf16_f32 v%d, v%d, v%d' % (P + v // 2, x0[0], x1[0]), 'v_cvt_pk_bf16_f32 v%d, v%d, v%d' % (P + 8 + v // 2, x0[1], x1[1])]
        def chainB():
            l = []; r = [(XA, XA + 1), (XA + 2, XA + 3)]
            for v in range(1, 16):
                l += self.cmul(r[v & 1], r[(v - 1) & 1], W8)
                if v & 1: l += pack(PB, v, r[0], r[1])
            return l
        def chainA():
            l = []; reg = {v: (XA + 4 + 2 * k, XA + 5 + 2 * k) for v, k in enumerate([0, 3, 4, 3, 1, 3, 4, 3, 2, 3, 4, 0, 1, 2, 3, 4])}
            src = {9: 0, 10: 4, 11: 8, 12: 9, 13: 11, 14: 12, 15: 13}
            for v in range(1, 16):
                l += self.cmul(reg[v], reg[v - 1] if v < 9 else reg[src[v]], W1 if v < 9 else W5)
                if v & 1: l += pack(PA, v, reg[v - 1], reg[v])
            return l
        def transp(D, P, SEL_):
            l = []
            for sg in range(2):
                for c in range(2):
                    d = 'v[%d:%d]' % (D + 16 * c, D + 16 * c + 15)
                    l.append('v_mfma_f32_32x32x16_bf16 %s, v[%d:%d], v[%d:%d], %s' % (d, P + 8 * c + 4 * sg, P + 8 * c + 4 * sg + 3, SEL_ + 4 * sg, SEL_ + 4 * sg + 3, '0' if sg == 0 else d))
            return l
        def repack(F, D): return ['v_cvt_pk_bf16_f32 v%d, v%d, v%d' % (F + i, D + 2 * i, D + 2 * i + 1) for i in range(16)]
        def mf2(first):
            k = 'v[%d:%d]' % (KA, KA + 15)
            return ['v_mfma_f32_32x32x16_bf16 %s, v[%d:%d], v[%d:%d], %s' % (k, FA2 + 4 * i, FA2 + 4 * i + 3, FB + 4 * i, FB + 4 * i + 3, '0' if (first and i == 0) else k) for i in range(4)]
        hook = 's_cmp_eq_u32 s37, 0\ns_cbranch_scc0 L_LN\nL_LNR:'
        if PK:
            seq = setup(0)
            for p in range(3):
                seq += interleave(chainB(), chainA())
                if p in LNP: seq.append('s_cmp_eq_u32 s19, %d\ns_cbranch_scc1 L_LN\nL_LNR%d:' % (p, p)); iln = len(seq)
                if p == 2 and 0 in SB: seq.append('s_cmp_eq_u32 s37, 0\ns_cbranch_scc0 {L}\ns_barrier\n{L}:'.format(L=self.lab('NB')))
                nx = setup(p + 1) if p < 2 else []
                tb, ta, rb, ra, m2 = transp(DB, PB, SELB), transp(DA, PA, SELA), repack(FB, DB), repack(FA2, DA), mf2(p == 0)
                order = [tb[0], tb[2], ta[0], ta[2], tb[1], tb[3], ta[1], ta[3]]
                h = len(nx) // 2
                seq += interleave(order[:5], nx[:h], per=6)
                seq += interleave(order[5:], rb[:8] + ra[:8], per=6)
                seq += interleave(m2[:2], nx[h:h + 6] + rb[8:] + ra[8:], per=6)
                seq += interleave(m2[2:], nx[h + 6:], per=6)
        if 'nok' in self.opts: a('s_cmp_eq_u32 s37, 0\ns_cbranch_scc1 L_NOK')
        nb = 0; n = len(seq); xh = False
        for i, x in enumerate(seq):
            if not xh and i >= iln + XHOOK * (n - iln):
                self.xhook(); xh = True
            for tp in TOUCH:
                if i == iln + int(tp * (n - iln)):
                    L = self.lab('TC')
                    a('s_cmp_eq_u32 s37, 0\ns_cbranch_scc1 %s' % L); self.touch(); a('%s:' % L)
            a(x)
        if 'nok' in self.opts: a('s_nop 15\nL_NOK:')
        self.stamp(3)
        if 1 in SB: a('s_cmp_eq_u32 s37, 0\ns_cbranch_scc0 {L}\ns_barrier\n{L}:'.format(L=self.lab('NB')))
        CA, CB = 176, 180
        a("""v_and_b32 v9, 15, v1
        v_lshrrev_b32 v10, 4, v1
        v_and_b32 v11, 1, v1
        v_xor_b32 v11, 1, v11
        v_mul_u32_u24 v11, 4162, v11
        v_lshl_add_u32 v11, v10, 4, v11
        v_lshlrev_b32 v12, 1, v9
        v_sub_u32 v11, v11, v12
        s_lshl_b32 s76, s60, 8
        s_sub_u32 s76, s38, s76
        s_add_u32 s76, s76, %d
        v_add_u32 v%d, s76, v11""" % (2 * (2047 - 16) - 512 - 192, CA))
        for p in range(1, 4): a('v_add_u32 v%d, %d, v%d' % (CA + p, -1024 * p, CA))
        a("""v_lshlrev_b32 v9, 5, v9
        v_lshl_add_u32 v9, v10, 4, v9
        s_lshl_b32 s76, s60, 8
        s_sub_u32 s76, s39, s76
        s_add_u32 s76, s76, %d
        v_add_u32 v%d, s76, v9""" % (512 - 32 - 192, CB))
        a("""s_lshr_b32 s76, s61, 2
        s_lshl_b32 s76, s76, 14
        s_and_b32 s77, s61, 3
        s_lshl_b32 s77, s77, 4
        s_add_u32 s76, s76, s77
        s_lshl_b32 s77, s60, 13
        s_add_u32 s26, s76, s77
        v_lshlrev_b32 v181, 6, v1
        s_lshl_b32 s77, s60, 11
        s_add_u32 s77, s77, s39
        s_add_u32 s27, s77, 512
        s_and_b32 s3, s34, 3
        v_lshlrev_b32 v182, 4, v1
        s_mov_b32 s20, %d""" % FX)
        xld = 'buffer_load_dword v183, v182, %s, s20 offen sc1' % WS_; xchk = 'v_cmp_ne_u32 vcc, s21, v183'
        udma = """s_mov_b32 m0, s27
        s_add_u32 s77, s26, 3072
        buffer_load_dwordx4 v181, {ws}, s26 offen sc1 lds
        buffer_load_dwordx4 v181, {ws}, s77 offen offset:1024 sc1 lds""".format(ws=WS_)
        Lg = self.lab('NG'); Lw = self.lab('NW'); Lx = self.lab('NX'); Lv = self.lab('NV')
        a('s_cmp_eq_u32 s37, 0\ns_cbranch_scc0 %s\ns_setprio 0' % Lg)
        self.g2_offsets_s()
        self.w2_voff(14, 3, 13)
        a("""s_lshl_b32 s76, s62, 7
        s_lshl_b32 s77, s3, 5
        s_add_u32 s76, s76, s77
        s_mul_i32 s16, s76, 1280
        s_min_u32 s76, s63, 9
        s_lshl_b32 s76, s76, 7
        s_add_u32 s16, s16, s76
        v_lshrrev_b32 v9, 3, v1
        v_mul_u32_u24 v9, 1280, v9
        v_lshrrev_b32 v10, 4, v1
        v_xor_b32 v10, v10, v1
        v_and_b32 v10, 7, v10
        v_lshl_add_u32 v9, v10, 4, v9
        v_xor_b32 v10, 64, v9
        s_lshl_b32 s76, s3, 12
        s_add_u32 m0, s76, 98304""")
        for k in range(len(SB), 9):
            if k == 7: a('s_waitcnt vmcnt(0)')
            a('s_barrier')
            i = k - XST
            if 0 <= i < 4: a('s_add_u32 s76, s16, %d\nbuffer_load_dwordx4 v%d, %s, s76 offen offset:%d lds' % (i * (8 * 1280 - 1024), 9 + (i & 1), X_, 1024 * i))
        a('s_cmp_lt_u32 s36, 20\ns_cbranch_scc0 %s' % Lv)
        slot_step = dict([(8 + k, s) for k, s in enumerate([0, 1, 18, 19, 20, 21, 22, 23])] + [(k, 2 + k) for k in range(8)])
        dm = self.w2_round([(slot_step[k], k) for k in [12, 13, 14, 15, 8, 9, 10, 11, 2, 3, 4, 5, 0, 1, 6, 7]], 14)
        assert RB8 <= 12 and RB9 <= 24
        if 'nodma' in self.opts: dm = ['s_nop 0'] * 32
        for x in dm[:RB8]: a(x)
        a('s_barrier')
        for x in dm[RB8:RB9]: a(x)
        a('s_barrier')
        for x in dm[RB9:32 - NLATE]: a(x)
        assert RWAIT <= 16 - NLATE
        a('s_waitcnt vmcnt(%d)\ns_branch %s\n%s:\ns_barrier\ns_barrier\n%s:' % (RWAIT, Lg, Lv, Lg))
        self.stamp('r0')
        if B1E == 1: a('s_barrier')
        a('s_setprio %d' % (2 * TPRIO))
        a(xld)
        for k in range(4): a('ds_write_b128 v%d, v[%d:%d] offset:%d' % (EX, KA + 4 * k, KA + 4 * k + 3, 1024 * k))
        a('s_mov_b64 exec, 1\nds_write_b32 v%d, v%d offset:4128\ns_mov_b64 exec, -1' % (EX, SC1))
        V = lambda r: KA + r
        a('v_add_f32 v{v0}, v{v0}, v31\nv_and_b32 v5, 1, v1\nv_cmp_eq_u32 vcc, 0, v5'.format(v0=V(0)))
        Lp = self.lab('XP'); Lq = self.lab('XQ')
        a('s_mov_b32 s79, 0\n%s:\nds_read_b32 v4, v%d offset:4128' % (Lp, EX + 3))
        for k in range(4): a('ds_read_b128 v[%d:%d], v%d offset:%d' % (FRG + 4 * k, FRG + 4 * k + 3, EX + 1, 1024 * k))
        a('s_add_u32 s79, s79, 1\ns_waitcnt lgkmcnt(4)\nv_readfirstlane_b32 s76, v4\ns_cmp_lg_u32 s76, 0\ns_cbranch_scc1 %s\ns_cmp_gt_u32 s79, %d\ns_cbranch_scc0 %s\n%s:' % (Lq, 64 * POLLMAX, Lp, Lq))
        self.stamp(4)
        for k in range(4):
            a('s_waitcnt lgkmcnt(%d)' % (3 - k))
            for r in range(4 * k, 4 * k + 4): a('v_add_f32 v%d, v%d, v%d' % (KA + r, KA + r, FRG + r))
        a("""v_cndmask_b32 v{m0}, v{v13}, v{v12}, vcc
        v_cndmask_b32 v{m1}, v{v15}, v{v14}, vcc
        s_cmp_eq_u32 s60, 0
        s_cbranch_scc0 L{t}_T1""".format(m0=FRG + 16, m1=FRG + 17, v12=V(12), v13=V(13), v14=V(14), v15=V(15), t=tag))
        def table(c):
            lv = [([V(o) for o in range(9)], 3072), ([V(9)] * 3 + [V(10)] * 3 + [V(11)] * 3, 2048),
                  ([V(12)] * 4 + [FRG + 16] + [V(13)] * 4, 1024), ([V(14)] * 4 + [FRG + 17] + [V(15)] * 4, 0)]
            for n, (t, off) in enumerate(lv):
                for d in range(4):
                    a('v_cvt_pk_bf16_f32 v%d, v%d, v%d' % (FRG + 4 * n + d, t[7 + c - 2 * d], t[6 + c - 2 * d]))
                a('ds_write_b128 v%d, v[%d:%d] offset:%d' % (EX + 2, FRG + 4 * n, FRG + 4 * n + 3, off))
        table(0)
        a('s_branch L%s_T2\nL%s_T1:' % (tag, tag))
        table(1)
        a('v_cvt_pk_bf16_f32 v8, v%d, 0\ns_mov_b64 exec, 1\nds_write_b32 v%d, v8 offset:4096\ns_mov_b64 exec, -1\nL%s_T2:' % (V(0), EX + 1, tag))
        self.stamp(5)
        Lok = self.lab('OK')
        if B1E == 0: a('s_barrier')
        a('s_setprio 0\ns_waitcnt vmcnt(0)\n%s\ns_cbranch_vccz %s' % (xchk, Lok))
        self.poll(xld, xchk)
        a('%s:' % Lok)
        self.stamp(6)
        a(udma)
        if B1E == 2: a('s_barrier')
        if NLATE:
            a('s_cmp_lt_u32 s36, 20\ns_cbranch_scc0 %s' % Lw)
            for i, x in enumerate(dm[32 - NLATE:]):
                if THR is not None and i % 2 == 0: a('s_waitcnt vmcnt(%d)' % THR)
                a(x)
            a('s_waitcnt vmcnt(%d)\ns_branch %s\n%s:' % (NLATE, Lx, Lw))
        a('s_waitcnt vmcnt(0)\n%s:' % Lx)
        self.stamp('R')
        assert NLATE == 0
        a('s_setprio %d\ns_waitcnt lgkmcnt(0)\ns_barrier' % (2 * CPRIO))
        self.stamp(7)
        YA = 16; FA_ = [48, 112]
        def creads(tt):
            f = FA_[tt & 1]; l = []
            for i in range(8):
                o = (128 if i % 2 == 0 else 0) + 16 * (3 - tt)
                ra = ['ds_read2_b32 v[%d:%d], v%d offset0:%d offset1:%d' % (f + 4 * i + 2 * e, f + 4 * i + 2 * e + 1, CA + i // 2, o + 2 * e, o + 2 * e + 1) for e in range(2)]
                rb = 'ds_read_b128 v[%d:%d], v%d offset:%d' % (f + 32 + 4 * i, f + 35 + 4 * i, CB, 512 * i + 64 * (3 - tt))
                l += ra + [rb]
            return l
        def cm(tt, i, j, first):
            f = FA_[tt & 1]; c = 'v[%d:%d]' % (YA + 4 * (i + j), YA + 4 * (i + j) + 3)
            return 'v_mfma_f32_16x16x32_bf16 %s, v[%d:%d], v[%d:%d], %s' % (c, f + 4 * i, f + 4 * i + 3, f + 32 + 4 * j, f + 35 + 4 * j, '0' if first else c)
        r0 = creads(0)
        for x in r0[:12]: a(x)
        for tt in range(4):
            order = []
            for k in range(8):
                order += [(k, i, j) for i in range(k + 1) for j in range(k + 1) if max(i, j) == k and i + j <= 7]
            seen = set()
            nxt = (r0[12:] if tt == 0 else []) + (creads(tt + 1) if tt < 3 else [])
            issued = 12 if tt == 0 else 24
            extra = 0
            lastk = -1
            if tt > 0: a('s_waitcnt lgkmcnt(0)')
            if tt == 3: a('s_mov_b64 exec, 1\nds_write_b32 v%d, v%d offset:4132\ns_mov_b64 exec, -1\ns_nop 3' % (EX, EX))
            for (k, i, j) in order:
                if tt == 0 and k != lastk:
                    while issued < 3 * (k + 1): a(nxt.pop(0)); issued += 1
                    a('s_waitcnt lgkmcnt(%d)' % min(15, issued + extra - 3 * (k + 1)))
                    lastk = k
                a(cm(tt, i, j, tt == 0 and (i + j) not in seen)); seen.add(i + j)
                if nxt:
                    a(nxt.pop(0))
                    if issued < 24: issued += 1
                    else: extra += 1
            for x in nxt: a(x)
        self.stamp(8)
        def lflag(off): a('s_mov_b64 exec, 1\nds_write_b32 v%d, v%d offset:%d\ns_mov_b64 exec, -1' % (EX, EX, off))
        def lwait(off, extra):
            Lp = self.lab('XP'); Lq = self.lab('XQ')
            a('s_mov_b32 s79, 0\n%s:\nds_read_b32 v4, v%d offset:%d' % (Lp, EX + 3, off))
            for x in extra: a(x)
            a('s_add_u32 s79, s79, 1\ns_waitcnt lgkmcnt(%d)\nv_readfirstlane_b32 s76, v4\ns_cmp_lg_u32 s76, 0\ns_cbranch_scc1 %s\ns_cmp_gt_u32 s79, %d\ns_cbranch_scc0 %s\n%s:' % (len(extra), Lq, 64 * POLLMAX, Lp, Lq))
        lwait(4132, [])
        a('s_nop 3\ns_cmp_eq_u32 s60, 0\ns_cbranch_scc0 L%s_R1' % tag)
        for k in range(4): a('ds_write_b128 v%d, v[%d:%d] offset:%d' % (EX, YA + 16 + 4 * k, YA + 19 + 4 * k, 1024 * k))
        lflag(4136)
        a('s_branch L%s_R2\nL%s_R1:' % (tag, tag))
        for k in range(4): a('ds_write_b128 v%d, v[%d:%d] offset:%d' % (EX, YA + 4 * k, YA + 3 + 4 * k, 1024 * k))
        lflag(4136)
        for k in range(16): a('v_mov_b32 v%d, v%d' % (YA + k, YA + 16 + k))
        a('L%s_R2:' % tag)
        lwait(4136, ['ds_read_b128 v[%d:%d], v%d offset:%d' % (48 + 4 * k, 51 + 4 * k, EX + 1, 1024 * k) for k in range(4)])
        a('''s_lshl_b32 s76, s61, 12
        s_lshl_b32 s77, s60, 11
        s_add_u32 s76, s76, s77
        s_add_u32 s76, s76, %d
        v_lshlrev_b32 v4, 4, v1''' % AA)
        for p in range(2):
            a('s_waitcnt lgkmcnt(%d)' % (2 - 2 * p))
            for k in range(8 * p, 8 * p + 8): a('v_add_f32 v%d, v%d, v%d' % (YA + k, YA + k, 48 + k))
            o = 64 + 4 * p
            for d in range(4): a('v_cvt_pk_bf16_f32 v%d, v%d, v%d' % (o + d, YA + 8 * p + 2 * d, YA + 8 * p + 2 * d + 1))
            a('v_permlane16_swap_b32 v%d, v%d\nv_permlane16_swap_b32 v%d, v%d' % (o, o + 2, o + 1, o + 3))
            a('buffer_store_dwordx4 v[%d:%d], v4, %s, s76 offen offset:%d sc1' % (o, o + 3, WS_, 1024 * p))
        self.stamp(9)
        a('s_setprio 0')
        a('s_mul_i32 s76, s60, 640\ns_add_u32 s76, s76, s61\ns_lshl_b32 s76, s76, 7\ns_add_u32 s76, s76, %d' % FA)
        for x in self.flag_regs(8): a(x)
        a('s_waitcnt vmcnt(0)'); a(self.flag(8, 76))
        self.stamp(10)
        Le = self.lab('EP')
        a('''s_lshl_b32 s76, s34, 8
        s_add_u32 s76, s76, s2
        s_cmp_eq_u32 s76, 192
        s_cbranch_scc0 {L}
        v_lshrrev_b32 v2, 2, v1
        v_mul_u32_u24 v2, 6144, v2
        v_and_b32 v3, 3, v1
        v_mul_u32_u24 v3, 1536, v3
        v_add_u32 v2, v3, v2
        s_mov_b32 s20, {fh}'''.format(L=Le, fh=FH))
        ld = '\n'.join('buffer_load_dword v%d, v2, %s, s20 offen offset:%d sc1' % (3 + i, WS_, 512 * i) for i in range(3))
        self.poll(ld, 'v_cmp_ne_u32 vcc, s21, v3\nv_cmp_ne_u32 s[76:77], s21, v4\nv_cmp_ne_u32 s[16:17], s21, v5\ns_or_b64 vcc, vcc, s[76:77]\ns_or_b64 vcc, vcc, s[16:17]')
        a('''s_mov_b32 s20, {ep}
        s_mov_b64 exec, 1
        buffer_store_dword v8, off, {ws}, s20 sc1
        s_branch L_FIN
        {L}:'''.format(L=Le, ep=EP, ws=WS_))
        a('s_cmp_lt_u32 s36, 20\ns_cbranch_scc0 L_FIN')
        a('s_mul_i32 s20, s62, 6144\ns_mul_i32 s77, s3, 1536\ns_add_u32 s20, s20, s77\ns_add_u32 s20, s20, %d' % (FH + 32 * 3072))
        self.spoll(12, 20)
        self.stamp('h1')
        a('s_barrier')
        a('''s_lshl_b32 s60, s63, 6
        s_lshl_b32 s76, s3, 4
        s_add_u32 s60, s60, s76
        s_lshr_b32 s76, s35, 2
        s_mul_i32 s76, s76, 640
        s_add_u32 s76, s76, s60
        s_lshl_b32 s76, s76, 7
        s_add_u32 s61, s76, {fa}
        v_and_b32 v4, 15, v1
        v_lshrrev_b32 v7, 4, v1
        v_lshlrev_b32 v8, 1, v7
        v_xor_b32 v8, v8, v4
        v_lshrrev_b32 v9, 1, v8
        v_lshlrev_b32 v9, 4, v9
        v_and_b32 v8, 1, v8
        v_lshl_add_u32 v9, v8, 9, v9
        v_lshl_add_u32 v9, v7, 12, v9
        v_xor_b32 v10, 64, v9
        s_lshl_b32 s60, s60, 12
        s_lshr_b32 s76, s35, 1
        s_lshl_b32 s76, s76, 10
        s_add_u32 s60, s60, s76
        s_and_b32 s76, s35, 1
        s_lshl_b32 s76, s76, 8
        s_add_u32 s60, s60, s76
        s_and_b32 s76, s62, 1
        s_lshl_b32 s76, s76, 7
        s_add_u32 s60, s60, s76
        s_add_u32 s60, s60, {aa}
        s_and_b32 s76, s3, 1
        s_mul_i32 s76, s76, 4160
        s_add_u32 m0, s76, s38'''.format(fa=FA, aa=AA))
        self.spoll(16, 61)
        self.stamp(11)
        a('s_barrier')
        for i in range(4):
            a('s_add_u32 s76, s60, %d\nbuffer_load_dwordx4 v%d, %s, s76 offen offset:%d sc1 lds' % (i * (16384 - 1024), 9 + (i & 1), WS_, 1024 * i))
        a('s_waitcnt vmcnt(0)')
        self.stamp(12)
        a('s_barrier\ns_branch L_FIN')
    def touch(self):
        self.a('s_and_b32 s76, s71, 3\ns_mul_i32 s76, s76, %d\ns_add_u32 s76, s76, s70\nbuffer_load_dword v255, v249, %s, s76 offen\ns_add_u32 s71, s71, 1' % (64 * 7680, W2_))
    def xhook(self):
        a = self.a
        L = self.lab('NH')
        a('s_cmp_eq_u32 s37, 0\ns_cbranch_scc1 %s' % L)
        a("""s_waitcnt vmcnt(0)
        s_barrier
        s_cmp_eq_u32 s34, 0
        s_cbranch_scc0 {L}
        s_lshl_b32 s76, s62, 4
        s_add_u32 s76, s76, {fx}""".format(L=L, fx=FX))
        for x in self.flag_regs(250): a(x)
        a(self.flag(250, 76).replace('0xff', '1')); a('%s:' % L)
        self.stamp('xf')
    def g2_offsets_s(self):
        self.a('''s_cmp_ge_u32 s36, 10
        s_cselect_b32 s62, 1, 0
        s_mul_i32 s63, s62, 10
        s_sub_u32 s63, s36, s63
        s_lshl_b32 s66, s35, 1
        s_add_u32 s62, s62, s66''')
        self.g2_offsets()
    def lnblock(self):
        a = self.a
        XF = 100; T0 = 140
        a('L_LN:')
        self.stamp('ln')
        a('''s_sub_u32 s70, s36, 24
        s_lshl_b32 s70, s70, 3
        s_add_u32 s70, s70, s34
        s_mul_i32 s70, s70, 7680
        s_mov_b32 s71, s35''')
        for k in range(TLN[0]): self.touch()
        a('''        v_lshrrev_b32 v4, 4, v1
        v_and_b32 v5, 15, v1
        s_and_b32 s76, s34, 1
        s_lshl_b32 s76, s76, 4
        s_lshr_b32 s77, s34, 1
        s_lshl_b32 s77, s77, 2
        s_add_u32 s76, s76, s77
        v_add_u32 v6, s76, v4
        v_mul_u32_u24 v6, {ts}, v6
        v_lshl_add_u32 v6, v5, 4, v6
        v_and_b32 v7, 3, v1
        v_bfe_u32 v8, v1, 2, 2
        v_lshl_add_u32 v7, v7, 2, v8
        v_mul_u32_u24 v7, {ts}, v7
        v_lshl_add_u32 v7, v4, 3, v7
        s_mul_i32 s76, s34, 160
        v_add_u32 v7, s76, v7
        v_lshlrev_b32 v8, 14, v4
        v_lshl_add_u32 v8, v5, 4, v8
        s_mul_i32 s65, s34, {cq}
        s_lshl_b32 s76, s62, 8
        s_add_u32 s65, s65, s76
        v_mov_b32 v10, 0
        v_mov_b32 v11, 0
        v_mov_b32 v12, 0
        v_mov_b32 v13, 0'''.format(ts=TSTR, cq=20 * 16384, t8=T0 + 8, t9=T0 + 9))
        for i in range(5):
            a('s_waitcnt vmcnt(%d)' % (4 + TLN[0] - i))
            for d in range(4):
                s = XI + 4 * i + d; f = XF + 8 * i + 2 * d
                a('''v_lshlrev_b32 v{f}, 16, v{s}
                v_and_b32 v{f1}, 0xffff0000, v{s}
                v_pk_add_f32 v[10:11], v[10:11], v[{f}:{f1}]
                v_pk_fma_f32 v[12:13], v[{f}:{f1}], v[{f}:{f1}], v[12:13]'''.format(f=f, f1=f + 1, s=s))
        self.stamp(1)
        a('v_add_f32 v10, v10, v11\nv_add_f32 v12, v12, v13')
        for sh in (8, 4, 2, 1):
            a('v_add_f32 v10, v10, v10 row_ror:%d\nv_add_f32 v12, v12, v12 row_ror:%d' % (sh, sh))
        rb = lambda d, s: 'v_cvt_pk_bf16_f32 v%d, v%d, v%d\nv_lshlrev_b32 v%d, 16, v%d' % (d, s, s, d, d)
        EPS = f32(1e-5)
        a('v_mul_f32 v10, {c}, v10\nv_mul_f32 v12, {c}, v12\nv_fma_f32 v12, -v10, v10, v12\nv_max_f32 v12, 0, v12'.format(c=f32(1.0 / 640)))
        a(rb(11, 10))
        a(rb(13, 12)); a('v_add_f32 v13, %s, v13' % EPS); a(rb(13, 13)); a('v_sqrt_f32 v13, v13'); a(rb(13, 13))
        a('v_rcp_f32 v14, v13\nv_mul_f32 v15, v11, v14\nv_sub_f32 v15, 0, v15')
        for i in range(5):
            for d in range(4):
                s = XI + 4 * i + d; f = XF + 8 * i + 2 * d
                a('v_pk_fma_f32 v[{f}:{f1}], v[{f}:{f1}], v[14:15], v[14:15] op_sel:[0,0,1] op_sel_hi:[1,0,1]\nv_cvt_pk_bf16_f32 v{s}, v{f}, v{f1}'.format(f=f, f1=f + 1, s=s))
            a('ds_write_b128 v6, v[%d:%d] offset:%d' % (XI + 4 * i, XI + 4 * i + 3, 256 * i))
        a('v_sub_f32 v10, v10, v11\nv_mul_f32 v10, v10, v14'); a(rb(10, 10))
        a('v_mul_f32 v12, v12, v14\nv_mul_f32 v12, v12, v14'); a(rb(12, 12)); a('v_add_f32 v12, %s, v12' % EPS); a(rb(12, 12)); a('v_sqrt_f32 v12, v12'); a(rb(12, 12))
        a('v_fma_f32 v10, -v10, v13, -v11\nv_mul_f32 v12, v13, v12')
        a('''s_lshl_b32 s67, s63, 4
        s_add_u32 s67, s67, {st}
        v_lshlrev_b32 v14, 4, v4
        v_mov_b32 v11, s21
        v_mov_b32 v13, s21
        v_cmp_eq_u32 vcc, 0, v5
        s_and_saveexec_b64 s[68:69], vcc
        buffer_store_dwordx4 v[10:13], v14, {ws}, s67 offen sc1
        s_mov_b64 exec, s[68:69]'''.format(st=ST, ws=WS_))
        for k in range(TLN[1]): self.touch()
        self.stamp('l4')
        a('s_waitcnt lgkmcnt(0)\ns_barrier')
        for i in range(5):
            for e in range(2):
                a('ds_read_b64_tr_b16 v[%d:%d], v7 offset:%d' % (XI + 4 * i + 2 * e, XI + 4 * i + 2 * e + 1, 32 * i + 16 * TSTR * e))
        for i in range(5):
            a('s_waitcnt lgkmcnt(%d)\ns_add_u32 s76, s65, %d\nbuffer_store_dwordx4 v[%d:%d], v8, %s, s76 offen sc1' % (8 - 2 * i, XT + i * 4 * 16384, XI + 4 * i, XI + 4 * i + 3, WS_))
        self.stamp('xs')
        if LNP[0] != LNP[1]: a('s_cmp_eq_u32 s19, %d\ns_cbranch_scc1 L_LNR%d' % (LNP[0], LNP[0]))
        a('s_branch L_LNR%d' % LNP[1])

    def build(self):
        a = self.a
        self.prologue()
        a('s_cmp_lt_u32 s36, 24\ns_cselect_b32 s76, 4, 0\ns_cmp_lt_u32 s34, s76\ns_cbranch_scc1 L_G')
        self.sel = SEL['S']; self.sn_entry(); self.scode(); self.lnblock()
        self.sel = SEL['G']; a('L_G:'); self.gwave()
        a('L_FIN:')
        self.dump_stamps()
        if self.AMP:
            if self.AMP[1] == 'end': a('s_memrealtime s[92:93]')
            who = self.AMP[2]
            a('s_cmp_eq_u32 s34, %d\ns_cbranch_scc0 L_END' % {'G': 0, 'S': 4, 'N': 0, 'M': 4}[who[0]])
            if len(who) > 1: a('s_cmp_eq_u32 s2, %s\ns_cbranch_scc0 L_END' % who[1:])
            else: a('s_cmp_lt_u32 s36, 20\ns_cbranch_scc0 L_END' if who in 'GS' else 's_cmp_ge_u32 s36, 24\ns_cbranch_scc0 L_END')
            a('''s_waitcnt lgkmcnt(0)
            s_sub_u32 s92, s92, s94
            s_lshl_b32 s92, s92, 3
            s_add_u32 s92, s92, 3000
            s_min_u32 s92, s92, 30000
            L_AMP:
            s_memrealtime s[98:99]
            s_waitcnt lgkmcnt(0)
            s_sub_u32 s77, s98, s96
            s_cmp_lt_u32 s77, s92
            s_cbranch_scc1 L_AMP''')
        for o_ in self.opts:
            if o_.startswith('pad='):
                a('''s_cmp_eq_u32 s34, 0
                s_cbranch_scc0 L_END
                s_cmp_lt_u32 s36, 20
                s_cbranch_scc0 L_END''')
                for q_ in self.opts:
                    if q_.startswith('padwg='): a('s_cmp_eq_u32 s2, %d\ns_cbranch_scc0 L_END' % int(q_[6:]))
                a('''L_PAD:
                s_memrealtime s[98:99]
                s_waitcnt lgkmcnt(0)
                s_sub_u32 s77, s98, s96
                s_cmp_lt_u32 s77, %d
                s_cbranch_scc1 L_PAD''' % int(o_[4:]))
        if 'span' in self.opts:
            a('''s_cmp_eq_u32 s34, 0
            s_cbranch_scc0 L_END
            s_waitcnt vmcnt(0)
            s_memrealtime s[98:99]
            s_memtime s[76:77]
            s_waitcnt lgkmcnt(0)
            s_not_b32 s97, s96
            s_sub_u32 s76, s76, s100
            s_sub_u32 s77, s98, s96
            s_mov_b64 exec, 1
            v_mov_b32 v0, 0
            v_mov_b32 v1, s97
            v_mov_b32 v2, s98
            v_mov_b32 v3, s96
            v_mov_b32 v4, s76
            v_mov_b32 v5, s77
            global_atomic_umax v0, v1, s[30:31]
            global_atomic_umax v0, v2, s[30:31] offset:4
            global_atomic_umax v0, v3, s[30:31] offset:8
            global_atomic_umax v0, v4, s[30:31] offset:12
            global_atomic_umax v0, v5, s[30:31] offset:16''')
        a('L_END:')
        body = a.finish()
        ref = open('parallel_sum__ssm_conv_s4d__mixer_channel_mlp__prompt.s.ref').read()
        head = ''.join(l + '\n' for l in ref.split('\n') if l.startswith(';') and '@launch' not in l)
        return head + '''; @launch grid=(256,1,1) block=(512,1,1) lds=163840
.amdgcn_target "amdgcn-amd-amdhsa--gfx950"
.text
.globl {n}
.p2align 8
.type {n},@function
{n}:
{body}    s_endpgm
.section .rodata,"a"
.p2align 6
.amdhsa_kernel {n}
  .amdhsa_next_free_vgpr 256
  .amdhsa_next_free_sgpr 102
  .amdhsa_accum_offset 256
  .amdhsa_group_segment_fixed_size 0
  .amdhsa_kernarg_size 120
  .amdhsa_user_sgpr_count 2
  .amdhsa_user_sgpr_kernarg_segment_ptr 1
  .amdhsa_system_sgpr_workgroup_id_x 1
  .amdhsa_float_denorm_mode_32 3
.end_amdhsa_kernel
'''.format(n=NAME, body=body)
if __name__ == '__main__':
    out = sys.argv[1]; opts = sys.argv[2:]
    g = G('stamps' in opts, opts); s = g.build(); open(out, 'w').write(s)
    print('wrote', out, len(s), 'bytes; nops inserted', g.a.nops)
```

```python
import sys, math, struct
sys.path.insert(0, 'work')
from asmdsl import Asm, interleave
NAME = 'parallel_sum__ssm_conv_s4d__mixer_channel_mlp__prompt_kernel'
def f32(x): return '0x%08x' % struct.unpack('<I', struct.pack('<f', x))[0]
LOG2E = math.log2(math.e)
XT, HH, AA, FL, DBG = 0x000000, 0x400000, 0xA00000, 0xD00000, 0xE00000
ST, CSA = FL + 0x70000, FL + 0x80000
FX, EP, FH, FA = FL + 0x8000, FL + 0xC000, FL + 0x10000, FL + 0x40000
WS_BYTES = 0x1000000
XR = 131072
L_TAB, L_U, L_ST = XR, XR + 2 * 8320, XR + 2 * 8320 + 2 * 4608
N_CS = 43008
VN = 27
L_AT = XR
L_RED = 0
N_T, N_TAB, N_U = 0, 49152, 49152 + 4 * 8320
TSTR = 2592
sWV, sXCD, sJ = 34, 35, 36
X_, W1_, W2_, WS_, OUT_ = 's[40:43]', 's[44:47]', 's[48:51]', 's[52:55]', 's[56:59]'
POLLMAX = 0x8000
BARPOS = [.45, .7, .9, 1.0, 1.0, 1.0, 1.0]
PPOS, NPH, B1P, RBU, B3B = 8, 16, 22, 4, 0
RB7, RB8, RB9, RB10, B0P, N2 = 8, 14, 23, 30, 0, 5
FLAG0 = 31
ROT = [40, 27, 0, 0]
SPRIO = 0
FLAG1 = 14
THR = None
NOBP = 2
KPRIO = 1
LORD = [2, 3, 4, 5, 0, 1, 6, 7]
XHOOK = 0.03
TOUCH = [0.05, 0.07, 0.3, 0.5]
TLN = [0, 0]
GT = 20
SLP = 4
XST = 2
XI, WI = 228, 164
XPOS = 7
NL0, NL1 = 0, 8
THR0 = None
FRONT = 0
PK = 1
LNP = [-1, 0]
NLATE = 0
NFIN = 2
CHAIN = 1
CPRIO = 1
PRE2 = 8
PRE1, GPOS, PLOW = 2, 1, 2
W1T = 0
SB = [1]
RWAIT = 4
TPRIO = 1
SWAP = 1
XEARLY = 1
WFIRST = 1
SA = 84
OUTAUX = ''
import os
SELS = {
 'main': {'G': [0, 'b0', 'b9', 5, 6, 7, 10, 11, 12], 'S': [0, 2, 3, 'st', 5, 6, 'R', 8, 10]},
 'start': {'G': [0, 'd0', 'd1', 'd2', 'w0', 'b0', 'b1', 'b2', 'b3'], 'S': [0, 'pl', 'a0', 2, 'ln', 'xs', 3, 4, 5]},
 'g1': {'G': [0, 'b0', 'b1', 'b2', 'b3', 'b4', 'b6', 'b8', 'b9'], 'S': [0, 2, 'xf', 3, 'st', 4, 5, 6, 'R']},
 'mid': {'G': [0, 'b9', 5, 't1', 't2', 't3', 'f0', 6, 7], 'S': [0, 3, 'r0', 4, 5, 6, 'r1', 'R', 7]},
 'ln': {'G': [0, 'b5', 'b6', 'b7', 'a8', 'b8', 'a9', 'w9', 'b9'], 'S': [0, 2, 'ln', 1, 'l4', 'xs', 'xf', 3, 'st']},
 'g2': {'G': [0, 's0', 's2', 's5', 's8', 's11', 's14', 's17', 's21'], 'S': [0, 7, 8, 9, 10, 11, 12]},
 'bad': {'G': [0, 'b9', 7, 'f1', 10, 8, 11], 'S': [0, 'r0', 'xf', 3, 5, 6]},
 'clk': {'G': [0, 'b1', 'b4', 'b6', 'b9'], 'S': [0]},
 'clk2': {'G': [0, 'b9', 7, 11, 12], 'S': [0]},
 'none': {'G': [0, 'b0', 'b2', 'b9', 7, 11, 12], 'S': [0, 2, 'xs', 3, 7, 9]},
 'end': {'G': [0, 7, 'f1', 10, 8, 9, 11, 12, 13], 'S': [0, 7, 8, 9, 10, 'h1', 11, 12]},
}
CLK = 's_memtime' if os.environ.get('CYC') else 's_memrealtime'
SEL = SELS[os.environ.get('SEL', 'main')]
SEL['N'] = SEL['S']
for _k in ('BARPOS', 'XHOOK', 'XST', 'XPOS', 'NL0', 'NL1', 'FLAG0', 'FLAG1', 'THR', 'SLP', 'TOUCH', 'TLN', 'GT', 'SA', 'OUTAUX', 'RB8', 'RB9', 'PPOS', 'NPH', 'B1P', 'RBU', 'ROT', 'NOBP', 'THR0', 'FRONT', 'PK', 'LNP', 'PRE2', 'PRE1', 'GPOS', 'PLOW', 'W1T', 'SB', 'RWAIT', 'RB7', 'RB10', 'B0P', 'N2', 'NLATE', 'NFIN', 'CHAIN', 'CPRIO', 'TPRIO', 'SWAP', 'XEARLY', 'WFIRST', 'KPRIO', 'SPRIO', 'B3B'):
    if os.environ.get(_k): globals()[_k] = eval(os.environ[_k])
NLN = min(64, -(-(15360 - 96 * GT) // (64 * max(1, len(TOUCH) + sum(TLN)))))
class G:
    def __init__(self, stamps=False, opts=()):
        self.a = Asm(); self.stamps = stamps; self.nlab = 0; self.opts = set(opts); self.sel = None
        self.AMP = ([o[4:].split(',') for o in opts if o.startswith('amp=')] or [None])[0]
    def lab(self, p='L'):
        self.nlab += 1; return '%s%d' % (p, self.nlab)
    def stamp(self, k):
        if self.AMP and str(k) == self.AMP[0]: self.a('s_memrealtime s[94:95]')
        if self.AMP and str(k) == self.AMP[1]: self.a('s_memrealtime s[92:93]')
        if 'padat=%s' % k in self.opts: self.a('s_memrealtime s[96:97]')
        if self.stamps and k in self.sel:
            i = self.sel.index(k); self.a('%s s[%d:%d]' % (CLK, 80 + 2 * i, 81 + 2 * i))
            if os.environ.get('BOTH'): self.a('s_memtime s[%d:%d]' % (88 + 2 * i, 89 + 2 * i))
    def dump_stamps(self):
        if not self.stamps: return
        a = self.a
        a('s_lshl_b32 s60, s2, 3\ns_add_u32 s60, s60, s%d\ns_lshl_b32 s60, s60, 6\ns_add_u32 s60, s60, %d' % (sWV, DBG))
        a('s_mov_b64 exec, -1\nv_mov_b32 v0, 0')
        a('s_memtime s[76:77]\n' + CLK + ' s[98:99]\ns_waitcnt lgkmcnt(0)\ns_sub_u32 s100, s76, s100')
        for k in range(11):
            a('v_mov_b32 v1, s%d\nbuffer_store_dword v1, v0, %s, s60 offen offset:%d' % (80 + 2 * k, WS_, 4 * k))
    def poll(self, load, check):
        L = self.lab('P'); E = self.lab('PE')
        self.a('s_mov_b32 s79, 0\n%s:\n%s\ns_add_u32 s79, s79, 1\ns_waitcnt vmcnt(0)\n%s\ns_cbranch_vccz %s\ns_sleep %d\ns_cmp_gt_u32 s79, %d\ns_cbranch_scc0 %s\n%s:' % (L, load, check, E, SLP, POLLMAX, L, E))
    def spoll(self, n, off):
        a = self.a
        D = list(range(64, 76)) + [16, 17, 18, 19]
        L = self.lab('SP'); E = self.lab('SE')
        a('s_add_u32 s22, s32, s%d\ns_addc_u32 s23, s33, 0\ns_mov_b32 s79, 0\n%s:' % (off, L))
        for i in range(n): a('s_load_dword s%d, s[22:23], %d glc' % (D[i], 128 * i))
        a('s_add_u32 s79, s79, 1\ns_waitcnt lgkmcnt(0)\ns_xor_b32 s76, s%d, s21' % D[0])
        for i in range(1, n): a('s_xor_b32 s77, s%d, s21\ns_or_b32 s76, s76, s77' % D[i])
        a('s_cbranch_scc0 %s\ns_sleep %d\ns_cmp_gt_u32 s79, %d\ns_cbranch_scc0 %s\n%s:' % (E, SLP, POLLMAX, L, E))
    def nonce0(self): self.a('s_mov_b32 s76, %d\ns_load_dword s21, s[32:33], s76' % EP)
    def nonce2(self): return 's_mul_i32 s21, s21, 0x9e3779b1\ns_add_u32 s21, s21, 0x7f4a7c15'
    def flag(self, v, soff):
        return 's_mov_b64 exec, 0xff\nbuffer_store_dwordx4 v[%d:%d], v%d, %s, s%d offen sc1\ns_mov_b64 exec, -1' % (v, v + 3, v + 4, WS_, soff)
    def flag_regs(self, v):
        return ['v_mov_b32 v%d, s21' % (v + i) for i in range(4)] + ['v_lshlrev_b32 v%d, 4, v1' % (v + 4)]
    def prologue(self):
        a = self.a
        a('''s_cmp_ge_u32 s2, 256
        s_cbranch_scc1 L_END
        s_load_dwordx16 s[4:19], s[0:1], 0
        s_load_dwordx8 s[20:27], s[0:1], 64
        s_load_dwordx4 s[28:31], s[0:1], 96
        s_load_dwordx2 s[32:33], s[0:1], 112''')
        if self.stamps:
            a('s_memtime s[100:101]\n' + CLK + ' s[80:81]')
            for k in range(1, 10): a('s_mov_b32 s%d, 0' % (80 + 2 * k))
        if self.AMP: a('s_memrealtime s[96:97]\ns_memrealtime s[94:95]\ns_memrealtime s[92:93]')
        if 'span' in self.opts or any(o.startswith('pad=') for o in self.opts): a('s_memrealtime s[96:97]\ns_memtime s[100:101]')
        a('''v_lshrrev_b32 v2, 6, v0
        v_and_b32 v1, 63, v0
        s_and_b32 s35, s2, 7
        v_readfirstlane_b32 s34, v2
        s_lshr_b32 s36, s2, 3
        s_xor_b32 s34, s34, %d''' % (4 if SWAP else 0))
    def srds(self, wait=True):
        self.a('''s_mov_b32 s42, %d
        s_mov_b32 s43, 0x20000
        s_mov_b32 s46, %d
        s_mov_b32 s47, 0x20000
        s_mov_b32 s50, %d
        s_mov_b32 s51, 0x20000
        s_mov_b32 s54, %d
        s_mov_b32 s55, 0x20000
        s_mov_b32 s58, %d
        s_mov_b32 s59, 0x20000''' % (2048 * 1280, 640 * 3072, 1536 * 1280, WS_BYTES, 2048 * 1280))
        if wait: self.a('s_waitcnt lgkmcnt(0)')
        self.a('''s_mov_b32 s40, s4
        s_mov_b32 s41, s5
        s_mov_b32 s44, s20
        s_mov_b32 s45, s21
        s_mov_b32 s48, s24
        s_mov_b32 s49, s25
        s_mov_b32 s52, s32
        s_mov_b32 s53, s33
        s_mov_b32 s56, s28
        s_mov_b32 s57, s29''')
        self.stamp('srd')
    def g1_ids(self, rb, cb, rot, adv=0):
        self.a("""s_mul_i32 s68, s36, 43
        s_lshr_b32 s68, s68, 8
        s_mul_i32 s69, s68, 6
        s_sub_u32 s69, s36, s69
        s_lshr_b32 s64, s35, 1
        s_and_b32 s65, s35, 1
        s_lshl_b32 s{rb}, s64, 2
        s_add_u32 s{rb}, s{rb}, s68
        s_mul_i32 s{cb}, s65, 6
        s_add_u32 s{cb}, s{cb}, s69
        s_mov_b32 s{rot}, {adv}""".format(rb=rb, cb=cb, rot=rot, adv=adv))
        for r, m in zip((68, 69, 64, 65), ROT):
            if m: self.a('s_mul_i32 s66, s%d, %d\ns_lshr_b32 s66, s66, 4\ns_add_u32 s%d, s%d, s66' % (r, m, rot, rot))
        self.a('s_mul_i32 s66, s{r}, 26\ns_lshr_b32 s66, s66, 8\ns_mul_i32 s66, s66, 10\ns_sub_u32 s{r}, s{r}, s66'.format(r=rot))
    def tile_ids(self):
        self.a("""s_cmp_ge_u32 s36, 10
        s_cselect_b32 s62, 1, 0
        s_mul_i32 s63, s62, 10
        s_sub_u32 s63, s36, s63
        s_lshl_b32 s66, s35, 1
        s_add_u32 s62, s62, s66""")
    def g1_voff(self, VX, VW, wv, rb, cb, t):
        a = self.a
        a("""s_lshl_b32 s76, s{rb}, 7
        s_lshl_b32 s77, s{wv}, 5
        s_add_u32 s76, s76, s77
        s_mul_i32 s76, s76, 1280
        v_lshrrev_b32 v{t0}, 3, v1
        v_mul_u32_u24 v{t0}, 1280, v{t0}
        v_lshrrev_b32 v{t1}, 4, v1
        v_xor_b32 v{t2}, v{t1}, v1
        v_and_b32 v{t2}, 7, v{t2}
        v_lshl_add_u32 v{t0}, v{t2}, 4, v{t0}
        v_add_u32 v{x0}, s76, v{t0}
        v_xor_b32 v{t0}, 64, v{x0}
        v_add_u32 v{x1}, {d1}, v{t0}
        v_add_u32 v{x2}, {d2}, v{x0}
        v_add_u32 v{x3}, {d3}, v{t0}
        s_mul_i32 s76, s{wv}, {w16}
        s_lshl_b32 s77, s{cb}, 8
        s_add_u32 s76, s76, s77
        v_mul_u32_u24 v{t0}, 3072, v{t1}
        v_lshlrev_b32 v{t2}, 2, v{t1}
        v_xor_b32 v{t2}, v{t2}, v1
        v_and_b32 v{t2}, 15, v{t2}
        v_lshl_add_u32 v{t0}, v{t2}, 4, v{t0}
        v_add_u32 v{w0}, s76, v{t0}
        v_xor_b32 v{t0}, 16, v{w0}
        v_add_u32 v{w1}, {e1}, v{w0}
        v_add_u32 v{w2}, {e2}, v{t0}
        v_add_u32 v{w3}, {e3}, v{t0}
        s_lshl_b32 s67, s{wv}, 12""".format(rb=rb, cb=cb, wv=wv, t0=t, t1=t + 1, t2=t + 2, x0=VX, x1=VX + 1, x2=VX + 2, x3=VX + 3, w0=VW, w1=VW + 1, w2=VW + 2, w3=VW + 3,
            d1=8 * 1280 - 1024, d2=16 * 1280 - 2048, d3=24 * 1280 - 3072, w16=16 * 3072, e1=4 * 3072 - 1024, e2=8 * 3072 - 2048, e3=12 * 3072 - 3072))
    def g1_dma(self, stage, VX, VW, rot, wfirst=False):
        idx = stage % 4
        lx, lw = [], []
        for i in range(4):
            pre = 's_add_u32 m0, s67, %d\ns_lshl_b32 s76, s%d, 7\n' % (idx * 16384, rot) if i == 0 else ''
            lx.append(pre + 'buffer_load_dwordx4 v%d, %s, s76 offen offset:%d lds' % (VX + i, X_, 1024 * i))
            pre = 's_add_u32 m0, s67, %d\ns_mul_i32 s77, s%d, %d\n' % (65536 + idx * 16384, rot, 64 * 3072) if i == 0 else ''
            lw.append(pre + 'buffer_load_dwordx4 v%d, %s, s77 offen offset:%d lds' % (VW + i, W1_, 1024 * i))
        l = lw + lx if wfirst else lx + lw
        l[7] += '\ns_add_u32 s{r}, s{r}, 1\ns_cmp_eq_u32 s{r}, 10\ns_cselect_b32 s{r}, 0, s{r}'.format(r=rot)
        return l
    def g2_offsets(self):
        a = self.a
        a('s_lshl_b32 s4, s63, 10')
        for i in range(1, 12):
            a('s_add_u32 s%d, s%d, 1024\ns_cmp_eq_u32 s%d, 12288\ns_cselect_b32 s%d, 0, s%d' % (4 + i, 3 + i, 4 + i, 4 + i, 4 + i))
    def w2_voff(self, v0, wv, t):
        self.a("""s_lshr_b32 s76, s{wv}, 1
        s_mul_i32 s76, s76, {khs}
        s_and_b32 s77, s{wv}, 1
        s_mul_i32 s77, s77, {r16}
        s_add_u32 s76, s76, s77
        s_lshl_b32 s77, s63, 7
        s_add_u32 s76, s76, s77
        v_lshrrev_b32 v{t}, 3, v1
        v_mul_u32_u24 v{v0}, 1280, v{t}
        v_lshrrev_b32 v{t}, 4, v1
        v_lshlrev_b32 v{t}, 1, v{t}
        v_xor_b32 v{t}, v{t}, v1
        v_and_b32 v{t}, 7, v{t}
        v_lshl_add_u32 v{v0}, v{t}, 4, v{v0}
        v_add_u32 v{v0}, s76, v{v0}
        v_add_u32 v{v1}, {d}, v{v0}
        s_lshl_b32 s78, s{wv}, 11""".format(wv=wv, khs=24 * 32 * 1280, r16=16 * 1280, t=t, v0=v0, v1=v0 + 1, d=8 * 1280 - 1024))
    def w2_dma(self, step, slot, v0):
        part, i = step // 12, step % 12
        return ['s_add_u32 m0, s78, %d\ns_mul_i32 s76, s%d, 80\n%sbuffer_load_dwordx4 v%d, %s, s76 offen lds' % (slot * 8192, 4 + i, 's_add_u32 s76, s76, 40960\n' if part else '', v0, W2_),
                'buffer_load_dwordx4 v%d, %s, s76 offen offset:1024 lds' % (v0 + 1, W2_)]
    def w2_round(self, units, v0, thr=None):
        l = []
        for st, sl in units:
            d = self.w2_dma(st, sl, v0)
            if thr is not None: d[0] = 's_waitcnt vmcnt(%d)\n' % thr + d[0]
            l += d
        return l
    def gwave(self, entry=False):
        a = self.a
        NT = 4
        VX, VW, RX, RW = 16, 20, 24, 26
        VBA, VXR, VAA, VSA = 30, 128, 129, 130
        XB, WB = [32, 64], 96
        VB2, VXI = 12, 240
        T, P, KC = 208, 224, 228
        TR, RF, A2, HR = 4, 16, 144, 208
        acc1 = lambda mt, nt: 144 + 32 * (mt >> 1) + 8 * nt + 4 * (mt & 1)
        acc = lambda t, nt: A2 + 32 * (t >> 1) + 8 * nt + 4 * (t & 1)
        dma = lambda st, wf=False: self.g1_dma(st, VX, VW, 39, wf)
        d1 = dma(1, WFIRST)
        if entry:
            a('s_setprio 1')
            self.g1_ids(37, 38, 39)
            self.g1_voff(VX, VW, 34, 37, 38, 2)
            a('s_mov_b32 s42, %d\ns_mov_b32 s43, 0x20000\ns_mov_b32 s46, %d\ns_mov_b32 s47, 0x20000\ns_waitcnt lgkmcnt(0)\ns_mov_b32 s40, s4\ns_mov_b32 s41, s5\ns_mov_b32 s44, s20\ns_mov_b32 s45, s21' % (2048 * 1280, 640 * 3072))
            for x in dma(0) + d1[:PRE1]: a(x)
            self.stamp('d0')
            if PLOW == 2: a('s_setprio 0')
            a('s_branch L_G')
            return
        for x in d1[PRE1:4]: a(x)
        self.srds(False)
        self.nonce0()
        self.tile_ids()
        a('s_and_b32 s60, s34, 1\ns_lshr_b32 s61, s34, 1')
        a("""v_and_b32 v8, 31, v1
        v_lshrrev_b32 v9, 5, v1
        v_and_b32 v10, 15, v1
        v_lshrrev_b32 v11, 4, v1
        v_bfe_u32 v12, v1, 4, 1
        v_bfe_u32 v13, v1, 2, 2
        v_and_b32 v14, 3, v1""")
        a("""v_lshrrev_b32 v4, 1, v10
        v_xor_b32 v4, v4, v11
        v_lshlrev_b32 v4, 4, v4
        v_lshl_add_u32 v4, v10, 7, v4
        s_lshl_b32 s76, s61, 13
        v_add_u32 v{x0}, s76, v4
        v_xor_b32 v{x1}, 64, v{x0}""".format(x0=RX, x1=RX + 1))
        a("""v_lshl_add_u32 v5, v11, 3, v13
        v_lshlrev_b32 v5, 8, v5
        s_lshl_b32 s76, s60, 1
        v_xor_b32 v4, s76, v13
        v_lshl_add_u32 v5, v4, 6, v5
        v_lshrrev_b32 v4, 1, v14
        v_lshl_add_u32 v5, v4, 5, v5
        v_lshl_add_u32 v5, v12, 4, v5
        v_and_b32 v4, 1, v1
        v_lshl_add_u32 v5, v4, 3, v5
        v_add_u32 v{w0}, 0x10000, v5
        v_xor_b32 v{w1}, 16, v{w0}
        v_xor_b32 v{w2}, 64, v{w0}
        v_xor_b32 v{w3}, 80, v{w0}""".format(w0=RW, w1=RW + 1, w2=RW + 2, w3=RW + 3))
        a("""v_lshrrev_b32 v4, 3, v10
        v_lshlrev_b32 v4, 8, v4
        v_and_b32 v5, 7, v1
        v_lshl_add_u32 v4, v5, 4, v4
        v_lshlrev_b32 v5, 11, v11
        s_lshl_b32 s76, s60, 10
        s_add_u32 s76, s76, {lu}
        v_add3_u32 v{aa}, v4, v5, s76
        s_lshl_b32 s76, s61, 11
        s_add_u32 s76, s76, {st}
        v_lshl_add_u32 v{sa}, v10, 5, s76""".format(lu=L_U + 1024, st=L_ST, aa=VAA, sa=VSA))
        a("""v_lshlrev_b32 v2, 4, v1
        s_lshl_b32 s76, s37, 1
        s_add_u32 s76, s76, s61
        s_mul_i32 s68, s76, {b4}
        s_mul_i32 s3, s76, 3072
        s_lshl_b32 s76, s38, 1
        s_add_u32 s76, s76, s60
        s_lshl_b32 s77, s76, 10
        s_add_u32 s68, s68, s77
        s_add_u32 s68, s68, {hh}
        s_lshl_b32 s76, s76, 7
        s_add_u32 s3, s3, s76
        s_add_u32 s3, s3, {fh}""".format(b4=4 * 49152, hh=HH, fh=FH))
        a("""s_lshl_b32 s76, s62, 1
        s_add_u32 s76, s76, s61
        s_mul_i32 s72, s76, {r64}
        s_mul_i32 s73, s76, {b4}
        s_mul_i32 s66, s76, 3072
        s_mul_i32 s77, s60, 12288
        s_add_u32 s73, s73, s77
        s_add_u32 s73, s73, {hh}
        s_mul_i32 s77, s60, 1536
        s_add_u32 s66, s66, s77
        s_add_u32 s66, s66, {fh}
        s_min_u32 s76, s63, 9
        s_lshl_b32 s76, s76, 7
        s_lshl_b32 s77, s60, 6
        s_add_u32 s76, s76, s77
        s_add_u32 s72, s72, s76
        v_lshlrev_b32 v4, 5, v12
        v_lshl_add_u32 v4, v9, 4, v4
        v_mul_u32_u24 v5, 1280, v10
        v_add_u32 v3, v4, v5
        v_add_u32 v{ba}, s76, v4""".format(r64=64 * 1280, b4=4 * 49152, hh=HH, fh=FH, ba=VBA + 1))
        a("""v_lshl_add_u32 v4, v12, 1, v9
        s_lshl_b32 s76, s60, 2
        v_lshrrev_b32 v5, 1, v10
        v_xor_b32 v4, v4, v5
        v_xor_b32 v4, s76, v4
        v_lshlrev_b32 v4, 4, v4
        v_lshl_add_u32 v4, v10, 7, v4
        s_mul_i32 s76, s61, 8320
        s_add_u32 s76, s76, %d
        v_add_u32 v%d, s76, v4""" % (L_TAB, VXR))
        a("""v_lshl_add_u32 v15, v12, 2, v13
        v_lshrrev_b32 v5, 1, v15
        v_lshl_add_u32 v15, v9, 4, v15
        v_lshlrev_b32 v15, 7, v15
        s_lshl_b32 s76, s60, 1
        v_xor_b32 v5, s76, v5
        v_lshl_add_u32 v15, v5, 5, v15
        v_lshl_add_u32 v15, v14, 3, v15
        s_lshl_b32 s76, s60, 12
        s_add_u32 s76, s76, 0x10000
        v_add_u32 v4, s76, v15
        v_xor_b32 v5, 32, v4
        v_xor_b32 v6, 64, v4
        v_xor_b32 v7, 96, v4""")
        self.w2_voff(8, sWV, 10)
        self.g2_offsets()
        a('global_load_dwordx4 v[%d:%d], v%d, s[26:27]' % (VB2, VB2 + 3, VBA + 1))
        for x in d1[4:]: a(x)
        self.stamp('d1')
        d2 = dma(2) + dma(3)
        for x in d2[:PRE2]: a(x)
        if GT:
            a('''s_lshl_b32 s70, s36, 2
            s_add_u32 s70, s70, s34
            s_mul_i32 s70, s70, {n}
            s_mul_i32 s71, s35, 1920
            s_add_u32 s70, s70, s71
            v_min_u32 v131, {n1}, v1
            v_add_lshl_u32 v131, v131, s70, 7
            v_add_u32 v132, {w}, v131
            v_min_u32 v131, v131, v132
            buffer_load_dword v132, v131, {w2}, 0 offen'''.format(n=GT, n1=GT - 1, w=-15360 * 128, w2=W2_))
        if PLOW == 2: a('s_setprio 1')
        self.stamp('d2')
        def xreads(st):
            return ['ds_read_b128 v[%d:%d], v%d offset:%d' % (XB[st & 1] + 8 * nt + 4 * ks, XB[st & 1] + 8 * nt + 4 * ks + 3, RX + ks, (st % 4) * 16384 + 2048 * nt) for nt in range(4) for ks in range(2)]
        def wreads(st, p):
            return ['ds_read_b64_tr_b16 v[%d:%d], v%d offset:%d' % (WB + 8 * mt + 4 * ks + 2 * e, WB + 8 * mt + 4 * ks + 2 * e + 1, RW + mt, (st % 4) * 16384 + 8192 * ks + 1024 * e)
                    for mt in (2 * p, 2 * p + 1) for ks in range(2) for e in range(2)]
        def mfmas(st, p):
            l = []
            for mt in (2 * p, 2 * p + 1):
                for nt in range(4):
                    for ks in range(2):
                        c = 'v[%d:%d]' % (acc1(mt, nt), acc1(mt, nt) + 3); w = WB + 8 * mt + 4 * ks; x = XB[st & 1] + 8 * nt + 4 * ks
                        l.append('v_mfma_f32_16x16x32_bf16 %s, v[%d:%d], v[%d:%d], %s' % (c, w, w + 3, x, x + 3, '0' if st == 0 and ks == 0 else c))
            return l
        def weave(mm, rd, n2):
            for i, m in enumerate(mm):
                a(m)
                k = 2 if i < n2 else 1
                for x in rd[:k]: a(x)
                rd = rd[k:]
            assert not rd
        AUA, AUB = XB[0], XB[0] + 16
        vm = [0] * 8 + [1] * 4 + ['b'] + [1] * 4 + ([2] * 8 + [3] * 8)[:PRE2] + ['t'] * (GT > 0)
        assert PRE2 >= 8
        for st in range(11):
            self.stamp('a%d' % st)
            w = ''
            if st in vm:
                k = len(vm) - vm[::-1].index(st); vm = vm[k:]; w = 'vmcnt(%d) ' % len(vm)
            a('s_waitcnt %slgkmcnt(0)' % w)
            self.stamp('w%d' % st)
            a('s_barrier')
            self.stamp('b%d' % st)
            if st == 10: break
            w0, xr = wreads(st, 0), xreads(st)
            rd = w0[:4] + xr + w0[4:]
            if st == 0:
                for x in rd: a(x)
                a(self.nonce2())
            elif st == 1:
                d3 = dma(4); vm += [4] * 8; weave(mfmas(0, 1), rd + d3[:4], 6)
            else: weave(mfmas(st - 1, 1), rd, N2)
            a('s_waitcnt lgkmcnt(0)')
            rd = wreads(st, 1)
            if st == 0: rd += d2[PRE2:]; vm += [3] * (16 - PRE2)
            if st == 1: rd = interleave(rd, d3[4:], every=2)
            if st == 7: rd += ['ds_read_b128 v[%d:%d], v%d offset:%d' % (VXI + 4 * nt, VXI + 4 * nt + 3, VXR, 4160 * (nt >> 1) + 2048 * (nt & 1)) for nt in range(NT)]
            weave(mfmas(st, 0), rd, 0)
        rd = ['ds_read_b128 v[%d:%d], v%d offset:%d' % (AUA + 4 * mt, AUA + 4 * mt + 3, VAA, 512 * (mt >> 1) + 128 * (mt & 1)) for mt in range(4)]
        rd += ['ds_read_b128 v[%d:%d], v%d offset:%d' % (AUB + 4 * nt, AUB + 4 * nt + 3, VSA, 512 * nt) for nt in range(4)]
        rd += ['ds_read_b64 v[%d:%d], v%d offset:%d' % (KC + 2 * nt, KC + 2 * nt + 1, VSA, 512 * nt + 16) for nt in range(4)]
        rd += ['ds_read_b32 v%d, v%d offset:%d' % (KC + 8 + nt, VSA, 512 * nt + 24) for nt in range(4)]
        weave(mfmas(9, 1), rd, 5)
        a('s_waitcnt lgkmcnt(0)')
        for p in (0, 1):
            for nt in range(4):
                for mt in (2 * p, 2 * p + 1):
                    c = 'v[%d:%d]' % (acc1(mt, nt), acc1(mt, nt) + 3)
                    a('v_mfma_f32_16x16x32_bf16 %s, v[%d:%d], v[%d:%d], %s' % (c, AUA + 4 * mt, AUA + 4 * mt + 3, AUB + 4 * nt, AUB + 4 * nt + 3, c))
        self.stamp(5)
        def gelu(part, nt):
            q = acc1(2 * part, nt); k = KC + 2 * nt; dl = KC + 8 + (nt & 2); o = nt & 1; t = T + 8 * (nt & 1)
            pr = lambda b, i: 'v[%d:%d]' % (b + 2 * i, b + 2 * i + 1)
            A = ['v_pk_mul_f32 %s, %s, %s' % (pr(t, i), pr(q, i), pr(q, i)) for i in range(4)]
            B = ['v_pk_fma_f32 %s, %s, v[%d:%d], v[%d:%d] op_sel:[0,0,1] op_sel_hi:[1,0,1]' % (pr(t, i), pr(t, i), k, k + 1, k, k + 1) for i in range(4)]
            C = ['v_pk_mul_f32 %s, %s, %s' % (pr(t, i), pr(t, i), pr(q, i)) for i in range(4)]
            E = ['v_exp_f32 v%d, v%d' % (t + i, t + i) for i in range(8)]
            D = ['v_pk_fma_f32 %s, %s, v[%d:%d], v[%d:%d] op_sel:[0,%d,%d] op_sel_hi:[1,%d,%d]' % (pr(t, i), pr(t, i), dl, dl + 1, dl, dl + 1, o, o, o, o) for i in range(4)]
            R = ['v_rcp_f32 v%d, v%d' % (t + i, t + i) for i in range(8)]
            Gc = ['v_cvt_pk_bf16_f32 v%d, v%d, v%d' % (P + i, t + 2 * i, t + 2 * i + 1) for i in range(4)]
            Gc[2] += '\ns_add_u32 s69, s68, %d' % (nt * 49152 + part * 24576)
            Gc[3] += '\nbuffer_store_dwordx4 v[%d:%d], v2, %s, s69 offen sc1' % (P, P + 3, WS_) if 'nost' not in self.opts else '\ns_nop 0 ; buffer_store'
            return A, B, C, E, D, R, C, Gc
        def gelu_stream(tiles):
            A, B, C, E, D, R, F, Gc = [sum((gelu(*t)[i] for t in tiles), []) for i in range(8)]
            g = lambda L, j: [L[j]] if 0 <= j < len(L) else []
            return [g(A, i + 2) + g(E, 2 * i) + g(B, i + 2) + g(E, 2 * i + 1) + g(C, i + 2) + g(D, i - 1) + g(R, 2 * i - 4) + g(F, i - 3) + g(R, 2 * i - 3) + g(Gc, i - 4)
                    for i in range(-2, 4 * len(tiles) + 4)]
        def trreads(buf, slot):
            return ['ds_read_b64_tr_b16 v[%d:%d], v%d offset:%d' % (RF + 16 * buf + 4 * t + 2 * e, RF + 16 * buf + 4 * t + 2 * e + 1, TR + t, (slot % 8) * 8192 + 1024 * e) for t in range(4) for e in range(2)]
        FV = 144
        flag = self.flag(FV, 3) + '\ns_add_u32 s3, s3, %d' % (32 * 3072)
        rr = []
        for b in range(8): rr += trreads(b, b)
        nst = 0
        for i, grp in enumerate(gelu_stream([(p, nt) for p in range(2) for nt in range(4)])):
            if i == B0P: a('s_barrier')
            if i == B1P:
                self.stamp('t2')
                a('s_barrier')
            if i == FLAG0:
                assert nst >= 4
                for x in self.flag_regs(FV): a(x)
                self.stamp('t3')
                a('s_waitcnt vmcnt(%d)' % (nst - 4)); a(flag); self.stamp('f0')
            if i == 10: self.stamp('t1')
            if i >= B1P:
                for x in rr[:RBU]:
                    if 'norr' not in self.opts: a(x)
                rr = rr[RBU:]
            for x in grp:
                a(x); nst += 'buffer_store' in x
        assert not rr
        self.stamp(6)
        a('s_waitcnt lgkmcnt(0)\ns_barrier')
        self.stamp(7)
        a("""s_cmp_lt_u32 s36, 20
        s_cbranch_scc1 L_G2
        s_waitcnt vmcnt(0)
        {flag}
        s_branch L_FIN
        L_G2:""".format(flag=flag))
        ini = []
        for r in [VB2] + [VXI + 4 * nt for nt in range(NT)]:
            ini += ['v_permlane16_swap_b32 v%d, v%d' % (r, r + 2), 'v_permlane16_swap_b32 v%d, v%d' % (r + 1, r + 3)]
        for i in range(4):
            ini += ['v_lshlrev_b32 v%d, 16, v%d' % (T + 2 * i, VB2 + i), 'v_and_b32 v%d, 0xffff0000, v%d' % (T + 2 * i + 1, VB2 + i)]
        for nt in range(NT):
            for i in range(4):
                s = VXI + 4 * nt + i; o = acc(0, nt) + 2 * i
                ini += ['v_lshlrev_b32 v%d, 16, v%d' % (o, s), 'v_and_b32 v%d, 0xffff0000, v%d' % (o + 1, s),
                        'v_add_f32 v%d, v%d, v%d' % (o, o, T + 2 * i), 'v_add_f32 v%d, v%d, v%d' % (o + 1, o + 1, T + 2 * i + 1)]
        hpl = 'buffer_load_dword v2, v10, %s, s66 offen sc1' % WS_; hchk = 'v_cmp_ne_u32 vcc, s21, v2'
        a('v_min_u32 v10, 11, v1\nv_lshlrev_b32 v10, 7, v10')
        flag = self.flag(176, 3)
        for x in self.flag_regs(176): a(x)
        dm = self.w2_round([(2 + k, k) for k in LORD[NL1:]] + [(10 + k, 8 + k) for k in range(8)], 8)
        d1 = dm[:NPH]
        d1.insert(PPOS, hpl)
        d1.insert(FLAG1, 's_waitcnt vmcnt(%d)\n' % FLAG1 + flag)
        for x in interleave(d1, ini, per=6): a(x)
        Lok = self.lab('OK')
        self.stamp('f1')
        a('s_waitcnt vmcnt(%d)\n%s\ns_cbranch_vccz %s' % (len(d1) - 1 - d1.index(hpl), hchk, Lok))
        self.poll(hpl, hchk)
        a('%s:' % Lok)
        self.stamp(10)
        a("""v_lshl_add_u32 v12, v1, 4, s73
        v_add_u32 v13, 49152, v12
        v_add_u32 v14, %d, v12
        v_add_u32 v15, %d, v12""" % (2 * 49152, 3 * 49152))
        RING = 3 * NT; NJ = 24 * NT
        def hload(j):
            s, nt = j // NT, j % NT
            r = HR + 16 * (s % 3) + 4 * nt
            if 'noh' in self.opts and j >= RING: return 's_nop 0'
            if 'hsame' in self.opts: return 'buffer_load_dwordx4 v[%d:%d], v%d, %s, s%d offen sc1' % (r, r + 3, 12 + nt, WS_, 4 + s % 3)
            return ('v_add_u32 v%d, 24576, v%d\n' % (12 + nt, 12 + nt) if s == 12 else '') + 'buffer_load_dwordx4 v[%d:%d], v%d, %s, s%d offen %s' % (r, r + 3, 12 + nt, WS_, 4 + s % 12, '' if 'hplain' in self.opts else 'sc1')
        RING = 3 * NT; NJ = 24 * NT
        for j in range(RING): a(hload(j))
        for x in dm[NPH:]: a(x)
        self.stamp(8)
        a("""s_lshl_b32 s76, s34, 13
        v_lshl_add_u32 v2, v1, 4, s76
        v_bfe_u32 v10, v1, 2, 3
        s_lshl_b32 s76, s61, 2
        v_xor_b32 v10, s76, v10
        v_lshlrev_b32 v10, 5, v10
        v_lshrrev_b32 v11, 2, v1
        v_lshl_add_u32 v10, v11, 8, v10
        v_and_b32 v11, 3, v1
        v_lshl_add_u32 v10, v11, 3, v10
        s_mul_i32 s16, s60, 8320
        s_add_u32 s16, s16, %d""" % L_TAB)
        self.stamp(9)
        def wbuf(s): return s if s < 2 else (s - 16 if s >= 18 else (s & 1))
        vm = list(range(RING)) + ['D'] * (len(dm) - NPH)
        assert NL1 == 8
        AZ = RF
        JF = 12 * NT - RING + 1
        extra = []
        for s in range(24):
            wb = RF + 16 * wbuf(s); nxt = s + 1; rd = []
            if 2 <= nxt < 18:
                if nxt in (2, 10): extra += ['v_add_u32 v%d, %s, v%d' % (r, '0x10000' if nxt == 10 else '0xffff0000', r) for r in range(4, 8)]
                rd = trreads(wbuf(nxt), nxt - 2)
            if s == 18: extra += ['v_xor_b32 v%d, %d, v10' % (4 + nt, 32 * nt) for nt in range(NT)] + ['v_add_u32 v%d, s16, v%d' % (4 + nt, 4 + nt) for nt in range(NT)]
            if s == 9:
                assert 'D' not in vm and JF >= 9 * NT
                a('s_barrier')
            if nxt in (2, 10):
                for x in extra: a(x)
                extra = []
            wl = 2 <= s < 18
            order = [(s, nt, t) for nt in range(NT) for t in range(4)]
            if s > 24 - NFIN: continue
            if s == 24 - NFIN: order = [(z, nt, t) for tt in ((2, 3), (0, 1)) for z in range(s, 24) for nt in range(NT) for t in tt]
            nw = 0
            for k, (z, nt, t) in enumerate(order):
                j = z * NT + nt; wb = RF + 16 * wbuf(z)
                if j in vm:
                    n = len(vm) - 1 - vm.index(j); vm = vm[vm.index(j) + 1:]
                    a('s_waitcnt vmcnt(%d)' % n + (' lgkmcnt(0)' if wl else '')); wl = False
                r = HR + 16 * (z % 3) + 4 * nt
                c = 'v[%d:%d]' % (acc(t, nt), acc(t, nt) + 3)
                a('v_mfma_f32_16x16x32_bf16 %s, v[%d:%d], v[%d:%d], %s' % (c, wb + 4 * t, wb + 4 * t + 3, r, r + 3, '0' if (s == 0 and t >= 2) else c))
                if s == 24 - NFIN:
                    k2 = k - len(order) // 2
                    if k2 >= 0 and k2 % NFIN == 0:
                        a('ds_write_b128 v2, v[%d:%d] offset:%d' % (acc(2 + (nw & 1), nw // 2), acc(2 + (nw & 1), nw // 2) + 3, 1024 * nw)); nw += 1
                    continue
                if t == 1 and j >= 1 and j - 1 + RING < NJ:
                    a(hload(j - 1 + RING)); vm.append(j - 1 + RING)
                    if j == SA: a('s_barrier')
                elif rd and t != 3: a(rd.pop(0))
                elif rd and nt < 2: a(rd.pop(0))
                elif extra and t != 3:
                    a(extra.pop(0))
                    if extra: a(extra.pop(0))
            assert not rd
            if s == 0: self.stamp(11)
            self.stamp('s%d' % s)
        self.stamp(12)
        for x in extra: a(x)
        a('v_xor_b32 v2, 0x2000, v2')
        a('s_waitcnt lgkmcnt(0)\ns_barrier')
        self.stamp(13)
        for nt in range(NT):
            for t in range(2):
                a('ds_read_b64_tr_b16 v[%d:%d], v%d offset:%d' % (AZ + 32 + 4 * nt + 2 * t, AZ + 33 + 4 * nt + 2 * t, 4 + nt, 4160 * t))
                a('ds_read_b128 v[%d:%d], v2 offset:%d' % (acc(2 + t, nt), acc(2 + t, nt) + 3, 1024 * (2 * nt + t)))
        for nt in range(NT):
            a('s_waitcnt lgkmcnt(%d)' % (4 * (NT - 1 - nt)))
            o = HR + 4 * nt; k = acc(0, nt)
            for d in range(4): a('v_lshlrev_b32 v%d, 16, v%d\nv_and_b32 v%d, 0xffff0000, v%d' % (AZ + 2 * d, AZ + 32 + 4 * nt + d, AZ + 2 * d + 1, AZ + 32 + 4 * nt + d))
            for d in range(4): a('v_pk_add_f32 v[%d:%d], v[%d:%d], v[%d:%d]' % (k + 2 * d, k + 2 * d + 1, k + 2 * d, k + 2 * d + 1, k + 32 + 2 * d, k + 33 + 2 * d))
            for d in range(4): a('v_pk_add_f32 v[%d:%d], v[%d:%d], v[%d:%d]' % (k + 2 * d, k + 2 * d + 1, k + 2 * d, k + 2 * d + 1, AZ + 2 * d, AZ + 2 * d + 1))
            for d in range(4): a('v_cvt_pk_bf16_f32 v%d, v%d, v%d' % (o + d, k + 2 * d, k + 2 * d + 1))
            a('s_add_u32 s76, s72, %d' % (nt * 16 * 1280))
            a('v_permlane16_swap_b32 v%d, v%d\nv_permlane16_swap_b32 v%d, v%d' % (o, o + 2, o + 1, o + 3))
            a('buffer_store_dwordx4 v[%d:%d], v3, %s, s76 offen %s' % (o, o + 3, OUT_, OUTAUX))
        self.stamp(14)
        a('s_branch L_FIN')

    def sn_entry(self):
        a = self.a
        a("""s_setprio 3
        s_cmp_ge_u32 s36, 24
        s_cselect_b32 s37, 1, 0
        s_cselect_b32 s76, 3, 1
        s_cselect_b32 s77, -48, 0
        s_lshr_b32 s78, s34, 1
        s_and_b32 s78, s78, s76
        s_add_u32 s76, s37, 1
        s_lshl_b32 s76, s36, s76
        s_mul_i32 s61, s35, 80
        s_add_u32 s61, s61, s76
        s_add_u32 s61, s61, s77
        s_add_u32 s61, s61, s78
        s_mul_i32 s76, s61, 384
        v_and_b32 v7, 31, v1
        v_mul_u32_u24 v2, 12, v7
        v_add_u32 v2, s76, v2
        s_lshl_b32 s66, s61, 1
        s_and_b32 s66, s66, 0xfffc""")
        if 'nocp' not in self.opts:
            L = self.lab('CP')
            a("""s_lshl_b32 s76, s37, 3
            s_add_u32 s76, s76, s34
            s_cmp_eq_u32 s76, 12
            s_cbranch_scc0 {L}
            s_getpc_b64 s[68:69]
            {L}pc:
            s_sub_u32 s68, s68, {L}pc-{n}
            s_subb_u32 s69, s69, 0
            s_sub_u32 s76, s36, 24
            s_lshl_b32 s76, s76, 12
            v_lshl_add_u32 v7, v7, 7, s76
            v_min_u32 v7, L_END-{n}, v7
            global_load_dword v255, v7, s[68:69]
            {L}:""".format(L=L, n=NAME))
        a('s_waitcnt lgkmcnt(0)')
        for k, p in enumerate((6, 8, 10, 12)):
            a('global_load_dwordx3 v[%d:%d], v2, s[%d:%d]' % (16 + 4 * k, 18 + 4 * k, p, p + 1))
        a('s_load_dword s72, s[14:15], s66\ns_load_dword s73, s[16:17], s66')
        self.stamp('pl')
        if PLOW: a('s_setprio 0')
        if GPOS == 1:
            a('s_branch L_S\nL_GE:'); self.sel = SEL['G']; self.gwave(True); self.sel = SEL['S']; a('L_S:')
        self.srds(False)
        self.nonce0()
        a("""s_and_b32 s60, s34, 1
        s_mov_b32 s38, {t1}
        s_mov_b32 s39, {u1}
        s_cmp_eq_u32 s37, 0
        s_cselect_b32 s38, {t0}, s38
        s_cselect_b32 s39, {u0}, s39
        s_mul_i32 s76, s78, 8320
        s_add_u32 s38, s38, s76
        s_lshr_b32 s76, s78, 1
        s_mul_i32 s76, s76, 9216
        s_and_b32 s77, s78, 1
        s_lshl_b32 s77, s77, 9
        s_add_u32 s39, s39, s76
        s_add_u32 s39, s39, s77
        s_lshl_b32 s62, s35, 3
        s_add_u32 s62, s62, s36
        s_sub_u32 s62, s62, 24
        s_lshl_b32 s63, s62, 5
        s_lshl_b32 s76, s34, 2
        s_add_u32 s63, s63, s76
        s_mul_i32 s64, s63, 1280
        v_mov_b32 v14, 0
        v_mov_b32 v15, 0
        v_lshrrev_b32 v4, 4, v1
        v_and_b32 v5, 15, v1
        v_mul_u32_u24 v6, 1280, v4
        v_lshl_add_u32 v248, v5, 4, v6""".format(t0=L_TAB, t1=N_TAB, u0=L_U, u1=N_U))
        a('s_cmp_lt_u32 s34, 4\ns_cselect_b32 s19, %d, %d\ns_cmp_eq_u32 s37, 0\ns_cselect_b32 s19, 3, s19' % tuple(LNP))
        if XEARLY: self.xloads()
        a('''s_sub_u32 s76, s36, 24
        s_lshl_b32 s76, s76, 3
        s_add_u32 s76, s76, s34
        s_mul_i32 s76, s76, {n}
        s_mul_i32 s77, s35, 1920
        s_add_u32 s76, s76, s77
        s_add_u32 s76, s76, {g}
        v_min_u32 v249, {n1}, v1
        v_add_lshl_u32 v249, v249, s76, 7'''.format(n=NLN, n1=NLN - 1, g=96 * GT))
        EX = 196 + 6; a = self.a
        a("""s_xor_b32 s76, s60, 1
        s_mul_i32 s76, s76, 4160
        s_add_u32 s76, s76, s38
        v_lshl_add_u32 v{e0}, v1, 4, s76
        s_mul_i32 s76, s60, 4160
        s_add_u32 s76, s76, s38
        v_lshl_add_u32 v{e1}, v1, 4, s76
        v_mov_b32 v{e3}, s76
        s_add_u32 s76, s76, 1008
        v_lshlrev_b32 v5, 4, v1
        v_sub_u32 v{e2}, s76, v5
        v_mov_b32 v8, 0
        v_mov_b32 v9, 0
        v_mov_b32 v10, 0
        v_mov_b32 v11, 0
        v_lshl_add_u32 v6, v1, 3, s39
        ds_write_b64 v6, v[8:9]
        s_mov_b64 exec, 7
        ds_write_b128 v{e1}, v[8:11] offset:4096
        s_mov_b64 exec, -1""".format(e0=EX, e1=EX + 1, e2=EX + 2, e3=EX + 3))
    def xloads(self):
        a = self.a
        Lx = self.lab('NX')
        a('s_cmp_eq_u32 s37, 0\ns_cbranch_scc1 %s' % Lx)
        for i in range(5): a('buffer_load_dwordx4 v[%d:%d], v248, %s, s64 offen offset:%d' % (XI + 4 * i, XI + 4 * i + 3, X_, 256 * i))
        a('%s:' % Lx)
    def cmul(self, d, x, w):
        return ['v_pk_mul_f32 v[%d:%d], v[%d:%d], v[%d:%d] op_sel:[1,1] op_sel_hi:[0,1] neg_lo:[0,1]' % (d[0], d[1], x[0], x[1], w[0], w[1]),
                'v_pk_fma_f32 v[%d:%d], v[%d:%d], v[%d:%d], v[%d:%d] op_sel_hi:[1,0,1]' % (d[0], d[1], x[0], x[1], w[0], w[1], d[0], d[1])]
    def scode(self):
        a = self.a
        tag = 'S'
        SELB, SELA, KA = 32, 40, 52
        FRG = 68
        PB, PA = 68, 84
        DB, DA = 100, 132
        FB, FA2 = 164, 180
        VV = 196
        DT, D2, SC1, SC2 = 48, 49, 50, 51
        a("""v_lshrrev_b32 v3, 5, v1
        v_cmp_eq_u32 s[74:75], 1, v3
        v_bfe_u32 v4, v1, 4, 1
        v_and_b32 v5, 15, v1
        v_cmp_eq_u32 vcc, v3, v4
        v_cndmask_b32 v5, 64, v5, vcc
        v_and_b32 v6, 3, v1
        v_bfe_u32 v7, v1, 3, 2
        v_lshl_add_u32 v6, v7, 2, v6
        v_add_u32 v7, 1, v6
        v_and_b32 v7, 12, v7
        v_and_b32 v8, 9, v6
        v_cmp_eq_u32 vcc, 1, v8
        s_and_b64 vcc, vcc, s[74:75]
        v_cndmask_b32 v6, v6, v7, vcc
        v_bfe_u32 v4, v1, 2, 1
        v_cmp_eq_u32 vcc, v3, v4
        v_cndmask_b32 v6, 64, v6, vcc
        v_mov_b32 v9, 0x3f80""")
        for v, sel in ((5, SELB), (6, SELA)):
            a('v_and_b32 v7, 1, v{v}\nv_lshlrev_b32 v7, 4, v7\nv_lshlrev_b32 v7, v7, v9\nv_lshrrev_b32 v8, 1, v{v}'.format(v=v))
            for d in range(0, 8, 2):
                a('v_cmp_eq_u32 vcc, %d, v8\nv_cmp_eq_u32 s[76:77], %d, v8\nv_nop\nv_cndmask_b32 v%d, 0, v7, vcc\nv_cndmask_b32 v%d, 0, v7, s[76:77]' % (d, d + 1, sel + d, sel + d + 1))
        EX = VV + 6
        a("""v_mov_b32 v4, 0x41000000
        v_mov_b32 v5, 0x43000000
        v_cndmask_b32 v{s1}, v4, v5, s[74:75]
        v_mov_b32 v5, 0x43800000
        v_cndmask_b32 v{s2}, 1.0, v5, s[74:75]
        s_and_b32 s76, s61, 1
        s_xor_b32 s76, s76, 1
        s_lshl_b32 s76, s76, 4
        s_mul_i32 s77, s60, 0x02020000
        s_add_u32 s77, s77, 0x01000c0c
        s_waitcnt lgkmcnt(0)
        {bp}
        s_lshl_b32 s72, s72, s76
        s_and_b32 s72, s72, 0xffff0000
        s_lshl_b32 s73, s73, s76
        s_and_b32 s73, s73, 0xffff0000
        v_mov_b32 v{dt}, s72
        v_mul_f32 v{dt}, {l2e}, v{dt}
        v_exp_f32 v{dt}, v{dt}
        v_mov_b32 v31, s73
        v_cvt_pk_bf16_f32 v{dt}, v{dt}, v{dt}
        v_lshlrev_b32 v{dt}, 16, v{dt}
        v_add_f32 v{d2}, v{dt}, v{dt}""".format(bp=self.nonce2(), s1=SC1, s2=SC2, dt=DT, d2=D2, l2e=f32(LOG2E)))
        a('v_cmp_eq_u32 vcc, 0, v1\nv_cndmask_b32 v31, 0, v31, vcc')
        self.stamp('a0')
        Ls = self.lab('NG'); Lx = self.lab('NX')
        if not XEARLY: self.xloads()
        a('s_setprio %d\ns_cmp_eq_u32 s37, 0\ns_cbranch_scc1 %s\ns_waitcnt vmcnt(5)\ns_branch %s\n%s:\ns_waitcnt vmcnt(0)\n%s:' % (2 * KPRIO, Lx, Ls, Lx, Ls))
        self.stamp(2)
        for k in range(4):
            for p in range(3):
                r = 16 + 4 * k + p
                a('v_perm_b32 v%d, v%d, v%d, s77' % (r, r, r))
        W8, W1, W5 = (VV, VV + 1), (VV + 2, VV + 3), (VV + 4, VV + 5)
        U = VV + 12
        XA = VV + 16
        def setup(p):
            l = """v_mul_f32 v4, {l2e}, v{la}
            v_exp_f32 v4, v4
            v_mul_f32 v5, v{ai}, v{dt}
            v_cvt_pk_bf16_f32 v4, v4, v4
            v_mul_f32 v5, {ci}, v5
            v_lshlrev_b32 v4, 16, v4
            v_mul_f32 v7, v5, v{s1}
            v_mul_f32 v4, v4, v{dt}
            v_mul_f32 v9, v5, v{s2}
            v_mul_f32 v4, {cr}, v4
            v_rndne_f32 v10, v7
            v_rndne_f32 v11, v9
            v_mul_f32 v6, v4, v{s1}
            v_mul_f32 v8, v4, v{s2}
            v_sub_f32 v7, v7, v10
            v_sub_f32 v9, v11, v9
            v_exp_f32 v6, v6
            v_exp_f32 v8, v8
            v_sin_f32 v10, v7
            v_cos_f32 v11, v7
            v_sin_f32 v12, v9
            v_cos_f32 v13, v9
            v_mul_f32 v{w8i}, v10, v6
            v_mul_f32 v{w8r}, v11, v6
            v_mul_f32 v{w1i}, v12, v8
            v_mul_f32 v{w1r}, v13, v8
            v_mul_f32 v{u1}, v10, v6
            v_mul_f32 v{u0}, v11, v6
            v_mul_f32 v{u3}, v12, v8
            v_mul_f32 v{u2}, v13, v8
            v_mul_f32 v4, v{cre}, v{d2}
            v_mul_f32 v5, v{cim}, v{d2}
            v_permlane32_swap_b32 v{w8i}, v{u1}
            v_permlane32_swap_b32 v{w8r}, v{u0}
            v_permlane32_swap_b32 v{w1i}, v{u3}
            v_permlane32_swap_b32 v{w1r}, v{u2}
            v_cndmask_b32 v{e0}, 1.0, v{u0}, s[74:75]
            v_cndmask_b32 v{e1}, 0, v{u1}, s[74:75]
            v_cndmask_b32 v6, 1.0, v{u2}, s[74:75]
            v_cndmask_b32 v7, 0, v{u3}, s[74:75]
            v_mul_f32 v{w5r}, v{u2}, v{u2}
            v_add_f32 v8, v{u2}, v{u2}
            v_fma_f32 v{w5r}, -v{u3}, v{u3}, v{w5r}
            v_mul_f32 v{w5i}, v8, v{u3}
            v_mul_f32 v{g0}, v4, v6
            v_mul_f32 v{g1}, v4, v7
            v_fmac_f32 v{g0}, v5, v7
            v_fma_f32 v{g1}, -v5, v6, v{g1}""".format(l2e=f32(LOG2E), la=16 + p, ai=20 + p, cre=24 + p, cim=28 + p, dt=DT, d2=D2, s1=SC1, s2=SC2,
                ci=f32(1 / (2 * math.pi)), cr=f32(-LOG2E), w8i=W8[1], w8r=W8[0], w1i=W1[1], w1r=W1[0], w5i=W5[1], w5r=W5[0],
                u0=U, u1=U + 1, u2=U + 2, u3=U + 3, e0=XA, e1=XA + 1, g0=XA + 4, g1=XA + 5)
            return [x.strip() for x in l.split('\n')]
        def pack(P, v, x0, x1):
            return ['v_cvt_pk_bf16_f32 v%d, v%d, v%d' % (P + v // 2, x0[0], x1[0]), 'v_cvt_pk_bf16_f32 v%d, v%d, v%d' % (P + 8 + v // 2, x0[1], x1[1])]
        def chainB():
            l = []; r = [(XA, XA + 1), (XA + 2, XA + 3)]
            for v in range(1, 16):
                l += self.cmul(r[v & 1], r[(v - 1) & 1], W8)
                if v & 1: l += pack(PB, v, r[0], r[1])
            return l
        def chainA():
            l = []; reg = {v: (XA + 4 + 2 * k, XA + 5 + 2 * k) for v, k in enumerate([0, 3, 4, 3, 1, 3, 4, 3, 2, 3, 4, 0, 1, 2, 3, 4])}
            src = {9: 0, 10: 4, 11: 8, 12: 9, 13: 11, 14: 12, 15: 13}
            for v in range(1, 16):
                l += self.cmul(reg[v], reg[v - 1] if v < 9 else reg[src[v]], W1 if v < 9 else W5)
                if v & 1: l += pack(PA, v, reg[v - 1], reg[v])
            return l
        def transp(D, P, SEL_):
            l = []
            for sg in range(2):
                for c in range(2):
                    d = 'v[%d:%d]' % (D + 16 * c, D + 16 * c + 15)
                    l.append('v_mfma_f32_32x32x16_bf16 %s, v[%d:%d], v[%d:%d], %s' % (d, P + 8 * c + 4 * sg, P + 8 * c + 4 * sg + 3, SEL_ + 4 * sg, SEL_ + 4 * sg + 3, '0' if sg == 0 else d))
            return l
        def repack(F, D): return ['v_cvt_pk_bf16_f32 v%d, v%d, v%d' % (F + i, D + 2 * i, D + 2 * i + 1) for i in range(16)]
        def mf2(first):
            k = 'v[%d:%d]' % (KA, KA + 15)
            return ['v_mfma_f32_32x32x16_bf16 %s, v[%d:%d], v[%d:%d], %s' % (k, FA2 + 4 * i, FA2 + 4 * i + 3, FB + 4 * i, FB + 4 * i + 3, '0' if (first and i == 0) else k) for i in range(4)]
        hook = 's_cmp_eq_u32 s37, 0\ns_cbranch_scc0 L_LN\nL_LNR:'
        if PK:
            seq = []
            if -1 in LNP: seq.append('s_cmp_eq_u32 s19, -1\ns_cbranch_scc1 L_LN\nL_LNRm:'); iln = 1
            seq += setup(0)
            for p in range(3):
                seq += interleave(chainB(), chainA())
                if p in LNP: seq.append('s_cmp_eq_u32 s19, %d\ns_cbranch_scc1 L_LN\nL_LNR%d:' % (p, p)); iln = len(seq)
                if p == 2 and 0 in SB: seq.append('s_cmp_eq_u32 s37, 0\ns_cbranch_scc0 {L}\ns_barrier\n{L}:'.format(L=self.lab('NB')))
                nx = setup(p + 1) if p < 2 else []
                tb, ta, rb, ra, m2 = transp(DB, PB, SELB), transp(DA, PA, SELA), repack(FB, DB), repack(FA2, DA), mf2(p == 0)
                order = [tb[0], tb[2], ta[0], ta[2], tb[1], tb[3], ta[1], ta[3]]
                h = len(nx) // 2
                seq += interleave(order[:5], nx[:h], per=6)
                seq += interleave(order[5:], rb[:8] + ra[:8], per=6)
                seq += interleave(m2[:2], nx[h:h + 6] + rb[8:] + ra[8:], per=6)
                seq += interleave(m2[2:], nx[h + 6:], per=6)
        if 'nok' in self.opts: a('s_cmp_eq_u32 s37, 0\ns_cbranch_scc1 L_NOK')
        nb = 0; n = len(seq); xh = False
        for i, x in enumerate(seq):
            if not xh and i >= iln + XHOOK * (n - iln):
                self.xhook(); xh = True
            for tp in TOUCH:
                if i == iln + int(tp * (n - iln)):
                    L = self.lab('TC')
                    a('s_cmp_eq_u32 s37, 0\ns_cbranch_scc1 %s' % L); self.touch(); a('%s:' % L)
            a(x)
        if 'nok' in self.opts: a('s_nop 15\nL_NOK:')
        self.stamp(3)
        if 1 in SB: a('s_cmp_eq_u32 s37, 0\ns_cbranch_scc0 {L}\ns_barrier\n{L}:'.format(L=self.lab('NB')))
        CA, CB = 176, 186
        a("""v_and_b32 v9, 15, v1
        v_lshrrev_b32 v10, 4, v1
        v_and_b32 v11, 1, v1
        v_xor_b32 v11, 1, v11
        v_mul_u32_u24 v11, 4162, v11
        v_lshl_add_u32 v11, v10, 4, v11
        v_lshlrev_b32 v12, 1, v9
        v_sub_u32 v11, v11, v12
        s_lshl_b32 s76, s60, 8
        s_sub_u32 s76, s38, s76
        s_add_u32 s76, s76, %d
        v_add_u32 v%d, s76, v11""" % (2 * (2047 - 16) - 512 - 192, CA))
        for p in range(1, 4): a('v_add_u32 v%d, %d, v%d' % (CA + p, -1024 * p, CA))
        a('v_lshl_add_u32 v9, v9, 1, v10\ns_lshl_b32 s76, s60, 4\ns_sub_u32 s76, 30, s76\nv_add_u32 v9, s76, v9')
        for tt in range(4):
            a('v_add_u32 v10, %d, v9\nv_and_b32 v11, 32, v10\nv_add_u32 v10, v10, v11\nv_lshl_add_u32 v%d, v10, 4, s39' % (-4 * tt, CB + tt))
        a("""s_and_b32 s3, s34, 3
        s_lshr_b32 s76, s61, 1
        s_lshl_b32 s76, s76, 13
        s_lshl_b32 s77, s3, 11
        s_add_u32 s26, s76, s77
        s_and_b32 s76, s61, 1
        s_lshl_b32 s76, s76, 9
        s_sub_u32 s27, s39, s76
        s_add_u32 s27, s27, s77
        s_add_u32 s27, s27, 1024
        v_and_b32 v181, 31, v1
        v_lshlrev_b32 v181, 5, v181
        v_lshrrev_b32 v182, 5, v1
        v_lshl_add_u32 v181, v182, 4, v181
        v_lshlrev_b32 v182, 4, v1
        v_and_b32 v184, 15, v1
        v_lshlrev_b32 v184, 7, v184
        s_add_u32 s20, s77, %d""" % FX)
        xld = 'buffer_load_dword v183, v184, %s, s20 offen sc1' % WS_; xchk = 'v_cmp_ne_u32 vcc, s21, v183'
        udma = """s_mov_b32 m0, s27
        buffer_load_dwordx4 v181, {ws}, s26 offen sc1 lds
        buffer_load_dwordx4 v181, {ws}, s26 offen offset:1024 sc1 lds""".format(ws=WS_)
        Lg = self.lab('NG'); Lw = self.lab('NW'); Lx = self.lab('NX'); Lv = self.lab('NV')
        a('s_cmp_eq_u32 s37, 0\ns_cbranch_scc0 %s\ns_setprio 0' % Lg)
        LX, LW = 16, 20
        def prep_x():
            self.tile_ids()
            a("""s_lshl_b32 s76, s62, 7
        s_lshl_b32 s77, s3, 5
        s_add_u32 s76, s76, s77
        s_mul_i32 s16, s76, 1280
        s_min_u32 s76, s63, 9
        s_lshl_b32 s76, s76, 7
        s_add_u32 s16, s16, s76
        v_lshrrev_b32 v9, 3, v1
        v_mul_u32_u24 v9, 1280, v9
        v_lshrrev_b32 v10, 4, v1
        v_xor_b32 v10, v10, v1
        v_and_b32 v10, 7, v10
        v_lshl_add_u32 v9, v10, 4, v9
        v_xor_b32 v10, 64, v9
        s_mul_i32 s17, s3, 4160
        s_add_u32 s17, s17, %d""" % L_TAB)
        def prep_aux():
            a('''s_lshl_b32 s76, s28, 2
        s_add_u32 s76, s76, s3
        s_lshl_b32 s77, s3, 4
        s_lshl_b32 s18, s65, 3
        s_add_u32 s77, s77, s18
        s_add_u32 s77, s77, s69
        s_sub_u32 s77, s77, s76
        v_and_b32 v185, 1, v1
        v_mul_i32_i24 v185, s77, v185
        v_add_u32 v185, s76, v185
        v_lshlrev_b32 v185, 7, v185
        s_mov_b32 s18, %d''' % FX)
        ald = 'buffer_load_dword v183, v185, %s, s18 offen sc1' % WS_
        vm = []
        def issue(x, tag): a(x); vm.append(tag)
        def need(*tags):
            k = max([i for i, t in enumerate(vm) if t in tags], default=-1)
            if k >= 0: a('s_waitcnt vmcnt(%d)' % (len(vm) - 1 - k)); del vm[:k + 1]
        slot_step = dict([(8 + k, s) for k, s in enumerate([0, 1, 18, 19, 20, 21, 22, 23])] + [(k, 2 + k) for k in range(8)])
        dm = self.w2_round([(slot_step[k], k) for k in [12, 13, 4, 5, 14, 15, 6, 7, 8, 9, 0, 1, 10, 11, 2, 3]], 14)
        assert RB7 <= 8 and RB8 <= 16 and RB9 <= 24 and RWAIT <= 4 and RB7 % 2 == 0
        for k in range(1, 9):
            need(k, *(['x'] if k == 7 else []))
            a('s_barrier')
            if k == XPOS: issue(ald, 'f')
            if k == 1:
                self.g1_ids(28, 29, 30, 5); self.g1_voff(LX, LW, 3, 28, 29, 9)
            if 2 <= k <= 6:
                for x in self.g1_dma(k + 3, LX, LW, 30): issue(x, k + 3)
            if k == 2: prep_x()
            i = k - XST
            if 0 <= i < 4: issue('s_mov_b32 m0, s17\ns_add_u32 s76, s16, %d\nbuffer_load_dwordx4 v%d, %s, s76 offen offset:%d lds' % (i * (8 * 1280 - 1024), 9 + (i & 1), X_, 1024 * i), 'x')
            if k == 3:
                prep_aux(); self.w2_voff(14, 3, 13)
                a('s_cmp_lt_u32 s36, 20\ns_cselect_b32 s76, 0, 0x40000000\nv_add_u32 v14, s76, v14\nv_add_u32 v15, s76, v15')
            if k == 4: self.g2_offsets()
            if k == 7:
                for x in dm[:RB7]: issue(x, 'w')
        Lok = self.lab('OK')
        need('f')
        a('%s\ns_cbranch_vccz %s' % (xchk, Lok))
        self.poll(ald, xchk)
        a('%s:' % Lok)
        self.stamp('st')
        a("""s_lshl_b32 s76, s3, 11
        s_add_u32 m0, s76, {lu}
        s_lshl_b32 s76, s29, 2
        s_add_u32 s76, s76, s3
        s_lshl_b32 s76, s76, 11
        s_add_u32 s76, s76, {csa}""".format(lu=L_U + 1024, csa=CSA))
        issue('buffer_load_dwordx4 v182, %s, s76 offen sc1 lds' % WS_, 'a')
        issue('buffer_load_dwordx4 v182, %s, s76 offen offset:1024 sc1 lds' % WS_, 'a')
        issue("""s_lshl_b32 s77, s3, 10
        s_add_u32 m0, s77, {ls}
        s_lshl_b32 s76, s28, 12
        s_add_u32 s76, s76, s77
        s_add_u32 s76, s76, {st}
        buffer_load_dwordx4 v182, {ws}, s76 offen sc1 lds""".format(ls=L_ST, st=ST, ws=WS_), 'a')
        for x in dm[RB7:RB8]: issue(x, 'w')
        need(9)
        a('s_barrier')
        for x in dm[RB8:RB9]: issue(x, 'w')
        need('a')
        a('s_barrier')
        for x in dm[RB9:RB10]: a(x)
        a('s_barrier')
        for x in dm[RB10:]: a(x)
        a('s_waitcnt vmcnt(%d)\n%s:\n%s:\n%s' % (RWAIT, Lw, Lg, xld))
        self.stamp('r0')
        a('s_setprio %d' % (2 * TPRIO))
        for k in range(4): a('ds_write_b128 v%d, v[%d:%d] offset:%d' % (EX, KA + 4 * k, KA + 4 * k + 3, 1024 * k))
        a('s_mov_b64 exec, 1\nds_write_b32 v%d, v%d offset:4128\ns_mov_b64 exec, -1' % (EX, SC1))
        V = lambda r: KA + r
        a('v_add_f32 v{v0}, v{v0}, v31\nv_and_b32 v5, 1, v1\nv_cmp_eq_u32 vcc, 0, v5'.format(v0=V(0)))
        Lp = self.lab('XP'); Lq = self.lab('XQ')
        a('s_mov_b32 s79, 0\n%s:\nds_read_b32 v4, v%d offset:4128' % (Lp, EX + 3))
        for k in range(4): a('ds_read_b128 v[%d:%d], v%d offset:%d' % (FRG + 4 * k, FRG + 4 * k + 3, EX + 1, 1024 * k))
        a('s_add_u32 s79, s79, 1\ns_waitcnt lgkmcnt(4)\nv_readfirstlane_b32 s76, v4\ns_cmp_lg_u32 s76, 0\ns_cbranch_scc1 %s\ns_cmp_gt_u32 s79, %d\ns_cbranch_scc0 %s\n%s:' % (Lq, 64 * POLLMAX, Lp, Lq))
        self.stamp(4)
        for k in range(4):
            a('s_waitcnt lgkmcnt(%d)' % (3 - k))
            for r in range(4 * k, 4 * k + 4): a('v_add_f32 v%d, v%d, v%d' % (KA + r, KA + r, FRG + r))
        a("""v_cndmask_b32 v{m0}, v{v13}, v{v12}, vcc
        v_cndmask_b32 v{m1}, v{v15}, v{v14}, vcc
        s_cmp_eq_u32 s60, 0
        s_cbranch_scc0 L{t}_T1""".format(m0=FRG + 16, m1=FRG + 17, v12=V(12), v13=V(13), v14=V(14), v15=V(15), t=tag))
        def table(c):
            lv = [([V(o) for o in range(9)], 3072), ([V(9)] * 3 + [V(10)] * 3 + [V(11)] * 3, 2048),
                  ([V(12)] * 4 + [FRG + 16] + [V(13)] * 4, 1024), ([V(14)] * 4 + [FRG + 17] + [V(15)] * 4, 0)]
            for n, (t, off) in enumerate(lv):
                for d in range(4):
                    a('v_cvt_pk_bf16_f32 v%d, v%d, v%d' % (FRG + 4 * n + d, t[7 + c - 2 * d], t[6 + c - 2 * d]))
                a('ds_write_b128 v%d, v[%d:%d] offset:%d' % (EX + 2, FRG + 4 * n, FRG + 4 * n + 3, off))
        table(0)
        a('s_branch L%s_T2\nL%s_T1:' % (tag, tag))
        table(1)
        a('v_cvt_pk_bf16_f32 v8, v%d, 0\ns_mov_b64 exec, 1\nds_write_b32 v%d, v8 offset:4096\ns_mov_b64 exec, -1\nL%s_T2:' % (V(0), EX + 1, tag))
        self.stamp(5)
        Lok = self.lab('OK')
        a('s_setprio 0\ns_waitcnt vmcnt(0)\n%s\ns_cbranch_vccz %s' % (xchk, Lok))
        self.poll(xld, xchk)
        a('%s:' % Lok)
        self.stamp(6)
        a(udma)
        a('s_cmp_eq_u32 s37, 0\ns_cbranch_scc0 %s\ns_barrier\n%s:\ns_waitcnt vmcnt(0)' % (Lx, Lx))
        self.stamp('R')
        assert NLATE == 0
        a('s_setprio %d\ns_waitcnt lgkmcnt(0)\ns_barrier' % (2 * CPRIO))
        self.stamp(7)
        YA = 16; FA_ = [48, 112]
        def creads(tt):
            f = FA_[tt & 1]; l = []
            for i in range(8):
                o = (128 if i % 2 == 0 else 0) + 16 * (3 - tt)
                ra = ['ds_read2_b32 v[%d:%d], v%d offset0:%d offset1:%d' % (f + 4 * i + 2 * e, f + 4 * i + 2 * e + 1, CA + i // 2, o + 2 * e, o + 2 * e + 1) for e in range(2)]
                rb = 'ds_read_b128 v[%d:%d], v%d offset:%d' % (f + 32 + 4 * i, f + 35 + 4 * i, CB + tt, 1024 * i)
                l += ra + [rb]
            return l
        def cm(tt, i, j, first):
            f = FA_[tt & 1]; c = 'v[%d:%d]' % (YA + 4 * (i + j), YA + 4 * (i + j) + 3)
            return 'v_mfma_f32_16x16x32_bf16 %s, v[%d:%d], v[%d:%d], %s' % (c, f + 4 * i, f + 4 * i + 3, f + 32 + 4 * j, f + 35 + 4 * j, '0' if first else c)
        r0 = creads(0)
        for x in r0[:12]: a(x)
        for tt in range(4):
            order = []
            for k in range(8):
                order += [(k, i, j) for i in range(k + 1) for j in range(k + 1) if max(i, j) == k and i + j <= 7]
            if tt > 0 and CHAIN: order = [(0, i, tau - i) for tau in range(8) for i in range(tau + 1)]
            seen = set()
            nxt = (r0[12:] if tt == 0 else []) + (creads(tt + 1) if tt < 3 else [])
            issued = 12 if tt == 0 else 24
            extra = 0
            lastk = -1
            if tt > 0: a('s_waitcnt lgkmcnt(0)')
            if tt == 3: a('s_mov_b64 exec, 1\nds_write_b32 v%d, v%d offset:4132\ns_mov_b64 exec, -1\ns_nop 3' % (EX, EX))
            for (k, i, j) in order:
                if tt == 0 and k != lastk:
                    while issued < 3 * (k + 1): a(nxt.pop(0)); issued += 1
                    a('s_waitcnt lgkmcnt(%d)' % min(15, issued + extra - 3 * (k + 1)))
                    lastk = k
                a(cm(tt, i, j, tt == 0 and (i + j) not in seen)); seen.add(i + j)
                if nxt:
                    a(nxt.pop(0))
                    if issued < 24: issued += 1
                    else: extra += 1
            for x in nxt: a(x)
        self.stamp(8)
        def lflag(off): a('s_mov_b64 exec, 1\nds_write_b32 v%d, v%d offset:%d\ns_mov_b64 exec, -1' % (EX, EX, off))
        def lwait(off, extra):
            Lp = self.lab('XP'); Lq = self.lab('XQ')
            a('s_mov_b32 s79, 0\n%s:\nds_read_b32 v4, v%d offset:%d' % (Lp, EX + 3, off))
            for x in extra: a(x)
            a('s_add_u32 s79, s79, 1\ns_waitcnt lgkmcnt(%d)\nv_readfirstlane_b32 s76, v4\ns_cmp_lg_u32 s76, 0\ns_cbranch_scc1 %s\ns_cmp_gt_u32 s79, %d\ns_cbranch_scc0 %s\n%s:' % (len(extra), Lq, 64 * POLLMAX, Lp, Lq))
        lwait(4132, [])
        a('s_nop 3\ns_cmp_eq_u32 s60, 0\ns_cbranch_scc0 L%s_R1' % tag)
        for k in range(4): a('ds_write_b128 v%d, v[%d:%d] offset:%d' % (EX, YA + 16 + 4 * k, YA + 19 + 4 * k, 1024 * k))
        lflag(4136)
        a('s_branch L%s_R2\nL%s_R1:' % (tag, tag))
        for k in range(4): a('ds_write_b128 v%d, v[%d:%d] offset:%d' % (EX, YA + 4 * k, YA + 3 + 4 * k, 1024 * k))
        lflag(4136)
        for k in range(16): a('v_mov_b32 v%d, v%d' % (YA + k, YA + 16 + k))
        a('L%s_R2:' % tag)
        lwait(4136, ['ds_read_b128 v[%d:%d], v%d offset:%d' % (48 + 4 * k, 51 + 4 * k, EX + 1, 1024 * k) for k in range(4)])
        a('''s_lshl_b32 s76, s61, 12
        s_lshl_b32 s77, s60, 11
        s_add_u32 s76, s76, s77
        s_add_u32 s76, s76, %d
        v_lshlrev_b32 v4, 4, v1''' % AA)
        for p in range(2):
            a('s_waitcnt lgkmcnt(%d)' % (2 - 2 * p))
            for k in range(8 * p, 8 * p + 8): a('v_add_f32 v%d, v%d, v%d' % (YA + k, YA + k, 48 + k))
            o = 64 + 4 * p
            for d in range(4): a('v_cvt_pk_bf16_f32 v%d, v%d, v%d' % (o + d, YA + 8 * p + 2 * d, YA + 8 * p + 2 * d + 1))
            a('v_permlane16_swap_b32 v%d, v%d\nv_permlane16_swap_b32 v%d, v%d' % (o, o + 2, o + 1, o + 3))
            a('buffer_store_dwordx4 v[%d:%d], v4, %s, s76 offen offset:%d sc1' % (o, o + 3, WS_, 1024 * p))
        self.stamp(9)
        a('s_setprio 0')
        a('s_mul_i32 s76, s60, 640\ns_add_u32 s76, s76, s61\ns_lshl_b32 s76, s76, 7\ns_add_u32 s76, s76, %d' % FA)
        for x in self.flag_regs(8): a(x)
        a('s_waitcnt vmcnt(0)'); a(self.flag(8, 76))
        self.stamp(10)
        Le = self.lab('EP')
        a('''s_lshl_b32 s76, s34, 8
        s_add_u32 s76, s76, s2
        s_cmp_eq_u32 s76, 192
        s_cbranch_scc0 {L}
        v_lshrrev_b32 v2, 2, v1
        v_mul_u32_u24 v2, 6144, v2
        v_and_b32 v3, 3, v1
        v_lshl_add_u32 v2, v3, 8, v2
        s_mov_b32 s20, {fh}'''.format(L=Le, fh=FH))
        a('v_lshlrev_b32 v6, 7, v1\ns_mov_b32 s18, %d' % FX)
        self.poll('buffer_load_dword v3, v6, %s, s18 offen sc1' % WS_, 'v_cmp_ne_u32 vcc, s21, v3')
        ld = '\n'.join('buffer_load_dword v%d, v2, %s, s20 offen offset:%d sc1' % (3 + i, WS_, 1024 * i) for i in range(3))
        self.poll(ld, 'v_cmp_ne_u32 vcc, s21, v3\nv_cmp_ne_u32 s[76:77], s21, v4\nv_cmp_ne_u32 s[16:17], s21, v5\ns_or_b64 vcc, vcc, s[76:77]\ns_or_b64 vcc, vcc, s[16:17]')
        a('''s_mov_b32 s20, {ep}
        s_mov_b64 exec, 1
        buffer_store_dword v8, off, {ws}, s20 sc1
        s_branch L_FIN
        {L}:'''.format(L=Le, ep=EP, ws=WS_))
        a('s_cmp_lt_u32 s36, 20\ns_cbranch_scc0 L_FIN')
        a('s_mul_i32 s20, s62, 6144\ns_mul_i32 s77, s3, 1536\ns_add_u32 s20, s20, s77\ns_add_u32 s20, s20, %d' % (FH + 32 * 3072))
        self.spoll(12, 20)
        self.stamp('h1')
        a('s_barrier')
        a('''s_lshl_b32 s60, s63, 6
        s_lshl_b32 s76, s3, 4
        s_add_u32 s60, s60, s76
        s_lshr_b32 s76, s35, 2
        s_mul_i32 s76, s76, 640
        s_add_u32 s76, s76, s60
        s_lshl_b32 s76, s76, 7
        s_add_u32 s61, s76, {fa}
        v_and_b32 v4, 15, v1
        v_lshrrev_b32 v7, 4, v1
        v_lshlrev_b32 v8, 1, v7
        v_xor_b32 v8, v8, v4
        v_lshrrev_b32 v9, 1, v8
        v_lshlrev_b32 v9, 4, v9
        v_and_b32 v8, 1, v8
        v_lshl_add_u32 v9, v8, 9, v9
        v_lshl_add_u32 v9, v7, 12, v9
        v_xor_b32 v10, 64, v9
        s_lshl_b32 s60, s60, 12
        s_lshr_b32 s76, s35, 1
        s_lshl_b32 s76, s76, 10
        s_add_u32 s60, s60, s76
        s_and_b32 s76, s35, 1
        s_lshl_b32 s76, s76, 8
        s_add_u32 s60, s60, s76
        s_and_b32 s76, s62, 1
        s_lshl_b32 s76, s76, 7
        s_add_u32 s60, s60, s76
        s_add_u32 s60, s60, {aa}
        s_and_b32 s76, s3, 1
        s_mul_i32 s76, s76, 4160
        s_add_u32 m0, s76, s38'''.format(fa=FA, aa=AA))
        self.spoll(16, 61)
        self.stamp(11)
        a('s_barrier')
        for i in range(4):
            a('s_add_u32 s76, s60, %d\nbuffer_load_dwordx4 v%d, %s, s76 offen offset:%d sc1 lds' % (i * (16384 - 1024), 9 + (i & 1), WS_, 1024 * i))
        a('s_waitcnt vmcnt(0)')
        self.stamp(12)
        a('s_barrier\ns_branch L_FIN')
    def touch(self):
        self.a('v_add_u32 v254, %d, v249\nv_min_u32 v254, v254, v249\nbuffer_load_dword v255, v254, %s, 0 offen\nv_add_u32 v249, %d, v249' % (-15360 * 128, W2_, 64 * NLN * 128))
    def xhook(self):
        a = self.a
        L = self.lab('NH')
        a('s_cmp_eq_u32 s37, 0\ns_cbranch_scc1 %s' % L)
        a("""s_waitcnt vmcnt(0)
        s_barrier
        s_cmp_eq_u32 s34, 0
        s_cbranch_scc0 {L}
        s_lshl_b32 s76, s62, 7
        s_add_u32 s76, s76, {fx}""".format(L=L, fx=FX))
        for x in self.flag_regs(250): a(x)
        a(self.flag(250, 76)); a('%s:' % L)
        self.stamp('xf')
    def lnblock(self):
        a = self.a
        XF = 100; T0 = 140
        a('L_LN:')
        self.stamp('ln')
        a('''        v_lshrrev_b32 v4, 4, v1
        v_and_b32 v5, 15, v1
        s_and_b32 s76, s34, 1
        s_lshl_b32 s76, s76, 3
        s_and_b32 s77, s34, 4
        s_add_u32 s76, s76, s77
        v_add_u32 v6, s76, v4
        v_mul_u32_u24 v6, {ts}, v6
        v_lshl_add_u32 v6, v5, 3, v6
        s_and_b32 s76, s34, 2
        s_lshl_b32 s76, s76, 1
        v_add_u32 v6, s76, v6
        v_and_b32 v7, 1, v1
        v_bfe_u32 v8, v1, 2, 2
        v_lshl_add_u32 v7, v7, 2, v8
        v_mul_u32_u24 v7, {ts}, v7
        v_lshl_add_u32 v7, v4, 4, v7
        v_bfe_u32 v8, v1, 1, 1
        v_lshl_add_u32 v7, v8, 3, v7
        s_mul_i32 s76, s34, 320
        v_add_u32 v7, s76, v7
        v_lshrrev_b32 v8, 3, v1
        v_lshlrev_b32 v8, 15, v8
        v_and_b32 v10, 7, v1
        v_lshl_add_u32 v8, v10, 4, v8
        s_and_b32 s65, s34, 1
        s_mul_i32 s65, s65, 160
        s_lshr_b32 s76, s34, 1
        s_add_u32 s65, s65, s76
        s_lshl_b32 s65, s65, 13
        s_lshl_b32 s76, s62, 7
        s_add_u32 s65, s65, s76
        v_mov_b32 v10, 0
        v_mov_b32 v11, 0
        v_mov_b32 v12, 0
        v_mov_b32 v13, 0'''.format(ts=TSTR, cq=20 * 16384, t8=T0 + 8, t9=T0 + 9))
        for i in range(5):
            a('s_waitcnt vmcnt(%d)' % (4 - i))
            for d in range(4):
                s = XI + 4 * i + d; f = XF + 8 * i + 2 * d
                a('''v_lshlrev_b32 v{f}, 16, v{s}
                v_and_b32 v{f1}, 0xffff0000, v{s}
                v_pk_add_f32 v[10:11], v[10:11], v[{f}:{f1}]
                v_pk_fma_f32 v[12:13], v[{f}:{f1}], v[{f}:{f1}], v[12:13]'''.format(f=f, f1=f + 1, s=s))
        self.stamp(1)
        a('''s_and_b32 s76, s35, 1
        s_mul_i32 s76, s76, 6
        s_add_u32 s28, s76, s36
        s_sub_u32 s28, s28, 24
        s_lshr_b32 s29, s35, 1
        s_mul_i32 s76, s29, 160
        s_mul_i32 s77, s34, 20
        s_add_u32 s76, s76, s77
        s_mul_i32 s76, s76, 3072
        s_lshl_b32 s77, s28, 8
        s_add_u32 s76, s76, s77
        s_cmp_lt_u32 s36, 30
        s_cselect_b32 s76, s76, 0x40000000
        s_cselect_b32 s77, s77, 0
        v_mul_u32_u24 v9, 3072, v4
        v_lshl_add_u32 v9, v5, 4, v9''')
        for i in range(5): a('buffer_load_dwordx4 v[%d:%d], v9, %s, s76 offen\ns_add_u32 s76, s76, 12288' % (WI + 4 * i, WI + 4 * i + 3, W1_))
        a('''s_and_b32 s76, s34, 1
        s_lshl_b32 s76, s76, 7
        s_add_u32 s76, s76, s77
        v_lshl_add_u32 v9, v1, 1, s76
        v_mov_b32 v{b}, 0
        global_load_short_d16_hi v{b}, v9, s[22:23]'''.format(b=WI + 20))
        for k in range(TLN[0]): self.touch()
        a('v_add_f32 v10, v10, v11\nv_add_f32 v12, v12, v13')
        for sh in (8, 4, 2, 1):
            a('v_add_f32 v10, v10, v10 row_ror:%d\nv_add_f32 v12, v12, v12 row_ror:%d' % (sh, sh))
        rb = lambda d, s: 'v_cvt_pk_bf16_f32 v%d, v%d, v%d\nv_lshlrev_b32 v%d, 16, v%d' % (d, s, s, d, d)
        EPS = f32(1e-5)
        a('v_mul_f32 v10, {c}, v10\nv_mul_f32 v12, {c}, v12\nv_fma_f32 v12, -v10, v10, v12\nv_max_f32 v12, 0, v12'.format(c=f32(1.0 / 640)))
        a(rb(11, 10))
        a(rb(13, 12)); a('v_add_f32 v13, %s, v13' % EPS); a(rb(13, 13)); a('v_sqrt_f32 v13, v13'); a(rb(13, 13))
        a('v_rcp_f32 v14, v13\nv_mul_f32 v15, v11, v14\nv_sub_f32 v15, 0, v15')
        for i in range(5):
            for d in range(4):
                s = XI + 4 * i + d; f = XF + 8 * i + 2 * d
                a('v_pk_fma_f32 v[{f}:{f1}], v[{f}:{f1}], v[14:15], v[14:15] op_sel:[0,0,1] op_sel_hi:[1,0,1]\nv_cvt_pk_bf16_f32 v{s}, v{f}, v{f1}'.format(f=f, f1=f + 1, s=s))
            for d in range(4): a('ds_write_b32 v6, v%d offset:%d' % (XI + 4 * i + d, 128 * i + 640 * d))
        a('v_sub_f32 v10, v10, v11\nv_mul_f32 v10, v10, v14'); a(rb(10, 10))
        a('v_mul_f32 v12, v12, v14\nv_mul_f32 v12, v12, v14'); a(rb(12, 12)); a('v_add_f32 v12, %s, v12' % EPS); a(rb(12, 12)); a('v_sqrt_f32 v12, v12'); a(rb(12, 12))
        a('v_fma_f32 v10, -v10, v13, -v11\nv_mul_f32 v12, v13, v12')
        C1 = -2.0 * LOG2E * math.sqrt(2.0 / math.pi)
        a('''v_rcp_f32 v14, v12
        v_cvt_pk_bf16_f32 v{t0}, v10, v10
        v_and_b32 v11, 0xffff0000, v{t0}
        v_sub_f32 v11, v10, v11
        v_cvt_pk_bf16_f32 v{t1}, v11, v12
        v_and_b32 v11, 0xffff0000, v{t1}
        v_sub_f32 v11, v12, v11
        v_cvt_pk_bf16_f32 v{t2}, v11, 0
        v_mul_f32 v13, {c1}, v14
        v_mul_f32 v14, v14, v14
        v_mul_f32 v14, {c2}, v14
        v_mul_f32 v14, v14, v13
        v_cmp_eq_u32 vcc, 1, v5
        s_lshl_b32 s67, s63, 5
        s_add_u32 s67, s67, {st}
        v_mov_b32 v{t3}, 0
        v_cndmask_b32 v{t0}, v{t0}, v14, vcc
        v_cndmask_b32 v{t1}, v{t1}, v13, vcc
        v_cndmask_b32 v{t2}, v{t2}, v12, vcc
        v_lshlrev_b32 v14, 5, v4
        v_lshl_add_u32 v14, v5, 4, v14
        v_cmp_gt_u32 vcc, 2, v5
        s_and_saveexec_b64 s[68:69], vcc
        buffer_store_dwordx4 v[{t0}:{t3}], v14, {ws}, s67 offen sc1
        s_mov_b64 exec, s[68:69]'''.format(st=ST, ws=WS_, t0=T0, t1=T0 + 1, t2=T0 + 2, t3=T0 + 3, c1=f32(C1), c2=f32(0.044715)))
        for k in range(TLN[1]): self.touch()
        self.stamp('l4')
        a('s_waitcnt lgkmcnt(0)\ns_barrier')
        for i in range(5):
            for e in range(2):
                a('ds_read_b64_tr_b16 v[%d:%d], v7 offset:%d' % (XI + 4 * i + 2 * e, XI + 4 * i + 2 * e + 1, 64 * i + 8 * TSTR * e))
        for i in range(5):
            a('s_waitcnt lgkmcnt(%d)\ns_add_u32 s76, s65, %d\nbuffer_store_dwordx4 v[%d:%d], v8, %s, s76 offen sc1' % (8 - 2 * i, XT + i * 32 * 8192, XI + 4 * i, XI + 4 * i + 3, WS_))
        self.stamp('xs')
        assert max(LNP) <= 0
        CA_ = 100
        a('s_waitcnt vmcnt(%d)' % (6 + TLN[0] + TLN[1]))
        for i in range(5):
            d = CA_ if i == 0 else CA_ + 8
            for k in range(4): a('v_lshlrev_b32 v%d, 16, v%d\nv_and_b32 v%d, 0xffff0000, v%d' % (d + 2 * k, WI + 4 * i + k, d + 2 * k + 1, WI + 4 * i + k))
            if i:
                for k in range(4): a('v_pk_add_f32 v[%d:%d], v[%d:%d], v[%d:%d]' % (CA_ + 2 * k, CA_ + 2 * k + 1, CA_ + 2 * k, CA_ + 2 * k + 1, d + 2 * k, d + 2 * k + 1))
        a('s_lshl_b32 s76, s34, 9\ns_add_u32 s76, s76, %d\nv_lshlrev_b32 v6, 3, v4\nv_lshl_add_u32 v6, v5, 5, v6\nv_add_u32 v6, s76, v6' % N_CS)
        for k in range(4): a('v_permlane32_swap_b32 v%d, v%d' % (CA_ + k, CA_ + 4 + k))
        for k in range(2): a('v_pk_add_f32 v[%d:%d], v[%d:%d], v[%d:%d]' % (CA_ + 2 * k, CA_ + 2 * k + 1, CA_ + 2 * k, CA_ + 2 * k + 1, CA_ + 4 + 2 * k, CA_ + 5 + 2 * k))
        for k in range(2): a('v_permlane16_swap_b32 v%d, v%d' % (CA_ + k, CA_ + 2 + k))
        a('v_pk_add_f32 v[%d:%d], v[%d:%d], v[%d:%d]' % (CA_, CA_ + 1, CA_, CA_ + 1, CA_ + 2, CA_ + 3))
        a('ds_write_b64 v6, v[%d:%d]\ns_waitcnt lgkmcnt(0)\ns_barrier' % (CA_, CA_ + 1))
        a('s_cmp_lt_u32 s34, 2\ns_cbranch_scc0 L_LNE\ns_cmp_lt_u32 s36, 30\ns_cbranch_scc0 L_LNE')
        a('s_lshl_b32 s76, s34, 8\ns_add_u32 s76, s76, %d\nv_lshl_add_u32 v6, v1, 2, s76' % N_CS)
        for k in range(4): a('ds_read2st64_b32 v[%d:%d], v6 offset0:%d offset1:%d' % (CA_ + 2 * k, CA_ + 2 * k + 1, 4 * k, 4 * k + 2))
        a('''s_cmp_eq_u32 s29, 0
        s_cselect_b32 s76, -1, 0
        v_and_b32 v{b}, s76, v{b}
        s_lshl_b32 s76, s28, 2
        s_add_u32 s76, s76, s29
        s_lshl_b32 s76, s76, 1
        s_add_u32 s76, s76, s34
        s_lshl_b32 s76, s76, 10
        s_add_u32 s76, s76, {csa}
        v_lshlrev_b32 v6, 4, v1
        v_lshrrev_b32 v12, 16, v{b}
        v_mov_b32 v13, 0
        s_waitcnt lgkmcnt(0)
        v_pk_add_f32 v[{c0}:{c1}], v[{c0}:{c1}], v[{c2}:{c3}]
        v_pk_add_f32 v[{c4}:{c5}], v[{c4}:{c5}], v[{c6}:{c7}]
        v_pk_add_f32 v[{c0}:{c1}], v[{c0}:{c1}], v[{c4}:{c5}]
        v_add_f32 v{c0}, v{c0}, v{c1}
        v_cvt_pk_bf16_f32 v11, v{c0}, v{b}
        v_lshlrev_b32 v10, 16, v11
        v_sub_f32 v10, v{c0}, v10
        v_cvt_pk_bf16_f32 v10, v{c0}, v10
        buffer_store_dwordx4 v[10:13], v6, {ws}, s76 offen sc1
        L_LNE:'''.format(b=WI + 20, csa=CSA, ws=WS_, **{'c%d' % i: CA_ + i for i in range(8)}))
        if -1 in LNP: a('s_cmp_eq_u32 s19, -1\ns_cbranch_scc1 L_LNRm')
        if 0 in LNP: a('s_nop 0\ns_branch L_LNR0')

    def build(self):
        a = self.a
        self.prologue()
        a('s_cmp_lt_u32 s36, 24\ns_cselect_b32 s76, 4, 0\ns_cmp_lt_u32 s34, s76')
        if GPOS == 0:
            a('s_cbranch_scc0 L_S'); self.sel = SEL['G']; self.gwave(True); a('L_S:')
        else: a('s_cbranch_scc1 L_GE')
        self.sel = SEL['S']; self.sn_entry(); self.scode(); self.lnblock()
        self.sel = SEL['G']
        if GPOS == 2: a('L_GE:'); self.gwave(True)
        a('L_G:'); self.gwave()
        a('L_FIN:')
        self.dump_stamps()
        if self.AMP:
            if self.AMP[1] == 'end': a('s_memrealtime s[92:93]')
            who = self.AMP[2]
            a('s_cmp_eq_u32 s34, %d\ns_cbranch_scc0 L_END' % {'G': 0, 'S': 4, 'N': 0, 'M': 4}[who[0]])
            if len(who) > 1: a('s_cmp_eq_u32 s2, %s\ns_cbranch_scc0 L_END' % who[1:])
            else: a('s_cmp_lt_u32 s36, 20\ns_cbranch_scc0 L_END' if who in 'GS' else 's_cmp_ge_u32 s36, 24\ns_cbranch_scc0 L_END')
            a('''s_waitcnt lgkmcnt(0)
            s_sub_u32 s92, s92, s94
            s_lshl_b32 s92, s92, 3
            s_add_u32 s92, s92, 3000
            s_min_u32 s92, s92, 30000
            L_AMP:
            s_memrealtime s[98:99]
            s_waitcnt lgkmcnt(0)
            s_sub_u32 s77, s98, s96
            s_cmp_lt_u32 s77, s92
            s_cbranch_scc1 L_AMP''')
        for o_ in self.opts:
            if o_.startswith('pad='):
                a('''s_cmp_eq_u32 s34, 0
                s_cbranch_scc0 L_END
                s_cmp_lt_u32 s36, 20
                s_cbranch_scc0 L_END''')
                for q_ in self.opts:
                    if q_.startswith('padwg='): a('s_cmp_eq_u32 s2, %d\ns_cbranch_scc0 L_END' % int(q_[6:]))
                a('''L_PAD:
                s_memrealtime s[98:99]
                s_waitcnt lgkmcnt(0)
                s_sub_u32 s77, s98, s96
                s_cmp_lt_u32 s77, %d
                s_cbranch_scc1 L_PAD''' % int(o_[4:]))
        if 'span' in self.opts:
            a('''s_cmp_eq_u32 s34, 0
            s_cbranch_scc0 L_END
            s_waitcnt vmcnt(0)
            s_memrealtime s[98:99]
            s_memtime s[76:77]
            s_waitcnt lgkmcnt(0)
            s_not_b32 s97, s96
            s_sub_u32 s76, s76, s100
            s_sub_u32 s77, s98, s96
            s_mov_b64 exec, 1
            v_mov_b32 v0, 0
            v_mov_b32 v1, s97
            v_mov_b32 v2, s98
            v_mov_b32 v3, s96
            v_mov_b32 v4, s76
            v_mov_b32 v5, s77
            global_atomic_umax v0, v1, s[30:31]
            global_atomic_umax v0, v2, s[30:31] offset:4
            global_atomic_umax v0, v3, s[30:31] offset:8
            global_atomic_umax v0, v4, s[30:31] offset:12
            global_atomic_umax v0, v5, s[30:31] offset:16''')
        a('L_END:')
        body = a.finish()
        ref = open('parallel_sum__ssm_conv_s4d__mixer_channel_mlp__prompt.s.ref').read()
        head = ''.join(l + '\n' for l in ref.split('\n') if l.startswith(';') and '@launch' not in l)
        return head + '''; @launch grid=(256,1,1) block=(512,1,1) lds=163840
.amdgcn_target "amdgcn-amd-amdhsa--gfx950"
.text
.globl {n}
.p2align 8
.type {n},@function
{n}:
{body}    s_endpgm
.section .rodata,"a"
.p2align 6
.amdhsa_kernel {n}
  .amdhsa_next_free_vgpr 256
  .amdhsa_next_free_sgpr 102
  .amdhsa_accum_offset 256
  .amdhsa_group_segment_fixed_size 0
  .amdhsa_kernarg_size 120
  .amdhsa_user_sgpr_count 2
  .amdhsa_user_sgpr_kernarg_segment_ptr 1
  .amdhsa_system_sgpr_workgroup_id_x 1
  .amdhsa_float_denorm_mode_32 3
.end_amdhsa_kernel
'''.format(n=NAME, body=body)
if __name__ == '__main__':
    out = sys.argv[1]; opts = sys.argv[2:]
    g = G('stamps' in opts, opts); s = g.build(); open(out, 'w').write(s)
    print('wrote', out, len(s), 'bytes; nops inserted', g.a.nops)
```

```python
import sys, math, struct
sys.path.insert(0, 'work')
from asmdsl import Asm, interleave
NAME = 'parallel_sum__ssm_conv_s4d__mixer_channel_mlp__prompt_kernel'
def f32(x): return '0x%08x' % struct.unpack('<I', struct.pack('<f', x))[0]
LOG2E = math.log2(math.e)
XT, HH, AA, FL, DBG = 0x000000, 0x400000, 0xA00000, 0xD00000, 0xE00000
ST, CSA = FL + 0x70000, FL + 0x80000
FX, EP, FH, FA = FL + 0x8000, FL + 0xC000, FL + 0x10000, FL + 0x40000
WS_BYTES = 0x1000000
XR = 131072
L_TAB, L_U, L_ST = XR, XR + 2 * 8320, XR + 2 * 8320 + 2 * 4608
N_CS = 43008
VN = 27
L_AT = XR
L_RED = 0
N_T, N_TAB, N_U = 0, 49152, 49152 + 4 * 8320
TSTR = 2592
sWV, sXCD, sJ = 34, 35, 36
X_, W1_, W2_, WS_, OUT_ = 's[40:43]', 's[44:47]', 's[48:51]', 's[52:55]', 's[56:59]'
POLLMAX = 0x8000
BARPOS = [.45, .7, .9, 1.0, 1.0, 1.0, 1.0]
PPOS, NPH, B1P, RBU, B3B = 8, 16, 22, 4, 0
RB7, RB8, RB9, RB10, B0P, N2 = 8, 14, 23, 30, 0, 5
FLAG0 = 31
ROT = [40, 27, 0, 0]
SPRIO = 0
FLAG1 = 14
THR = None
NOBP = 2
KPRIO = 1
LORD = [2, 3, 4, 5, 0, 1, 6, 7]
XHOOK = 0.03
TOUCH = [0.05, 0.07, 0.3, 0.5]
TLN = [0, 0]
GT = 20
SLP = 4
XST = 2
XI, WI = 228, 164
XPOS = 7
NL0, NL1 = 0, 8
THR0 = None
FRONT = 0
PK = 1
LNP = [-1, 0]
NLATE = 0
NFIN = 2
CHAIN = 1
CPRIO = 1
PRE2 = 8
W1T = 0
SB = [1]
RWAIT = 4
TPRIO = 1
SWAP = 1
XEARLY = 1
WFIRST = 1
SA = 84
OUTAUX = ''
import os
SELS = {
 'main': {'G': [0, 'b0', 'b9', 5, 6, 7, 10, 11, 12], 'S': [0, 2, 3, 'st', 5, 6, 'R', 8, 10]},
 'start': {'G': [0, 'd0', 'd1', 'd2', 'w0', 'b0', 'b1', 'b2', 'b3'], 'S': [0, 'pl', 'a0', 2, 'ln', 'xs', 3, 4, 5]},
 'g1': {'G': [0, 'b0', 'b1', 'b2', 'b3', 'b4', 'b6', 'b8', 'b9'], 'S': [0, 2, 'xf', 3, 'st', 4, 5, 6, 'R']},
 'mid': {'G': [0, 'b9', 5, 't1', 't2', 't3', 'f0', 6, 7], 'S': [0, 3, 'r0', 4, 5, 6, 'r1', 'R', 7]},
 'ln': {'G': [0, 'b5', 'b6', 'b7', 'a8', 'b8', 'a9', 'w9', 'b9'], 'S': [0, 2, 'ln', 1, 'l4', 'xs', 'xf', 3, 'st']},
 'g2': {'G': [0, 's0', 's2', 's5', 's8', 's11', 's14', 's17', 's21'], 'S': [0, 7, 8, 9, 10, 11, 12]},
 'bad': {'G': [0, 'b9', 7, 'f1', 10, 8, 11], 'S': [0, 'r0', 'xf', 3, 5, 6]},
 'clk': {'G': [0, 'b1', 'b4', 'b6', 'b9'], 'S': [0]},
 'clk2': {'G': [0, 'b9', 7, 11, 12], 'S': [0]},
 'none': {'G': [0, 'b0', 'b2', 'b9', 7, 11, 12], 'S': [0, 2, 'xs', 3, 7, 9]},
 'end': {'G': [0, 7, 'f1', 10, 8, 9, 11, 12, 13], 'S': [0, 7, 8, 9, 10, 'h1', 11, 12]},
}
CLK = 's_memtime' if os.environ.get('CYC') else 's_memrealtime'
SEL = SELS[os.environ.get('SEL', 'main')]
SEL['N'] = SEL['S']
for _k in ('BARPOS', 'XHOOK', 'XST', 'XPOS', 'NL0', 'NL1', 'FLAG0', 'FLAG1', 'THR', 'SLP', 'TOUCH', 'TLN', 'GT', 'SA', 'OUTAUX', 'RB8', 'RB9', 'PPOS', 'NPH', 'B1P', 'RBU', 'ROT', 'NOBP', 'THR0', 'FRONT', 'PK', 'LNP', 'PRE2', 'W1T', 'SB', 'RWAIT', 'RB7', 'RB10', 'B0P', 'N2', 'NLATE', 'NFIN', 'CHAIN', 'CPRIO', 'TPRIO', 'SWAP', 'XEARLY', 'WFIRST', 'KPRIO', 'SPRIO', 'B3B'):
    if os.environ.get(_k): globals()[_k] = eval(os.environ[_k])
NLN = min(64, -(-(15360 - 96 * GT) // (64 * max(1, len(TOUCH) + sum(TLN)))))
class G:
    def __init__(self, stamps=False, opts=()):
        self.a = Asm(); self.stamps = stamps; self.nlab = 0; self.opts = set(opts); self.sel = None
        self.AMP = ([o[4:].split(',') for o in opts if o.startswith('amp=')] or [None])[0]
    def lab(self, p='L'):
        self.nlab += 1; return '%s%d' % (p, self.nlab)
    def stamp(self, k):
        if self.AMP and str(k) == self.AMP[0]: self.a('s_memrealtime s[94:95]')
        if self.AMP and str(k) == self.AMP[1]: self.a('s_memrealtime s[92:93]')
        if 'padat=%s' % k in self.opts: self.a('s_memrealtime s[96:97]')
        if self.stamps and k in self.sel:
            i = self.sel.index(k); self.a('%s s[%d:%d]' % (CLK, 80 + 2 * i, 81 + 2 * i))
            if os.environ.get('BOTH'): self.a('s_memtime s[%d:%d]' % (88 + 2 * i, 89 + 2 * i))
    def dump_stamps(self):
        if not self.stamps: return
        a = self.a
        a('s_lshl_b32 s60, s2, 3\ns_add_u32 s60, s60, s%d\ns_lshl_b32 s60, s60, 6\ns_add_u32 s60, s60, %d' % (sWV, DBG))
        a('s_mov_b64 exec, -1\nv_mov_b32 v0, 0')
        a('s_memtime s[76:77]\n' + CLK + ' s[98:99]\ns_waitcnt lgkmcnt(0)\ns_sub_u32 s100, s76, s100')
        for k in range(11):
            a('v_mov_b32 v1, s%d\nbuffer_store_dword v1, v0, %s, s60 offen offset:%d' % (80 + 2 * k, WS_, 4 * k))
    def poll(self, load, check):
        L = self.lab('P'); E = self.lab('PE')
        self.a('s_mov_b32 s79, 0\n%s:\n%s\ns_add_u32 s79, s79, 1\ns_waitcnt vmcnt(0)\n%s\ns_cbranch_vccz %s\ns_sleep %d\ns_cmp_gt_u32 s79, %d\ns_cbranch_scc0 %s\n%s:' % (L, load, check, E, SLP, POLLMAX, L, E))
    def spoll(self, n, off):
        a = self.a
        D = list(range(64, 76)) + [16, 17, 18, 19]
        L = self.lab('SP'); E = self.lab('SE')
        a('s_add_u32 s22, s32, s%d\ns_addc_u32 s23, s33, 0\ns_mov_b32 s79, 0\n%s:' % (off, L))
        for i in range(n): a('s_load_dword s%d, s[22:23], %d glc' % (D[i], 128 * i))
        a('s_add_u32 s79, s79, 1\ns_waitcnt lgkmcnt(0)\ns_xor_b32 s76, s%d, s21' % D[0])
        for i in range(1, n): a('s_xor_b32 s77, s%d, s21\ns_or_b32 s76, s76, s77' % D[i])
        a('s_cbranch_scc0 %s\ns_sleep %d\ns_cmp_gt_u32 s79, %d\ns_cbranch_scc0 %s\n%s:' % (E, SLP, POLLMAX, L, E))
    def nonce0(self): self.a('s_mov_b32 s76, %d\ns_load_dword s21, s[32:33], s76' % EP)
    def nonce2(self): return 's_mul_i32 s21, s21, 0x9e3779b1\ns_add_u32 s21, s21, 0x7f4a7c15'
    def flag(self, v, soff):
        return 's_mov_b64 exec, 0xff\nbuffer_store_dwordx4 v[%d:%d], v%d, %s, s%d offen sc1\ns_mov_b64 exec, -1' % (v, v + 3, v + 4, WS_, soff)
    def flag_regs(self, v):
        return ['v_mov_b32 v%d, s21' % (v + i) for i in range(4)] + ['v_lshlrev_b32 v%d, 4, v1' % (v + 4)]
    def prologue(self):
        a = self.a
        a('''s_cmp_ge_u32 s2, 256
        s_cbranch_scc1 L_END
        s_load_dwordx16 s[4:19], s[0:1], 0
        s_load_dwordx8 s[20:27], s[0:1], 64
        s_load_dwordx4 s[28:31], s[0:1], 96
        s_load_dwordx2 s[32:33], s[0:1], 112''')
        if self.stamps:
            a('s_memtime s[100:101]\n' + CLK + ' s[80:81]')
            for k in range(1, 10): a('s_mov_b32 s%d, 0' % (80 + 2 * k))
        if self.AMP: a('s_memrealtime s[96:97]\ns_memrealtime s[94:95]\ns_memrealtime s[92:93]')
        if 'span' in self.opts or any(o.startswith('pad=') for o in self.opts): a('s_memrealtime s[96:97]\ns_memtime s[100:101]')
        a('''v_lshrrev_b32 v2, 6, v0
        v_and_b32 v1, 63, v0
        s_and_b32 s35, s2, 7
        v_readfirstlane_b32 s34, v2
        s_lshr_b32 s36, s2, 3
        s_xor_b32 s34, s34, %d''' % (4 if SWAP else 0))
    def srds(self, wait=True):
        self.a('''s_mov_b32 s42, %d
        s_mov_b32 s43, 0x20000
        s_mov_b32 s46, %d
        s_mov_b32 s47, 0x20000
        s_mov_b32 s50, %d
        s_mov_b32 s51, 0x20000
        s_mov_b32 s54, %d
        s_mov_b32 s55, 0x20000
        s_mov_b32 s58, %d
        s_mov_b32 s59, 0x20000''' % (2048 * 1280, 640 * 3072, 1536 * 1280, WS_BYTES, 2048 * 1280))
        if wait: self.a('s_waitcnt lgkmcnt(0)')
        self.a('''s_mov_b32 s40, s4
        s_mov_b32 s41, s5
        s_mov_b32 s44, s20
        s_mov_b32 s45, s21
        s_mov_b32 s48, s24
        s_mov_b32 s49, s25
        s_mov_b32 s52, s32
        s_mov_b32 s53, s33
        s_mov_b32 s56, s28
        s_mov_b32 s57, s29''')
        self.stamp('srd')
    def g1_ids(self, rb, cb, rot, adv=0):
        self.a("""s_mul_i32 s68, s36, 43
        s_lshr_b32 s68, s68, 8
        s_mul_i32 s69, s68, 6
        s_sub_u32 s69, s36, s69
        s_lshr_b32 s64, s35, 1
        s_and_b32 s65, s35, 1
        s_lshl_b32 s{rb}, s64, 2
        s_add_u32 s{rb}, s{rb}, s68
        s_mul_i32 s{cb}, s65, 6
        s_add_u32 s{cb}, s{cb}, s69
        s_mov_b32 s{rot}, {adv}""".format(rb=rb, cb=cb, rot=rot, adv=adv))
        for r, m in zip((68, 69, 64, 65), ROT):
            if m: self.a('s_mul_i32 s66, s%d, %d\ns_lshr_b32 s66, s66, 4\ns_add_u32 s%d, s%d, s66' % (r, m, rot, rot))
        self.a('s_mul_i32 s66, s{r}, 26\ns_lshr_b32 s66, s66, 8\ns_mul_i32 s66, s66, 10\ns_sub_u32 s{r}, s{r}, s66'.format(r=rot))
    def tile_ids(self):
        self.a("""s_cmp_ge_u32 s36, 10
        s_cselect_b32 s62, 1, 0
        s_mul_i32 s63, s62, 10
        s_sub_u32 s63, s36, s63
        s_lshl_b32 s66, s35, 1
        s_add_u32 s62, s62, s66""")
    def g1_voff(self, VX, VW, wv, rb, cb, t):
        a = self.a
        a("""s_lshl_b32 s76, s{rb}, 7
        s_lshl_b32 s77, s{wv}, 5
        s_add_u32 s76, s76, s77
        s_mul_i32 s76, s76, 1280
        v_lshrrev_b32 v{t0}, 3, v1
        v_mul_u32_u24 v{t0}, 1280, v{t0}
        v_lshrrev_b32 v{t1}, 4, v1
        v_xor_b32 v{t2}, v{t1}, v1
        v_and_b32 v{t2}, 7, v{t2}
        v_lshl_add_u32 v{t0}, v{t2}, 4, v{t0}
        v_add_u32 v{x0}, s76, v{t0}
        v_xor_b32 v{t0}, 64, v{x0}
        v_add_u32 v{x1}, {d1}, v{t0}
        v_add_u32 v{x2}, {d2}, v{x0}
        v_add_u32 v{x3}, {d3}, v{t0}
        s_mul_i32 s76, s{wv}, {w16}
        s_lshl_b32 s77, s{cb}, 8
        s_add_u32 s76, s76, s77
        v_mul_u32_u24 v{t0}, 3072, v{t1}
        v_lshlrev_b32 v{t2}, 2, v{t1}
        v_xor_b32 v{t2}, v{t2}, v1
        v_and_b32 v{t2}, 15, v{t2}
        v_lshl_add_u32 v{t0}, v{t2}, 4, v{t0}
        v_add_u32 v{w0}, s76, v{t0}
        v_xor_b32 v{t0}, 16, v{w0}
        v_add_u32 v{w1}, {e1}, v{w0}
        v_add_u32 v{w2}, {e2}, v{t0}
        v_add_u32 v{w3}, {e3}, v{t0}
        s_lshl_b32 s67, s{wv}, 12""".format(rb=rb, cb=cb, wv=wv, t0=t, t1=t + 1, t2=t + 2, x0=VX, x1=VX + 1, x2=VX + 2, x3=VX + 3, w0=VW, w1=VW + 1, w2=VW + 2, w3=VW + 3,
            d1=8 * 1280 - 1024, d2=16 * 1280 - 2048, d3=24 * 1280 - 3072, w16=16 * 3072, e1=4 * 3072 - 1024, e2=8 * 3072 - 2048, e3=12 * 3072 - 3072))
    def g1_dma(self, stage, VX, VW, rot, wfirst=False):
        idx = stage % 4
        lx, lw = [], []
        for i in range(4):
            pre = 's_add_u32 m0, s67, %d\ns_lshl_b32 s76, s%d, 7\n' % (idx * 16384, rot) if i == 0 else ''
            lx.append(pre + 'buffer_load_dwordx4 v%d, %s, s76 offen offset:%d lds' % (VX + i, X_, 1024 * i))
            pre = 's_add_u32 m0, s67, %d\ns_mul_i32 s77, s%d, %d\n' % (65536 + idx * 16384, rot, 64 * 3072) if i == 0 else ''
            lw.append(pre + 'buffer_load_dwordx4 v%d, %s, s77 offen offset:%d lds' % (VW + i, W1_, 1024 * i))
        l = lw + lx if wfirst else lx + lw
        l[7] += '\ns_add_u32 s{r}, s{r}, 1\ns_cmp_eq_u32 s{r}, 10\ns_cselect_b32 s{r}, 0, s{r}'.format(r=rot)
        return l
    def g2_offsets(self):
        a = self.a
        a('s_lshl_b32 s4, s63, 10')
        for i in range(1, 12):
            a('s_add_u32 s%d, s%d, 1024\ns_cmp_eq_u32 s%d, 12288\ns_cselect_b32 s%d, 0, s%d' % (4 + i, 3 + i, 4 + i, 4 + i, 4 + i))
    def w2_voff(self, v0, wv, t):
        self.a("""s_lshr_b32 s76, s{wv}, 1
        s_mul_i32 s76, s76, {khs}
        s_and_b32 s77, s{wv}, 1
        s_mul_i32 s77, s77, {r16}
        s_add_u32 s76, s76, s77
        s_lshl_b32 s77, s63, 7
        s_add_u32 s76, s76, s77
        v_lshrrev_b32 v{t}, 3, v1
        v_mul_u32_u24 v{v0}, 1280, v{t}
        v_lshrrev_b32 v{t}, 4, v1
        v_lshlrev_b32 v{t}, 1, v{t}
        v_xor_b32 v{t}, v{t}, v1
        v_and_b32 v{t}, 7, v{t}
        v_lshl_add_u32 v{v0}, v{t}, 4, v{v0}
        v_add_u32 v{v0}, s76, v{v0}
        v_add_u32 v{v1}, {d}, v{v0}
        s_lshl_b32 s78, s{wv}, 11""".format(wv=wv, khs=24 * 32 * 1280, r16=16 * 1280, t=t, v0=v0, v1=v0 + 1, d=8 * 1280 - 1024))
    def w2_dma(self, step, slot, v0):
        part, i = step // 12, step % 12
        return ['s_add_u32 m0, s78, %d\ns_mul_i32 s76, s%d, 80\n%sbuffer_load_dwordx4 v%d, %s, s76 offen lds' % (slot * 8192, 4 + i, 's_add_u32 s76, s76, 40960\n' if part else '', v0, W2_),
                'buffer_load_dwordx4 v%d, %s, s76 offen offset:1024 lds' % (v0 + 1, W2_)]
    def w2_round(self, units, v0, thr=None):
        l = []
        for st, sl in units:
            d = self.w2_dma(st, sl, v0)
            if thr is not None: d[0] = 's_waitcnt vmcnt(%d)\n' % thr + d[0]
            l += d
        return l
    def gwave(self):
        a = self.a
        NT = 4
        VX, VW, RX, RW = 16, 20, 24, 26
        VBA, VXR, VAA, VSA = 30, 128, 129, 130
        XB, WB = [32, 64], 96
        VB2, VXI = 12, 240
        T, P, KC = 208, 224, 228
        TR, RF, A2, HR = 4, 16, 144, 208
        acc1 = lambda mt, nt: 144 + 32 * (mt >> 1) + 8 * nt + 4 * (mt & 1)
        acc = lambda t, nt: A2 + 32 * (t >> 1) + 8 * nt + 4 * (t & 1)
        a('s_setprio 1')
        self.g1_ids(37, 38, 39)
        self.g1_voff(VX, VW, 34, 37, 38, 2)
        self.srds()
        self.nonce0()
        dma = lambda st, wf=False: self.g1_dma(st, VX, VW, 39, wf)
        for x in dma(0): a(x)
        self.stamp('d0')
        self.tile_ids()
        a('s_and_b32 s60, s34, 1\ns_lshr_b32 s61, s34, 1')
        a("""v_and_b32 v8, 31, v1
        v_lshrrev_b32 v9, 5, v1
        v_and_b32 v10, 15, v1
        v_lshrrev_b32 v11, 4, v1
        v_bfe_u32 v12, v1, 4, 1
        v_bfe_u32 v13, v1, 2, 2
        v_and_b32 v14, 3, v1""")
        a("""v_lshrrev_b32 v4, 1, v10
        v_xor_b32 v4, v4, v11
        v_lshlrev_b32 v4, 4, v4
        v_lshl_add_u32 v4, v10, 7, v4
        s_lshl_b32 s76, s61, 13
        v_add_u32 v{x0}, s76, v4
        v_xor_b32 v{x1}, 64, v{x0}""".format(x0=RX, x1=RX + 1))
        a("""v_lshl_add_u32 v5, v11, 3, v13
        v_lshlrev_b32 v5, 8, v5
        s_lshl_b32 s76, s60, 1
        v_xor_b32 v4, s76, v13
        v_lshl_add_u32 v5, v4, 6, v5
        v_lshrrev_b32 v4, 1, v14
        v_lshl_add_u32 v5, v4, 5, v5
        v_lshl_add_u32 v5, v12, 4, v5
        v_and_b32 v4, 1, v1
        v_lshl_add_u32 v5, v4, 3, v5
        v_add_u32 v{w0}, 0x10000, v5
        v_xor_b32 v{w1}, 16, v{w0}
        v_xor_b32 v{w2}, 64, v{w0}
        v_xor_b32 v{w3}, 80, v{w0}""".format(w0=RW, w1=RW + 1, w2=RW + 2, w3=RW + 3))
        a("""v_lshrrev_b32 v4, 3, v10
        v_lshlrev_b32 v4, 8, v4
        v_and_b32 v5, 7, v1
        v_lshl_add_u32 v4, v5, 4, v4
        v_lshlrev_b32 v5, 11, v11
        s_lshl_b32 s76, s60, 10
        s_add_u32 s76, s76, {lu}
        v_add3_u32 v{aa}, v4, v5, s76
        s_lshl_b32 s76, s61, 11
        s_add_u32 s76, s76, {st}
        v_lshl_add_u32 v{sa}, v10, 5, s76""".format(lu=L_U + 1024, st=L_ST, aa=VAA, sa=VSA))
        a("""v_lshlrev_b32 v2, 4, v1
        s_lshl_b32 s76, s37, 1
        s_add_u32 s76, s76, s61
        s_mul_i32 s68, s76, {b4}
        s_mul_i32 s3, s76, 3072
        s_lshl_b32 s76, s38, 1
        s_add_u32 s76, s76, s60
        s_lshl_b32 s77, s76, 10
        s_add_u32 s68, s68, s77
        s_add_u32 s68, s68, {hh}
        s_lshl_b32 s76, s76, 7
        s_add_u32 s3, s3, s76
        s_add_u32 s3, s3, {fh}""".format(b4=4 * 49152, hh=HH, fh=FH))
        a("""s_lshl_b32 s76, s62, 1
        s_add_u32 s76, s76, s61
        s_mul_i32 s72, s76, {r64}
        s_mul_i32 s73, s76, {b4}
        s_mul_i32 s66, s76, 3072
        s_mul_i32 s77, s60, 12288
        s_add_u32 s73, s73, s77
        s_add_u32 s73, s73, {hh}
        s_mul_i32 s77, s60, 1536
        s_add_u32 s66, s66, s77
        s_add_u32 s66, s66, {fh}
        s_min_u32 s76, s63, 9
        s_lshl_b32 s76, s76, 7
        s_lshl_b32 s77, s60, 6
        s_add_u32 s76, s76, s77
        s_add_u32 s72, s72, s76
        v_lshlrev_b32 v4, 5, v12
        v_lshl_add_u32 v4, v9, 4, v4
        v_mul_u32_u24 v5, 1280, v10
        v_add_u32 v3, v4, v5
        v_add_u32 v{ba}, s76, v4""".format(r64=64 * 1280, b4=4 * 49152, hh=HH, fh=FH, ba=VBA + 1))
        a("""v_lshl_add_u32 v4, v12, 1, v9
        s_lshl_b32 s76, s60, 2
        v_lshrrev_b32 v5, 1, v10
        v_xor_b32 v4, v4, v5
        v_xor_b32 v4, s76, v4
        v_lshlrev_b32 v4, 4, v4
        v_lshl_add_u32 v4, v10, 7, v4
        s_mul_i32 s76, s61, 8320
        s_add_u32 s76, s76, %d
        v_add_u32 v%d, s76, v4""" % (L_TAB, VXR))
        a("""v_lshl_add_u32 v15, v12, 2, v13
        v_lshrrev_b32 v5, 1, v15
        v_lshl_add_u32 v15, v9, 4, v15
        v_lshlrev_b32 v15, 7, v15
        s_lshl_b32 s76, s60, 1
        v_xor_b32 v5, s76, v5
        v_lshl_add_u32 v15, v5, 5, v15
        v_lshl_add_u32 v15, v14, 3, v15
        s_lshl_b32 s76, s60, 12
        s_add_u32 s76, s76, 0x10000
        v_add_u32 v4, s76, v15
        v_xor_b32 v5, 32, v4
        v_xor_b32 v6, 64, v4
        v_xor_b32 v7, 96, v4""")
        self.w2_voff(8, sWV, 10)
        self.g2_offsets()
        a('global_load_dwordx4 v[%d:%d], v%d, s[26:27]' % (VB2, VB2 + 3, VBA + 1))
        for x in dma(1, WFIRST): a(x)
        self.stamp('d1')
        d2 = dma(2) + dma(3)
        for x in d2[:PRE2]: a(x)
        if GT:
            a('''s_lshl_b32 s70, s36, 2
            s_add_u32 s70, s70, s34
            s_mul_i32 s70, s70, {n}
            s_mul_i32 s71, s35, 1920
            s_add_u32 s70, s70, s71
            v_min_u32 v131, {n1}, v1
            v_add_lshl_u32 v131, v131, s70, 7
            v_add_u32 v132, {w}, v131
            v_min_u32 v131, v131, v132
            buffer_load_dword v132, v131, {w2}, 0 offen'''.format(n=GT, n1=GT - 1, w=-15360 * 128, w2=W2_))
        self.stamp('d2')
        def xreads(st):
            return ['ds_read_b128 v[%d:%d], v%d offset:%d' % (XB[st & 1] + 8 * nt + 4 * ks, XB[st & 1] + 8 * nt + 4 * ks + 3, RX + ks, (st % 4) * 16384 + 2048 * nt) for nt in range(4) for ks in range(2)]
        def wreads(st, p):
            return ['ds_read_b64_tr_b16 v[%d:%d], v%d offset:%d' % (WB + 8 * mt + 4 * ks + 2 * e, WB + 8 * mt + 4 * ks + 2 * e + 1, RW + mt, (st % 4) * 16384 + 8192 * ks + 1024 * e)
                    for mt in (2 * p, 2 * p + 1) for ks in range(2) for e in range(2)]
        def mfmas(st, p):
            l = []
            for mt in (2 * p, 2 * p + 1):
                for nt in range(4):
                    for ks in range(2):
                        c = 'v[%d:%d]' % (acc1(mt, nt), acc1(mt, nt) + 3); w = WB + 8 * mt + 4 * ks; x = XB[st & 1] + 8 * nt + 4 * ks
                        l.append('v_mfma_f32_16x16x32_bf16 %s, v[%d:%d], v[%d:%d], %s' % (c, w, w + 3, x, x + 3, '0' if st == 0 and ks == 0 else c))
            return l
        def weave(mm, rd, n2):
            for i, m in enumerate(mm):
                a(m)
                k = 2 if i < n2 else 1
                for x in rd[:k]: a(x)
                rd = rd[k:]
            assert not rd
        AUA, AUB = XB[0], XB[0] + 16
        vm = [0] * 8 + ['b'] + [1] * 8 + ([2] * 8 + [3] * 8)[:PRE2] + ['t'] * (GT > 0)
        assert PRE2 >= 8
        for st in range(11):
            self.stamp('a%d' % st)
            w = ''
            if st in vm:
                k = len(vm) - vm[::-1].index(st); vm = vm[k:]; w = 'vmcnt(%d) ' % len(vm)
            a('s_waitcnt %slgkmcnt(0)' % w)
            self.stamp('w%d' % st)
            a('s_barrier')
            self.stamp('b%d' % st)
            if st == 10: break
            w0, xr = wreads(st, 0), xreads(st)
            rd = w0[:4] + xr + w0[4:]
            if st == 0:
                for x in rd: a(x)
                a(self.nonce2())
            elif st == 1:
                d3 = dma(4); vm += [4] * 8; weave(mfmas(0, 1), rd + d3[:4], 6)
            else: weave(mfmas(st - 1, 1), rd, N2)
            a('s_waitcnt lgkmcnt(0)')
            rd = wreads(st, 1)
            if st == 0: rd += d2[PRE2:]; vm += [3] * (16 - PRE2)
            if st == 1: rd = interleave(rd, d3[4:], every=2)
            if st == 7: rd += ['ds_read_b128 v[%d:%d], v%d offset:%d' % (VXI + 4 * nt, VXI + 4 * nt + 3, VXR, 4160 * (nt >> 1) + 2048 * (nt & 1)) for nt in range(NT)]
            weave(mfmas(st, 0), rd, 0)
        rd = ['ds_read_b128 v[%d:%d], v%d offset:%d' % (AUA + 4 * mt, AUA + 4 * mt + 3, VAA, 512 * (mt >> 1) + 128 * (mt & 1)) for mt in range(4)]
        rd += ['ds_read_b128 v[%d:%d], v%d offset:%d' % (AUB + 4 * nt, AUB + 4 * nt + 3, VSA, 512 * nt) for nt in range(4)]
        rd += ['ds_read_b64 v[%d:%d], v%d offset:%d' % (KC + 2 * nt, KC + 2 * nt + 1, VSA, 512 * nt + 16) for nt in range(4)]
        rd += ['ds_read_b32 v%d, v%d offset:%d' % (KC + 8 + nt, VSA, 512 * nt + 24) for nt in range(4)]
        weave(mfmas(9, 1), rd, 5)
        a('s_waitcnt lgkmcnt(0)')
        for p in (0, 1):
            for nt in range(4):
                for mt in (2 * p, 2 * p + 1):
                    c = 'v[%d:%d]' % (acc1(mt, nt), acc1(mt, nt) + 3)
                    a('v_mfma_f32_16x16x32_bf16 %s, v[%d:%d], v[%d:%d], %s' % (c, AUA + 4 * mt, AUA + 4 * mt + 3, AUB + 4 * nt, AUB + 4 * nt + 3, c))
        self.stamp(5)
        def gelu(part, nt):
            q = acc1(2 * part, nt); k = KC + 2 * nt; dl = KC + 8 + (nt & 2); o = nt & 1; t = T + 8 * (nt & 1)
            pr = lambda b, i: 'v[%d:%d]' % (b + 2 * i, b + 2 * i + 1)
            A = ['v_pk_mul_f32 %s, %s, %s' % (pr(t, i), pr(q, i), pr(q, i)) for i in range(4)]
            B = ['v_pk_fma_f32 %s, %s, v[%d:%d], v[%d:%d] op_sel:[0,0,1] op_sel_hi:[1,0,1]' % (pr(t, i), pr(t, i), k, k + 1, k, k + 1) for i in range(4)]
            C = ['v_pk_mul_f32 %s, %s, %s' % (pr(t, i), pr(t, i), pr(q, i)) for i in range(4)]
            E = ['v_exp_f32 v%d, v%d' % (t + i, t + i) for i in range(8)]
            D = ['v_pk_fma_f32 %s, %s, v[%d:%d], v[%d:%d] op_sel:[0,%d,%d] op_sel_hi:[1,%d,%d]' % (pr(t, i), pr(t, i), dl, dl + 1, dl, dl + 1, o, o, o, o) for i in range(4)]
            R = ['v_rcp_f32 v%d, v%d' % (t + i, t + i) for i in range(8)]
            Gc = ['v_cvt_pk_bf16_f32 v%d, v%d, v%d' % (P + i, t + 2 * i, t + 2 * i + 1) for i in range(4)]
            Gc[2] += '\ns_add_u32 s69, s68, %d' % (nt * 49152 + part * 24576)
            Gc[3] += '\nbuffer_store_dwordx4 v[%d:%d], v2, %s, s69 offen sc1' % (P, P + 3, WS_) if 'nost' not in self.opts else '\ns_nop 0 ; buffer_store'
            return A, B, C, E, D, R, C, Gc
        def gelu_stream(tiles):
            A, B, C, E, D, R, F, Gc = [sum((gelu(*t)[i] for t in tiles), []) for i in range(8)]
            g = lambda L, j: [L[j]] if 0 <= j < len(L) else []
            return [g(A, i + 2) + g(E, 2 * i) + g(B, i + 2) + g(E, 2 * i + 1) + g(C, i + 2) + g(D, i - 1) + g(R, 2 * i - 4) + g(F, i - 3) + g(R, 2 * i - 3) + g(Gc, i - 4)
                    for i in range(-2, 4 * len(tiles) + 4)]
        def trreads(buf, slot):
            return ['ds_read_b64_tr_b16 v[%d:%d], v%d offset:%d' % (RF + 16 * buf + 4 * t + 2 * e, RF + 16 * buf + 4 * t + 2 * e + 1, TR + t, (slot % 8) * 8192 + 1024 * e) for t in range(4) for e in range(2)]
        FV = 144
        flag = self.flag(FV, 3) + '\ns_add_u32 s3, s3, %d' % (32 * 3072)
        rr = []
        for b in range(8): rr += trreads(b, b)
        nst = 0
        for i, grp in enumerate(gelu_stream([(p, nt) for p in range(2) for nt in range(4)])):
            if i == B0P: a('s_barrier')
            if i == B1P:
                self.stamp('t2')
                a('s_barrier')
            if i == FLAG0:
                assert nst >= 4
                for x in self.flag_regs(FV): a(x)
                self.stamp('t3')
                a('s_waitcnt vmcnt(%d)' % (nst - 4)); a(flag); self.stamp('f0')
            if i == 10: self.stamp('t1')
            if i >= B1P:
                for x in rr[:RBU]:
                    if 'norr' not in self.opts: a(x)
                rr = rr[RBU:]
            for x in grp:
                a(x); nst += 'buffer_store' in x
        assert not rr
        self.stamp(6)
        a('s_waitcnt lgkmcnt(0)\ns_barrier')
        self.stamp(7)
        a("""s_cmp_lt_u32 s36, 20
        s_cbranch_scc1 L_G2
        s_waitcnt vmcnt(0)
        {flag}
        s_branch L_FIN
        L_G2:""".format(flag=flag))
        ini = []
        for r in [VB2] + [VXI + 4 * nt for nt in range(NT)]:
            ini += ['v_permlane16_swap_b32 v%d, v%d' % (r, r + 2), 'v_permlane16_swap_b32 v%d, v%d' % (r + 1, r + 3)]
        for i in range(4):
            ini += ['v_lshlrev_b32 v%d, 16, v%d' % (T + 2 * i, VB2 + i), 'v_and_b32 v%d, 0xffff0000, v%d' % (T + 2 * i + 1, VB2 + i)]
        for nt in range(NT):
            for i in range(4):
                s = VXI + 4 * nt + i; o = acc(0, nt) + 2 * i
                ini += ['v_lshlrev_b32 v%d, 16, v%d' % (o, s), 'v_and_b32 v%d, 0xffff0000, v%d' % (o + 1, s),
                        'v_add_f32 v%d, v%d, v%d' % (o, o, T + 2 * i), 'v_add_f32 v%d, v%d, v%d' % (o + 1, o + 1, T + 2 * i + 1)]
        hpl = 'buffer_load_dword v2, v10, %s, s66 offen sc1' % WS_; hchk = 'v_cmp_ne_u32 vcc, s21, v2'
        a('v_min_u32 v10, 11, v1\nv_lshlrev_b32 v10, 7, v10')
        flag = self.flag(176, 3)
        for x in self.flag_regs(176): a(x)
        dm = self.w2_round([(2 + k, k) for k in LORD[NL1:]] + [(10 + k, 8 + k) for k in range(8)], 8)
        d1 = dm[:NPH]
        d1.insert(PPOS, hpl)
        d1.insert(FLAG1, 's_waitcnt vmcnt(%d)\n' % FLAG1 + flag)
        for x in interleave(d1, ini, per=6): a(x)
        Lok = self.lab('OK')
        self.stamp('f1')
        a('s_waitcnt vmcnt(%d)\n%s\ns_cbranch_vccz %s' % (len(d1) - 1 - d1.index(hpl), hchk, Lok))
        self.poll(hpl, hchk)
        a('%s:' % Lok)
        self.stamp(10)
        a("""v_lshl_add_u32 v12, v1, 4, s73
        v_add_u32 v13, 49152, v12
        v_add_u32 v14, %d, v12
        v_add_u32 v15, %d, v12""" % (2 * 49152, 3 * 49152))
        RING = 3 * NT; NJ = 24 * NT
        def hload(j):
            s, nt = j // NT, j % NT
            r = HR + 16 * (s % 3) + 4 * nt
            if 'noh' in self.opts and j >= RING: return 's_nop 0'
            if 'hsame' in self.opts: return 'buffer_load_dwordx4 v[%d:%d], v%d, %s, s%d offen sc1' % (r, r + 3, 12 + nt, WS_, 4 + s % 3)
            return ('v_add_u32 v%d, 24576, v%d\n' % (12 + nt, 12 + nt) if s == 12 else '') + 'buffer_load_dwordx4 v[%d:%d], v%d, %s, s%d offen %s' % (r, r + 3, 12 + nt, WS_, 4 + s % 12, '' if 'hplain' in self.opts else 'sc1')
        RING = 3 * NT; NJ = 24 * NT
        for j in range(RING): a(hload(j))
        for x in dm[NPH:]: a(x)
        self.stamp(8)
        a("""s_lshl_b32 s76, s34, 13
        v_lshl_add_u32 v2, v1, 4, s76
        v_bfe_u32 v10, v1, 2, 3
        s_lshl_b32 s76, s61, 2
        v_xor_b32 v10, s76, v10
        v_lshlrev_b32 v10, 5, v10
        v_lshrrev_b32 v11, 2, v1
        v_lshl_add_u32 v10, v11, 8, v10
        v_and_b32 v11, 3, v1
        v_lshl_add_u32 v10, v11, 3, v10
        s_mul_i32 s16, s60, 8320
        s_add_u32 s16, s16, %d""" % L_TAB)
        self.stamp(9)
        def wbuf(s): return s if s < 2 else (s - 16 if s >= 18 else (s & 1))
        vm = list(range(RING)) + ['D'] * (len(dm) - NPH)
        assert NL1 == 8
        AZ = RF
        JF = 12 * NT - RING + 1
        extra = []
        for s in range(24):
            wb = RF + 16 * wbuf(s); nxt = s + 1; rd = []
            if 2 <= nxt < 18:
                if nxt in (2, 10): extra += ['v_add_u32 v%d, %s, v%d' % (r, '0x10000' if nxt == 10 else '0xffff0000', r) for r in range(4, 8)]
                rd = trreads(wbuf(nxt), nxt - 2)
            if s == 18: extra += ['v_xor_b32 v%d, %d, v10' % (4 + nt, 32 * nt) for nt in range(NT)] + ['v_add_u32 v%d, s16, v%d' % (4 + nt, 4 + nt) for nt in range(NT)]
            if s == 9:
                assert 'D' not in vm and JF >= 9 * NT
                a('s_barrier')
            if nxt in (2, 10):
                for x in extra: a(x)
                extra = []
            wl = 2 <= s < 18
            order = [(s, nt, t) for nt in range(NT) for t in range(4)]
            if s > 24 - NFIN: continue
            if s == 24 - NFIN: order = [(z, nt, t) for tt in ((2, 3), (0, 1)) for z in range(s, 24) for nt in range(NT) for t in tt]
            nw = 0
            for k, (z, nt, t) in enumerate(order):
                j = z * NT + nt; wb = RF + 16 * wbuf(z)
                if j in vm:
                    n = len(vm) - 1 - vm.index(j); vm = vm[vm.index(j) + 1:]
                    a('s_waitcnt vmcnt(%d)' % n + (' lgkmcnt(0)' if wl else '')); wl = False
                r = HR + 16 * (z % 3) + 4 * nt
                c = 'v[%d:%d]' % (acc(t, nt), acc(t, nt) + 3)
                a('v_mfma_f32_16x16x32_bf16 %s, v[%d:%d], v[%d:%d], %s' % (c, wb + 4 * t, wb + 4 * t + 3, r, r + 3, '0' if (s == 0 and t >= 2) else c))
                if s == 24 - NFIN:
                    k2 = k - len(order) // 2
                    if k2 >= 0 and k2 % NFIN == 0:
                        a('ds_write_b128 v2, v[%d:%d] offset:%d' % (acc(2 + (nw & 1), nw // 2), acc(2 + (nw & 1), nw // 2) + 3, 1024 * nw)); nw += 1
                    continue
                if t == 1 and j >= 1 and j - 1 + RING < NJ:
                    a(hload(j - 1 + RING)); vm.append(j - 1 + RING)
                    if j == SA: a('s_barrier')
                elif rd and t != 3: a(rd.pop(0))
                elif rd and nt < 2: a(rd.pop(0))
                elif extra and t != 3:
                    a(extra.pop(0))
                    if extra: a(extra.pop(0))
            assert not rd
            if s == 0: self.stamp(11)
            self.stamp('s%d' % s)
        self.stamp(12)
        for x in extra: a(x)
        a('v_xor_b32 v2, 0x2000, v2')
        a('s_waitcnt lgkmcnt(0)\ns_barrier')
        self.stamp(13)
        for nt in range(NT):
            for t in range(2):
                a('ds_read_b64_tr_b16 v[%d:%d], v%d offset:%d' % (AZ + 32 + 4 * nt + 2 * t, AZ + 33 + 4 * nt + 2 * t, 4 + nt, 4160 * t))
                a('ds_read_b128 v[%d:%d], v2 offset:%d' % (acc(2 + t, nt), acc(2 + t, nt) + 3, 1024 * (2 * nt + t)))
        for nt in range(NT):
            a('s_waitcnt lgkmcnt(%d)' % (4 * (NT - 1 - nt)))
            o = HR + 4 * nt; k = acc(0, nt)
            for d in range(4): a('v_lshlrev_b32 v%d, 16, v%d\nv_and_b32 v%d, 0xffff0000, v%d' % (AZ + 2 * d, AZ + 32 + 4 * nt + d, AZ + 2 * d + 1, AZ + 32 + 4 * nt + d))
            for d in range(4): a('v_pk_add_f32 v[%d:%d], v[%d:%d], v[%d:%d]' % (k + 2 * d, k + 2 * d + 1, k + 2 * d, k + 2 * d + 1, k + 32 + 2 * d, k + 33 + 2 * d))
            for d in range(4): a('v_pk_add_f32 v[%d:%d], v[%d:%d], v[%d:%d]' % (k + 2 * d, k + 2 * d + 1, k + 2 * d, k + 2 * d + 1, AZ + 2 * d, AZ + 2 * d + 1))
            for d in range(4): a('v_cvt_pk_bf16_f32 v%d, v%d, v%d' % (o + d, k + 2 * d, k + 2 * d + 1))
            a('s_add_u32 s76, s72, %d' % (nt * 16 * 1280))
            a('v_permlane16_swap_b32 v%d, v%d\nv_permlane16_swap_b32 v%d, v%d' % (o, o + 2, o + 1, o + 3))
            a('buffer_store_dwordx4 v[%d:%d], v3, %s, s76 offen %s' % (o, o + 3, OUT_, OUTAUX))
        self.stamp(14)
        a('s_branch L_FIN')

    def sn_entry(self):
        a = self.a
        a("""s_setprio 3
        s_cmp_ge_u32 s36, 24
        s_cselect_b32 s37, 1, 0
        s_cselect_b32 s76, 3, 1
        s_cselect_b32 s77, -48, 0
        s_lshr_b32 s78, s34, 1
        s_and_b32 s78, s78, s76
        s_add_u32 s76, s37, 1
        s_lshl_b32 s76, s36, s76
        s_mul_i32 s61, s35, 80
        s_add_u32 s61, s61, s76
        s_add_u32 s61, s61, s77
        s_add_u32 s61, s61, s78
        s_mul_i32 s76, s61, 384
        v_and_b32 v7, 31, v1
        v_mul_u32_u24 v2, 12, v7
        v_add_u32 v2, s76, v2
        s_lshl_b32 s66, s61, 1
        s_and_b32 s66, s66, 0xfffc""")
        if 'nocp' not in self.opts:
            L = self.lab('CP')
            a("""s_lshl_b32 s76, s37, 3
            s_add_u32 s76, s76, s34
            s_cmp_eq_u32 s76, 12
            s_cbranch_scc0 {L}
            s_getpc_b64 s[68:69]
            {L}pc:
            s_sub_u32 s68, s68, {L}pc-{n}
            s_subb_u32 s69, s69, 0
            s_sub_u32 s76, s36, 24
            s_lshl_b32 s76, s76, 12
            v_lshl_add_u32 v7, v7, 7, s76
            v_min_u32 v7, L_END-{n}, v7
            global_load_dword v255, v7, s[68:69]
            {L}:""".format(L=L, n=NAME))
        a('s_waitcnt lgkmcnt(0)')
        for k, p in enumerate((6, 8, 10, 12)):
            a('global_load_dwordx3 v[%d:%d], v2, s[%d:%d]' % (16 + 4 * k, 18 + 4 * k, p, p + 1))
        a('s_load_dword s72, s[14:15], s66\ns_load_dword s73, s[16:17], s66')
        self.stamp('pl')
        self.srds(False)
        self.nonce0()
        a("""s_and_b32 s60, s34, 1
        s_mov_b32 s38, {t1}
        s_mov_b32 s39, {u1}
        s_cmp_eq_u32 s37, 0
        s_cselect_b32 s38, {t0}, s38
        s_cselect_b32 s39, {u0}, s39
        s_mul_i32 s76, s78, 8320
        s_add_u32 s38, s38, s76
        s_lshr_b32 s76, s78, 1
        s_mul_i32 s76, s76, 9216
        s_and_b32 s77, s78, 1
        s_lshl_b32 s77, s77, 9
        s_add_u32 s39, s39, s76
        s_add_u32 s39, s39, s77
        s_lshl_b32 s62, s35, 3
        s_add_u32 s62, s62, s36
        s_sub_u32 s62, s62, 24
        s_lshl_b32 s63, s62, 5
        s_lshl_b32 s76, s34, 2
        s_add_u32 s63, s63, s76
        s_mul_i32 s64, s63, 1280
        v_mov_b32 v14, 0
        v_mov_b32 v15, 0
        v_lshrrev_b32 v4, 4, v1
        v_and_b32 v5, 15, v1
        v_mul_u32_u24 v6, 1280, v4
        v_lshl_add_u32 v248, v5, 4, v6""".format(t0=L_TAB, t1=N_TAB, u0=L_U, u1=N_U))
        a('s_cmp_lt_u32 s34, 4\ns_cselect_b32 s19, %d, %d\ns_cmp_eq_u32 s37, 0\ns_cselect_b32 s19, 3, s19' % tuple(LNP))
        if XEARLY: self.xloads()
        a('''s_sub_u32 s76, s36, 24
        s_lshl_b32 s76, s76, 3
        s_add_u32 s76, s76, s34
        s_mul_i32 s76, s76, {n}
        s_mul_i32 s77, s35, 1920
        s_add_u32 s76, s76, s77
        s_add_u32 s76, s76, {g}
        v_min_u32 v249, {n1}, v1
        v_add_lshl_u32 v249, v249, s76, 7'''.format(n=NLN, n1=NLN - 1, g=96 * GT))
        EX = 196 + 6; a = self.a
        a("""s_xor_b32 s76, s60, 1
        s_mul_i32 s76, s76, 4160
        s_add_u32 s76, s76, s38
        v_lshl_add_u32 v{e0}, v1, 4, s76
        s_mul_i32 s76, s60, 4160
        s_add_u32 s76, s76, s38
        v_lshl_add_u32 v{e1}, v1, 4, s76
        v_mov_b32 v{e3}, s76
        s_add_u32 s76, s76, 1008
        v_lshlrev_b32 v5, 4, v1
        v_sub_u32 v{e2}, s76, v5
        v_mov_b32 v8, 0
        v_mov_b32 v9, 0
        v_mov_b32 v10, 0
        v_mov_b32 v11, 0
        v_lshl_add_u32 v6, v1, 3, s39
        ds_write_b64 v6, v[8:9]
        s_mov_b64 exec, 7
        ds_write_b128 v{e1}, v[8:11] offset:4096
        s_mov_b64 exec, -1""".format(e0=EX, e1=EX + 1, e2=EX + 2, e3=EX + 3))
    def xloads(self):
        a = self.a
        Lx = self.lab('NX')
        a('s_cmp_eq_u32 s37, 0\ns_cbranch_scc1 %s' % Lx)
        for i in range(5): a('buffer_load_dwordx4 v[%d:%d], v248, %s, s64 offen offset:%d' % (XI + 4 * i, XI + 4 * i + 3, X_, 256 * i))
        a('%s:' % Lx)
    def cmul(self, d, x, w):
        return ['v_pk_mul_f32 v[%d:%d], v[%d:%d], v[%d:%d] op_sel:[1,1] op_sel_hi:[0,1] neg_lo:[0,1]' % (d[0], d[1], x[0], x[1], w[0], w[1]),
                'v_pk_fma_f32 v[%d:%d], v[%d:%d], v[%d:%d], v[%d:%d] op_sel_hi:[1,0,1]' % (d[0], d[1], x[0], x[1], w[0], w[1], d[0], d[1])]
    def scode(self):
        a = self.a
        tag = 'S'
        SELB, SELA, KA = 32, 40, 52
        FRG = 68
        PB, PA = 68, 84
        DB, DA = 100, 132
        FB, FA2 = 164, 180
        VV = 196
        DT, D2, SC1, SC2 = 48, 49, 50, 51
        a("""v_lshrrev_b32 v3, 5, v1
        v_cmp_eq_u32 s[74:75], 1, v3
        v_bfe_u32 v4, v1, 4, 1
        v_and_b32 v5, 15, v1
        v_cmp_eq_u32 vcc, v3, v4
        v_cndmask_b32 v5, 64, v5, vcc
        v_and_b32 v6, 3, v1
        v_bfe_u32 v7, v1, 3, 2
        v_lshl_add_u32 v6, v7, 2, v6
        v_add_u32 v7, 1, v6
        v_and_b32 v7, 12, v7
        v_and_b32 v8, 9, v6
        v_cmp_eq_u32 vcc, 1, v8
        s_and_b64 vcc, vcc, s[74:75]
        v_cndmask_b32 v6, v6, v7, vcc
        v_bfe_u32 v4, v1, 2, 1
        v_cmp_eq_u32 vcc, v3, v4
        v_cndmask_b32 v6, 64, v6, vcc
        v_mov_b32 v9, 0x3f80""")
        for v, sel in ((5, SELB), (6, SELA)):
            a('v_and_b32 v7, 1, v{v}\nv_lshlrev_b32 v7, 4, v7\nv_lshlrev_b32 v7, v7, v9\nv_lshrrev_b32 v8, 1, v{v}'.format(v=v))
            for d in range(0, 8, 2):
                a('v_cmp_eq_u32 vcc, %d, v8\nv_cmp_eq_u32 s[76:77], %d, v8\nv_nop\nv_cndmask_b32 v%d, 0, v7, vcc\nv_cndmask_b32 v%d, 0, v7, s[76:77]' % (d, d + 1, sel + d, sel + d + 1))
        EX = VV + 6
        a("""v_mov_b32 v4, 0x41000000
        v_mov_b32 v5, 0x43000000
        v_cndmask_b32 v{s1}, v4, v5, s[74:75]
        v_mov_b32 v5, 0x43800000
        v_cndmask_b32 v{s2}, 1.0, v5, s[74:75]
        s_and_b32 s76, s61, 1
        s_xor_b32 s76, s76, 1
        s_lshl_b32 s76, s76, 4
        s_mul_i32 s77, s60, 0x02020000
        s_add_u32 s77, s77, 0x01000c0c
        s_waitcnt lgkmcnt(0)
        {bp}
        s_lshl_b32 s72, s72, s76
        s_and_b32 s72, s72, 0xffff0000
        s_lshl_b32 s73, s73, s76
        s_and_b32 s73, s73, 0xffff0000
        v_mov_b32 v{dt}, s72
        v_mul_f32 v{dt}, {l2e}, v{dt}
        v_exp_f32 v{dt}, v{dt}
        v_mov_b32 v31, s73
        v_cvt_pk_bf16_f32 v{dt}, v{dt}, v{dt}
        v_lshlrev_b32 v{dt}, 16, v{dt}
        v_add_f32 v{d2}, v{dt}, v{dt}""".format(bp=self.nonce2(), s1=SC1, s2=SC2, dt=DT, d2=D2, l2e=f32(LOG2E)))
        a('v_cmp_eq_u32 vcc, 0, v1\nv_cndmask_b32 v31, 0, v31, vcc')
        self.stamp('a0')
        Ls = self.lab('NG'); Lx = self.lab('NX')
        if not XEARLY: self.xloads()
        a('s_setprio %d\ns_cmp_eq_u32 s37, 0\ns_cbranch_scc1 %s\ns_waitcnt vmcnt(5)\ns_branch %s\n%s:\ns_waitcnt vmcnt(0)\n%s:' % (2 * KPRIO, Lx, Ls, Lx, Ls))
        self.stamp(2)
        for k in range(4):
            for p in range(3):
                r = 16 + 4 * k + p
                a('v_perm_b32 v%d, v%d, v%d, s77' % (r, r, r))
        W8, W1, W5 = (VV, VV + 1), (VV + 2, VV + 3), (VV + 4, VV + 5)
        U = VV + 12
        XA = VV + 16
        def setup(p):
            l = """v_mul_f32 v4, {l2e}, v{la}
            v_exp_f32 v4, v4
            v_mul_f32 v5, v{ai}, v{dt}
            v_cvt_pk_bf16_f32 v4, v4, v4
            v_mul_f32 v5, {ci}, v5
            v_lshlrev_b32 v4, 16, v4
            v_mul_f32 v7, v5, v{s1}
            v_mul_f32 v4, v4, v{dt}
            v_mul_f32 v9, v5, v{s2}
            v_mul_f32 v4, {cr}, v4
            v_rndne_f32 v10, v7
            v_rndne_f32 v11, v9
            v_mul_f32 v6, v4, v{s1}
            v_mul_f32 v8, v4, v{s2}
            v_sub_f32 v7, v7, v10
            v_sub_f32 v9, v11, v9
            v_exp_f32 v6, v6
            v_exp_f32 v8, v8
            v_sin_f32 v10, v7
            v_cos_f32 v11, v7
            v_sin_f32 v12, v9
            v_cos_f32 v13, v9
            v_mul_f32 v{w8i}, v10, v6
            v_mul_f32 v{w8r}, v11, v6
            v_mul_f32 v{w1i}, v12, v8
            v_mul_f32 v{w1r}, v13, v8
            v_mul_f32 v{u1}, v10, v6
            v_mul_f32 v{u0}, v11, v6
            v_mul_f32 v{u3}, v12, v8
            v_mul_f32 v{u2}, v13, v8
            v_mul_f32 v4, v{cre}, v{d2}
            v_mul_f32 v5, v{cim}, v{d2}
            v_permlane32_swap_b32 v{w8i}, v{u1}
            v_permlane32_swap_b32 v{w8r}, v{u0}
            v_permlane32_swap_b32 v{w1i}, v{u3}
            v_permlane32_swap_b32 v{w1r}, v{u2}
            v_cndmask_b32 v{e0}, 1.0, v{u0}, s[74:75]
            v_cndmask_b32 v{e1}, 0, v{u1}, s[74:75]
            v_cndmask_b32 v6, 1.0, v{u2}, s[74:75]
            v_cndmask_b32 v7, 0, v{u3}, s[74:75]
            v_mul_f32 v{w5r}, v{u2}, v{u2}
            v_add_f32 v8, v{u2}, v{u2}
            v_fma_f32 v{w5r}, -v{u3}, v{u3}, v{w5r}
            v_mul_f32 v{w5i}, v8, v{u3}
            v_mul_f32 v{g0}, v4, v6
            v_mul_f32 v{g1}, v4, v7
            v_fmac_f32 v{g0}, v5, v7
            v_fma_f32 v{g1}, -v5, v6, v{g1}""".format(l2e=f32(LOG2E), la=16 + p, ai=20 + p, cre=24 + p, cim=28 + p, dt=DT, d2=D2, s1=SC1, s2=SC2,
                ci=f32(1 / (2 * math.pi)), cr=f32(-LOG2E), w8i=W8[1], w8r=W8[0], w1i=W1[1], w1r=W1[0], w5i=W5[1], w5r=W5[0],
                u0=U, u1=U + 1, u2=U + 2, u3=U + 3, e0=XA, e1=XA + 1, g0=XA + 4, g1=XA + 5)
            return [x.strip() for x in l.split('\n')]
        def pack(P, v, x0, x1):
            return ['v_cvt_pk_bf16_f32 v%d, v%d, v%d' % (P + v // 2, x0[0], x1[0]), 'v_cvt_pk_bf16_f32 v%d, v%d, v%d' % (P + 8 + v // 2, x0[1], x1[1])]
        def chainB():
            l = []; r = [(XA, XA + 1), (XA + 2, XA + 3)]
            for v in range(1, 16):
                l += self.cmul(r[v & 1], r[(v - 1) & 1], W8)
                if v & 1: l += pack(PB, v, r[0], r[1])
            return l
        def chainA():
            l = []; reg = {v: (XA + 4 + 2 * k, XA + 5 + 2 * k) for v, k in enumerate([0, 3, 4, 3, 1, 3, 4, 3, 2, 3, 4, 0, 1, 2, 3, 4])}
            src = {9: 0, 10: 4, 11: 8, 12: 9, 13: 11, 14: 12, 15: 13}
            for v in range(1, 16):
                l += self.cmul(reg[v], reg[v - 1] if v < 9 else reg[src[v]], W1 if v < 9 else W5)
                if v & 1: l += pack(PA, v, reg[v - 1], reg[v])
            return l
        def transp(D, P, SEL_):
            l = []
            for sg in range(2):
                for c in range(2):
                    d = 'v[%d:%d]' % (D + 16 * c, D + 16 * c + 15)
                    l.append('v_mfma_f32_32x32x16_bf16 %s, v[%d:%d], v[%d:%d], %s' % (d, P + 8 * c + 4 * sg, P + 8 * c + 4 * sg + 3, SEL_ + 4 * sg, SEL_ + 4 * sg + 3, '0' if sg == 0 else d))
            return l
        def repack(F, D): return ['v_cvt_pk_bf16_f32 v%d, v%d, v%d' % (F + i, D + 2 * i, D + 2 * i + 1) for i in range(16)]
        def mf2(first):
            k = 'v[%d:%d]' % (KA, KA + 15)
            return ['v_mfma_f32_32x32x16_bf16 %s, v[%d:%d], v[%d:%d], %s' % (k, FA2 + 4 * i, FA2 + 4 * i + 3, FB + 4 * i, FB + 4 * i + 3, '0' if (first and i == 0) else k) for i in range(4)]
        hook = 's_cmp_eq_u32 s37, 0\ns_cbranch_scc0 L_LN\nL_LNR:'
        if PK:
            seq = []
            if -1 in LNP: seq.append('s_cmp_eq_u32 s19, -1\ns_cbranch_scc1 L_LN\nL_LNRm:'); iln = 1
            seq += setup(0)
            for p in range(3):
                seq += interleave(chainB(), chainA())
                if p in LNP: seq.append('s_cmp_eq_u32 s19, %d\ns_cbranch_scc1 L_LN\nL_LNR%d:' % (p, p)); iln = len(seq)
                if p == 2 and 0 in SB: seq.append('s_cmp_eq_u32 s37, 0\ns_cbranch_scc0 {L}\ns_barrier\n{L}:'.format(L=self.lab('NB')))
                nx = setup(p + 1) if p < 2 else []
                tb, ta, rb, ra, m2 = transp(DB, PB, SELB), transp(DA, PA, SELA), repack(FB, DB), repack(FA2, DA), mf2(p == 0)
                order = [tb[0], tb[2], ta[0], ta[2], tb[1], tb[3], ta[1], ta[3]]
                h = len(nx) // 2
                seq += interleave(order[:5], nx[:h], per=6)
                seq += interleave(order[5:], rb[:8] + ra[:8], per=6)
                seq += interleave(m2[:2], nx[h:h + 6] + rb[8:] + ra[8:], per=6)
                seq += interleave(m2[2:], nx[h + 6:], per=6)
        if 'nok' in self.opts: a('s_cmp_eq_u32 s37, 0\ns_cbranch_scc1 L_NOK')
        nb = 0; n = len(seq); xh = False
        for i, x in enumerate(seq):
            if not xh and i >= iln + XHOOK * (n - iln):
                self.xhook(); xh = True
            for tp in TOUCH:
                if i == iln + int(tp * (n - iln)):
                    L = self.lab('TC')
                    a('s_cmp_eq_u32 s37, 0\ns_cbranch_scc1 %s' % L); self.touch(); a('%s:' % L)
            a(x)
        if 'nok' in self.opts: a('s_nop 15\nL_NOK:')
        self.stamp(3)
        if 1 in SB: a('s_cmp_eq_u32 s37, 0\ns_cbranch_scc0 {L}\ns_barrier\n{L}:'.format(L=self.lab('NB')))
        CA, CB = 176, 186
        a("""v_and_b32 v9, 15, v1
        v_lshrrev_b32 v10, 4, v1
        v_and_b32 v11, 1, v1
        v_xor_b32 v11, 1, v11
        v_mul_u32_u24 v11, 4162, v11
        v_lshl_add_u32 v11, v10, 4, v11
        v_lshlrev_b32 v12, 1, v9
        v_sub_u32 v11, v11, v12
        s_lshl_b32 s76, s60, 8
        s_sub_u32 s76, s38, s76
        s_add_u32 s76, s76, %d
        v_add_u32 v%d, s76, v11""" % (2 * (2047 - 16) - 512 - 192, CA))
        for p in range(1, 4): a('v_add_u32 v%d, %d, v%d' % (CA + p, -1024 * p, CA))
        a('v_lshl_add_u32 v9, v9, 1, v10\ns_lshl_b32 s76, s60, 4\ns_sub_u32 s76, 30, s76\nv_add_u32 v9, s76, v9')
        for tt in range(4):
            a('v_add_u32 v10, %d, v9\nv_and_b32 v11, 32, v10\nv_add_u32 v10, v10, v11\nv_lshl_add_u32 v%d, v10, 4, s39' % (-4 * tt, CB + tt))
        a("""s_and_b32 s3, s34, 3
        s_lshr_b32 s76, s61, 1
        s_lshl_b32 s76, s76, 13
        s_lshl_b32 s77, s3, 11
        s_add_u32 s26, s76, s77
        s_and_b32 s76, s61, 1
        s_lshl_b32 s76, s76, 9
        s_sub_u32 s27, s39, s76
        s_add_u32 s27, s27, s77
        s_add_u32 s27, s27, 1024
        v_and_b32 v181, 31, v1
        v_lshlrev_b32 v181, 5, v181
        v_lshrrev_b32 v182, 5, v1
        v_lshl_add_u32 v181, v182, 4, v181
        v_lshlrev_b32 v182, 4, v1
        v_and_b32 v184, 15, v1
        v_lshlrev_b32 v184, 7, v184
        s_add_u32 s20, s77, %d""" % FX)
        xld = 'buffer_load_dword v183, v184, %s, s20 offen sc1' % WS_; xchk = 'v_cmp_ne_u32 vcc, s21, v183'
        udma = """s_mov_b32 m0, s27
        buffer_load_dwordx4 v181, {ws}, s26 offen sc1 lds
        buffer_load_dwordx4 v181, {ws}, s26 offen offset:1024 sc1 lds""".format(ws=WS_)
        Lg = self.lab('NG'); Lw = self.lab('NW'); Lx = self.lab('NX'); Lv = self.lab('NV')
        a('s_cmp_eq_u32 s37, 0\ns_cbranch_scc0 %s\ns_setprio 0' % Lg)
        LX, LW = 16, 20
        def prep_x():
            self.tile_ids()
            a("""s_lshl_b32 s76, s62, 7
        s_lshl_b32 s77, s3, 5
        s_add_u32 s76, s76, s77
        s_mul_i32 s16, s76, 1280
        s_min_u32 s76, s63, 9
        s_lshl_b32 s76, s76, 7
        s_add_u32 s16, s16, s76
        v_lshrrev_b32 v9, 3, v1
        v_mul_u32_u24 v9, 1280, v9
        v_lshrrev_b32 v10, 4, v1
        v_xor_b32 v10, v10, v1
        v_and_b32 v10, 7, v10
        v_lshl_add_u32 v9, v10, 4, v9
        v_xor_b32 v10, 64, v9
        s_mul_i32 s17, s3, 4160
        s_add_u32 s17, s17, %d""" % L_TAB)
        def prep_aux():
            a('''s_lshl_b32 s76, s28, 2
        s_add_u32 s76, s76, s3
        s_lshl_b32 s77, s3, 4
        s_lshl_b32 s18, s65, 3
        s_add_u32 s77, s77, s18
        s_add_u32 s77, s77, s69
        s_sub_u32 s77, s77, s76
        v_and_b32 v185, 1, v1
        v_mul_i32_i24 v185, s77, v185
        v_add_u32 v185, s76, v185
        v_lshlrev_b32 v185, 7, v185
        s_mov_b32 s18, %d''' % FX)
        ald = 'buffer_load_dword v183, v185, %s, s18 offen sc1' % WS_
        vm = []
        def issue(x, tag): a(x); vm.append(tag)
        def need(*tags):
            k = max([i for i, t in enumerate(vm) if t in tags], default=-1)
            if k >= 0: a('s_waitcnt vmcnt(%d)' % (len(vm) - 1 - k)); del vm[:k + 1]
        slot_step = dict([(8 + k, s) for k, s in enumerate([0, 1, 18, 19, 20, 21, 22, 23])] + [(k, 2 + k) for k in range(8)])
        dm = self.w2_round([(slot_step[k], k) for k in [12, 13, 4, 5, 14, 15, 6, 7, 8, 9, 0, 1, 10, 11, 2, 3]], 14)
        assert RB7 <= 8 and RB8 <= 16 and RB9 <= 24 and RWAIT <= 4 and RB7 % 2 == 0
        for k in range(1, 9):
            need(k, *(['x'] if k == 7 else []))
            a('s_barrier')
            if k == XPOS: issue(ald, 'f')
            if k == 1:
                self.g1_ids(28, 29, 30, 5); self.g1_voff(LX, LW, 3, 28, 29, 9)
            if 2 <= k <= 6:
                for x in self.g1_dma(k + 3, LX, LW, 30): issue(x, k + 3)
            if k == 2: prep_x()
            i = k - XST
            if 0 <= i < 4: issue('s_mov_b32 m0, s17\ns_add_u32 s76, s16, %d\nbuffer_load_dwordx4 v%d, %s, s76 offen offset:%d lds' % (i * (8 * 1280 - 1024), 9 + (i & 1), X_, 1024 * i), 'x')
            if k == 3:
                prep_aux(); self.w2_voff(14, 3, 13)
                a('s_cmp_lt_u32 s36, 20\ns_cselect_b32 s76, 0, 0x40000000\nv_add_u32 v14, s76, v14\nv_add_u32 v15, s76, v15')
            if k == 4: self.g2_offsets()
            if k == 7:
                for x in dm[:RB7]: issue(x, 'w')
        Lok = self.lab('OK')
        need('f')
        a('%s\ns_cbranch_vccz %s' % (xchk, Lok))
        self.poll(ald, xchk)
        a('%s:' % Lok)
        self.stamp('st')
        a("""s_lshl_b32 s76, s3, 11
        s_add_u32 m0, s76, {lu}
        s_lshl_b32 s76, s29, 2
        s_add_u32 s76, s76, s3
        s_lshl_b32 s76, s76, 11
        s_add_u32 s76, s76, {csa}""".format(lu=L_U + 1024, csa=CSA))
        issue('buffer_load_dwordx4 v182, %s, s76 offen sc1 lds' % WS_, 'a')
        issue('buffer_load_dwordx4 v182, %s, s76 offen offset:1024 sc1 lds' % WS_, 'a')
        issue("""s_lshl_b32 s77, s3, 10
        s_add_u32 m0, s77, {ls}
        s_lshl_b32 s76, s28, 12
        s_add_u32 s76, s76, s77
        s_add_u32 s76, s76, {st}
        buffer_load_dwordx4 v182, {ws}, s76 offen sc1 lds""".format(ls=L_ST, st=ST, ws=WS_), 'a')
        for x in dm[RB7:RB8]: issue(x, 'w')
        need(9)
        a('s_barrier')
        for x in dm[RB8:RB9]: issue(x, 'w')
        need('a')
        a('s_barrier')
        for x in dm[RB9:RB10]: a(x)
        a('s_barrier')
        for x in dm[RB10:]: a(x)
        a('s_waitcnt vmcnt(%d)\n%s:\n%s:\n%s' % (RWAIT, Lw, Lg, xld))
        self.stamp('r0')
        a('s_setprio %d' % (2 * TPRIO))
        for k in range(4): a('ds_write_b128 v%d, v[%d:%d] offset:%d' % (EX, KA + 4 * k, KA + 4 * k + 3, 1024 * k))
        a('s_mov_b64 exec, 1\nds_write_b32 v%d, v%d offset:4128\ns_mov_b64 exec, -1' % (EX, SC1))
        V = lambda r: KA + r
        a('v_add_f32 v{v0}, v{v0}, v31\nv_and_b32 v5, 1, v1\nv_cmp_eq_u32 vcc, 0, v5'.format(v0=V(0)))
        Lp = self.lab('XP'); Lq = self.lab('XQ')
        a('s_mov_b32 s79, 0\n%s:\nds_read_b32 v4, v%d offset:4128' % (Lp, EX + 3))
        for k in range(4): a('ds_read_b128 v[%d:%d], v%d offset:%d' % (FRG + 4 * k, FRG + 4 * k + 3, EX + 1, 1024 * k))
        a('s_add_u32 s79, s79, 1\ns_waitcnt lgkmcnt(4)\nv_readfirstlane_b32 s76, v4\ns_cmp_lg_u32 s76, 0\ns_cbranch_scc1 %s\ns_cmp_gt_u32 s79, %d\ns_cbranch_scc0 %s\n%s:' % (Lq, 64 * POLLMAX, Lp, Lq))
        self.stamp(4)
        for k in range(4):
            a('s_waitcnt lgkmcnt(%d)' % (3 - k))
            for r in range(4 * k, 4 * k + 4): a('v_add_f32 v%d, v%d, v%d' % (KA + r, KA + r, FRG + r))
        a("""v_cndmask_b32 v{m0}, v{v13}, v{v12}, vcc
        v_cndmask_b32 v{m1}, v{v15}, v{v14}, vcc
        s_cmp_eq_u32 s60, 0
        s_cbranch_scc0 L{t}_T1""".format(m0=FRG + 16, m1=FRG + 17, v12=V(12), v13=V(13), v14=V(14), v15=V(15), t=tag))
        def table(c):
            lv = [([V(o) for o in range(9)], 3072), ([V(9)] * 3 + [V(10)] * 3 + [V(11)] * 3, 2048),
                  ([V(12)] * 4 + [FRG + 16] + [V(13)] * 4, 1024), ([V(14)] * 4 + [FRG + 17] + [V(15)] * 4, 0)]
            for n, (t, off) in enumerate(lv):
                for d in range(4):
                    a('v_cvt_pk_bf16_f32 v%d, v%d, v%d' % (FRG + 4 * n + d, t[7 + c - 2 * d], t[6 + c - 2 * d]))
                a('ds_write_b128 v%d, v[%d:%d] offset:%d' % (EX + 2, FRG + 4 * n, FRG + 4 * n + 3, off))
        table(0)
        a('s_branch L%s_T2\nL%s_T1:' % (tag, tag))
        table(1)
        a('v_cvt_pk_bf16_f32 v8, v%d, 0\ns_mov_b64 exec, 1\nds_write_b32 v%d, v8 offset:4096\ns_mov_b64 exec, -1\nL%s_T2:' % (V(0), EX + 1, tag))
        self.stamp(5)
        Lok = self.lab('OK')
        a('s_setprio 0\ns_waitcnt vmcnt(0)\n%s\ns_cbranch_vccz %s' % (xchk, Lok))
        self.poll(xld, xchk)
        a('%s:' % Lok)
        self.stamp(6)
        a(udma)
        a('s_cmp_eq_u32 s37, 0\ns_cbranch_scc0 %s\ns_barrier\n%s:\ns_waitcnt vmcnt(0)' % (Lx, Lx))
        self.stamp('R')
        assert NLATE == 0
        a('s_setprio %d\ns_waitcnt lgkmcnt(0)\ns_barrier' % (2 * CPRIO))
        self.stamp(7)
        YA = 16; FA_ = [48, 112]
        def creads(tt):
            f = FA_[tt & 1]; l = []
            for i in range(8):
                o = (128 if i % 2 == 0 else 0) + 16 * (3 - tt)
                ra = ['ds_read2_b32 v[%d:%d], v%d offset0:%d offset1:%d' % (f + 4 * i + 2 * e, f + 4 * i + 2 * e + 1, CA + i // 2, o + 2 * e, o + 2 * e + 1) for e in range(2)]
                rb = 'ds_read_b128 v[%d:%d], v%d offset:%d' % (f + 32 + 4 * i, f + 35 + 4 * i, CB + tt, 1024 * i)
                l += ra + [rb]
            return l
        def cm(tt, i, j, first):
            f = FA_[tt & 1]; c = 'v[%d:%d]' % (YA + 4 * (i + j), YA + 4 * (i + j) + 3)
            return 'v_mfma_f32_16x16x32_bf16 %s, v[%d:%d], v[%d:%d], %s' % (c, f + 4 * i, f + 4 * i + 3, f + 32 + 4 * j, f + 35 + 4 * j, '0' if first else c)
        r0 = creads(0)
        for x in r0[:12]: a(x)
        for tt in range(4):
            order = []
            for k in range(8):
                order += [(k, i, j) for i in range(k + 1) for j in range(k + 1) if max(i, j) == k and i + j <= 7]
            if tt > 0 and CHAIN: order = [(0, i, tau - i) for tau in range(8) for i in range(tau + 1)]
            seen = set()
            nxt = (r0[12:] if tt == 0 else []) + (creads(tt + 1) if tt < 3 else [])
            issued = 12 if tt == 0 else 24
            extra = 0
            lastk = -1
            if tt > 0: a('s_waitcnt lgkmcnt(0)')
            if tt == 3: a('s_mov_b64 exec, 1\nds_write_b32 v%d, v%d offset:4132\ns_mov_b64 exec, -1\ns_nop 3' % (EX, EX))
            for (k, i, j) in order:
                if tt == 0 and k != lastk:
                    while issued < 3 * (k + 1): a(nxt.pop(0)); issued += 1
                    a('s_waitcnt lgkmcnt(%d)' % min(15, issued + extra - 3 * (k + 1)))
                    lastk = k
                a(cm(tt, i, j, tt == 0 and (i + j) not in seen)); seen.add(i + j)
                if nxt:
                    a(nxt.pop(0))
                    if issued < 24: issued += 1
                    else: extra += 1
            for x in nxt: a(x)
        self.stamp(8)
        def lflag(off): a('s_mov_b64 exec, 1\nds_write_b32 v%d, v%d offset:%d\ns_mov_b64 exec, -1' % (EX, EX, off))
        def lwait(off, extra):
            Lp = self.lab('XP'); Lq = self.lab('XQ')
            a('s_mov_b32 s79, 0\n%s:\nds_read_b32 v4, v%d offset:%d' % (Lp, EX + 3, off))
            for x in extra: a(x)
            a('s_add_u32 s79, s79, 1\ns_waitcnt lgkmcnt(%d)\nv_readfirstlane_b32 s76, v4\ns_cmp_lg_u32 s76, 0\ns_cbranch_scc1 %s\ns_cmp_gt_u32 s79, %d\ns_cbranch_scc0 %s\n%s:' % (len(extra), Lq, 64 * POLLMAX, Lp, Lq))
        lwait(4132, [])
        a('s_nop 3\ns_cmp_eq_u32 s60, 0\ns_cbranch_scc0 L%s_R1' % tag)
        for k in range(4): a('ds_write_b128 v%d, v[%d:%d] offset:%d' % (EX, YA + 16 + 4 * k, YA + 19 + 4 * k, 1024 * k))
        lflag(4136)
        a('s_branch L%s_R2\nL%s_R1:' % (tag, tag))
        for k in range(4): a('ds_write_b128 v%d, v[%d:%d] offset:%d' % (EX, YA + 4 * k, YA + 3 + 4 * k, 1024 * k))
        lflag(4136)
        for k in range(16): a('v_mov_b32 v%d, v%d' % (YA + k, YA + 16 + k))
        a('L%s_R2:' % tag)
        lwait(4136, ['ds_read_b128 v[%d:%d], v%d offset:%d' % (48 + 4 * k, 51 + 4 * k, EX + 1, 1024 * k) for k in range(4)])
        a('''s_lshl_b32 s76, s61, 12
        s_lshl_b32 s77, s60, 11
        s_add_u32 s76, s76, s77
        s_add_u32 s76, s76, %d
        v_lshlrev_b32 v4, 4, v1''' % AA)
        for p in range(2):
            a('s_waitcnt lgkmcnt(%d)' % (2 - 2 * p))
            for k in range(8 * p, 8 * p + 8): a('v_add_f32 v%d, v%d, v%d' % (YA + k, YA + k, 48 + k))
            o = 64 + 4 * p
            for d in range(4): a('v_cvt_pk_bf16_f32 v%d, v%d, v%d' % (o + d, YA + 8 * p + 2 * d, YA + 8 * p + 2 * d + 1))
            a('v_permlane16_swap_b32 v%d, v%d\nv_permlane16_swap_b32 v%d, v%d' % (o, o + 2, o + 1, o + 3))
            a('buffer_store_dwordx4 v[%d:%d], v4, %s, s76 offen offset:%d sc1' % (o, o + 3, WS_, 1024 * p))
        self.stamp(9)
        a('s_setprio 0')
        a('s_mul_i32 s76, s60, 640\ns_add_u32 s76, s76, s61\ns_lshl_b32 s76, s76, 7\ns_add_u32 s76, s76, %d' % FA)
        for x in self.flag_regs(8): a(x)
        a('s_waitcnt vmcnt(0)'); a(self.flag(8, 76))
        self.stamp(10)
        Le = self.lab('EP')
        a('''s_lshl_b32 s76, s34, 8
        s_add_u32 s76, s76, s2
        s_cmp_eq_u32 s76, 192
        s_cbranch_scc0 {L}
        v_lshrrev_b32 v2, 2, v1
        v_mul_u32_u24 v2, 6144, v2
        v_and_b32 v3, 3, v1
        v_lshl_add_u32 v2, v3, 8, v2
        s_mov_b32 s20, {fh}'''.format(L=Le, fh=FH))
        a('v_lshlrev_b32 v6, 7, v1\ns_mov_b32 s18, %d' % FX)
        self.poll('buffer_load_dword v3, v6, %s, s18 offen sc1' % WS_, 'v_cmp_ne_u32 vcc, s21, v3')
        ld = '\n'.join('buffer_load_dword v%d, v2, %s, s20 offen offset:%d sc1' % (3 + i, WS_, 1024 * i) for i in range(3))
        self.poll(ld, 'v_cmp_ne_u32 vcc, s21, v3\nv_cmp_ne_u32 s[76:77], s21, v4\nv_cmp_ne_u32 s[16:17], s21, v5\ns_or_b64 vcc, vcc, s[76:77]\ns_or_b64 vcc, vcc, s[16:17]')
        a('''s_mov_b32 s20, {ep}
        s_mov_b64 exec, 1
        buffer_store_dword v8, off, {ws}, s20 sc1
        s_branch L_FIN
        {L}:'''.format(L=Le, ep=EP, ws=WS_))
        a('s_cmp_lt_u32 s36, 20\ns_cbranch_scc0 L_FIN')
        a('s_mul_i32 s20, s62, 6144\ns_mul_i32 s77, s3, 1536\ns_add_u32 s20, s20, s77\ns_add_u32 s20, s20, %d' % (FH + 32 * 3072))
        self.spoll(12, 20)
        self.stamp('h1')
        a('s_barrier')
        a('''s_lshl_b32 s60, s63, 6
        s_lshl_b32 s76, s3, 4
        s_add_u32 s60, s60, s76
        s_lshr_b32 s76, s35, 2
        s_mul_i32 s76, s76, 640
        s_add_u32 s76, s76, s60
        s_lshl_b32 s76, s76, 7
        s_add_u32 s61, s76, {fa}
        v_and_b32 v4, 15, v1
        v_lshrrev_b32 v7, 4, v1
        v_lshlrev_b32 v8, 1, v7
        v_xor_b32 v8, v8, v4
        v_lshrrev_b32 v9, 1, v8
        v_lshlrev_b32 v9, 4, v9
        v_and_b32 v8, 1, v8
        v_lshl_add_u32 v9, v8, 9, v9
        v_lshl_add_u32 v9, v7, 12, v9
        v_xor_b32 v10, 64, v9
        s_lshl_b32 s60, s60, 12
        s_lshr_b32 s76, s35, 1
        s_lshl_b32 s76, s76, 10
        s_add_u32 s60, s60, s76
        s_and_b32 s76, s35, 1
        s_lshl_b32 s76, s76, 8
        s_add_u32 s60, s60, s76
        s_and_b32 s76, s62, 1
        s_lshl_b32 s76, s76, 7
        s_add_u32 s60, s60, s76
        s_add_u32 s60, s60, {aa}
        s_and_b32 s76, s3, 1
        s_mul_i32 s76, s76, 4160
        s_add_u32 m0, s76, s38'''.format(fa=FA, aa=AA))
        self.spoll(16, 61)
        self.stamp(11)
        a('s_barrier')
        for i in range(4):
            a('s_add_u32 s76, s60, %d\nbuffer_load_dwordx4 v%d, %s, s76 offen offset:%d sc1 lds' % (i * (16384 - 1024), 9 + (i & 1), WS_, 1024 * i))
        a('s_waitcnt vmcnt(0)')
        self.stamp(12)
        a('s_barrier\ns_branch L_FIN')
    def touch(self):
        self.a('v_add_u32 v254, %d, v249\nv_min_u32 v254, v254, v249\nbuffer_load_dword v255, v254, %s, 0 offen\nv_add_u32 v249, %d, v249' % (-15360 * 128, W2_, 64 * NLN * 128))
    def xhook(self):
        a = self.a
        L = self.lab('NH')
        a('s_cmp_eq_u32 s37, 0\ns_cbranch_scc1 %s' % L)
        a("""s_waitcnt vmcnt(0)
        s_barrier
        s_cmp_eq_u32 s34, 0
        s_cbranch_scc0 {L}
        s_lshl_b32 s76, s62, 7
        s_add_u32 s76, s76, {fx}""".format(L=L, fx=FX))
        for x in self.flag_regs(250): a(x)
        a(self.flag(250, 76)); a('%s:' % L)
        self.stamp('xf')
    def lnblock(self):
        a = self.a
        XF = 100; T0 = 140
        a('L_LN:')
        self.stamp('ln')
        a('''        v_lshrrev_b32 v4, 4, v1
        v_and_b32 v5, 15, v1
        s_and_b32 s76, s34, 1
        s_lshl_b32 s76, s76, 3
        s_and_b32 s77, s34, 4
        s_add_u32 s76, s76, s77
        v_add_u32 v6, s76, v4
        v_mul_u32_u24 v6, {ts}, v6
        v_lshl_add_u32 v6, v5, 3, v6
        s_and_b32 s76, s34, 2
        s_lshl_b32 s76, s76, 1
        v_add_u32 v6, s76, v6
        v_and_b32 v7, 1, v1
        v_bfe_u32 v8, v1, 2, 2
        v_lshl_add_u32 v7, v7, 2, v8
        v_mul_u32_u24 v7, {ts}, v7
        v_lshl_add_u32 v7, v4, 4, v7
        v_bfe_u32 v8, v1, 1, 1
        v_lshl_add_u32 v7, v8, 3, v7
        s_mul_i32 s76, s34, 320
        v_add_u32 v7, s76, v7
        v_lshrrev_b32 v8, 3, v1
        v_lshlrev_b32 v8, 15, v8
        v_and_b32 v10, 7, v1
        v_lshl_add_u32 v8, v10, 4, v8
        s_and_b32 s65, s34, 1
        s_mul_i32 s65, s65, 160
        s_lshr_b32 s76, s34, 1
        s_add_u32 s65, s65, s76
        s_lshl_b32 s65, s65, 13
        s_lshl_b32 s76, s62, 7
        s_add_u32 s65, s65, s76
        v_mov_b32 v10, 0
        v_mov_b32 v11, 0
        v_mov_b32 v12, 0
        v_mov_b32 v13, 0'''.format(ts=TSTR, cq=20 * 16384, t8=T0 + 8, t9=T0 + 9))
        for i in range(5):
            a('s_waitcnt vmcnt(%d)' % (4 - i))
            for d in range(4):
                s = XI + 4 * i + d; f = XF + 8 * i + 2 * d
                a('''v_lshlrev_b32 v{f}, 16, v{s}
                v_and_b32 v{f1}, 0xffff0000, v{s}
                v_pk_add_f32 v[10:11], v[10:11], v[{f}:{f1}]
                v_pk_fma_f32 v[12:13], v[{f}:{f1}], v[{f}:{f1}], v[12:13]'''.format(f=f, f1=f + 1, s=s))
        self.stamp(1)
        a('''s_and_b32 s76, s35, 1
        s_mul_i32 s76, s76, 6
        s_add_u32 s28, s76, s36
        s_sub_u32 s28, s28, 24
        s_lshr_b32 s29, s35, 1
        s_mul_i32 s76, s29, 160
        s_mul_i32 s77, s34, 20
        s_add_u32 s76, s76, s77
        s_mul_i32 s76, s76, 3072
        s_lshl_b32 s77, s28, 8
        s_add_u32 s76, s76, s77
        s_cmp_lt_u32 s36, 30
        s_cselect_b32 s76, s76, 0x40000000
        s_cselect_b32 s77, s77, 0
        v_mul_u32_u24 v9, 3072, v4
        v_lshl_add_u32 v9, v5, 4, v9''')
        for i in range(5): a('buffer_load_dwordx4 v[%d:%d], v9, %s, s76 offen\ns_add_u32 s76, s76, 12288' % (WI + 4 * i, WI + 4 * i + 3, W1_))
        a('''s_and_b32 s76, s34, 1
        s_lshl_b32 s76, s76, 7
        s_add_u32 s76, s76, s77
        v_lshl_add_u32 v9, v1, 1, s76
        v_mov_b32 v{b}, 0
        global_load_short_d16_hi v{b}, v9, s[22:23]'''.format(b=WI + 20))
        for k in range(TLN[0]): self.touch()
        a('v_add_f32 v10, v10, v11\nv_add_f32 v12, v12, v13')
        for sh in (8, 4, 2, 1):
            a('v_add_f32 v10, v10, v10 row_ror:%d\nv_add_f32 v12, v12, v12 row_ror:%d' % (sh, sh))
        rb = lambda d, s: 'v_cvt_pk_bf16_f32 v%d, v%d, v%d\nv_lshlrev_b32 v%d, 16, v%d' % (d, s, s, d, d)
        EPS = f32(1e-5)
        a('v_mul_f32 v10, {c}, v10\nv_mul_f32 v12, {c}, v12\nv_fma_f32 v12, -v10, v10, v12\nv_max_f32 v12, 0, v12'.format(c=f32(1.0 / 640)))
        a(rb(11, 10))
        a(rb(13, 12)); a('v_add_f32 v13, %s, v13' % EPS); a(rb(13, 13)); a('v_sqrt_f32 v13, v13'); a(rb(13, 13))
        a('v_rcp_f32 v14, v13\nv_mul_f32 v15, v11, v14\nv_sub_f32 v15, 0, v15')
        for i in range(5):
            for d in range(4):
                s = XI + 4 * i + d; f = XF + 8 * i + 2 * d
                a('v_pk_fma_f32 v[{f}:{f1}], v[{f}:{f1}], v[14:15], v[14:15] op_sel:[0,0,1] op_sel_hi:[1,0,1]\nv_cvt_pk_bf16_f32 v{s}, v{f}, v{f1}'.format(f=f, f1=f + 1, s=s))
            for d in range(4): a('ds_write_b32 v6, v%d offset:%d' % (XI + 4 * i + d, 128 * i + 640 * d))
        a('v_sub_f32 v10, v10, v11\nv_mul_f32 v10, v10, v14'); a(rb(10, 10))
        a('v_mul_f32 v12, v12, v14\nv_mul_f32 v12, v12, v14'); a(rb(12, 12)); a('v_add_f32 v12, %s, v12' % EPS); a(rb(12, 12)); a('v_sqrt_f32 v12, v12'); a(rb(12, 12))
        a('v_fma_f32 v10, -v10, v13, -v11\nv_mul_f32 v12, v13, v12')
        C1 = -2.0 * LOG2E * math.sqrt(2.0 / math.pi)
        a('''v_rcp_f32 v14, v12
        v_cvt_pk_bf16_f32 v{t0}, v10, v10
        v_and_b32 v11, 0xffff0000, v{t0}
        v_sub_f32 v11, v10, v11
        v_cvt_pk_bf16_f32 v{t1}, v11, v12
        v_and_b32 v11, 0xffff0000, v{t1}
        v_sub_f32 v11, v12, v11
        v_cvt_pk_bf16_f32 v{t2}, v11, 0
        v_mul_f32 v13, {c1}, v14
        v_mul_f32 v14, v14, v14
        v_mul_f32 v14, {c2}, v14
        v_mul_f32 v14, v14, v13
        v_cmp_eq_u32 vcc, 1, v5
        s_lshl_b32 s67, s63, 5
        s_add_u32 s67, s67, {st}
        v_mov_b32 v{t3}, 0
        v_cndmask_b32 v{t0}, v{t0}, v14, vcc
        v_cndmask_b32 v{t1}, v{t1}, v13, vcc
        v_cndmask_b32 v{t2}, v{t2}, v12, vcc
        v_lshlrev_b32 v14, 5, v4
        v_lshl_add_u32 v14, v5, 4, v14
        v_cmp_gt_u32 vcc, 2, v5
        s_and_saveexec_b64 s[68:69], vcc
        buffer_store_dwordx4 v[{t0}:{t3}], v14, {ws}, s67 offen sc1
        s_mov_b64 exec, s[68:69]'''.format(st=ST, ws=WS_, t0=T0, t1=T0 + 1, t2=T0 + 2, t3=T0 + 3, c1=f32(C1), c2=f32(0.044715)))
        for k in range(TLN[1]): self.touch()
        self.stamp('l4')
        a('s_waitcnt lgkmcnt(0)\ns_barrier')
        for i in range(5):
            for e in range(2):
                a('ds_read_b64_tr_b16 v[%d:%d], v7 offset:%d' % (XI + 4 * i + 2 * e, XI + 4 * i + 2 * e + 1, 64 * i + 8 * TSTR * e))
        for i in range(5):
            a('s_waitcnt lgkmcnt(%d)\ns_add_u32 s76, s65, %d\nbuffer_store_dwordx4 v[%d:%d], v8, %s, s76 offen sc1' % (8 - 2 * i, XT + i * 32 * 8192, XI + 4 * i, XI + 4 * i + 3, WS_))
        self.stamp('xs')
        assert max(LNP) <= 0
        CA_ = 100
        a('s_waitcnt vmcnt(%d)' % (6 + TLN[0] + TLN[1]))
        for i in range(5):
            d = CA_ if i == 0 else CA_ + 8
            for k in range(4): a('v_lshlrev_b32 v%d, 16, v%d\nv_and_b32 v%d, 0xffff0000, v%d' % (d + 2 * k, WI + 4 * i + k, d + 2 * k + 1, WI + 4 * i + k))
            if i:
                for k in range(4): a('v_pk_add_f32 v[%d:%d], v[%d:%d], v[%d:%d]' % (CA_ + 2 * k, CA_ + 2 * k + 1, CA_ + 2 * k, CA_ + 2 * k + 1, d + 2 * k, d + 2 * k + 1))
        a('s_lshl_b32 s76, s34, 9\ns_add_u32 s76, s76, %d\nv_lshlrev_b32 v6, 3, v4\nv_lshl_add_u32 v6, v5, 5, v6\nv_add_u32 v6, s76, v6' % N_CS)
        for k in range(4): a('v_permlane32_swap_b32 v%d, v%d' % (CA_ + k, CA_ + 4 + k))
        for k in range(2): a('v_pk_add_f32 v[%d:%d], v[%d:%d], v[%d:%d]' % (CA_ + 2 * k, CA_ + 2 * k + 1, CA_ + 2 * k, CA_ + 2 * k + 1, CA_ + 4 + 2 * k, CA_ + 5 + 2 * k))
        for k in range(2): a('v_permlane16_swap_b32 v%d, v%d' % (CA_ + k, CA_ + 2 + k))
        a('v_pk_add_f32 v[%d:%d], v[%d:%d], v[%d:%d]' % (CA_, CA_ + 1, CA_, CA_ + 1, CA_ + 2, CA_ + 3))
        a('ds_write_b64 v6, v[%d:%d]\ns_waitcnt lgkmcnt(0)\ns_barrier' % (CA_, CA_ + 1))
        a('s_cmp_lt_u32 s34, 2\ns_cbranch_scc0 L_LNE\ns_cmp_lt_u32 s36, 30\ns_cbranch_scc0 L_LNE')
        a('s_lshl_b32 s76, s34, 8\ns_add_u32 s76, s76, %d\nv_lshl_add_u32 v6, v1, 2, s76' % N_CS)
        for k in range(4): a('ds_read2st64_b32 v[%d:%d], v6 offset0:%d offset1:%d' % (CA_ + 2 * k, CA_ + 2 * k + 1, 4 * k, 4 * k + 2))
        a('''s_cmp_eq_u32 s29, 0
        s_cselect_b32 s76, -1, 0
        v_and_b32 v{b}, s76, v{b}
        s_lshl_b32 s76, s28, 2
        s_add_u32 s76, s76, s29
        s_lshl_b32 s76, s76, 1
        s_add_u32 s76, s76, s34
        s_lshl_b32 s76, s76, 10
        s_add_u32 s76, s76, {csa}
        v_lshlrev_b32 v6, 4, v1
        v_lshrrev_b32 v12, 16, v{b}
        v_mov_b32 v13, 0
        s_waitcnt lgkmcnt(0)
        v_pk_add_f32 v[{c0}:{c1}], v[{c0}:{c1}], v[{c2}:{c3}]
        v_pk_add_f32 v[{c4}:{c5}], v[{c4}:{c5}], v[{c6}:{c7}]
        v_pk_add_f32 v[{c0}:{c1}], v[{c0}:{c1}], v[{c4}:{c5}]
        v_add_f32 v{c0}, v{c0}, v{c1}
        v_cvt_pk_bf16_f32 v11, v{c0}, v{b}
        v_lshlrev_b32 v10, 16, v11
        v_sub_f32 v10, v{c0}, v10
        v_cvt_pk_bf16_f32 v10, v{c0}, v10
        buffer_store_dwordx4 v[10:13], v6, {ws}, s76 offen sc1
        L_LNE:'''.format(b=WI + 20, csa=CSA, ws=WS_, **{'c%d' % i: CA_ + i for i in range(8)}))
        if -1 in LNP: a('s_cmp_eq_u32 s19, -1\ns_cbranch_scc1 L_LNRm')
        if 0 in LNP: a('s_nop 0\ns_branch L_LNR0')

    def build(self):
        a = self.a
        self.prologue()
        a('s_cmp_lt_u32 s36, 24\ns_cselect_b32 s76, 4, 0\ns_cmp_lt_u32 s34, s76\ns_cbranch_scc1 L_G')
        self.sel = SEL['S']; self.sn_entry(); self.scode(); self.lnblock()
        self.sel = SEL['G']; a('L_G:'); self.gwave()
        a('L_FIN:')
        self.dump_stamps()
        if self.AMP:
            if self.AMP[1] == 'end': a('s_memrealtime s[92:93]')
            who = self.AMP[2]
            a('s_cmp_eq_u32 s34, %d\ns_cbranch_scc0 L_END' % {'G': 0, 'S': 4, 'N': 0, 'M': 4}[who[0]])
            if len(who) > 1: a('s_cmp_eq_u32 s2, %s\ns_cbranch_scc0 L_END' % who[1:])
            else: a('s_cmp_lt_u32 s36, 20\ns_cbranch_scc0 L_END' if who in 'GS' else 's_cmp_ge_u32 s36, 24\ns_cbranch_scc0 L_END')
            a('''s_waitcnt lgkmcnt(0)
            s_sub_u32 s92, s92, s94
            s_lshl_b32 s92, s92, 3
            s_add_u32 s92, s92, 3000
            s_min_u32 s92, s92, 30000
            L_AMP:
            s_memrealtime s[98:99]
            s_waitcnt lgkmcnt(0)
            s_sub_u32 s77, s98, s96
            s_cmp_lt_u32 s77, s92
            s_cbranch_scc1 L_AMP''')
        for o_ in self.opts:
            if o_.startswith('pad='):
                a('''s_cmp_eq_u32 s34, 0
                s_cbranch_scc0 L_END
                s_cmp_lt_u32 s36, 20
                s_cbranch_scc0 L_END''')
                for q_ in self.opts:
                    if q_.startswith('padwg='): a('s_cmp_eq_u32 s2, %d\ns_cbranch_scc0 L_END' % int(q_[6:]))
                a('''L_PAD:
                s_memrealtime s[98:99]
                s_waitcnt lgkmcnt(0)
                s_sub_u32 s77, s98, s96
                s_cmp_lt_u32 s77, %d
                s_cbranch_scc1 L_PAD''' % int(o_[4:]))
        if 'span' in self.opts:
            a('''s_cmp_eq_u32 s34, 0
            s_cbranch_scc0 L_END
            s_waitcnt vmcnt(0)
            s_memrealtime s[98:99]
            s_memtime s[76:77]
            s_waitcnt lgkmcnt(0)
            s_not_b32 s97, s96
            s_sub_u32 s76, s76, s100
            s_sub_u32 s77, s98, s96
            s_mov_b64 exec, 1
            v_mov_b32 v0, 0
            v_mov_b32 v1, s97
            v_mov_b32 v2, s98
            v_mov_b32 v3, s96
            v_mov_b32 v4, s76
            v_mov_b32 v5, s77
            global_atomic_umax v0, v1, s[30:31]
            global_atomic_umax v0, v2, s[30:31] offset:4
            global_atomic_umax v0, v3, s[30:31] offset:8
            global_atomic_umax v0, v4, s[30:31] offset:12
            global_atomic_umax v0, v5, s[30:31] offset:16''')
        a('L_END:')
        body = a.finish()
        ref = open('parallel_sum__ssm_conv_s4d__mixer_channel_mlp__prompt.s.ref').read()
        head = ''.join(l + '\n' for l in ref.split('\n') if l.startswith(';') and '@launch' not in l)
        return head + '''; @launch grid=(256,1,1) block=(512,1,1) lds=163840
.amdgcn_target "amdgcn-amd-amdhsa--gfx950"
.text
.globl {n}
.p2align 8
.type {n},@function
{n}:
{body}    s_endpgm
.section .rodata,"a"
.p2align 6
.amdhsa_kernel {n}
  .amdhsa_next_free_vgpr 256
  .amdhsa_next_free_sgpr 102
  .amdhsa_accum_offset 256
  .amdhsa_group_segment_fixed_size 0
  .amdhsa_kernarg_size 120
  .amdhsa_user_sgpr_count 2
  .amdhsa_user_sgpr_kernarg_segment_ptr 1
  .amdhsa_system_sgpr_workgroup_id_x 1
  .amdhsa_float_denorm_mode_32 3
.end_amdhsa_kernel
'''.format(n=NAME, body=body)
if __name__ == '__main__':
    out = sys.argv[1]; opts = sys.argv[2:]
    g = G('stamps' in opts, opts); s = g.build(); open(out, 'w').write(s)
    print('wrote', out, len(s), 'bytes; nops inserted', g.a.nops)
```

```python
import re
TRANS = ('v_exp_f32', 'v_log_f32', 'v_rcp_f32', 'v_rsq_f32', 'v_sqrt_f32', 'v_sin_f32', 'v_cos_f32', 'v_rcp_iflag_f32')
def regs(tok):
    tok = tok.strip().lstrip('-')
    if tok.startswith('abs(') or tok.startswith('|'): tok = tok.replace('abs(', '').replace(')', '').replace('|', '')
    m = re.fullmatch(r'([vsa])\[(\d+):(\d+)\]', tok)
    if m: return {(m.group(1), i) for i in range(int(m.group(2)), int(m.group(3)) + 1)}
    m = re.fullmatch(r'([vsa])(\d+)', tok)
    if m: return {(m.group(1), int(m.group(2)))}
    if tok == 'vcc': return {('s', 'vcc')}
    if tok == 'exec': return {('s', 'exec')}
    if tok == 'm0': return {('s', 'm0')}
    return set()
class Ins:
    def __init__(self, text):
        self.text = text
        t = text.split(';')[0].strip()
        self.label = t.endswith(':')
        self.directive = t.startswith('.')
        parts = t.split(None, 1)
        self.op = parts[0] if parts else ''
        rest = parts[1] if len(parts) > 1 else ''
        ops = [o.strip() for o in re.split(r',\s*(?![^\[]*\])', rest)] if rest else []
        mods = ''
        if ops:
            last = ops[-1].split(None, 1)
            ops[-1] = last[0]
            mods = last[1] if len(last) > 1 else ''
        self.ops, self.mods = ops, mods
        op = self.op
        for suf in ('_e32', '_e64', '_dpp', '_sdwa'):
            if op.endswith(suf): op = op[:-len(suf)]
        self.base = op
        self.mfma = op.startswith('v_mfma')
        self.valu = op.startswith('v_') and not self.mfma
        self.salu = op.startswith('s_')
        self.ds = op.startswith('ds_')
        self.vmem = op.startswith(('buffer_', 'global_', 'flat_'))
        self.trans = op in TRANS
        self.dpp = 'row_' in mods or 'quad_perm' in mods or 'wave_' in mods
        self.branch = op.startswith(('s_cbranch', 's_branch', 's_setpc', 's_endpgm'))
        self.ldsdma = self.vmem and re.search(r'\blds\b', mods + ' ' + ' '.join(ops)) is not None
        R = [regs(o) for o in ops]
        w, r = set(), set()
        self.A = self.B = self.C = set()
        self.store_data = set()
        if self.mfma:
            w = R[0]; self.A, self.B, self.C = R[1], R[2], R[3]; r = R[1] | R[2] | R[3]
            self.passes = 8 if '32x32x16' in op else 4
        elif self.valu:
            if op.startswith('v_cmp'):
                w = R[0]; r = set().union(*R[1:])
                if op.startswith('v_cmpx'): w = w | {('s', 'exec')}
            elif op.startswith('v_permlane') and 'swap' in op:
                w = R[0] | R[1]; r = R[0] | R[1]
            elif op in ('v_add_co_u32', 'v_sub_co_u32', 'v_addc_co_u32', 'v_subb_co_u32'):
                w = R[0] | R[1]; r = set().union(*R[2:])
            elif op == 'v_nop': pass
            else:
                w = R[0]; r = set().union(*R[1:]) if len(R) > 1 else set()
                if op.startswith(('v_fmac', 'v_dot2c', 'v_pk_fmac')) or self.dpp or op == 'v_writelane_b32': r = r | R[0]
        elif self.ds:
            if op.startswith(('ds_read', 'ds_bpermute', 'ds_permute', 'ds_swizzle')): w = R[0]; r = set().union(*R[1:])
            else: r = set().union(*R)
        elif self.vmem:
            if 'load' in op and not self.ldsdma:
                w = R[0]; r = set().union(*R[1:])
                if 'd16' in op: r = r | R[0]
            else:
                r = set().union(*R) if R else set()
                if 'store' in op and ('x3' in op or 'x4' in op):
                    self.store_data = R[0] if op.startswith('buffer') else R[1]
            if self.ldsdma: r = r | {('s', 'm0')}
        elif self.salu:
            if op.startswith(('s_cmp', 's_waitcnt', 's_barrier', 's_nop', 's_cbranch', 's_branch', 's_setprio', 's_sleep', 's_endpgm', 's_bitcmp')):
                r = set().union(*R) if R else set()
            elif R:
                w = R[0]; r = set().union(*R[1:]) if len(R) > 1 else set()
                if 'saveexec' in op: w = w | {('s', 'exec')}
        self.w, self.r = w, r
        self.states = 1
        if op == 's_nop': self.states = int(ops[0], 0) + 1
def need(p, c):
    n = 0
    pv = {x for x in p.w if x[0] in 'va'}; ps = {x for x in p.w if x[0] == 's'}
    if p.valu:
        if c.mfma and pv & c.r: n = max(n, 2)
        if c.valu and c.dpp and pv & c.r: n = max(n, 2)
        if c.base.startswith('v_permlane') and pv & c.r: n = max(n, 2)
        if c.base in ('v_readfirstlane_b32', 'v_readlane_b32') and pv & c.r: n = max(n, 1)
        if p.trans and (c.valu or c.mfma or c.ds or c.vmem) and pv & c.r: n = max(n, 1)
        if ps:
            if c.vmem and ps & c.r: n = max(n, 5)
            if c.valu and ps & c.r: n = max(n, 4 if c.base in ('v_readlane_b32', 'v_writelane_b32') else 2)
            if c.salu and (ps & c.r or (c.base.startswith('s_cbranch_vcc') and ('s', 'vcc') in ps)): n = max(n, 1)
            if ('s', 'exec') in ps and (c.mfma or c.dpp or c.base.startswith(('v_permlane', 'v_read', 'v_write'))): n = max(n, 5)
        if ('op_sel' in p.mods and not p.base.startswith('v_pk')) or 'sdwa' in p.op:
            if c.valu and pv & (c.r | c.w): n = max(n, 1)
    if p.mfma:
        big = p.passes == 8
        if c.mfma:
            if pv & (c.A | c.B): n = max(n, 12 if big else 8)
            if pv & c.C and not (c.C == pv and c.passes == p.passes): n = max(n, 10 if big else 6)
            if pv & c.w and not (pv & c.C): n = max(n, 10 if big else 6)
        elif (c.valu or c.vmem or c.ds) and pv & (c.r | c.w): n = max(n, 12 if big else 8)
        if c.valu and p.C & c.w: n = max(n, 7 if big else 3)
    if p.salu and ('s', 'm0') in ps and c.ldsdma: n = max(n, 1)
    if p.store_data and p.store_data & c.w: n = max(n, 2)
    return n
class Asm:
    def __init__(self): self.lines = []
    def __call__(self, s):
        for l in s.strip('\n').split('\n'):
            if l.strip(): self.lines.append(l.strip())
    def finish(self, verbose=False, layout=None):
        ins = [Ins(l) for l in self.lines]
        out = []
        nops = 0
        def pad(hist, c):
            d = 0; req = 0
            for p in reversed(hist):
                if p.label or p.directive or p.op == '': continue
                k = need(p, c) - d
                if k > req: req = k
                d += p.states
                if d >= 20: break
            return req
        for c in ins:
            if not (c.label or c.directive or c.op == ''):
                k = pad(out[-40:], c)
                if k > 0:
                    out.append(Ins('s_nop %d' % (k - 1))); nops += 1
                    if verbose: print('nop %d before: %s' % (k, c.text))
            out.append(c)
        labels = {c.text.split(':')[0].strip(): i for i, c in enumerate(out) if c.label}
        for i, c in enumerate(out):
            if c.base.startswith(('s_cbranch', 's_branch')) and c.ops[0] in labels:
                hist = out[max(0, i - 40):i + 1]
                j = labels[c.ops[0]]
                for t in out[j:j + 24]:
                    if t.label or t.directive or t.op == '': continue
                    k = pad(hist[-60:], t)
                    if k > 0: raise SystemExit('hazard across branch to %s at: %s (need %d more)' % (c.ops[0], t.text, k))
                    hist = hist + [t]
                    if t.base in ('s_branch', 's_endpgm'): break
        self.nops = nops
        if layout: out = self.layout(out, layout)
        return '\n'.join(('' if c.label or c.directive else '    ') + c.text for c in out) + '\n'
def _sizes(out, name):
    import subprocess, tempfile, os
    d = tempfile.mkdtemp()
    txt = '.amdgcn_target "amdgcn-amd-amdhsa--gfx950"\n.text\n%s:\n' % name
    idx = []
    for i, c in enumerate(out):
        if c.directive: continue
        if not c.label: idx.append(i)
        txt += c.text + '\n'
    for l in set(re.findall(r'\b(PAD\w+)\b', txt)): txt += l + ':\n'
    open(d + '/a.s', 'w').write(txt)
    subprocess.run(['clang', '-x', 'assembler', '-target', 'amdgcn-amd-amdhsa', '-mcpu=gfx950', '-c', d + '/a.s', '-o', d + '/a.o'], check=True)
    dis = subprocess.run(['llvm-objdump', '-d', '--mcpu=gfx950', d + '/a.o'], capture_output=True, text=True).stdout
    sz = [4 * len(m.group(1).split()) for m in re.finditer(r'// [0-9A-F]{12}: ((?:[0-9A-F]{8} ?)+)', dis)]
    assert len(sz) == len(idx), (len(sz), len(idx))
    for i, z in zip(idx, sz): out[i].size = z
WIDEN = ('v_mul_f32', 'v_add_f32', 'v_sub_f32', 'v_mov_b32', 'v_exp_f32', 'v_rcp_f32', 'v_sin_f32', 'v_cos_f32', 'v_rndne_f32', 'v_fmac_f32', 'v_lshlrev_b32', 'v_lshrrev_b32',
         'v_and_b32', 'v_xor_b32', 'v_add_u32', 'v_sub_u32', 'v_min_u32', 'v_max_f32', 'v_sqrt_f32', 'v_mul_u32_u24')
def _layout(self, out, cfg):
    _sizes(out, cfg['name'])
    res = []; off = 0; region = None; npad = {}; nextpage = None; fixes = 0
    real = lambda c: not (c.label or c.directive or c.op == '')
    for i, c in enumerate(out):
        if c.directive and c.text.startswith('.page'):
            region = c.text.split()[1]; npad.setdefault(region, 0)
            res.append(Ins('.p2align 12')); off = 0; nextpage = 0; continue
        if c.directive and c.text.startswith('.region'):
            region = c.text.split()[1]; npad.setdefault(region, 0); continue
        if not real(c): res.append(c); continue
        if nextpage is not None and off >= nextpage:
            nextpage += 4096
            nm = '%s%d' % (region, npad[region]); npad[region] += 1
            if nm in cfg['pads']:
                res.append(Ins('PAD%s:' % nm)); p = Ins('s_cbranch_execz %s' % cfg['pads'][nm]); p.size = 4
                res.append(p); off += 4
        if cfg['align'] and c.size == 8 and off % 8 == 4:
            run = 0
            for t in out[i:]:
                if not real(t): continue
                if t.size != 8: break
                run += 0 if t.mfma else 1
            j = len(res) - 1
            while j >= 0 and not real(res[j]) and not res[j].directive: j -= 1
            p = res[j]
            if run >= 2 and real(p) and p.size == 4 and p.op in WIDEN and not p.dpp:
                q = Ins(p.text.replace(p.op, p.op + '_e64', 1)); q.size = 8; res[j] = q; off += 4; fixes += 1
            elif run >= cfg.get('noprun', 7):
                q = Ins('s_nop 0'); q.size = 4; res.append(q); off += 4; fixes += 1
        res.append(c); off += c.size
    self.npad = npad; self.fixes = fixes
    return res
Asm.layout = _layout
def interleave(main, fill, start=0, every=1, per=1):
    out = []; fi = 0
    for i, m in enumerate(main):
        out.append(m)
        if i >= start and (i - start) % every == 0:
            for _ in range(per):
                if fi < len(fill): out.append(fill[fi]); fi += 1
    out.extend(fill[fi:])
    return out
```

```python
import sys, math, struct, re
sys.path.insert(0, 'work')
from asmdsl import Asm, interleave
NAME = 'parallel_sum__ssm_conv_s4d__mixer_channel_mlp__prompt_kernel'
def f32(x): return '0x%08x' % struct.unpack('<I', struct.pack('<f', x))[0]
LOG2E = math.log2(math.e)
XT, HH, AA, FL, DBG = 0x000000, 0x400000, 0xA00000, 0xD00000, 0xE00000
ST, CSA = FL + 0x70000, FL + 0x80000
FX, EP, FH, FA = FL + 0x8000, FL + 0xC000, FL + 0x10000, FL + 0x40000
WS_BYTES = 0x1000000
XR = 131072
L_TAB, L_U, L_ST = XR, XR + 2 * 8320, XR + 2 * 8320 + 2 * 4608
N_CS = 43008
VN = 27
L_AT = XR
L_RED = 0
N_T, N_TAB, N_U = 0, 49152, 49152 + 4 * 8320
TSTR = 2592
sWV, sXCD, sJ = 34, 35, 36
X_, W1_, W2_, WS_, OUT_ = 's[40:43]', 's[44:47]', 's[48:51]', 's[52:55]', 's[56:59]'
POLLMAX = 0x8000
RSLOT = {5: 12, 7: 13, 0: 14, 1: 15, 2: 4, 3: 5, 4: 6, 6: 7}
RSTEP = [0, 1, 18, 19, 20, 21, 22, 23]
LSLOT = [0, 1, 2, 3, 8, 9, 10, 11, 12, 13, 14, 15, 4, 5, 6, 7]
BARPOS = [.45, .7, .9, 1.0, 1.0, 1.0, 1.0]
PPOS, NPH, B1P, RBU, RBE = 8, 16, 24, 4, 1
RB7, RB8, RB9, RB10, B0P, N2 = 8, 12, 20, 26, 0, 5
FLAG0 = 33
ALIGN, NOPRUN, PAGE, WARM, WS0 = 1, 7, 1, 3, 4
WG = [['G0', 'G1', 'G2', 'G3']]
WS2 = 1
BUP = 33
QROT, WEARLY = 1, 1
ROT = [32, 27, 40, 0]
SPRIO = 0
FLAG1 = 14
THR = None
NOBP = 2
KPRIO = 1
LORD = [2, 3, 4, 5, 0, 1, 6, 7]
XHOOK = 0.03
TOUCH = [0.05]
TLN = [0, 0, 0]
GT = 0
SLP = 4
XST = 2
XI, WI = 228, 148
XPOS = 7
NL0, NL1 = 0, 8
THR0 = None
FRONT = 0
PK = 1
LNP = [-1, 0]
NLATE = 0
NFIN = 2
CHAIN = 1
CPRIO = 1
PRE2 = 8
W1T = 0
SB = [1]
RWAIT = 4
TPRIO = 1
SWAP = 1
XEARLY = 1
WFIRST = 1
SA = 84
OUTAUX = ''
import os
SELS = {
 'main': {'G': [0, 'b0', 'b9', 5, 6, 7, 10, 11, 12], 'S': [0, 2, 3, 'st', 5, 6, 'R', 8, 10]},
 'start': {'G': [0, 'd0', 'd1', 'd2', 'w0', 'b0', 'b1', 'b2', 'b3'], 'S': [0, 'pl', 'a0', 2, 'ln', 'xs', 3, 4, 5]},
 'g1': {'G': [0, 'b0', 'b1', 'b2', 'b3', 'b4', 'b6', 'b8', 'b9'], 'S': [0, 2, 'xf', 3, 'st', 4, 5, 6, 'R']},
 'mid': {'G': [0, 'b9', 5, 't1', 't2', 't3', 'f0', 6, 7], 'S': [0, 3, 'r0', 4, 5, 6, 'r1', 'R', 7]},
 'ln': {'G': [0, 'b5', 'b6', 'b7', 'a8', 'b8', 'a9', 'w9', 'b9'], 'S': [0, 2, 'ln', 1, 'l4', 'xs', 'xf', 3, 'st']},
 'g2': {'G': [0, 's0', 's2', 's5', 's8', 's11', 's14', 's17', 's21'], 'S': [0, 7, 8, 9, 10, 11, 12]},
 'bad': {'G': [0, 'b9', 7, 'f1', 10, 8, 11], 'S': [0, 'r0', 'xf', 3, 5, 6]},
 'clk': {'G': [0, 'b1', 'b4', 'b6', 'b9'], 'S': [0]},
 'clk2': {'G': [0, 'b9', 7, 11, 12], 'S': [0]},
 'g2b': {'G': [0, 's7', 's8', 's9', 's10', 's11', 's12', 's13', 's14'], 'S': [0, 10, 'h1', 11]},
 'g2c': {'G': [0, 's0', 's1', 's2', 's3', 's4', 's5', 's6', 's7'], 'S': [0, 8, 9, 10, 'h1']},
 'g2d': {'G': [0, 's19', 's20', 's21', 12, 13, 14], 'S': [0, 11, 12]},
 'none': {'G': [0, 'b0', 'b2', 'b9', 7, 11, 12], 'S': [0, 2, 'xs', 3, 7, 9]},
 'end': {'G': [0, 7, 'f1', 10, 8, 9, 11, 12, 13], 'S': [0, 7, 8, 9, 10, 'h1', 11, 12]},
}
CLK = 's_memtime' if os.environ.get('CYC') else 's_memrealtime'
SEL = SELS[os.environ.get('SEL', 'main')]
SEL['N'] = SEL['S']
for _k in ('BARPOS', 'XHOOK', 'XST', 'XPOS', 'NL0', 'NL1', 'FLAG0', 'ALIGN', 'NOPRUN', 'PAGE', 'WARM', 'WS0', 'WG', 'WS2', 'BUP', 'FLAG1', 'THR', 'SLP', 'TOUCH', 'TLN', 'GT', 'SA', 'OUTAUX', 'RB8', 'RB9', 'PPOS', 'NPH', 'B1P', 'RBU', 'ROT', 'QROT', 'WEARLY', 'NOBP', 'THR0', 'FRONT', 'PK', 'LNP', 'PRE2', 'W1T', 'SB', 'RWAIT', 'RB7', 'RB10', 'B0P', 'N2', 'NLATE', 'NFIN', 'CHAIN', 'CPRIO', 'TPRIO', 'SWAP', 'XEARLY', 'WFIRST', 'KPRIO', 'SPRIO', 'RBE'):
    if os.environ.get(_k): globals()[_k] = eval(os.environ[_k])
NLN = min(64, -(-(15360 - 96 * GT) // (64 * max(1, len(TOUCH) + sum(TLN)))))
class G:
    def __init__(self, stamps=False, opts=()):
        self.a = Asm(); self.stamps = stamps; self.nlab = 0; self.opts = set(opts); self.sel = None; self.wret = {}
        self.AMP = ([o[4:].split(',') for o in opts if o.startswith('amp=')] or [None])[0]
    def lab(self, p='L'):
        self.nlab += 1; return '%s%d' % (p, self.nlab)
    def stamp(self, k):
        if self.AMP and str(k) == self.AMP[0]: self.a('s_memrealtime s[94:95]')
        if self.AMP and str(k) == self.AMP[1]: self.a('s_memrealtime s[92:93]')
        if 'padat=%s' % k in self.opts: self.a('s_memrealtime s[96:97]')
        if self.stamps and k in self.sel:
            i = self.sel.index(k); self.a('%s s[%d:%d]' % (CLK, 80 + 2 * i, 81 + 2 * i))
            if os.environ.get('BOTH'): self.a('s_memtime s[%d:%d]' % (88 + 2 * i, 89 + 2 * i))
    def dump_stamps(self):
        if not self.stamps: return
        a = self.a
        a('s_lshl_b32 s60, s2, 3\ns_add_u32 s60, s60, s%d\ns_lshl_b32 s60, s60, 6\ns_add_u32 s60, s60, %d' % (sWV, DBG))
        a('s_mov_b64 exec, -1\nv_mov_b32 v0, 0')
        a('s_memtime s[76:77]\n' + CLK + ' s[98:99]\ns_waitcnt lgkmcnt(0)\ns_sub_u32 s100, s76, s100')
        for k in range(11):
            a('v_mov_b32 v1, s%d\nbuffer_store_dword v1, v0, %s, s60 offen offset:%d' % (80 + 2 * k, WS_, 4 * k))
    def poll(self, load, check):
        L = self.lab('P'); E = self.lab('PE')
        self.a('s_mov_b32 s79, 0\n%s:\n%s\ns_add_u32 s79, s79, 1\ns_waitcnt vmcnt(0)\n%s\ns_cbranch_vccz %s\ns_sleep %d\ns_cmp_gt_u32 s79, %d\ns_cbranch_scc0 %s\n%s:' % (L, load, check, E, SLP, POLLMAX, L, E))
    def spoll(self, n, off):
        a = self.a
        D = list(range(64, 76)) + [16, 17, 18, 19]
        L = self.lab('SP'); E = self.lab('SE')
        a('s_add_u32 s22, s32, s%d\ns_addc_u32 s23, s33, 0\ns_mov_b32 s79, 0\n%s:' % (off, L))
        for i in range(n): a('s_load_dword s%d, s[22:23], %d glc' % (D[i], 128 * i))
        a('s_add_u32 s79, s79, 1\ns_waitcnt lgkmcnt(0)\ns_xor_b32 s76, s%d, s21' % D[0])
        for i in range(1, n): a('s_xor_b32 s77, s%d, s21\ns_or_b32 s76, s76, s77' % D[i])
        a('s_cbranch_scc0 %s\ns_sleep %d\ns_cmp_gt_u32 s79, %d\ns_cbranch_scc0 %s\n%s:' % (E, SLP, POLLMAX, L, E))
    def warm(self, pads, sel):
        a = self.a
        L = self.lab('WR')
        for p in pads:
            if p: assert p not in self.wret; self.wret[p] = L
        a('s_mov_b64 exec, 0')
        for i, p in enumerate(pads):
            if p: a('s_cmp_eq_u32 s%d, %d\ns_cbranch_scc1 PAD%s' % (sel, i, p))
        a('%s:\ns_mov_b64 exec, -1' % L)
    def nonce0(self): self.a('s_mov_b32 s76, %d\ns_load_dword s21, s[32:33], s76' % EP)
    def nonce2(self): return 's_mul_i32 s21, s21, 0x9e3779b1\ns_add_u32 s21, s21, 0x7f4a7c15'
    def flag(self, v, soff):
        return 's_mov_b64 exec, 0xff\nbuffer_store_dwordx4 v[%d:%d], v%d, %s, s%d offen sc1\ns_mov_b64 exec, -1' % (v, v + 3, v + 4, WS_, soff)
    def flag_regs(self, v):
        return ['v_mov_b32 v%d, s21' % (v + i) for i in range(4)] + ['v_lshlrev_b32 v%d, 4, v1' % (v + 4)]
    def prologue(self):
        a = self.a
        a('''s_cmp_ge_u32 s2, 256
        s_cbranch_scc1 L_END
        s_load_dwordx16 s[4:19], s[0:1], 0
        s_load_dwordx8 s[20:27], s[0:1], 64
        s_load_dwordx4 s[28:31], s[0:1], 96
        s_load_dwordx2 s[32:33], s[0:1], 112''')
        if self.stamps:
            a('s_memtime s[100:101]\n' + CLK + ' s[80:81]')
            for k in range(1, 10): a('s_mov_b32 s%d, 0' % (80 + 2 * k))
        if self.AMP: a('s_memrealtime s[96:97]\ns_memrealtime s[94:95]\ns_memrealtime s[92:93]')
        if 'span' in self.opts or any(o.startswith('pad=') for o in self.opts): a('s_memrealtime s[96:97]\ns_memtime s[100:101]')
        a('''v_lshrrev_b32 v2, 6, v0
        v_and_b32 v1, 63, v0
        s_and_b32 s35, s2, 7
        v_readfirstlane_b32 s34, v2
        s_lshr_b32 s36, s2, 3
        s_xor_b32 s34, s34, %d''' % (4 if SWAP else 0))
    def srds(self, wait=True):
        self.a('''s_mov_b32 s42, %d
        s_mov_b32 s43, 0x20000
        s_mov_b32 s46, %d
        s_mov_b32 s47, 0x20000
        s_mov_b32 s50, %d
        s_mov_b32 s51, 0x20000
        s_mov_b32 s54, %d
        s_mov_b32 s55, 0x20000
        s_mov_b32 s58, %d
        s_mov_b32 s59, 0x20000''' % (2048 * 1280, 640 * 3072, 1536 * 1280, WS_BYTES, 2048 * 1280))
        if wait: self.a('s_waitcnt lgkmcnt(0)')
        self.a('''s_mov_b32 s40, s4
        s_mov_b32 s41, s5
        s_mov_b32 s44, s20
        s_mov_b32 s45, s21
        s_mov_b32 s48, s24
        s_mov_b32 s49, s25
        s_mov_b32 s52, s32
        s_mov_b32 s53, s33
        s_mov_b32 s56, s28
        s_mov_b32 s57, s29''')
        self.stamp('srd')
    def g1_ids(self, rb, cb, rot, adv=0):
        self.a("""s_mul_i32 s68, s36, 43
        s_lshr_b32 s68, s68, 8
        s_mul_i32 s69, s68, 6
        s_sub_u32 s69, s36, s69
        s_lshr_b32 s64, s35, 1
        s_and_b32 s65, s35, 1
        s_lshl_b32 s{rb}, s64, 2
        s_add_u32 s{rb}, s{rb}, s68
        s_mul_i32 s{cb}, s65, 6
        s_add_u32 s{cb}, s{cb}, s69
        s_mov_b32 s{rot}, {adv}""".format(rb=rb, cb=cb, rot=rot, adv=adv))
        if QROT: self.a('s_add_u32 s64, s64, 1')
        for r, m in zip((68, 69, 64, 65), ROT):
            if m: self.a('s_mul_i32 s66, s%d, %d\ns_lshr_b32 s66, s66, 4\ns_add_u32 s%d, s%d, s66' % (r, m, rot, rot))
        self.a('s_mul_i32 s66, s{r}, 26\ns_lshr_b32 s66, s66, 8\ns_mul_i32 s66, s66, 10\ns_sub_u32 s{r}, s{r}, s66'.format(r=rot))
    def tile_ids(self):
        self.a("""s_cmp_ge_u32 s36, 10
        s_cselect_b32 s62, 1, 0
        s_mul_i32 s63, s62, 10
        s_sub_u32 s63, s36, s63
        s_lshl_b32 s66, s35, 1
        s_add_u32 s62, s62, s66""")
    def g1_voff(self, VX, VW, wv, rb, cb, t):
        a = self.a
        a("""s_lshl_b32 s76, s{rb}, 7
        s_lshl_b32 s77, s{wv}, 5
        s_add_u32 s76, s76, s77
        s_mul_i32 s76, s76, 1280
        v_lshrrev_b32 v{t0}, 3, v1
        v_mul_u32_u24 v{t0}, 1280, v{t0}
        v_lshrrev_b32 v{t1}, 4, v1
        v_xor_b32 v{t2}, v{t1}, v1
        v_and_b32 v{t2}, 7, v{t2}
        v_lshl_add_u32 v{t0}, v{t2}, 4, v{t0}
        v_add_u32 v{x0}, s76, v{t0}
        v_xor_b32 v{t0}, 64, v{x0}
        v_add_u32 v{x1}, {d1}, v{t0}
        v_add_u32 v{x2}, {d2}, v{x0}
        v_add_u32 v{x3}, {d3}, v{t0}
        s_mul_i32 s76, s{wv}, {w16}
        s_lshl_b32 s77, s{cb}, 8
        s_add_u32 s76, s76, s77
        v_mul_u32_u24 v{t0}, 3072, v{t1}
        v_lshlrev_b32 v{t2}, 2, v{t1}
        v_xor_b32 v{t2}, v{t2}, v1
        v_and_b32 v{t2}, 15, v{t2}
        v_lshl_add_u32 v{t0}, v{t2}, 4, v{t0}
        v_add_u32 v{w0}, s76, v{t0}
        v_xor_b32 v{t0}, 16, v{w0}
        v_add_u32 v{w1}, {e1}, v{w0}
        v_add_u32 v{w2}, {e2}, v{t0}
        v_add_u32 v{w3}, {e3}, v{t0}
        s_lshl_b32 s67, s{wv}, 12""".format(rb=rb, cb=cb, wv=wv, t0=t, t1=t + 1, t2=t + 2, x0=VX, x1=VX + 1, x2=VX + 2, x3=VX + 3, w0=VW, w1=VW + 1, w2=VW + 2, w3=VW + 3,
            d1=8 * 1280 - 1024, d2=16 * 1280 - 2048, d3=24 * 1280 - 3072, w16=16 * 3072, e1=4 * 3072 - 1024, e2=8 * 3072 - 2048, e3=12 * 3072 - 3072))
    def g1_dma(self, stage, VX, VW, rot, wfirst=False):
        idx = stage % 4
        lx, lw = [], []
        for i in range(4):
            pre = 's_add_u32 m0, s67, %d\ns_lshl_b32 s76, s%d, 7\n' % (idx * 16384, rot) if i == 0 else ''
            lx.append(pre + 'buffer_load_dwordx4 v%d, %s, s76 offen offset:%d lds' % (VX + i, X_, 1024 * i))
            pre = 's_add_u32 m0, s67, %d\ns_mul_i32 s77, s%d, %d\n' % (65536 + idx * 16384, rot, 64 * 3072) if i == 0 else ''
            lw.append(pre + 'buffer_load_dwordx4 v%d, %s, s77 offen offset:%d lds' % (VW + i, W1_, 1024 * i))
        l = lw + lx if wfirst else lx + lw
        l[7] += '\ns_add_u32 s{r}, s{r}, 1\ns_cmp_eq_u32 s{r}, 10\ns_cselect_b32 s{r}, 0, s{r}'.format(r=rot)
        return l
    def g2_offsets(self):
        a = self.a
        a('s_mul_i32 s4, s63, 77\ns_lshr_b32 s4, s4, 6\ns_lshl_b32 s4, s4, 10')
        for i in range(1, 12):
            a('s_add_u32 s%d, s%d, 1024\ns_cmp_eq_u32 s%d, 12288\ns_cselect_b32 s%d, 0, s%d' % (4 + i, 3 + i, 4 + i, 4 + i, 4 + i))
    def w2_voff(self, v0, wv, t):
        self.a("""s_lshr_b32 s76, s{wv}, 1
        s_mul_i32 s76, s76, {khs}
        s_and_b32 s77, s{wv}, 1
        s_mul_i32 s77, s77, {r16}
        s_add_u32 s76, s76, s77
        s_lshl_b32 s77, s63, 7
        s_add_u32 s76, s76, s77
        v_lshrrev_b32 v{t}, 3, v1
        v_mul_u32_u24 v{v0}, 1280, v{t}
        v_lshrrev_b32 v{t}, 4, v1
        v_lshlrev_b32 v{t}, 1, v{t}
        v_xor_b32 v{t}, v{t}, v1
        v_and_b32 v{t}, 7, v{t}
        v_lshl_add_u32 v{v0}, v{t}, 4, v{v0}
        v_add_u32 v{v0}, s76, v{v0}
        v_add_u32 v{v1}, {d}, v{v0}
        s_lshl_b32 s78, s{wv}, 11""".format(wv=wv, khs=24 * 32 * 1280, r16=16 * 1280, t=t, v0=v0, v1=v0 + 1, d=8 * 1280 - 1024))
    def w2_dma(self, step, slot, v0):
        part, i = step // 12, step % 12
        return ['s_add_u32 m0, s78, %d\ns_mul_i32 s76, s%d, 80\n%sbuffer_load_dwordx4 v%d, %s, s76 offen lds' % (slot * 8192, 4 + i, 's_add_u32 s76, s76, 40960\n' if part else '', v0, W2_),
                'buffer_load_dwordx4 v%d, %s, s76 offen offset:1024 lds' % (v0 + 1, W2_)]
    def w2_round(self, units, v0, thr=None):
        l = []
        for st, sl in units:
            d = self.w2_dma(st, sl, v0)
            if thr is not None: d[0] = 's_waitcnt vmcnt(%d)\n' % thr + d[0]
            l += d
        return l
    def gwave(self):
        a = self.a
        NT = 4
        VX, VW, RX, RW = 16, 20, 24, 26
        VBA, VXR, VAA, VSA = 30, 128, 129, 130
        XB, WB = [32, 64], 96
        VB2, VXI = 12, 240
        T, P, KC = 208, 224, 228
        TR, RF, A2, HR = 4, 16, 144, 208
        acc1 = lambda mt, nt: 144 + 32 * (mt >> 1) + 8 * nt + 4 * (mt & 1)
        acc = lambda t, nt: A2 + 32 * (t >> 1) + 8 * nt + 4 * (t & 1)
        a('s_setprio 1')
        self.g1_ids(37, 38, 39)
        self.g1_voff(VX, VW, 34, 37, 38, 2)
        self.srds()
        self.nonce0()
        dma = lambda st, wf=False: self.g1_dma(st, VX, VW, 39, wf)
        for x in dma(0): a(x)
        self.stamp('d0')
        self.tile_ids()
        a('s_and_b32 s60, s34, 1\ns_lshr_b32 s61, s34, 1')
        a("""v_and_b32 v8, 31, v1
        v_lshrrev_b32 v9, 5, v1
        v_and_b32 v10, 15, v1
        v_lshrrev_b32 v11, 4, v1
        v_bfe_u32 v12, v1, 4, 1
        v_bfe_u32 v13, v1, 2, 2
        v_and_b32 v14, 3, v1""")
        a("""v_lshrrev_b32 v4, 1, v10
        v_xor_b32 v4, v4, v11
        v_lshlrev_b32 v4, 4, v4
        v_lshl_add_u32 v4, v10, 7, v4
        s_lshl_b32 s76, s61, 13
        v_add_u32 v{x0}, s76, v4
        v_xor_b32 v{x1}, 64, v{x0}""".format(x0=RX, x1=RX + 1))
        a("""v_lshl_add_u32 v5, v11, 3, v13
        v_lshlrev_b32 v5, 8, v5
        s_lshl_b32 s76, s60, 1
        v_xor_b32 v4, s76, v13
        v_lshl_add_u32 v5, v4, 6, v5
        v_lshrrev_b32 v4, 1, v14
        v_lshl_add_u32 v5, v4, 5, v5
        v_lshl_add_u32 v5, v12, 4, v5
        v_and_b32 v4, 1, v1
        v_lshl_add_u32 v5, v4, 3, v5
        v_add_u32 v{w0}, 0x10000, v5
        v_xor_b32 v{w1}, 16, v{w0}
        v_xor_b32 v{w2}, 64, v{w0}
        v_xor_b32 v{w3}, 80, v{w0}""".format(w0=RW, w1=RW + 1, w2=RW + 2, w3=RW + 3))
        a("""v_lshrrev_b32 v4, 3, v10
        v_lshlrev_b32 v4, 8, v4
        v_and_b32 v5, 7, v1
        v_lshl_add_u32 v4, v5, 4, v4
        v_lshlrev_b32 v5, 11, v11
        s_lshl_b32 s76, s60, 10
        s_add_u32 s76, s76, {lu}
        v_add3_u32 v{aa}, v4, v5, s76
        s_lshl_b32 s76, s61, 11
        s_add_u32 s76, s76, {st}
        v_lshl_add_u32 v{sa}, v10, 5, s76""".format(lu=L_U + 1024, st=L_ST, aa=VAA, sa=VSA))
        a("""v_lshlrev_b32 v2, 4, v1
        s_lshl_b32 s76, s37, 1
        s_add_u32 s76, s76, s61
        s_mul_i32 s68, s76, {b4}
        s_mul_i32 s3, s76, 3072
        s_lshl_b32 s76, s38, 1
        s_add_u32 s76, s76, s60
        s_lshl_b32 s77, s76, 10
        s_add_u32 s68, s68, s77
        s_add_u32 s68, s68, {hh}
        s_lshl_b32 s76, s76, 7
        s_add_u32 s3, s3, s76
        s_add_u32 s3, s3, {fh}""".format(b4=4 * 49152, hh=HH, fh=FH))
        a("""s_lshl_b32 s76, s62, 1
        s_add_u32 s76, s76, s61
        s_mul_i32 s72, s76, {r64}
        s_mul_i32 s73, s76, {b4}
        s_mul_i32 s66, s76, 3072
        s_mul_i32 s77, s60, 12288
        s_add_u32 s73, s73, s77
        s_add_u32 s73, s73, {hh}
        s_mul_i32 s77, s60, 1536
        s_add_u32 s66, s66, s77
        s_add_u32 s66, s66, {fh}
        s_min_u32 s76, s63, 9
        s_lshl_b32 s76, s76, 7
        s_lshl_b32 s77, s60, 6
        s_add_u32 s76, s76, s77
        s_add_u32 s72, s72, s76
        v_lshlrev_b32 v4, 5, v12
        v_lshl_add_u32 v4, v9, 4, v4
        v_add_u32 v{ba}, s76, v4""".format(r64=64 * 1280, b4=4 * 49152, hh=HH, fh=FH, ba=VBA + 1))
        a("""v_lshl_add_u32 v4, v12, 1, v9
        s_lshl_b32 s76, s60, 2
        v_lshrrev_b32 v5, 1, v10
        v_xor_b32 v4, v4, v5
        v_xor_b32 v4, s76, v4
        v_lshlrev_b32 v4, 4, v4
        v_lshl_add_u32 v4, v10, 7, v4
        s_mul_i32 s76, s61, 8320
        s_add_u32 s76, s76, %d
        v_add_u32 v%d, s76, v4""" % (L_TAB, VXR))
        a("""v_lshl_add_u32 v15, v12, 2, v13
        v_lshrrev_b32 v5, 1, v15
        v_lshl_add_u32 v15, v9, 4, v15
        v_lshlrev_b32 v15, 7, v15
        s_lshl_b32 s76, s60, 1
        v_xor_b32 v5, s76, v5
        v_lshl_add_u32 v15, v5, 5, v15
        v_lshl_add_u32 v15, v14, 3, v15
        s_lshl_b32 s76, s60, 12
        s_add_u32 s76, s76, 0x10000
        v_add_u32 v4, s76, v15
        v_xor_b32 v5, 32, v4
        v_xor_b32 v6, 64, v4
        v_xor_b32 v7, 96, v4""")
        self.w2_voff(8, sWV, 10)
        self.g2_offsets()
        a('global_load_dwordx4 v[%d:%d], v%d, s[26:27]' % (VB2, VB2 + 3, VBA + 1))
        for x in dma(1, WFIRST): a(x)
        self.stamp('d1')
        if WARM & 2:
            for l in WG: self.warm(l, 34)
        d2 = dma(2) + dma(3)
        for x in d2[:PRE2]: a(x)
        if GT:
            a('''s_lshl_b32 s70, s36, 2
            s_add_u32 s70, s70, s34
            s_mul_i32 s70, s70, {n}
            s_mul_i32 s71, s35, 1920
            s_add_u32 s70, s70, s71
            v_min_u32 v131, {n1}, v1
            v_add_lshl_u32 v131, v131, s70, 7
            v_add_u32 v132, {w}, v131
            v_min_u32 v131, v131, v132
            buffer_load_dword v132, v131, {w2}, 0 offen'''.format(n=GT, n1=GT - 1, w=-15360 * 128, w2=W2_))
        self.stamp('d2')
        def xreads(st):
            return ['ds_read_b128 v[%d:%d], v%d offset:%d' % (XB[st & 1] + 8 * nt + 4 * ks, XB[st & 1] + 8 * nt + 4 * ks + 3, RX + ks, (st % 4) * 16384 + 2048 * nt) for nt in range(4) for ks in range(2)]
        def wreads(st, p):
            return ['ds_read_b64_tr_b16 v[%d:%d], v%d offset:%d' % (WB + 8 * mt + 4 * ks + 2 * e, WB + 8 * mt + 4 * ks + 2 * e + 1, RW + mt, (st % 4) * 16384 + 8192 * ks + 1024 * e)
                    for mt in (2 * p, 2 * p + 1) for ks in range(2) for e in range(2)]
        def mfmas(st, p):
            l = []
            for mt in (2 * p, 2 * p + 1):
                for nt in range(4):
                    for ks in range(2):
                        c = 'v[%d:%d]' % (acc1(mt, nt), acc1(mt, nt) + 3); w = WB + 8 * mt + 4 * ks; x = XB[st & 1] + 8 * nt + 4 * ks
                        l.append('v_mfma_f32_16x16x32_bf16 %s, v[%d:%d], v[%d:%d], %s' % (c, w, w + 3, x, x + 3, '0' if st == 0 and ks == 0 else c))
            return l
        def weave(mm, rd, n2):
            for i, m in enumerate(mm):
                a(m)
                k = 2 if i < n2 else 1
                for x in rd[:k]: a(x)
                rd = rd[k:]
            assert not rd
        def trreads(buf, slot):
            return ['ds_read_b64_tr_b16 v[%d:%d], v%d offset:%d' % (RF + 16 * buf + 4 * t + 2 * e, RF + 16 * buf + 4 * t + 2 * e + 1, TR + t, (slot % 8) * 8192 + 1024 * e) for t in range(4) for e in range(2)]
        AUA, AUB = XB[0], XB[0] + 16
        vm = [0] * 8 + ['b'] + [1] * 8 + ([2] * 8 + [3] * 8)[:PRE2] + ['t'] * (GT > 0)
        assert PRE2 >= 8
        for st in range(11):
            self.stamp('a%d' % st)
            w = ''
            if st in vm:
                k = len(vm) - vm[::-1].index(st); vm = vm[k:]; w = 'vmcnt(%d) ' % len(vm)
            a('s_waitcnt %slgkmcnt(0)' % w)
            self.stamp('w%d' % st)
            a('s_barrier')
            self.stamp('b%d' % st)
            if st == 10: break
            w0, xr = wreads(st, 0), xreads(st)
            rd = w0[:4] + xr + w0[4:]
            if st == 0:
                for x in rd: a(x)
                a(self.nonce2())
            elif st == 1:
                d3 = dma(4); vm += [4] * 8; weave(mfmas(0, 1), rd + d3[:4], 6)
            else: weave(mfmas(st - 1, 1), rd, N2)
            a('s_waitcnt lgkmcnt(0)')
            rd = wreads(st, 1)
            if st == 0: rd += d2[PRE2:]; vm += [3] * (16 - PRE2)
            if st == 1: rd = interleave(rd, d3[4:], every=2)
            if st == 7: rd += ['ds_read_b128 v[%d:%d], v%d offset:%d' % (VXI + 4 * nt, VXI + 4 * nt + 3, VXR, 4160 * (nt >> 1) + 2048 * (nt & 1)) for nt in range(NT)]
            weave(mfmas(st, 0), rd, 0)
        rd = ['ds_read_b128 v[%d:%d], v%d offset:%d' % (AUA + 4 * mt, AUA + 4 * mt + 3, VAA, 512 * (mt >> 1) + 128 * (mt & 1)) for mt in range(4)]
        rd += ['ds_read_b128 v[%d:%d], v%d offset:%d' % (AUB + 4 * nt, AUB + 4 * nt + 3, VSA, 512 * nt) for nt in range(4)]
        rd += ['ds_read_b64 v[%d:%d], v%d offset:%d' % (KC + 2 * nt, KC + 2 * nt + 1, VSA, 512 * nt + 16) for nt in range(4)]
        rd += ['ds_read_b32 v%d, v%d offset:%d' % (KC + 8 + nt, VSA, 512 * nt + 24) for nt in range(4)]
        weave(mfmas(9, 1), rd, 5)
        a('s_waitcnt lgkmcnt(0)')
        am = []
        for p in (0, 1):
            for nt in range(4):
                for mt in (2 * p, 2 * p + 1):
                    c = 'v[%d:%d]' % (acc1(mt, nt), acc1(mt, nt) + 3)
                    am.append('v_mfma_f32_16x16x32_bf16 %s, v[%d:%d], v[%d:%d], %s' % (c, AUA + 4 * mt, AUA + 4 * mt + 3, AUB + 4 * nt, AUB + 4 * nt + 3, c))
        weave(am, trreads(5, RSLOT[5]) + trreads(7, RSLOT[7]), 0)
        self.stamp(5)
        def gelu(part, nt):
            q = acc1(2 * part, nt); k = KC + 2 * nt; dl = KC + 8 + (nt & 2); o = nt & 1; t = T + 8 * (nt & 1)
            pr = lambda b, i: 'v[%d:%d]' % (b + 2 * i, b + 2 * i + 1)
            A = ['v_pk_mul_f32 %s, %s, %s' % (pr(t, i), pr(q, i), pr(q, i)) for i in range(4)]
            B = ['v_pk_fma_f32 %s, %s, v[%d:%d], v[%d:%d] op_sel:[0,0,1] op_sel_hi:[1,0,1]' % (pr(t, i), pr(t, i), k, k + 1, k, k + 1) for i in range(4)]
            C = ['v_pk_mul_f32 %s, %s, %s' % (pr(t, i), pr(t, i), pr(q, i)) for i in range(4)]
            E = ['v_exp_f32 v%d, v%d' % (t + i, t + i) for i in range(8)]
            D = ['v_pk_fma_f32 %s, %s, v[%d:%d], v[%d:%d] op_sel:[0,%d,%d] op_sel_hi:[1,%d,%d]' % (pr(t, i), pr(t, i), dl, dl + 1, dl, dl + 1, o, o, o, o) for i in range(4)]
            R = ['v_rcp_f32 v%d, v%d' % (t + i, t + i) for i in range(8)]
            Gc = ['v_cvt_pk_bf16_f32 v%d, v%d, v%d' % (P + i, t + 2 * i, t + 2 * i + 1) for i in range(4)]
            Gc[2] += '\ns_add_u32 s69, s68, %d' % (nt * 49152 + part * 24576)
            Gc[3] += '\nbuffer_store_dwordx4 v[%d:%d], v2, %s, s69 offen sc1' % (P, P + 3, WS_) if 'nost' not in self.opts else '\ns_nop 0 ; buffer_store'
            return A, B, C, E, D, R, C, Gc
        def gelu_stream(tiles):
            A, B, C, E, D, R, F, Gc = [sum((gelu(*t)[i] for t in tiles), []) for i in range(8)]
            g = lambda L, j: [L[j]] if 0 <= j < len(L) else []
            return [g(A, i + 2) + g(E, 2 * i) + g(B, i + 2) + g(E, 2 * i + 1) + g(C, i + 2) + g(D, i - 1) + g(R, 2 * i - 4) + g(F, i - 3) + g(R, 2 * i - 3) + g(Gc, i - 4)
                    for i in range(-2, 4 * len(tiles) + 4)]
        FV = 144
        flag = self.flag(FV, 3) + '\ns_add_u32 s3, s3, %d' % (32 * 3072)
        rr = []
        for b in (0, 1, 2, 3, 4, 6): rr += trreads(b, RSLOT[b])
        rr[16] = '\n'.join('v_add_u32 v%d, 0xffff0000, v%d' % (r, r) for r in range(4, 8)) + '\n' + rr[16]
        nst = 0
        for i, grp in enumerate(gelu_stream([(p, nt) for p in range(2) for nt in range(4)])):
            if i == B0P: a('s_barrier')
            if i == 22: self.stamp('t2')
            if i == FLAG0:
                assert nst >= 4
                for x in self.flag_regs(FV): a(x)
                self.stamp('t3')
                a('s_waitcnt vmcnt(%d)' % (nst - 4)); a(flag); self.stamp('f0')
            if i == 10: self.stamp('t1')
            if i >= B1P and (i - B1P) % RBE == 0:
                for x in rr[:RBU]:
                    if 'norr' not in self.opts: a(x)
                rr = rr[RBU:]
            for x in grp:
                a(x); nst += 'buffer_store' in x
        assert not rr
        self.stamp(6)
        a('s_waitcnt lgkmcnt(0)\ns_barrier')
        self.stamp(7)
        a("""s_cmp_lt_u32 s36, 20
        s_cbranch_scc1 L_G2
        s_waitcnt vmcnt(0)
        {flag}
        s_branch L_FIN
        L_G2:""".format(flag=flag))
        ini = []
        for r in [VB2] + [VXI + 4 * nt for nt in range(NT)]:
            ini += ['v_permlane16_swap_b32 v%d, v%d' % (r, r + 2), 'v_permlane16_swap_b32 v%d, v%d' % (r + 1, r + 3)]
        for i in range(4):
            ini += ['v_lshlrev_b32 v%d, 16, v%d' % (T + 2 * i, VB2 + i), 'v_and_b32 v%d, 0xffff0000, v%d' % (T + 2 * i + 1, VB2 + i)]
        for nt in range(NT):
            for i in range(4):
                s = VXI + 4 * nt + i; o = acc(0, nt) + 2 * i
                ini += ['v_lshlrev_b32 v%d, 16, v%d' % (o, s), 'v_and_b32 v%d, 0xffff0000, v%d' % (o + 1, s),
                        'v_add_f32 v%d, v%d, v%d' % (o, o, T + 2 * i), 'v_add_f32 v%d, v%d, v%d' % (o + 1, o + 1, T + 2 * i + 1)]
        hpl = 'buffer_load_dword v2, v10, %s, s66 offen sc1' % WS_; hchk = 'v_cmp_ne_u32 vcc, s21, v2'
        a('v_min_u32 v10, 11, v1\nv_lshlrev_b32 v10, 7, v10')
        flag = self.flag(176, 3)
        for x in self.flag_regs(176): a(x)
        dm = self.w2_round([(10 + k, LSLOT[8 + k]) for k in range(8)], 8)
        d1 = dm[:NPH]
        d1.insert(PPOS, hpl)
        d1.insert(FLAG1, 's_waitcnt vmcnt(%d)\n' % FLAG1 + flag)
        for x in interleave(d1, ini, per=6): a(x)
        Lok = self.lab('OK')
        self.stamp('f1')
        a('s_waitcnt vmcnt(%d)\n%s\ns_cbranch_vccz %s' % (len(d1) - 1 - d1.index(hpl), hchk, Lok))
        self.poll(hpl, hchk)
        a('%s:' % Lok)
        self.stamp(10)
        a("""v_lshl_add_u32 v12, v1, 4, s73
        v_add_u32 v13, 49152, v12
        v_add_u32 v14, %d, v12
        v_add_u32 v15, %d, v12""" % (2 * 49152, 3 * 49152))
        RING = 3 * NT; NJ = 24 * NT
        def hload(j):
            s, nt = j // NT, j % NT
            r = HR + 16 * (s % 3) + 4 * nt
            if 'noh' in self.opts and j >= RING: return 's_nop 0'
            if 'hsame' in self.opts: return 'buffer_load_dwordx4 v[%d:%d], v%d, %s, s%d offen sc1' % (r, r + 3, 12 + nt, WS_, 4 + s % 3)
            return ('v_add_u32 v%d, 24576, v%d\n' % (12 + nt, 12 + nt) if s == 12 else '') + 'buffer_load_dwordx4 v[%d:%d], v%d, %s, s%d offen %s' % (r, r + 3, 12 + nt, WS_, 4 + s % 12, '' if 'hplain' in self.opts else 'sc1')
        RING = 3 * NT; NJ = 24 * NT
        for j in range(RING): a(hload(j))
        for x in dm[NPH:]: a(x)
        self.stamp(8)
        a("""s_lshl_b32 s76, s34, 13
        v_lshl_add_u32 v2, v1, 4, s76
        v_bfe_u32 v10, v1, 2, 3
        s_lshl_b32 s76, s61, 2
        v_xor_b32 v10, s76, v10
        v_lshlrev_b32 v10, 5, v10
        v_lshrrev_b32 v11, 2, v1
        v_lshl_add_u32 v10, v11, 8, v10
        v_and_b32 v11, 3, v1
        v_lshl_add_u32 v10, v11, 3, v10
        s_mul_i32 s16, s60, 8320
        s_add_u32 s16, s16, %d
        v_lshrrev_b32 v8, 2, v1
        v_mul_u32_u24 v3, 1280, v8
        v_lshl_add_u32 v3, v11, 4, v3
        v_mul_u32_u24 v9, 80, v8
        v_lshl_add_u32 v9, v11, 4, v9
        s_lshl_b32 s76, s34, 13
        s_add_u32 s76, s76, 32768
        v_add_u32 v9, s76, v9
        v_and_b32 v8, 15, v1
        v_mul_u32_u24 v8, 80, v8
        v_lshrrev_b32 v11, 4, v1
        v_lshl_add_u32 v8, v11, 3, v8
        v_add_u32 v8, s76, v8""" % L_TAB)
        self.stamp(9)
        def wbuf(s): return s if s < 2 else (s - 16 if s >= 18 else (s & 1))
        vm = list(range(RING)) + ['D'] * (len(dm) - NPH)
        assert NL1 == 8
        AZ = RF
        JF = 12 * NT - RING + 1
        extra = []
        for s in range(24):
            wb = RF + 16 * wbuf(s); nxt = s + 1; rd = []
            if 2 <= nxt < 18:
                if nxt in (6, 14): extra += ['v_add_u32 v%d, %s, v%d' % (r, '0x10000' if nxt == 6 else '0xffff0000', r) for r in range(4, 8)]
                rd = trreads(wbuf(nxt), LSLOT[nxt - 2])
            if s == 18: extra += ['v_xor_b32 v%d, %d, v10' % (4 + nt, 32 * nt) for nt in range(NT)] + ['v_add_u32 v%d, s16, v%d' % (4 + nt, 4 + nt) for nt in range(NT)]
            if s == 9:
                assert 'D' not in vm and JF >= 9 * NT
                a('s_barrier')
            if nxt in (6, 14):
                for x in extra: a(x)
                extra = []
            wl = 2 <= s < 18
            order = [(s, nt, t) for nt in range(NT) for t in range(4)]
            if s > 24 - NFIN: continue
            if s == 24 - NFIN: order = [(z, nt, t) for tt in ((2, 3), (0, 1)) for z in range(s, 24) for nt in range(NT) for t in tt]
            nw = 0
            for k, (z, nt, t) in enumerate(order):
                j = z * NT + nt; wb = RF + 16 * wbuf(z)
                if j in vm:
                    n = len(vm) - 1 - vm.index(j); vm = vm[vm.index(j) + 1:]
                    a('s_waitcnt vmcnt(%d)' % n + (' lgkmcnt(0)' if wl else '')); wl = False
                r = HR + 16 * (z % 3) + 4 * nt
                c = 'v[%d:%d]' % (acc(t, nt), acc(t, nt) + 3)
                a('v_mfma_f32_16x16x32_bf16 %s, v[%d:%d], v[%d:%d], %s' % (c, wb + 4 * t, wb + 4 * t + 3, r, r + 3, '0' if (s == 0 and t >= 2) else c))
                if s == 24 - NFIN:
                    k2 = k - len(order) // 2
                    if k2 >= 0 and k2 % NFIN == 0:
                        a('ds_write_b128 v2, v[%d:%d] offset:%d' % (acc(2 + (nw & 1), nw // 2), acc(2 + (nw & 1), nw // 2) + 3, 1024 * nw)); nw += 1
                    continue
                if t == 1 and j >= 1 and j - 1 + RING < NJ:
                    a(hload(j - 1 + RING)); vm.append(j - 1 + RING)
                    if j == SA: a('s_barrier')
                elif rd and t != 3: a(rd.pop(0))
                elif rd and nt < 2: a(rd.pop(0))
                elif extra and t != 3:
                    a(extra.pop(0))
                    if extra: a(extra.pop(0))
            assert not rd
            if s == 0: self.stamp(11)
            self.stamp('s%d' % s)
        self.stamp(12)
        for x in extra: a(x)
        a('v_xor_b32 v2, 0x2000, v2')
        a('s_waitcnt lgkmcnt(0)\ns_barrier')
        self.stamp(13)
        for nt in range(NT):
            for t in range(2):
                a('ds_read_b64_tr_b16 v[%d:%d], v%d offset:%d' % (AZ + 32 + 4 * nt + 2 * t, AZ + 33 + 4 * nt + 2 * t, 4 + nt, 4160 * t))
                a('ds_read_b128 v[%d:%d], v2 offset:%d' % (acc(2 + t, nt), acc(2 + t, nt) + 3, 1024 * (2 * nt + t)))
        lg = [('i', nt) for nt in range(NT) for _ in range(4)]
        def lwait(tag):
            if tag in lg:
                k = len(lg) - lg[::-1].index(tag); del lg[:k]; a('s_waitcnt lgkmcnt(%d)' % len(lg))
        def store(nt):
            a('s_add_u32 s76, s72, %d' % (nt * 16 * 1280)); lwait(('o', nt))
            a('buffer_store_dwordx4 v[%d:%d], v3, %s, s76 offen %s' % (HR + 4 * nt + 16, HR + 4 * nt + 19, OUT_, OUTAUX))
        for nt in range(NT):
            lwait(('i', nt))
            o = HR + 4 * nt; k = acc(0, nt)
            for d in range(4): a('v_lshlrev_b32 v%d, 16, v%d\nv_and_b32 v%d, 0xffff0000, v%d' % (AZ + 2 * d, AZ + 32 + 4 * nt + d, AZ + 2 * d + 1, AZ + 32 + 4 * nt + d))
            for d in range(4): a('v_pk_add_f32 v[%d:%d], v[%d:%d], v[%d:%d]' % (k + 2 * d, k + 2 * d + 1, k + 2 * d, k + 2 * d + 1, k + 32 + 2 * d, k + 33 + 2 * d))
            for d in range(4): a('v_pk_add_f32 v[%d:%d], v[%d:%d], v[%d:%d]' % (k + 2 * d, k + 2 * d + 1, k + 2 * d, k + 2 * d + 1, AZ + 2 * d, AZ + 2 * d + 1))
            for d in range(4): a('v_cvt_pk_bf16_f32 v%d, v%d, v%d' % (o + d, k + 2 * d, k + 2 * d + 1))
            for t in range(2): a('ds_write_b64 v8, v[%d:%d] offset:%d' % (o + 2 * t, o + 2 * t + 1, 1280 * nt + 32 * t))
            a('ds_read_b128 v[%d:%d], v9 offset:%d' % (o + 16, o + 19, 1280 * nt))
            lg += ['w', 'w', ('o', nt)]
            if nt: store(nt - 1)
        store(NT - 1)
        self.stamp(14)
        a('s_branch L_FIN')

    def sn_entry(self):
        a = self.a
        a("""s_setprio 3
        s_cmp_ge_u32 s36, 24
        s_cselect_b32 s37, 1, 0
        s_cselect_b32 s76, 3, 1
        s_cselect_b32 s77, -48, 0
        s_lshr_b32 s78, s34, 1
        s_and_b32 s78, s78, s76
        s_add_u32 s76, s37, 1
        s_lshl_b32 s76, s36, s76
        s_mul_i32 s61, s35, 80
        s_add_u32 s61, s61, s76
        s_add_u32 s61, s61, s77
        s_add_u32 s61, s61, s78
        s_mul_i32 s76, s61, 384
        v_and_b32 v7, 31, v1
        v_mul_u32_u24 v2, 12, v7
        v_add_u32 v2, s76, v2
        s_lshl_b32 s66, s61, 1
        s_and_b32 s66, s66, 0xfffc""")
        if 'nocp' not in self.opts:
            L = self.lab('CP')
            a("""s_lshl_b32 s76, s37, 3
            s_add_u32 s76, s76, s34
            s_cmp_eq_u32 s76, 12
            s_cbranch_scc0 {L}
            s_getpc_b64 s[68:69]
            {L}pc:
            s_sub_u32 s68, s68, {L}pc-{n}
            s_subb_u32 s69, s69, 0
            s_sub_u32 s76, s36, 24
            s_mul_i32 s76, s76, 5120
            v_min_u32 v7, 39, v1
            v_lshl_add_u32 v7, v7, 7, s76
            v_min_u32 v7, L_END-{n}, v7
            global_load_dword v255, v7, s[68:69]
            {L}:""".format(L=L, n=NAME))
        a('s_waitcnt lgkmcnt(0)')
        for k, p in enumerate((6, 8, 10, 12)):
            a('global_load_dwordx3 v[%d:%d], v2, s[%d:%d]' % (16 + 4 * k, 18 + 4 * k, p, p + 1))
        a('s_load_dword s72, s[14:15], s66\ns_load_dword s73, s[16:17], s66')
        self.stamp('pl')
        self.srds(False)
        self.nonce0()
        a("""s_and_b32 s60, s34, 1
        s_mov_b32 s38, {t1}
        s_mov_b32 s39, {u1}
        s_cmp_eq_u32 s37, 0
        s_cselect_b32 s38, {t0}, s38
        s_cselect_b32 s39, {u0}, s39
        s_mul_i32 s76, s78, 8320
        s_add_u32 s38, s38, s76
        s_lshr_b32 s76, s78, 1
        s_mul_i32 s76, s76, 9216
        s_and_b32 s77, s78, 1
        s_lshl_b32 s77, s77, 9
        s_add_u32 s39, s39, s76
        s_add_u32 s39, s39, s77
        s_lshl_b32 s62, s35, 3
        s_add_u32 s62, s62, s36
        s_sub_u32 s62, s62, 24
        s_lshl_b32 s63, s62, 5
        s_lshl_b32 s76, s34, 2
        s_add_u32 s63, s63, s76
        s_mul_i32 s64, s63, 1280
        v_mov_b32 v14, 0
        v_mov_b32 v15, 0
        v_lshrrev_b32 v4, 4, v1
        v_and_b32 v5, 15, v1
        v_mul_u32_u24 v6, 1280, v4
        v_lshl_add_u32 v248, v5, 4, v6""".format(t0=L_TAB, t1=N_TAB, u0=L_U, u1=N_U))
        a('s_cmp_lt_u32 s34, 4\ns_cselect_b32 s19, %d, %d\ns_cmp_eq_u32 s37, 0\ns_cselect_b32 s19, 3, s19' % tuple(LNP))
        if XEARLY: self.xloads()
        a('''s_sub_u32 s76, s36, 24
        s_lshl_b32 s76, s76, 3
        s_add_u32 s76, s76, s34
        s_mul_i32 s76, s76, {n}
        s_mul_i32 s77, s35, 1920
        s_add_u32 s76, s76, s77
        s_add_u32 s76, s76, {g}
        v_min_u32 v249, {n1}, v1
        v_add_lshl_u32 v249, v249, s76, 7'''.format(n=NLN, n1=NLN - 1, g=96 * GT))
        EX = 196 + 6; a = self.a
        a("""s_xor_b32 s76, s60, 1
        s_mul_i32 s76, s76, 4160
        s_add_u32 s76, s76, s38
        v_lshl_add_u32 v{e0}, v1, 4, s76
        s_mul_i32 s76, s60, 4160
        s_add_u32 s76, s76, s38
        v_lshl_add_u32 v{e1}, v1, 4, s76
        v_mov_b32 v{e3}, s76
        s_add_u32 s76, s76, 1008
        v_lshlrev_b32 v5, 4, v1
        v_sub_u32 v{e2}, s76, v5
        v_mov_b32 v8, 0
        v_mov_b32 v9, 0
        v_mov_b32 v10, 0
        v_mov_b32 v11, 0
        v_lshl_add_u32 v6, v1, 3, s39
        ds_write_b64 v6, v[8:9]
        s_mov_b64 exec, 7
        ds_write_b128 v{e1}, v[8:11] offset:4096
        s_mov_b64 exec, -1""".format(e0=EX, e1=EX + 1, e2=EX + 2, e3=EX + 3))
    def xloads(self):
        a = self.a
        Lx = self.lab('NX')
        a('s_cmp_eq_u32 s37, 0\ns_cbranch_scc1 %s' % Lx)
        for i in range(5): a('buffer_load_dwordx4 v[%d:%d], v248, %s, s64 offen offset:%d' % (XI + 4 * i, XI + 4 * i + 3, X_, 256 * i))
        a('%s:' % Lx)
    def cmul(self, d, x, w):
        return ['v_pk_mul_f32 v[%d:%d], v[%d:%d], v[%d:%d] op_sel:[1,1] op_sel_hi:[0,1] neg_lo:[0,1]' % (d[0], d[1], x[0], x[1], w[0], w[1]),
                'v_pk_fma_f32 v[%d:%d], v[%d:%d], v[%d:%d], v[%d:%d] op_sel_hi:[1,0,1]' % (d[0], d[1], x[0], x[1], w[0], w[1], d[0], d[1])]
    def scode(self):
        a = self.a
        tag = 'S'
        SELB, SELA, KA = 32, 40, 52
        FRG = 68
        PB, PA = 68, 84
        DB, DA = 100, 132
        FB, FA2 = 164, 180
        VV = 196
        DT, D2, SC1, SC2 = 48, 49, 50, 51
        a("""v_lshrrev_b32 v3, 5, v1
        v_cmp_eq_u32 s[74:75], 1, v3
        v_bfe_u32 v4, v1, 4, 1
        v_and_b32 v5, 15, v1
        v_cmp_eq_u32 vcc, v3, v4
        v_cndmask_b32 v5, 64, v5, vcc
        v_and_b32 v6, 3, v1
        v_bfe_u32 v7, v1, 3, 2
        v_lshl_add_u32 v6, v7, 2, v6
        v_add_u32 v7, 1, v6
        v_and_b32 v7, 12, v7
        v_and_b32 v8, 9, v6
        v_cmp_eq_u32 vcc, 1, v8
        s_and_b64 vcc, vcc, s[74:75]
        v_cndmask_b32 v6, v6, v7, vcc
        v_bfe_u32 v4, v1, 2, 1
        v_cmp_eq_u32 vcc, v3, v4
        v_cndmask_b32 v6, 64, v6, vcc
        v_mov_b32 v9, 0x3f80""")
        for v, sel in ((5, SELB), (6, SELA)):
            a('v_and_b32 v7, 1, v{v}\nv_lshlrev_b32 v7, 4, v7\nv_lshlrev_b32 v7, v7, v9\nv_lshrrev_b32 v8, 1, v{v}'.format(v=v))
            for d in range(0, 8, 2):
                a('v_cmp_eq_u32 vcc, %d, v8\nv_cmp_eq_u32 s[76:77], %d, v8\nv_nop\nv_cndmask_b32 v%d, 0, v7, vcc\nv_cndmask_b32 v%d, 0, v7, s[76:77]' % (d, d + 1, sel + d, sel + d + 1))
        EX = VV + 6
        if WARM & 1:
            a('s_and_b32 s3, s34, 3'); self.warm(['S0', 'S1', 'S2', 'S3'][:WS0], 3)
        a("""v_mov_b32 v4, 0x41000000
        v_mov_b32 v5, 0x43000000
        v_cndmask_b32 v{s1}, v4, v5, s[74:75]
        v_mov_b32 v5, 0x43800000
        v_cndmask_b32 v{s2}, 1.0, v5, s[74:75]
        s_and_b32 s76, s61, 1
        s_xor_b32 s76, s76, 1
        s_lshl_b32 s76, s76, 4
        s_mul_i32 s77, s60, 0x02020000
        s_add_u32 s77, s77, 0x01000c0c
        s_waitcnt lgkmcnt(0)
        {bp}
        s_lshl_b32 s72, s72, s76
        s_and_b32 s72, s72, 0xffff0000
        s_lshl_b32 s73, s73, s76
        s_and_b32 s73, s73, 0xffff0000
        v_mov_b32 v{dt}, s72
        v_mul_f32 v{dt}, {l2e}, v{dt}
        v_exp_f32 v{dt}, v{dt}
        v_mov_b32 v31, s73
        v_cvt_pk_bf16_f32 v{dt}, v{dt}, v{dt}
        v_lshlrev_b32 v{dt}, 16, v{dt}
        v_add_f32 v{d2}, v{dt}, v{dt}""".format(bp=self.nonce2(), s1=SC1, s2=SC2, dt=DT, d2=D2, l2e=f32(LOG2E)))
        a('v_cmp_eq_u32 vcc, 0, v1\nv_cndmask_b32 v31, 0, v31, vcc')
        self.stamp('a0')
        if PAGE: a('s_branch L_K\n.page S\nL_K:')
        Ls = self.lab('NG'); Lx = self.lab('NX')
        if not XEARLY: self.xloads()
        a('s_setprio %d\ns_cmp_eq_u32 s37, 0\ns_cbranch_scc1 %s\ns_waitcnt vmcnt(5)\ns_branch %s\n%s:\ns_waitcnt vmcnt(0)\n%s:' % (2 * KPRIO, Lx, Ls, Lx, Ls))
        self.stamp(2)
        for k in range(4):
            for p in range(3):
                r = 16 + 4 * k + p
                a('v_perm_b32 v%d, v%d, v%d, s77' % (r, r, r))
        W8, W1, W5 = (VV, VV + 1), (VV + 2, VV + 3), (VV + 4, VV + 5)
        U = VV + 12
        XA = VV + 16
        def setup(p):
            l = """v_mul_f32 v4, {l2e}, v{la}
            v_exp_f32 v4, v4
            v_mul_f32 v5, v{ai}, v{dt}
            v_cvt_pk_bf16_f32 v4, v4, v4
            v_mul_f32 v5, {ci}, v5
            v_lshlrev_b32 v4, 16, v4
            v_mul_f32 v7, v5, v{s1}
            v_mul_f32 v4, v4, v{dt}
            v_mul_f32 v9, v5, v{s2}
            v_mul_f32 v4, {cr}, v4
            v_rndne_f32 v10, v7
            v_rndne_f32 v11, v9
            v_mul_f32 v6, v4, v{s1}
            v_mul_f32 v8, v4, v{s2}
            v_sub_f32 v7, v7, v10
            v_sub_f32 v9, v11, v9
            v_exp_f32 v6, v6
            v_exp_f32 v8, v8
            v_sin_f32 v10, v7
            v_cos_f32 v11, v7
            v_sin_f32 v12, v9
            v_cos_f32 v13, v9
            v_mul_f32 v{w8i}, v10, v6
            v_mul_f32 v{w8r}, v11, v6
            v_mul_f32 v{w1i}, v12, v8
            v_mul_f32 v{w1r}, v13, v8
            v_mul_f32 v{u1}, v10, v6
            v_mul_f32 v{u0}, v11, v6
            v_mul_f32 v{u3}, v12, v8
            v_mul_f32 v{u2}, v13, v8
            v_mul_f32 v4, v{cre}, v{d2}
            v_mul_f32 v5, v{cim}, v{d2}
            v_permlane32_swap_b32 v{w8i}, v{u1}
            v_permlane32_swap_b32 v{w8r}, v{u0}
            v_permlane32_swap_b32 v{w1i}, v{u3}
            v_permlane32_swap_b32 v{w1r}, v{u2}
            v_cndmask_b32 v{e0}, 1.0, v{u0}, s[74:75]
            v_cndmask_b32 v{e1}, 0, v{u1}, s[74:75]
            v_cndmask_b32 v6, 1.0, v{u2}, s[74:75]
            v_cndmask_b32 v7, 0, v{u3}, s[74:75]
            v_mul_f32 v{w5r}, v{u2}, v{u2}
            v_add_f32 v8, v{u2}, v{u2}
            v_fma_f32 v{w5r}, -v{u3}, v{u3}, v{w5r}
            v_mul_f32 v{w5i}, v8, v{u3}
            v_mul_f32 v{g0}, v4, v6
            v_mul_f32 v{g1}, v4, v7
            v_fmac_f32 v{g0}, v5, v7
            v_fma_f32 v{g1}, -v5, v6, v{g1}""".format(l2e=f32(LOG2E), la=16 + p, ai=20 + p, cre=24 + p, cim=28 + p, dt=DT, d2=D2, s1=SC1, s2=SC2,
                ci=f32(1 / (2 * math.pi)), cr=f32(-LOG2E), w8i=W8[1], w8r=W8[0], w1i=W1[1], w1r=W1[0], w5i=W5[1], w5r=W5[0],
                u0=U, u1=U + 1, u2=U + 2, u3=U + 3, e0=XA, e1=XA + 1, g0=XA + 4, g1=XA + 5)
            return [x.strip() for x in l.split('\n')]
        def pack(P, v, x0, x1):
            return ['v_cvt_pk_bf16_f32 v%d, v%d, v%d' % (P + v // 2, x0[0], x1[0]), 'v_cvt_pk_bf16_f32 v%d, v%d, v%d' % (P + 8 + v // 2, x0[1], x1[1])]
        def chainB():
            l = []; r = [(XA, XA + 1), (XA + 2, XA + 3)]
            for v in range(1, 16):
                l += self.cmul(r[v & 1], r[(v - 1) & 1], W8)
                if v & 1: l += pack(PB, v, r[0], r[1])
            return l
        def chainA():
            l = []; reg = {v: (XA + 4 + 2 * k, XA + 5 + 2 * k) for v, k in enumerate([0, 3, 4, 3, 1, 3, 4, 3, 2, 3, 4, 0, 1, 2, 3, 4])}
            src = {9: 0, 10: 4, 11: 8, 12: 9, 13: 11, 14: 12, 15: 13}
            for v in range(1, 16):
                l += self.cmul(reg[v], reg[v - 1] if v < 9 else reg[src[v]], W1 if v < 9 else W5)
                if v & 1: l += pack(PA, v, reg[v - 1], reg[v])
            return l
        def transp(D, P, SEL_):
            l = []
            for sg in range(2):
                for c in range(2):
                    d = 'v[%d:%d]' % (D + 16 * c, D + 16 * c + 15)
                    l.append('v_mfma_f32_32x32x16_bf16 %s, v[%d:%d], v[%d:%d], %s' % (d, P + 8 * c + 4 * sg, P + 8 * c + 4 * sg + 3, SEL_ + 4 * sg, SEL_ + 4 * sg + 3, '0' if sg == 0 else d))
            return l
        def repack(F, D): return ['v_cvt_pk_bf16_f32 v%d, v%d, v%d' % (F + i, D + 2 * i, D + 2 * i + 1) for i in range(16)]
        def mf2(first):
            k = 'v[%d:%d]' % (KA, KA + 15)
            return ['v_mfma_f32_32x32x16_bf16 %s, v[%d:%d], v[%d:%d], %s' % (k, FA2 + 4 * i, FA2 + 4 * i + 3, FB + 4 * i, FB + 4 * i + 3, '0' if (first and i == 0) else k) for i in range(4)]
        hook = 's_cmp_eq_u32 s37, 0\ns_cbranch_scc0 L_LN\nL_LNR:'
        if PK:
            seq = []
            if -1 in LNP: seq.append('s_cmp_eq_u32 s19, -1\ns_cbranch_scc1 L_LN\nL_LNRm:'); iln = 1
            seq += setup(0)
            for p in range(3):
                seq += interleave(chainB(), chainA())
                if p in LNP: seq.append('s_cmp_eq_u32 s19, %d\ns_cbranch_scc1 L_LN\nL_LNR%d:' % (p, p)); iln = len(seq)
                if p == 2 and 0 in SB: seq.append('s_cmp_eq_u32 s37, 0\ns_cbranch_scc0 {L}\ns_barrier\n{L}:'.format(L=self.lab('NB')))
                nx = setup(p + 1) if p < 2 else []
                tb, ta, rb, ra, m2 = transp(DB, PB, SELB), transp(DA, PA, SELA), repack(FB, DB), repack(FA2, DA), mf2(p == 0)
                order = [tb[0], tb[2], ta[0], ta[2], tb[1], tb[3], ta[1], ta[3]]
                h = len(nx) // 2
                seq += interleave(order[:5], nx[:h], per=6)
                seq += interleave(order[5:], rb[:8] + ra[:8], per=6)
                seq += interleave(m2[:2], nx[h:h + 6] + rb[8:] + ra[8:], per=6)
                seq += interleave(m2[2:], nx[h + 6:], per=6)
        if 'nok' in self.opts: a('s_cmp_eq_u32 s37, 0\ns_cbranch_scc1 L_NOK')
        nb = 0; n = len(seq); xh = False
        for i, x in enumerate(seq):
            if not xh and i >= iln + XHOOK * (n - iln):
                self.xhook(); xh = True
            for tp in TOUCH:
                if i == iln + int(tp * (n - iln)):
                    L = self.lab('TC')
                    a('s_cmp_eq_u32 s37, 0\ns_cbranch_scc1 %s' % L); self.touch(); a('%s:' % L)
            a(x)
        if 'nok' in self.opts: a('s_nop 15\nL_NOK:')
        self.stamp(3)
        if 1 in SB: a('s_cmp_eq_u32 s37, 0\ns_cbranch_scc0 {L}\ns_barrier\n{L}:'.format(L=self.lab('NB')))
        CA, CB = 176, 186
        a("""v_and_b32 v9, 15, v1
        v_lshrrev_b32 v10, 4, v1
        v_and_b32 v11, 1, v1
        v_xor_b32 v11, 1, v11
        v_mul_u32_u24 v11, 4162, v11
        v_lshl_add_u32 v11, v10, 4, v11
        v_lshlrev_b32 v12, 1, v9
        v_sub_u32 v11, v11, v12
        s_lshl_b32 s76, s60, 8
        s_sub_u32 s76, s38, s76
        s_add_u32 s76, s76, %d
        v_add_u32 v%d, s76, v11""" % (2 * (2047 - 16) - 512 - 192, CA))
        for p in range(1, 4): a('v_add_u32 v%d, %d, v%d' % (CA + p, -1024 * p, CA))
        a('v_lshl_add_u32 v9, v9, 1, v10\ns_lshl_b32 s76, s60, 4\ns_sub_u32 s76, 30, s76\nv_add_u32 v9, s76, v9')
        for tt in range(4):
            a('v_add_u32 v10, %d, v9\nv_and_b32 v11, 32, v10\nv_add_u32 v10, v10, v11\nv_lshl_add_u32 v%d, v10, 4, s39' % (-4 * tt, CB + tt))
        a("""s_and_b32 s3, s34, 3
        s_lshr_b32 s76, s61, 1
        s_lshl_b32 s76, s76, 13
        s_lshl_b32 s77, s3, 11
        s_add_u32 s26, s76, s77
        s_and_b32 s76, s61, 1
        s_lshl_b32 s76, s76, 9
        s_sub_u32 s27, s39, s76
        s_add_u32 s27, s27, s77
        s_add_u32 s27, s27, 1024
        v_and_b32 v181, 31, v1
        v_lshlrev_b32 v181, 5, v181
        v_lshrrev_b32 v182, 5, v1
        v_lshl_add_u32 v181, v182, 4, v181
        v_lshlrev_b32 v182, 4, v1
        v_and_b32 v184, 15, v1
        v_lshlrev_b32 v184, 7, v184
        s_add_u32 s20, s77, %d""" % FX)
        xld = 'buffer_load_dword v183, v184, %s, s20 offen sc1' % WS_; xchk = 'v_cmp_ne_u32 vcc, s21, v183'
        udma = """s_mov_b32 m0, s27
        buffer_load_dwordx4 v181, {ws}, s26 offen sc1 lds
        buffer_load_dwordx4 v181, {ws}, s26 offen offset:1024 sc1 lds""".format(ws=WS_)
        Lg = self.lab('NG'); Lw = self.lab('NW'); Lx = self.lab('NX'); Lv = self.lab('NV')
        a('s_cmp_eq_u32 s37, 0\ns_cbranch_scc0 %s\ns_setprio 0' % Lg)
        LX, LW = 16, 20
        def prep_x():
            self.tile_ids()
            a("""s_lshl_b32 s76, s62, 7
        s_lshl_b32 s77, s3, 5
        s_add_u32 s76, s76, s77
        s_mul_i32 s16, s76, 1280
        s_min_u32 s76, s63, 9
        s_lshl_b32 s76, s76, 7
        s_add_u32 s16, s16, s76
        v_lshrrev_b32 v9, 3, v1
        v_mul_u32_u24 v9, 1280, v9
        v_lshrrev_b32 v10, 4, v1
        v_xor_b32 v10, v10, v1
        v_and_b32 v10, 7, v10
        v_lshl_add_u32 v9, v10, 4, v9
        v_xor_b32 v10, 64, v9
        s_mul_i32 s17, s3, 4160
        s_add_u32 s17, s17, %d""" % L_TAB)
        def prep_aux():
            a('''s_lshl_b32 s76, s28, 2
        s_add_u32 s76, s76, s3
        s_lshl_b32 s77, s3, 4
        s_lshl_b32 s18, s65, 3
        s_add_u32 s77, s77, s18
        s_add_u32 s77, s77, s69
        s_sub_u32 s77, s77, s76
        v_and_b32 v185, 1, v1
        v_mul_i32_i24 v185, s77, v185
        v_add_u32 v185, s76, v185
        v_lshlrev_b32 v185, 7, v185
        s_mov_b32 s18, %d''' % FX)
        ald = 'buffer_load_dword v183, v185, %s, s18 offen sc1' % WS_
        vm = []
        def issue(x, tag): a(x); vm.append(tag)
        def need(*tags):
            k = max([i for i, t in enumerate(vm) if t in tags], default=-1)
            if k >= 0: a('s_waitcnt vmcnt(%d)' % (len(vm) - 1 - k)); del vm[:k + 1]
        slot_step = dict([(sl, RSTEP[b]) for b, sl in RSLOT.items()] + [(LSLOT[k], 2 + k) for k in range(8)])
        dm = self.w2_round([(slot_step[k], k) for k in [12, 13, 4, 5, 14, 15, 6, 7, 0, 1, 8, 9, 2, 3, 10, 11]], 14)
        tg = ['r1'] * 4 + ['r2'] * 12 + ['l'] * 16
        assert RB7 <= 8 and RB8 <= 16 and RB9 <= 24 and RB7 % 2 == 0 and RB10 >= 16
        for k in range(1, 9):
            need(k, *(['x'] if k == 7 else []))
            a('s_barrier')
            if k == XPOS: issue(ald, 'f')
            if k == 1:
                self.g1_ids(28, 29, 30, 5); self.g1_voff(LX, LW, 3, 28, 29, 9)
            if 2 <= k <= 6:
                for x in self.g1_dma(k + 3, LX, LW, 30): issue(x, k + 3)
            if k == 2: prep_x()
            i = k - XST
            if 0 <= i < 4: issue('s_mov_b32 m0, s17\ns_add_u32 s76, s16, %d\nbuffer_load_dwordx4 v%d, %s, s76 offen offset:%d lds' % (i * (8 * 1280 - 1024), 9 + (i & 1), X_, 1024 * i), 'x')
            if k == 3:
                prep_aux(); self.w2_voff(14, 3, 13)
                a('s_cmp_lt_u32 s36, 20\ns_cselect_b32 s76, 0, 0x40000000\nv_add_u32 v14, s76, v14\nv_add_u32 v15, s76, v15')
            if k == 4: self.g2_offsets()
            if k == WS2 and WARM & 4: self.warm(['S2'], 3)
            if k == 7:
                for x, t in zip(dm[:RB7], tg): issue(x, t)
        Lok = self.lab('OK')
        need('f')
        a('%s\ns_cbranch_vccz %s' % (xchk, Lok))
        self.poll(ald, xchk)
        a('%s:' % Lok)
        self.stamp('st')
        a("""s_lshl_b32 s76, s3, 11
        s_add_u32 m0, s76, {lu}
        s_lshl_b32 s76, s29, 2
        s_add_u32 s76, s76, s3
        s_lshl_b32 s76, s76, 11
        s_add_u32 s76, s76, {csa}""".format(lu=L_U + 1024, csa=CSA))
        issue('buffer_load_dwordx4 v182, %s, s76 offen sc1 lds' % WS_, 'a')
        issue('buffer_load_dwordx4 v182, %s, s76 offen offset:1024 sc1 lds' % WS_, 'a')
        issue("""s_lshl_b32 s77, s3, 10
        s_add_u32 m0, s77, {ls}
        s_lshl_b32 s76, s28, 12
        s_add_u32 s76, s76, s77
        s_add_u32 s76, s76, {st}
        buffer_load_dwordx4 v182, {ws}, s76 offen sc1 lds""".format(ls=L_ST, st=ST, ws=WS_), 'a')
        for x, t in zip(dm[RB7:RB8], tg[RB7:]): issue(x, t)
        need(9)
        a('s_barrier')
        for x, t in zip(dm[RB8:RB9], tg[RB8:]): issue(x, t)
        need('a', 'r1')
        a('s_barrier')
        for x, t in zip(dm[RB9:RB10], tg[RB9:]): issue(x, t)
        need('r2')
        a('s_barrier')
        for x in dm[RB10:]: a(x)
        a('s_waitcnt vmcnt(%d)\n%s:\n%s:\n%s' % (RWAIT, Lw, Lg, xld))
        self.stamp('r0')
        a('s_setprio %d' % (2 * TPRIO))
        for k in range(4): a('ds_write_b128 v%d, v[%d:%d] offset:%d' % (EX, KA + 4 * k, KA + 4 * k + 3, 1024 * k))
        a('s_mov_b64 exec, 1\nds_write_b32 v%d, v%d offset:4128\ns_mov_b64 exec, -1' % (EX, SC1))
        V = lambda r: KA + r
        a('v_add_f32 v{v0}, v{v0}, v31\nv_and_b32 v5, 1, v1\nv_cmp_eq_u32 vcc, 0, v5'.format(v0=V(0)))
        Lp = self.lab('XP'); Lq = self.lab('XQ')
        a('s_mov_b32 s79, 0\n%s:\nds_read_b32 v4, v%d offset:4128' % (Lp, EX + 3))
        for k in range(4): a('ds_read_b128 v[%d:%d], v%d offset:%d' % (FRG + 4 * k, FRG + 4 * k + 3, EX + 1, 1024 * k))
        a('s_add_u32 s79, s79, 1\ns_waitcnt lgkmcnt(4)\nv_readfirstlane_b32 s76, v4\ns_cmp_lg_u32 s76, 0\ns_cbranch_scc1 %s\ns_cmp_gt_u32 s79, %d\ns_cbranch_scc0 %s\n%s:' % (Lq, 64 * POLLMAX, Lp, Lq))
        self.stamp(4)
        for k in range(4):
            a('s_waitcnt lgkmcnt(%d)' % (3 - k))
            for r in range(4 * k, 4 * k + 4): a('v_add_f32 v%d, v%d, v%d' % (KA + r, KA + r, FRG + r))
        a("""v_cndmask_b32 v{m0}, v{v13}, v{v12}, vcc
        v_cndmask_b32 v{m1}, v{v15}, v{v14}, vcc
        s_cmp_eq_u32 s60, 0
        s_cbranch_scc0 L{t}_T1""".format(m0=FRG + 16, m1=FRG + 17, v12=V(12), v13=V(13), v14=V(14), v15=V(15), t=tag))
        def table(c):
            lv = [([V(o) for o in range(9)], 3072), ([V(9)] * 3 + [V(10)] * 3 + [V(11)] * 3, 2048),
                  ([V(12)] * 4 + [FRG + 16] + [V(13)] * 4, 1024), ([V(14)] * 4 + [FRG + 17] + [V(15)] * 4, 0)]
            for n, (t, off) in enumerate(lv):
                for d in range(4):
                    a('v_cvt_pk_bf16_f32 v%d, v%d, v%d' % (FRG + 4 * n + d, t[7 + c - 2 * d], t[6 + c - 2 * d]))
                a('ds_write_b128 v%d, v[%d:%d] offset:%d' % (EX + 2, FRG + 4 * n, FRG + 4 * n + 3, off))
        table(0)
        a('s_branch L%s_T2\nL%s_T1:' % (tag, tag))
        table(1)
        a('v_cvt_pk_bf16_f32 v8, v%d, 0\ns_mov_b64 exec, 1\nds_write_b32 v%d, v8 offset:4096\ns_mov_b64 exec, -1\nL%s_T2:' % (V(0), EX + 1, tag))
        self.stamp(5)
        Lok = self.lab('OK')
        a('s_setprio 0\ns_waitcnt vmcnt(0)\n%s\ns_cbranch_vccz %s' % (xchk, Lok))
        self.poll(xld, xchk)
        a('%s:' % Lok)
        self.stamp(6)
        a(udma)
        a('s_waitcnt vmcnt(0)')
        self.stamp('R')
        Ln = self.lab('NB'); Lp = self.lab('XP'); Lq = self.lab('XQ')
        a('s_setprio %d\ns_cmp_eq_u32 s37, 0\ns_cbranch_scc0 %s\ns_waitcnt lgkmcnt(0)\ns_barrier\ns_branch %s' % (2 * CPRIO, Ln, Lq))
        a('''{Ln}:
        s_lshr_b32 s76, s34, 2
        s_mul_i32 s76, s76, 16640
        s_add_u32 s76, s76, {w}
        v_mov_b32 v5, s76
        v_mov_b32 v4, 1
        s_mov_b64 exec, 1
        ds_add_u32 v5, v4
        s_mov_b64 exec, -1
        s_mov_b32 s79, 0
        {Lp}:
        ds_read_b32 v4, v5
        s_add_u32 s79, s79, 1
        s_waitcnt lgkmcnt(0)
        v_readfirstlane_b32 s76, v4
        s_cmp_eq_u32 s76, 4
        s_cbranch_scc1 {Lq}
        s_sleep 1
        s_cmp_gt_u32 s79, {mx}
        s_cbranch_scc0 {Lp}
        {Lq}:'''.format(Ln=Ln, Lp=Lp, Lq=Lq, w=N_TAB + 4140, mx=64 * POLLMAX))
        self.stamp(7)
        YA = 16; FA_ = [48, 112]
        def creads(tt):
            f = FA_[tt & 1]; l = []
            for i in range(8):
                o = (128 if i % 2 == 0 else 0) + 16 * (3 - tt)
                ra = ['ds_read2_b32 v[%d:%d], v%d offset0:%d offset1:%d' % (f + 4 * i + 2 * e, f + 4 * i + 2 * e + 1, CA + i // 2, o + 2 * e, o + 2 * e + 1) for e in range(2)]
                rb = 'ds_read_b128 v[%d:%d], v%d offset:%d' % (f + 32 + 4 * i, f + 35 + 4 * i, CB + tt, 1024 * i)
                l += ra + [rb]
            return l
        def cm(tt, i, j, first):
            f = FA_[tt & 1]; c = 'v[%d:%d]' % (YA + 4 * (i + j), YA + 4 * (i + j) + 3)
            return 'v_mfma_f32_16x16x32_bf16 %s, v[%d:%d], v[%d:%d], %s' % (c, f + 4 * i, f + 4 * i + 3, f + 32 + 4 * j, f + 35 + 4 * j, '0' if first else c)
        r0 = creads(0)
        for x in r0[:12]: a(x)
        for tt in range(4):
            order = []
            for k in range(8):
                order += [(k, i, j) for i in range(k + 1) for j in range(k + 1) if max(i, j) == k and i + j <= 7]
            if tt > 0 and CHAIN: order = [(0, i, tau - i) for tau in range(8) for i in range(tau + 1)]
            seen = set()
            nxt = (r0[12:] if tt == 0 else []) + (creads(tt + 1) if tt < 3 else [])
            issued = 12 if tt == 0 else 24
            extra = 0
            lastk = -1
            if tt > 0: a('s_waitcnt lgkmcnt(0)')
            if tt == 3: a('s_mov_b64 exec, 1\nds_write_b32 v%d, v%d offset:4132\ns_mov_b64 exec, -1\ns_nop 3' % (EX, EX))
            for (k, i, j) in order:
                if tt == 0 and k != lastk:
                    while issued < 3 * (k + 1): a(nxt.pop(0)); issued += 1
                    a('s_waitcnt lgkmcnt(%d)' % min(15, issued + extra - 3 * (k + 1)))
                    lastk = k
                a(cm(tt, i, j, tt == 0 and (i + j) not in seen)); seen.add(i + j)
                if nxt:
                    a(nxt.pop(0))
                    if issued < 24: issued += 1
                    else: extra += 1
            for x in nxt: a(x)
        self.stamp(8)
        def lflag(off): a('s_mov_b64 exec, 1\nds_write_b32 v%d, v%d offset:%d\ns_mov_b64 exec, -1' % (EX, EX, off))
        def lwait(off, extra):
            Lp = self.lab('XP'); Lq = self.lab('XQ')
            a('s_mov_b32 s79, 0\n%s:\nds_read_b32 v4, v%d offset:%d' % (Lp, EX + 3, off))
            for x in extra: a(x)
            a('s_add_u32 s79, s79, 1\ns_waitcnt lgkmcnt(%d)\nv_readfirstlane_b32 s76, v4\ns_cmp_lg_u32 s76, 0\ns_cbranch_scc1 %s\ns_cmp_gt_u32 s79, %d\ns_cbranch_scc0 %s\n%s:' % (len(extra), Lq, 64 * POLLMAX, Lp, Lq))
        lwait(4132, [])
        a('s_nop 3\ns_cmp_eq_u32 s60, 0\ns_cbranch_scc0 L%s_R1' % tag)
        for k in range(4): a('ds_write_b128 v%d, v[%d:%d] offset:%d' % (EX, YA + 16 + 4 * k, YA + 19 + 4 * k, 1024 * k))
        lflag(4136)
        a('s_branch L%s_R2\nL%s_R1:' % (tag, tag))
        for k in range(4): a('ds_write_b128 v%d, v[%d:%d] offset:%d' % (EX, YA + 4 * k, YA + 3 + 4 * k, 1024 * k))
        lflag(4136)
        for k in range(16): a('v_mov_b32 v%d, v%d' % (YA + k, YA + 16 + k))
        a('L%s_R2:' % tag)
        lwait(4136, ['ds_read_b128 v[%d:%d], v%d offset:%d' % (48 + 4 * k, 51 + 4 * k, EX + 1, 1024 * k) for k in range(4)])
        a('''s_lshl_b32 s76, s61, 12
        s_lshl_b32 s77, s60, 11
        s_add_u32 s76, s76, s77
        s_add_u32 s76, s76, %d
        v_lshlrev_b32 v4, 4, v1''' % AA)
        for p in range(2):
            a('s_waitcnt lgkmcnt(%d)' % (2 - 2 * p))
            for k in range(8 * p, 8 * p + 8): a('v_add_f32 v%d, v%d, v%d' % (YA + k, YA + k, 48 + k))
            o = 64 + 4 * p
            for d in range(4): a('v_cvt_pk_bf16_f32 v%d, v%d, v%d' % (o + d, YA + 8 * p + 2 * d, YA + 8 * p + 2 * d + 1))
            a('v_permlane16_swap_b32 v%d, v%d\nv_permlane16_swap_b32 v%d, v%d' % (o, o + 2, o + 1, o + 3))
            a('buffer_store_dwordx4 v[%d:%d], v4, %s, s76 offen offset:%d sc1' % (o, o + 3, WS_, 1024 * p))
        self.stamp(9)
        a('s_setprio 0')
        a('s_mul_i32 s76, s60, 640\ns_add_u32 s76, s76, s61\ns_lshl_b32 s76, s76, 7\ns_add_u32 s76, s76, %d' % FA)
        for x in self.flag_regs(8): a(x)
        a('s_waitcnt vmcnt(0)'); a(self.flag(8, 76))
        self.stamp(10)
        Le = self.lab('EP')
        a('''s_lshl_b32 s76, s34, 8
        s_add_u32 s76, s76, s2
        s_cmp_eq_u32 s76, 192
        s_cbranch_scc0 {L}
        v_lshrrev_b32 v2, 2, v1
        v_mul_u32_u24 v2, 6144, v2
        v_and_b32 v3, 3, v1
        v_lshl_add_u32 v2, v3, 8, v2
        s_mov_b32 s20, {fh}'''.format(L=Le, fh=FH))
        a('v_lshlrev_b32 v6, 7, v1\ns_mov_b32 s18, %d' % FX)
        self.poll('buffer_load_dword v3, v6, %s, s18 offen sc1' % WS_, 'v_cmp_ne_u32 vcc, s21, v3')
        ld = '\n'.join('buffer_load_dword v%d, v2, %s, s20 offen offset:%d sc1' % (3 + i, WS_, 1024 * i) for i in range(3))
        self.poll(ld, 'v_cmp_ne_u32 vcc, s21, v3\nv_cmp_ne_u32 s[76:77], s21, v4\nv_cmp_ne_u32 s[16:17], s21, v5\ns_or_b64 vcc, vcc, s[76:77]\ns_or_b64 vcc, vcc, s[16:17]')
        a('''s_mov_b32 s20, {ep}
        s_mov_b64 exec, 1
        buffer_store_dword v8, off, {ws}, s20 sc1
        s_branch L_FIN
        {L}:'''.format(L=Le, ep=EP, ws=WS_))
        a('s_cmp_lt_u32 s36, 20\ns_cbranch_scc0 L_FIN')
        a('s_mul_i32 s20, s62, 6144\ns_mul_i32 s77, s3, 1536\ns_add_u32 s20, s20, s77\ns_add_u32 s20, s20, %d' % (FH + 32 * 3072))
        self.spoll(12, 20)
        self.stamp('h1')
        a('s_barrier')
        a('''s_lshl_b32 s60, s63, 6
        s_lshl_b32 s76, s3, 4
        s_add_u32 s60, s60, s76
        s_lshr_b32 s76, s35, 2
        s_mul_i32 s76, s76, 640
        s_add_u32 s76, s76, s60
        s_lshl_b32 s76, s76, 7
        s_add_u32 s61, s76, {fa}
        v_and_b32 v4, 15, v1
        v_lshrrev_b32 v7, 4, v1
        v_lshlrev_b32 v8, 1, v7
        v_xor_b32 v8, v8, v4
        v_lshrrev_b32 v9, 1, v8
        v_lshlrev_b32 v9, 4, v9
        v_and_b32 v8, 1, v8
        v_lshl_add_u32 v9, v8, 9, v9
        v_lshl_add_u32 v9, v7, 12, v9
        v_xor_b32 v10, 64, v9
        s_lshl_b32 s60, s60, 12
        s_lshr_b32 s76, s35, 1
        s_lshl_b32 s76, s76, 10
        s_add_u32 s60, s60, s76
        s_and_b32 s76, s35, 1
        s_lshl_b32 s76, s76, 8
        s_add_u32 s60, s60, s76
        s_and_b32 s76, s62, 1
        s_lshl_b32 s76, s76, 7
        s_add_u32 s60, s60, s76
        s_add_u32 s60, s60, {aa}
        s_and_b32 s76, s3, 1
        s_mul_i32 s76, s76, 4160
        s_add_u32 m0, s76, s38'''.format(fa=FA, aa=AA))
        self.spoll(16, 61)
        self.stamp(11)
        a('s_barrier')
        for i in range(4):
            a('s_add_u32 s76, s60, %d\nbuffer_load_dwordx4 v%d, %s, s76 offen offset:%d sc1 lds' % (i * (16384 - 1024), 9 + (i & 1), WS_, 1024 * i))
        a('s_waitcnt vmcnt(0)')
        self.stamp(12)
        a('s_barrier\ns_branch L_FIN')
    def touch(self):
        self.a('v_add_u32 v254, %d, v249\nv_min_u32 v254, v254, v249\nbuffer_load_dword v255, v254, %s, 0 offen\nv_add_u32 v249, %d, v249' % (-15360 * 128, W2_, 64 * NLN * 128))
    def xhook(self):
        a = self.a
        L = self.lab('NH')
        a('s_cmp_eq_u32 s37, 0\ns_cbranch_scc1 %s' % L)
        a('s_waitcnt vmcnt(%d)' % TLN[2])
        a("""s_barrier
        s_cmp_eq_u32 s34, 0
        s_cbranch_scc0 {L}
        s_lshl_b32 s76, s62, 7
        s_add_u32 s76, s76, {fx}""".format(L=L, fx=FX))
        for x in self.flag_regs(250): a(x)
        a(self.flag(250, 76)); a('%s:' % L)
        self.stamp('xf')
    def wloads(self):
        a = self.a
        L = self.lab('WL')
        a("""s_cmp_lt_u32 s34, 4
        s_cbranch_scc0 {L}
        s_and_b32 s76, s35, 1
        s_mul_i32 s76, s76, 6
        s_sub_u32 s77, s36, 24
        s_add_u32 s28, s76, s77
        s_mul_i32 s77, s77, {rc}
        s_lshr_b32 s77, s77, 4
        s_lshl_b32 s77, s77, 6
        s_lshr_b32 s29, s35, 1
        s_mul_i32 s76, s29, 160
        s_add_u32 s76, s76, s77
        s_mul_i32 s77, s34, 40
        s_add_u32 s76, s76, s77
        s_mul_i32 s76, s76, 3072
        s_lshl_b32 s77, s28, 8
        s_cmp_lt_u32 s36, 30
        s_cselect_b32 s18, s77, 0x40000000
        s_cselect_b32 s77, s77, 0
        v_mul_u32_u24 v9, 3072, v4
        v_lshl_add_u32 v9, v5, 4, v9
        v_add_u32 v9, s18, v9""".format(L=L, rc=ROT[1] if QROT else 0))
        for i in range(10): a('s_sub_u32 s18, s76, %d\ns_min_u32 s76, s76, s18\nbuffer_load_dwordx4 v[%d:%d], v9, %s, s76 offen\ns_add_u32 s76, s76, 12288' % (640 * 3072, WI + 4 * i, WI + 4 * i + 3, W1_))
        a("""s_and_b32 s76, s34, 1
        s_lshl_b32 s76, s76, 7
        s_add_u32 s76, s76, s77
        v_lshl_add_u32 v9, v1, 1, s76
        v_mov_b32 v{b}, 0
        global_load_short_d16_hi v{b}, v9, s[22:23]
        {L}:""".format(b=WI + 40, L=L))
    def lnblock(self):
        a = self.a
        XF = 100; T0 = 140
        a('L_LN:')
        self.stamp('ln')
        a('''        v_lshrrev_b32 v4, 4, v1
        v_and_b32 v5, 15, v1
        s_and_b32 s76, s34, 1
        s_lshl_b32 s76, s76, 3
        s_and_b32 s77, s34, 4
        s_add_u32 s76, s76, s77
        v_add_u32 v6, s76, v4
        v_mul_u32_u24 v6, {ts}, v6
        v_lshl_add_u32 v6, v5, 3, v6
        s_and_b32 s76, s34, 2
        s_lshl_b32 s76, s76, 1
        v_add_u32 v6, s76, v6
        v_and_b32 v7, 1, v1
        v_bfe_u32 v8, v1, 2, 2
        v_lshl_add_u32 v7, v7, 2, v8
        v_mul_u32_u24 v7, {ts}, v7
        v_lshl_add_u32 v7, v4, 4, v7
        v_bfe_u32 v8, v1, 1, 1
        v_lshl_add_u32 v7, v8, 3, v7
        s_mul_i32 s76, s34, 320
        v_add_u32 v7, s76, v7
        v_lshrrev_b32 v8, 3, v1
        v_lshlrev_b32 v8, 15, v8
        v_and_b32 v10, 7, v1
        v_lshl_add_u32 v8, v10, 4, v8
        s_and_b32 s65, s34, 1
        s_mul_i32 s65, s65, 160
        s_lshr_b32 s76, s34, 1
        s_add_u32 s65, s65, s76
        s_lshl_b32 s65, s65, 13
        s_lshl_b32 s76, s62, 7
        s_add_u32 s65, s65, s76
        v_mov_b32 v10, 0
        v_mov_b32 v11, 0
        v_mov_b32 v12, 0
        v_mov_b32 v13, 0'''.format(ts=TSTR, cq=20 * 16384, t8=T0 + 8, t9=T0 + 9))
        if WEARLY:
            self.wloads()
            L = self.lab('WW'); a('s_waitcnt vmcnt(11)\ns_cmp_lt_u32 s34, 4\ns_cbranch_scc1 %s\ns_waitcnt vmcnt(0)\n%s:' % (L, L))
        for i in range(5):
            if not WEARLY: a('s_waitcnt vmcnt(%d)' % (4 - i))
            for d in range(4):
                s = XI + 4 * i + d; f = XF + 8 * i + 2 * d
                a('''v_lshlrev_b32 v{f}, 16, v{s}
                v_and_b32 v{f1}, 0xffff0000, v{s}
                v_pk_add_f32 v[10:11], v[10:11], v[{f}:{f1}]
                v_pk_fma_f32 v[12:13], v[{f}:{f1}], v[{f}:{f1}], v[12:13]'''.format(f=f, f1=f + 1, s=s))
        self.stamp(1)
        if not WEARLY: self.wloads()
        for k in range(TLN[0]): self.touch()
        a('v_add_f32 v10, v10, v11\nv_add_f32 v12, v12, v13')
        for sh in (8, 4, 2, 1):
            a('v_add_f32 v10, v10, v10 row_ror:%d\nv_add_f32 v12, v12, v12 row_ror:%d' % (sh, sh))
        rb = lambda d, s: 'v_cvt_pk_bf16_f32 v%d, v%d, v%d\nv_lshlrev_b32 v%d, 16, v%d' % (d, s, s, d, d)
        EPS = f32(1e-5)
        a('v_mul_f32 v10, {c}, v10\nv_mul_f32 v12, {c}, v12\nv_fma_f32 v12, -v10, v10, v12\nv_max_f32 v12, 0, v12'.format(c=f32(1.0 / 640)))
        a(rb(11, 10))
        a(rb(13, 12)); a('v_add_f32 v13, %s, v13' % EPS); a(rb(13, 13)); a('v_sqrt_f32 v13, v13'); a(rb(13, 13))
        a('v_rcp_f32 v14, v13\nv_mul_f32 v15, v11, v14\nv_sub_f32 v15, 0, v15')
        for i in range(5):
            for d in range(4):
                s = XI + 4 * i + d; f = XF + 8 * i + 2 * d
                a('v_pk_fma_f32 v[{f}:{f1}], v[{f}:{f1}], v[14:15], v[14:15] op_sel:[0,0,1] op_sel_hi:[1,0,1]\nv_cvt_pk_bf16_f32 v{s}, v{f}, v{f1}'.format(f=f, f1=f + 1, s=s))
            for d in range(4): a('ds_write_b32 v6, v%d offset:%d' % (XI + 4 * i + d, 128 * i + 640 * d))
        a('v_sub_f32 v10, v10, v11\nv_mul_f32 v10, v10, v14'); a(rb(10, 10))
        a('v_mul_f32 v12, v12, v14\nv_mul_f32 v12, v12, v14'); a(rb(12, 12)); a('v_add_f32 v12, %s, v12' % EPS); a(rb(12, 12)); a('v_sqrt_f32 v12, v12'); a(rb(12, 12))
        a('v_fma_f32 v10, -v10, v13, -v11\nv_mul_f32 v12, v13, v12')
        C1 = -2.0 * LOG2E * math.sqrt(2.0 / math.pi)
        a('''v_rcp_f32 v14, v12
        v_cvt_pk_bf16_f32 v{t0}, v10, v10
        v_and_b32 v11, 0xffff0000, v{t0}
        v_sub_f32 v11, v10, v11
        v_cvt_pk_bf16_f32 v{t1}, v11, v12
        v_and_b32 v11, 0xffff0000, v{t1}
        v_sub_f32 v11, v12, v11
        v_cvt_pk_bf16_f32 v{t2}, v11, 0
        v_mul_f32 v13, {c1}, v14
        v_mul_f32 v14, v14, v14
        v_mul_f32 v14, {c2}, v14
        v_mul_f32 v14, v14, v13
        v_cmp_eq_u32 vcc, 1, v5
        s_lshl_b32 s67, s63, 5
        s_add_u32 s67, s67, {st}
        v_mov_b32 v{t3}, 0
        v_cndmask_b32 v{t0}, v{t0}, v14, vcc
        v_cndmask_b32 v{t1}, v{t1}, v13, vcc
        v_cndmask_b32 v{t2}, v{t2}, v12, vcc
        v_lshlrev_b32 v14, 5, v4
        v_lshl_add_u32 v14, v5, 4, v14
        v_cmp_gt_u32 vcc, 2, v5
        s_and_saveexec_b64 s[68:69], vcc
        buffer_store_dwordx4 v[{t0}:{t3}], v14, {ws}, s67 offen sc1
        s_mov_b64 exec, s[68:69]'''.format(st=ST, ws=WS_, t0=T0, t1=T0 + 1, t2=T0 + 2, t3=T0 + 3, c1=f32(C1), c2=f32(0.044715)))
        for k in range(TLN[1]): self.touch()
        self.stamp('l4')
        a('s_waitcnt lgkmcnt(0)\ns_barrier')
        for i in range(5):
            for e in range(2):
                a('ds_read_b64_tr_b16 v[%d:%d], v7 offset:%d' % (XI + 4 * i + 2 * e, XI + 4 * i + 2 * e + 1, 64 * i + 8 * TSTR * e))
        for i in range(5):
            a('s_waitcnt lgkmcnt(%d)\ns_add_u32 s76, s65, %d\nbuffer_store_dwordx4 v[%d:%d], v8, %s, s76 offen sc1' % (8 - 2 * i, XT + i * 32 * 8192, XI + 4 * i, XI + 4 * i + 3, WS_))
        self.stamp('xs')
        assert max(LNP) <= 0
        CA_ = 100
        a('s_cmp_lt_u32 s34, 4\ns_cbranch_scc0 L_CSB\ns_waitcnt vmcnt(%d)' % (6 + TLN[0] + TLN[1]))
        for i in range(10):
            d = CA_ if i == 0 else CA_ + 8
            for k in range(4): a('v_lshlrev_b32 v%d, 16, v%d\nv_and_b32 v%d, 0xffff0000, v%d' % (d + 2 * k, WI + 4 * i + k, d + 2 * k + 1, WI + 4 * i + k))
            if i:
                for k in range(4): a('v_pk_add_f32 v[%d:%d], v[%d:%d], v[%d:%d]' % (CA_ + 2 * k, CA_ + 2 * k + 1, CA_ + 2 * k, CA_ + 2 * k + 1, d + 2 * k, d + 2 * k + 1))
        a('s_lshl_b32 s76, s34, 9\ns_add_u32 s76, s76, %d\nv_lshlrev_b32 v6, 3, v4\nv_lshl_add_u32 v6, v5, 5, v6\nv_add_u32 v6, s76, v6' % N_CS)
        for k in range(4): a('v_permlane32_swap_b32 v%d, v%d' % (CA_ + k, CA_ + 4 + k))
        for k in range(2): a('v_pk_add_f32 v[%d:%d], v[%d:%d], v[%d:%d]' % (CA_ + 2 * k, CA_ + 2 * k + 1, CA_ + 2 * k, CA_ + 2 * k + 1, CA_ + 4 + 2 * k, CA_ + 5 + 2 * k))
        for k in range(2): a('v_permlane16_swap_b32 v%d, v%d' % (CA_ + k, CA_ + 2 + k))
        a('v_pk_add_f32 v[%d:%d], v[%d:%d], v[%d:%d]' % (CA_, CA_ + 1, CA_, CA_ + 1, CA_ + 2, CA_ + 3))
        a('ds_write_b64 v6, v[%d:%d]\ns_waitcnt lgkmcnt(0)\nL_CSB:\ns_barrier' % (CA_, CA_ + 1))
        a('s_cmp_lt_u32 s34, 2\ns_cbranch_scc0 L_LNE\ns_cmp_lt_u32 s36, 30\ns_cbranch_scc0 L_LNE')
        a('s_lshl_b32 s76, s34, 8\ns_add_u32 s76, s76, %d\nv_lshl_add_u32 v6, v1, 2, s76' % N_CS)
        for k in range(2): a('ds_read2st64_b32 v[%d:%d], v6 offset0:%d offset1:%d' % (CA_ + 2 * k, CA_ + 2 * k + 1, 4 * k, 4 * k + 2))
        a('''s_cmp_eq_u32 s29, 0
        s_cselect_b32 s76, -1, 0
        v_and_b32 v{b}, s76, v{b}
        s_lshl_b32 s76, s28, 2
        s_add_u32 s76, s76, s29
        s_lshl_b32 s76, s76, 1
        s_add_u32 s76, s76, s34
        s_lshl_b32 s76, s76, 10
        s_add_u32 s76, s76, {csa}
        v_lshlrev_b32 v6, 4, v1
        v_lshrrev_b32 v12, 16, v{b}
        v_mov_b32 v13, 0
        s_waitcnt lgkmcnt(0)
        v_pk_add_f32 v[{c0}:{c1}], v[{c0}:{c1}], v[{c2}:{c3}]
        v_add_f32 v{c0}, v{c0}, v{c1}
        v_cvt_pk_bf16_f32 v11, v{c0}, v{b}
        v_lshlrev_b32 v10, 16, v11
        v_sub_f32 v10, v{c0}, v10
        v_cvt_pk_bf16_f32 v10, v{c0}, v10
        buffer_store_dwordx4 v[10:13], v6, {ws}, s76 offen sc1
        L_LNE:'''.format(b=WI + 40, csa=CSA, ws=WS_, **{'c%d' % i: CA_ + i for i in range(8)}))
        for k in range(TLN[2]): self.touch()
        if -1 in LNP: a('s_cmp_eq_u32 s19, -1\ns_cbranch_scc1 L_LNRm')
        if 0 in LNP: a('s_nop 0\ns_branch L_LNR0')

    def build(self):
        a = self.a
        self.prologue()
        a('s_cmp_lt_u32 s36, 24\ns_cselect_b32 s76, 4, 0\ns_cmp_lt_u32 s34, s76\ns_cbranch_scc1 L_G')
        self.sel = SEL['S']; self.sn_entry(); self.scode(); self.lnblock()
        self.sel = SEL['G']
        if PAGE == 2: a('.page G')
        elif PAGE: a('.region G')
        a('L_G:'); self.gwave()
        a('L_FIN:')
        self.dump_stamps()
        if self.AMP:
            if self.AMP[1] == 'end': a('s_memrealtime s[92:93]')
            who = self.AMP[2]
            a('s_cmp_eq_u32 s34, %d\ns_cbranch_scc0 L_END' % {'G': 0, 'S': 4, 'N': 0, 'M': 4}[who[0]])
            if len(who) > 1: a('s_cmp_eq_u32 s2, %s\ns_cbranch_scc0 L_END' % who[1:])
            else: a('s_cmp_lt_u32 s36, 20\ns_cbranch_scc0 L_END' if who in 'GS' else 's_cmp_ge_u32 s36, 24\ns_cbranch_scc0 L_END')
            a('''s_waitcnt lgkmcnt(0)
            s_sub_u32 s92, s92, s94
            s_lshl_b32 s92, s92, 3
            s_add_u32 s92, s92, 3000
            s_min_u32 s92, s92, 30000
            L_AMP:
            s_memrealtime s[98:99]
            s_waitcnt lgkmcnt(0)
            s_sub_u32 s77, s98, s96
            s_cmp_lt_u32 s77, s92
            s_cbranch_scc1 L_AMP''')
        for o_ in self.opts:
            if o_.startswith('pad='):
                a('''s_cmp_eq_u32 s34, 0
                s_cbranch_scc0 L_END
                s_cmp_lt_u32 s36, 20
                s_cbranch_scc0 L_END''')
                for q_ in self.opts:
                    if q_.startswith('padwg='): a('s_cmp_eq_u32 s2, %d\ns_cbranch_scc0 L_END' % int(q_[6:]))
                a('''L_PAD:
                s_memrealtime s[98:99]
                s_waitcnt lgkmcnt(0)
                s_sub_u32 s77, s98, s96
                s_cmp_lt_u32 s77, %d
                s_cbranch_scc1 L_PAD''' % int(o_[4:]))
        if 'span' in self.opts:
            a('''s_cmp_eq_u32 s34, 0
            s_cbranch_scc0 L_END
            s_waitcnt vmcnt(0)
            s_memrealtime s[98:99]
            s_memtime s[76:77]
            s_waitcnt lgkmcnt(0)
            s_not_b32 s97, s96
            s_sub_u32 s76, s76, s100
            s_sub_u32 s77, s98, s96
            s_mov_b64 exec, 1
            v_mov_b32 v0, 0
            v_mov_b32 v1, s97
            v_mov_b32 v2, s98
            v_mov_b32 v3, s96
            v_mov_b32 v4, s76
            v_mov_b32 v5, s77
            global_atomic_umax v0, v1, s[30:31]
            global_atomic_umax v0, v2, s[30:31] offset:4
            global_atomic_umax v0, v3, s[30:31] offset:8
            global_atomic_umax v0, v4, s[30:31] offset:12
            global_atomic_umax v0, v5, s[30:31] offset:16''')
        a('L_END:')
        body = a.finish(layout=dict(name=NAME, align=ALIGN, pads=self.wret, noprun=NOPRUN))
        used = set(re.findall(r's_c?branch\w* (PAD\w+)', body)); have = set(re.findall(r'^(PAD\w+):', body, re.M))
        for l in used - have: body = body.replace(' ' + l + '\n', ' ' + self.wret[l[3:]] + '\n')
        ref = open('parallel_sum__ssm_conv_s4d__mixer_channel_mlp__prompt.s.ref').read()
        head = ''.join(l + '\n' for l in ref.split('\n') if l.startswith(';') and '@launch' not in l)
        return head + '''; @launch grid=(256,1,1) block=(512,1,1) lds=163840
.amdgcn_target "amdgcn-amd-amdhsa--gfx950"
.text
.globl {n}
.p2align 8
.type {n},@function
{n}:
{body}    s_endpgm
.section .rodata,"a"
.p2align 6
.amdhsa_kernel {n}
  .amdhsa_next_free_vgpr 256
  .amdhsa_next_free_sgpr 102
  .amdhsa_accum_offset 256
  .amdhsa_group_segment_fixed_size 0
  .amdhsa_kernarg_size 120
  .amdhsa_user_sgpr_count 2
  .amdhsa_user_sgpr_kernarg_segment_ptr 1
  .amdhsa_system_sgpr_workgroup_id_x 1
  .amdhsa_float_denorm_mode_32 3
.end_amdhsa_kernel
'''.format(n=NAME, body=body)
if __name__ == '__main__':
    out = sys.argv[1]; opts = sys.argv[2:]
    g = G('stamps' in opts, opts); s = g.build(); open(out, 'w').write(s)
    print('wrote', out, len(s), 'bytes; nops inserted', g.a.nops, 'pads', g.a.npad, 'align fixes', g.a.fixes)
```

```python
import sys, math, struct, re
sys.path.insert(0, 'work')
from asmdsl import Asm, interleave
NAME = 'parallel_sum__ssm_conv_s4d__mixer_channel_mlp__prompt_kernel'
def f32(x): return '0x%08x' % struct.unpack('<I', struct.pack('<f', x))[0]
LOG2E = math.log2(math.e)
XT, HH, AA, FL, DBG = 0x000000, 0x400000, 0xA00000, 0xD00000, 0xE00000
ST, CSA = FL + 0x70000, FL + 0x80000
FY = FL + 0xA000
FX, EP, FH, FA = FL + 0x8000, FL + 0xC000, FL + 0x10000, FL + 0x40000
WS_BYTES = 0x1000000
XR = 131072
L_TAB, L_U, L_ST = XR, XR + 2 * 8320, XR + 2 * 8320 + 2 * 4608
N_CS = 43008
VN = 27
L_AT = XR
L_RED = 0
N_T, N_TAB, N_U = 0, 49152, 49152 + 4 * 8320
TSTR = 2592
sWV, sXCD, sJ = 34, 35, 36
X_, W1_, W2_, WS_, OUT_ = 's[40:43]', 's[44:47]', 's[48:51]', 's[52:55]', 's[56:59]'
POLLMAX = 0x8000
RSLOT = {5: 12, 7: 13, 3: 4, 4: 5, 6: 14, 1: 15, 2: 6, 0: 7}
LSLOT = [0, 1, 2, 3, 8, 9, 10, 11, 12, 13, 14, 15, 4, 5, 6, 7]
BARPOS = [.45, .7, .9, 1.0, 1.0, 1.0, 1.0]
PPOS, NPH, B1P, RBU, RBE = 11, 16, 31, 6, 1
RB7, RB8, RB9, RB10, B0P, N2 = 4, 10, 18, 22, 0, 5
FLAG0 = 36
T3 = 0
ALIGN, NOPRUN, PAGE, WARM, WS0 = 1, 7, 1, 3, 4
WG = [['G0', 'G1', 'G2', 'G3']]
WS2 = 1
BUP = 33
QROT, WEARLY = 1, 1
ROT = [32, 27, 40, 0]
SPRIO = 0
FLAG1 = 14
THR = None
NOBP = 2
KPRIO = 1
LORD = [2, 3, 4, 5, 0, 1, 6, 7]
XHOOK = 0.06
TOUCH = [0.08]
TLN = [0, 0, 0]
GT = 0
SLP = 4
XST = 2
XI, WI = 228, 148
XPOS = 6
NL0, NL1 = 0, 8
THR0 = None
FRONT = 0
PK = 1
LNP = [-1, 0]
NLATE = 0
NFIN = 2
CHAIN = 1
CPRIO = 1
PRE2 = 8
GPOS, PLOW, RF0, HPRE = 2, 0, 2, 0
W1T = 0
SB = [1]
RWAIT = 4
TPRIO = 1
SWAP = 1
XEARLY = 1
WFIRST = 1
SA = 84
OUTAUX = 'nt'
import os
SELS = {
 'main': {'G': [0, 'b0', 'b9', 5, 6, 7, 10, 11, 12], 'S': [0, 2, 3, 'st', 5, 6, 'R', 8, 10]},
 'start': {'G': [0, 'd0', 'd1', 'd2', 'w0', 'b0', 'b1', 'b2', 'b3'], 'S': [0, 'pl', 'a0', 2, 'ln', 'xs', 3, 4, 5]},
 'g1': {'G': [0, 'b0', 'b1', 'b2', 'b3', 'b4', 'b6', 'b8', 'b9'], 'S': [0, 2, 'xf', 3, 'st', 4, 5, 6, 'R']},
 'mid': {'G': [0, 'b9', 5, 't1', 't2', 't3', 'f0', 6, 7], 'S': [0, 3, 'r0', 4, 5, 6, 'r1', 'R', 7]},
 'ln': {'G': [0, 'b5', 'b6', 'b7', 'a8', 'b8', 'a9', 'w9', 'b9'], 'S': [0, 'ln', 1, 'l4', 'yf', 'xs', 'xf', 3, 'st']},
 'g2': {'G': [0, 's0', 's2', 's5', 's8', 's11', 's14', 's17', 's21'], 'S': [0, 7, 8, 9, 10, 11, 12]},
 'bad': {'G': [0, 'b9', 7, 'f1', 10, 8, 11], 'S': [0, 'r0', 'xf', 3, 5, 6]},
 'clk': {'G': [0, 'b0', 'b5', 'b9', 't1'], 'S': [0]},
 'clk2': {'G': [0, 't1', 7, 11, 's11'], 'S': [0]},
 'g2b': {'G': [0, 's7', 's8', 's9', 's10', 's11', 's12', 's13', 's14'], 'S': [0, 10, 'h1', 11]},
 'g2c': {'G': [0, 's0', 's1', 's2', 's3', 's4', 's5', 's6', 's7'], 'S': [0, 8, 9, 10, 'h1']},
 'g2d': {'G': [0, 's19', 's20', 's21', 12, 13, 14], 'S': [0, 11, 12]},
 'none': {'G': [0, 'b0', 'b2', 'b9', 7, 11, 12], 'S': [0, 2, 'xs', 3, 7, 9]},
 'end': {'G': [0, 7, 'f1', 10, 8, 9, 11, 12, 13], 'S': [0, 7, 8, 9, 10, 'h1', 11, 12]},
}
CLK = 's_memtime' if os.environ.get('CYC') else 's_memrealtime'
SEL = SELS[os.environ.get('SEL', 'main')]
SEL['N'] = SEL['S']
for _k in ('BARPOS', 'XHOOK', 'XST', 'XPOS', 'NL0', 'NL1', 'FLAG0', 'T3', 'ALIGN', 'NOPRUN', 'PAGE', 'WARM', 'WS0', 'WG', 'WS2', 'BUP', 'FLAG1', 'THR', 'SLP', 'TOUCH', 'TLN', 'GT', 'SA', 'OUTAUX', 'RB8', 'RB9', 'PPOS', 'NPH', 'B1P', 'RBU', 'ROT', 'QROT', 'WEARLY', 'NOBP', 'THR0', 'FRONT', 'PK', 'LNP', 'PRE2', 'GPOS', 'PLOW', 'RF0', 'HPRE', 'W1T', 'SB', 'RWAIT', 'RB7', 'RB10', 'B0P', 'N2', 'NLATE', 'NFIN', 'CHAIN', 'CPRIO', 'TPRIO', 'SWAP', 'XEARLY', 'WFIRST', 'KPRIO', 'SPRIO', 'RBE'):
    if os.environ.get(_k): globals()[_k] = eval(os.environ[_k])
NLN = min(64, -(-(15360 - 96 * GT) // (64 * max(1, len(TOUCH) + sum(TLN)))))
RSTEP = list(range(RF0)) + list(range(16 + RF0, 24))
class G:
    def __init__(self, stamps=False, opts=()):
        self.a = Asm(); self.stamps = stamps; self.nlab = 0; self.opts = set(opts); self.sel = None; self.wret = {}
        self.AMP = ([o[4:].split(',') for o in opts if o.startswith('amp=')] or [None])[0]
    def lab(self, p='L'):
        self.nlab += 1; return '%s%d' % (p, self.nlab)
    def stamp(self, k):
        if self.AMP and str(k) == self.AMP[0]: self.a('s_memrealtime s[94:95]')
        if self.AMP and str(k) == self.AMP[1]: self.a('s_memrealtime s[92:93]')
        if 'padat=%s' % k in self.opts: self.a('s_memrealtime s[96:97]')
        if self.stamps and k in self.sel:
            i = self.sel.index(k); self.a('%s s[%d:%d]' % (CLK, 80 + 2 * i, 81 + 2 * i))
            if os.environ.get('BOTH'): self.a('s_memtime s[%d:%d]' % (88 + 2 * i, 89 + 2 * i))
    def dump_stamps(self):
        if not self.stamps: return
        a = self.a
        a('s_lshl_b32 s60, s2, 3\ns_add_u32 s60, s60, s%d\ns_lshl_b32 s60, s60, 6\ns_add_u32 s60, s60, %d' % (sWV, DBG))
        a('s_mov_b64 exec, -1\nv_mov_b32 v0, 0')
        a('s_memtime s[76:77]\n' + CLK + ' s[98:99]\ns_waitcnt lgkmcnt(0)\ns_sub_u32 s100, s76, s100')
        for k in range(11):
            a('v_mov_b32 v1, s%d\nbuffer_store_dword v1, v0, %s, s60 offen offset:%d' % (80 + 2 * k, WS_, 4 * k))
    def poll(self, load, check):
        L = self.lab('P'); E = self.lab('PE')
        self.a('s_mov_b32 s79, 0\n%s:\n%s\ns_add_u32 s79, s79, 1\ns_waitcnt vmcnt(0)\n%s\ns_cbranch_vccz %s\ns_sleep %d\ns_cmp_gt_u32 s79, %d\ns_cbranch_scc0 %s\n%s:' % (L, load, check, E, SLP, POLLMAX, L, E))
    def spoll(self, n, off):
        a = self.a
        D = list(range(64, 76)) + [16, 17, 18, 19]
        L = self.lab('SP'); E = self.lab('SE')
        a('s_add_u32 s22, s32, s%d\ns_addc_u32 s23, s33, 0\ns_mov_b32 s79, 0\n%s:' % (off, L))
        for i in range(n): a('s_load_dword s%d, s[22:23], %d glc' % (D[i], 128 * i))
        a('s_add_u32 s79, s79, 1\ns_waitcnt lgkmcnt(0)\ns_xor_b32 s76, s%d, s21' % D[0])
        for i in range(1, n): a('s_xor_b32 s77, s%d, s21\ns_or_b32 s76, s76, s77' % D[i])
        a('s_cbranch_scc0 %s\ns_sleep %d\ns_cmp_gt_u32 s79, %d\ns_cbranch_scc0 %s\n%s:' % (E, SLP, POLLMAX, L, E))
    def warm(self, pads, sel):
        a = self.a
        L = self.lab('WR')
        for p in pads:
            if p: assert p not in self.wret; self.wret[p] = L
        a('s_mov_b64 exec, 0')
        for i, p in enumerate(pads):
            if p: a('s_cmp_eq_u32 s%d, %d\ns_cbranch_scc1 PAD%s' % (sel, i, p))
        a('%s:\ns_mov_b64 exec, -1' % L)
    def nonce0(self): self.a('s_mov_b32 s76, %d\ns_load_dword s21, s[32:33], s76' % EP)
    def nonce2(self): return 's_mul_i32 s21, s21, 0x9e3779b1\ns_add_u32 s21, s21, 0x7f4a7c15'
    def flag(self, v, soff):
        return 's_mov_b64 exec, 0xff\nbuffer_store_dwordx4 v[%d:%d], v%d, %s, s%d offen sc1\ns_mov_b64 exec, -1' % (v, v + 3, v + 4, WS_, soff)
    def flag_regs(self, v):
        return ['v_mov_b32 v%d, s21' % (v + i) for i in range(4)] + ['v_lshlrev_b32 v%d, 4, v1' % (v + 4)]
    def prologue(self):
        a = self.a
        a('''s_cmp_ge_u32 s2, 256
        s_cbranch_scc1 L_END
        s_load_dwordx16 s[4:19], s[0:1], 0
        s_load_dwordx8 s[20:27], s[0:1], 64
        s_load_dwordx4 s[28:31], s[0:1], 96
        s_load_dwordx2 s[32:33], s[0:1], 112''')
        if self.stamps:
            a('s_memtime s[100:101]\n' + CLK + ' s[80:81]')
            for k in range(1, 10): a('s_mov_b32 s%d, 0' % (80 + 2 * k))
        if self.AMP: a('s_memrealtime s[96:97]\ns_memrealtime s[94:95]\ns_memrealtime s[92:93]')
        if 'span' in self.opts or any(o.startswith('pad=') for o in self.opts): a('s_memrealtime s[96:97]\ns_memtime s[100:101]')
        a('''v_lshrrev_b32 v2, 6, v0
        v_and_b32 v1, 63, v0
        s_and_b32 s35, s2, 7
        v_readfirstlane_b32 s34, v2
        s_lshr_b32 s36, s2, 3
        s_xor_b32 s34, s34, %d''' % (4 if SWAP else 0))
    def srds(self, wait=True):
        self.a('''s_mov_b32 s42, %d
        s_mov_b32 s43, 0x20000
        s_mov_b32 s46, %d
        s_mov_b32 s47, 0x20000
        s_mov_b32 s50, %d
        s_mov_b32 s51, 0x20000
        s_mov_b32 s54, %d
        s_mov_b32 s55, 0x20000
        s_mov_b32 s58, %d
        s_mov_b32 s59, 0x20000''' % (2048 * 1280, 640 * 3072, 1536 * 1280, WS_BYTES, 2048 * 1280))
        if wait: self.a('s_waitcnt lgkmcnt(0)')
        self.a('''s_mov_b32 s40, s4
        s_mov_b32 s41, s5
        s_mov_b32 s44, s20
        s_mov_b32 s45, s21
        s_mov_b32 s48, s24
        s_mov_b32 s49, s25
        s_mov_b32 s52, s32
        s_mov_b32 s53, s33
        s_mov_b32 s56, s28
        s_mov_b32 s57, s29''')
        self.stamp('srd')
    def g1_ids(self, rb, cb, rot, adv=0):
        self.a("""s_mul_i32 s68, s36, 43
        s_lshr_b32 s68, s68, 8
        s_mul_i32 s69, s68, 6
        s_sub_u32 s69, s36, s69
        s_lshr_b32 s64, s35, 1
        s_and_b32 s65, s35, 1
        s_lshl_b32 s{rb}, s64, 2
        s_add_u32 s{rb}, s{rb}, s68
        s_mul_i32 s{cb}, s65, 6
        s_add_u32 s{cb}, s{cb}, s69
        s_mov_b32 s{rot}, {adv}""".format(rb=rb, cb=cb, rot=rot, adv=adv))
        if QROT: self.a('s_add_u32 s64, s64, 1')
        for r, m in zip((68, 69, 64, 65), ROT):
            if m: self.a('s_mul_i32 s66, s%d, %d\ns_lshr_b32 s66, s66, 4\ns_add_u32 s%d, s%d, s66' % (r, m, rot, rot))
        self.a('s_mul_i32 s66, s{r}, 26\ns_lshr_b32 s66, s66, 8\ns_mul_i32 s66, s66, 10\ns_sub_u32 s{r}, s{r}, s66'.format(r=rot))
    def tile_ids(self):
        self.a("""s_cmp_ge_u32 s36, 10
        s_cselect_b32 s62, 1, 0
        s_mul_i32 s63, s62, 10
        s_sub_u32 s63, s36, s63
        s_lshl_b32 s66, s35, 1
        s_add_u32 s62, s62, s66""")
    def g1_voff(self, VX, VW, wv, rb, cb, t):
        a = self.a
        a("""s_lshl_b32 s76, s{rb}, 7
        s_lshl_b32 s77, s{wv}, 5
        s_add_u32 s76, s76, s77
        s_mul_i32 s76, s76, 1280
        v_lshrrev_b32 v{t0}, 3, v1
        v_mul_u32_u24 v{t0}, 1280, v{t0}
        v_lshrrev_b32 v{t1}, 4, v1
        v_xor_b32 v{t2}, v{t1}, v1
        v_and_b32 v{t2}, 7, v{t2}
        v_lshl_add_u32 v{t0}, v{t2}, 4, v{t0}
        v_add_u32 v{x0}, s76, v{t0}
        v_xor_b32 v{t0}, 64, v{x0}
        v_add_u32 v{x1}, {d1}, v{t0}
        v_add_u32 v{x2}, {d2}, v{x0}
        v_add_u32 v{x3}, {d3}, v{t0}
        s_mul_i32 s76, s{wv}, {w16}
        s_lshl_b32 s77, s{cb}, 8
        s_add_u32 s76, s76, s77
        v_mul_u32_u24 v{t0}, 3072, v{t1}
        v_lshlrev_b32 v{t2}, 2, v{t1}
        v_xor_b32 v{t2}, v{t2}, v1
        v_and_b32 v{t2}, 15, v{t2}
        v_lshl_add_u32 v{t0}, v{t2}, 4, v{t0}
        v_add_u32 v{w0}, s76, v{t0}
        v_xor_b32 v{t0}, 16, v{w0}
        v_add_u32 v{w1}, {e1}, v{w0}
        v_add_u32 v{w2}, {e2}, v{t0}
        v_add_u32 v{w3}, {e3}, v{t0}
        s_lshl_b32 s67, s{wv}, 12""".format(rb=rb, cb=cb, wv=wv, t0=t, t1=t + 1, t2=t + 2, x0=VX, x1=VX + 1, x2=VX + 2, x3=VX + 3, w0=VW, w1=VW + 1, w2=VW + 2, w3=VW + 3,
            d1=8 * 1280 - 1024, d2=16 * 1280 - 2048, d3=24 * 1280 - 3072, w16=16 * 3072, e1=4 * 3072 - 1024, e2=8 * 3072 - 2048, e3=12 * 3072 - 3072))
    def g1_dma(self, stage, VX, VW, rot, wfirst=False):
        idx = stage % 4
        lx, lw = [], []
        for i in range(4):
            pre = 's_add_u32 m0, s67, %d\ns_lshl_b32 s76, s%d, 7\n' % (idx * 16384, rot) if i == 0 else ''
            lx.append(pre + 'buffer_load_dwordx4 v%d, %s, s76 offen offset:%d lds' % (VX + i, X_, 1024 * i))
            pre = 's_add_u32 m0, s67, %d\ns_mul_i32 s77, s%d, %d\n' % (65536 + idx * 16384, rot, 64 * 3072) if i == 0 else ''
            lw.append(pre + 'buffer_load_dwordx4 v%d, %s, s77 offen offset:%d lds' % (VW + i, W1_, 1024 * i))
        l = lw + lx if wfirst else lx + lw
        l[7] += '\ns_add_u32 s{r}, s{r}, 1\ns_cmp_eq_u32 s{r}, 10\ns_cselect_b32 s{r}, 0, s{r}'.format(r=rot)
        return l
    def g2_offsets(self):
        a = self.a
        a('s_mul_i32 s4, s63, 77\ns_lshr_b32 s4, s4, 6\ns_lshl_b32 s4, s4, 10')
        for i in range(1, 12):
            a('s_add_u32 s%d, s%d, 1024\ns_cmp_eq_u32 s%d, 12288\ns_cselect_b32 s%d, 0, s%d' % (4 + i, 3 + i, 4 + i, 4 + i, 4 + i))
    def w2_voff(self, v0, wv, t):
        self.a("""s_lshr_b32 s76, s{wv}, 1
        s_mul_i32 s76, s76, {khs}
        s_and_b32 s77, s{wv}, 1
        s_mul_i32 s77, s77, {r16}
        s_add_u32 s76, s76, s77
        s_lshl_b32 s77, s63, 7
        s_add_u32 s76, s76, s77
        v_lshrrev_b32 v{t}, 3, v1
        v_mul_u32_u24 v{v0}, 1280, v{t}
        v_lshrrev_b32 v{t}, 4, v1
        v_lshlrev_b32 v{t}, 1, v{t}
        v_xor_b32 v{t}, v{t}, v1
        v_and_b32 v{t}, 7, v{t}
        v_lshl_add_u32 v{v0}, v{t}, 4, v{v0}
        v_add_u32 v{v0}, s76, v{v0}
        v_add_u32 v{v1}, {d}, v{v0}
        s_lshl_b32 s78, s{wv}, 11""".format(wv=wv, khs=24 * 32 * 1280, r16=16 * 1280, t=t, v0=v0, v1=v0 + 1, d=8 * 1280 - 1024))
    def w2_dma(self, step, slot, v0):
        part, i = step // 12, step % 12
        return ['s_add_u32 m0, s78, %d\ns_mul_i32 s76, s%d, 80\n%sbuffer_load_dwordx4 v%d, %s, s76 offen lds' % (slot * 8192, 4 + i, 's_add_u32 s76, s76, 40960\n' if part else '', v0, W2_),
                'buffer_load_dwordx4 v%d, %s, s76 offen offset:1024 lds' % (v0 + 1, W2_)]
    def w2_round(self, units, v0, thr=None):
        l = []
        for st, sl in units:
            d = self.w2_dma(st, sl, v0)
            if thr is not None: d[0] = 's_waitcnt vmcnt(%d)\n' % thr + d[0]
            l += d
        return l
    def gwave(self, entry=False):
        a = self.a
        NT = 4
        VX, VW, RX, RW = 16, 20, 24, 26
        VBA, VXR, VAA, VSA = 30, 128, 129, 130
        XB, WB = [32, 64], 96
        VB2, VXI = 12, 240
        T, P, KC = 208, 224, 228
        TR, RF, A2, HR = 4, 16, 144, 208
        acc1 = lambda mt, nt: 144 + 32 * (mt >> 1) + 8 * nt + 4 * (mt & 1)
        acc = lambda t, nt: A2 + 32 * (t >> 1) + 8 * nt + 4 * (t & 1)
        dma = lambda st, wf=False: self.g1_dma(st, VX, VW, 39, wf)
        if entry:
            a('s_setprio 1')
            self.g1_ids(37, 38, 39)
            self.g1_voff(VX, VW, 34, 37, 38, 2)
            a('s_mov_b32 s42, %d\ns_mov_b32 s43, 0x20000\ns_mov_b32 s46, %d\ns_mov_b32 s47, 0x20000\ns_waitcnt lgkmcnt(0)\ns_mov_b32 s40, s4\ns_mov_b32 s41, s5\ns_mov_b32 s44, s20\ns_mov_b32 s45, s21' % (2048 * 1280, 640 * 3072))
            for x in dma(0): a(x)
            self.stamp('d0')
            if GPOS == 1: a('s_branch L_G')
            return
        self.srds(False)
        self.nonce0()
        self.tile_ids()
        a('s_and_b32 s60, s34, 1\ns_lshr_b32 s61, s34, 1')
        a("""v_and_b32 v8, 31, v1
        v_lshrrev_b32 v9, 5, v1
        v_and_b32 v10, 15, v1
        v_lshrrev_b32 v11, 4, v1
        v_bfe_u32 v12, v1, 4, 1
        v_bfe_u32 v13, v1, 2, 2
        v_and_b32 v14, 3, v1""")
        a("""v_lshrrev_b32 v4, 1, v10
        v_xor_b32 v4, v4, v11
        v_lshlrev_b32 v4, 4, v4
        v_lshl_add_u32 v4, v10, 7, v4
        s_lshl_b32 s76, s61, 13
        v_add_u32 v{x0}, s76, v4
        v_xor_b32 v{x1}, 64, v{x0}""".format(x0=RX, x1=RX + 1))
        a("""v_lshl_add_u32 v5, v11, 3, v13
        v_lshlrev_b32 v5, 8, v5
        s_lshl_b32 s76, s60, 1
        v_xor_b32 v4, s76, v13
        v_lshl_add_u32 v5, v4, 6, v5
        v_lshrrev_b32 v4, 1, v14
        v_lshl_add_u32 v5, v4, 5, v5
        v_lshl_add_u32 v5, v12, 4, v5
        v_and_b32 v4, 1, v1
        v_lshl_add_u32 v5, v4, 3, v5
        v_add_u32 v{w0}, 0x10000, v5
        v_xor_b32 v{w1}, 16, v{w0}
        v_xor_b32 v{w2}, 64, v{w0}
        v_xor_b32 v{w3}, 80, v{w0}""".format(w0=RW, w1=RW + 1, w2=RW + 2, w3=RW + 3))
        a("""v_lshrrev_b32 v4, 3, v10
        v_lshlrev_b32 v4, 8, v4
        v_and_b32 v5, 7, v1
        v_lshl_add_u32 v4, v5, 4, v4
        v_lshlrev_b32 v5, 11, v11
        s_lshl_b32 s76, s60, 10
        s_add_u32 s76, s76, {lu}
        v_add3_u32 v{aa}, v4, v5, s76
        s_lshl_b32 s76, s61, 11
        s_add_u32 s76, s76, {st}
        v_lshl_add_u32 v{sa}, v10, 5, s76""".format(lu=L_U + 1024, st=L_ST, aa=VAA, sa=VSA))
        a("""v_lshlrev_b32 v2, 4, v1
        s_lshl_b32 s76, s37, 1
        s_add_u32 s76, s76, s61
        s_mul_i32 s68, s76, {b4}
        s_mul_i32 s3, s76, 3072
        s_lshl_b32 s76, s38, 1
        s_add_u32 s76, s76, s60
        s_lshl_b32 s77, s76, 10
        s_add_u32 s68, s68, s77
        s_add_u32 s68, s68, {hh}
        s_lshl_b32 s76, s76, 7
        s_add_u32 s3, s3, s76
        s_add_u32 s3, s3, {fh}""".format(b4=4 * 49152, hh=HH, fh=FH))
        a("""s_lshl_b32 s76, s62, 1
        s_add_u32 s76, s76, s61
        s_mul_i32 s72, s76, {r64}
        s_mul_i32 s73, s76, {b4}
        s_mul_i32 s66, s76, 3072
        s_mul_i32 s77, s60, 12288
        s_add_u32 s73, s73, s77
        s_add_u32 s73, s73, {hh}
        s_mul_i32 s77, s60, 1536
        s_add_u32 s66, s66, s77
        s_add_u32 s66, s66, {fh}
        s_min_u32 s76, s63, 9
        s_lshl_b32 s76, s76, 7
        s_lshl_b32 s77, s60, 6
        s_add_u32 s76, s76, s77
        s_add_u32 s72, s72, s76
        v_lshlrev_b32 v4, 5, v12
        v_lshl_add_u32 v4, v9, 4, v4
        v_add_u32 v{ba}, s76, v4""".format(r64=64 * 1280, b4=4 * 49152, hh=HH, fh=FH, ba=VBA + 1))
        a("""v_lshl_add_u32 v4, v12, 1, v9
        s_lshl_b32 s76, s60, 2
        v_lshrrev_b32 v5, 1, v10
        v_xor_b32 v4, v4, v5
        v_xor_b32 v4, s76, v4
        v_lshlrev_b32 v4, 4, v4
        v_lshl_add_u32 v4, v10, 7, v4
        s_mul_i32 s76, s61, 8320
        s_add_u32 s76, s76, %d
        v_add_u32 v%d, s76, v4""" % (L_TAB, VXR))
        a("""v_lshl_add_u32 v15, v12, 2, v13
        v_lshrrev_b32 v5, 1, v15
        v_lshl_add_u32 v15, v9, 4, v15
        v_lshlrev_b32 v15, 7, v15
        s_lshl_b32 s76, s60, 1
        v_xor_b32 v5, s76, v5
        v_lshl_add_u32 v15, v5, 5, v15
        v_lshl_add_u32 v15, v14, 3, v15
        s_lshl_b32 s76, s60, 12
        s_add_u32 s76, s76, 0x10000
        v_add_u32 v4, s76, v15
        v_xor_b32 v5, 32, v4
        v_xor_b32 v6, 64, v4
        v_xor_b32 v7, 96, v4""")
        self.w2_voff(8, sWV, 10)
        self.g2_offsets()
        a('global_load_dwordx4 v[%d:%d], v%d, s[26:27]' % (VB2, VB2 + 3, VBA + 1))
        for x in dma(1, WFIRST): a(x)
        self.stamp('d1')
        if WARM & 2:
            for l in WG: self.warm(l, 34)
        d2 = dma(2) + dma(3)
        for x in d2[:PRE2]: a(x)
        if GT:
            a('''s_lshl_b32 s70, s36, 2
            s_add_u32 s70, s70, s34
            s_mul_i32 s70, s70, {n}
            s_mul_i32 s71, s35, 1920
            s_add_u32 s70, s70, s71
            v_min_u32 v131, {n1}, v1
            v_add_lshl_u32 v131, v131, s70, 7
            v_add_u32 v132, {w}, v131
            v_min_u32 v131, v131, v132
            buffer_load_dword v132, v131, {w2}, 0 offen'''.format(n=GT, n1=GT - 1, w=-15360 * 128, w2=W2_))
        self.stamp('d2')
        def xreads(st):
            return ['ds_read_b128 v[%d:%d], v%d offset:%d' % (XB[st & 1] + 8 * nt + 4 * ks, XB[st & 1] + 8 * nt + 4 * ks + 3, RX + ks, (st % 4) * 16384 + 2048 * nt) for nt in range(4) for ks in range(2)]
        def wreads(st, p):
            return ['ds_read_b64_tr_b16 v[%d:%d], v%d offset:%d' % (WB + 8 * mt + 4 * ks + 2 * e, WB + 8 * mt + 4 * ks + 2 * e + 1, RW + mt, (st % 4) * 16384 + 8192 * ks + 1024 * e)
                    for mt in (2 * p, 2 * p + 1) for ks in range(2) for e in range(2)]
        def mfmas(st, p):
            l = []
            for mt in (2 * p, 2 * p + 1):
                for nt in range(4):
                    for ks in range(2):
                        c = 'v[%d:%d]' % (acc1(mt, nt), acc1(mt, nt) + 3); w = WB + 8 * mt + 4 * ks; x = XB[st & 1] + 8 * nt + 4 * ks
                        l.append('v_mfma_f32_16x16x32_bf16 %s, v[%d:%d], v[%d:%d], %s' % (c, w, w + 3, x, x + 3, '0' if st == 0 and ks == 0 else c))
            return l
        def weave(mm, rd, n2):
            for i, m in enumerate(mm):
                a(m)
                k = 2 if i < n2 else 1
                for x in rd[:k]: a(x)
                rd = rd[k:]
            assert not rd
        def trreads(buf, slot, TR=TR):
            return ['ds_read_b64_tr_b16 v[%d:%d], v%d offset:%d' % (RF + 16 * buf + 4 * t + 2 * e, RF + 16 * buf + 4 * t + 2 * e + 1, TR + t, (slot % 8) * 8192 + 1024 * e) for t in range(4) for e in range(2)]
        AUA, AUB = XB[0], XB[0] + 16
        auxr = ['ds_read_b128 v[%d:%d], v%d offset:%d' % (AUA + 4 * mt, AUA + 4 * mt + 3, VAA, 512 * (mt >> 1) + 128 * (mt & 1)) for mt in range(4)]
        auxr += ['ds_read_b128 v[%d:%d], v%d offset:%d' % (AUB + 4 * nt, AUB + 4 * nt + 3, VSA, 512 * nt) for nt in range(4)]
        auxr += ['ds_read_b64 v[%d:%d], v%d offset:%d' % (KC + 2 * nt, KC + 2 * nt + 1, VSA, 512 * nt + 16) for nt in range(4)]
        auxr += ['ds_read_b32 v%d, v%d offset:%d' % (KC + 8 + nt, VSA, 512 * nt + 24) for nt in range(4)]
        vm = [0] * 8 + ['b'] + [1] * 8 + ([2] * 8 + [3] * 8)[:PRE2] + ['t'] * (GT > 0)
        assert PRE2 >= 8
        for st in range(11):
            self.stamp('a%d' % st)
            w = ''
            if st in vm:
                k = len(vm) - vm[::-1].index(st); vm = vm[k:]; w = 'vmcnt(%d) ' % len(vm)
            a('s_waitcnt %slgkmcnt(0)' % w)
            self.stamp('w%d' % st)
            a('s_barrier')
            self.stamp('b%d' % st)
            if st == 10: break
            w0, xr = wreads(st, 0), xreads(st)
            rd = w0[:4] + xr + w0[4:]
            if st == 0:
                for x in rd: a(x)
                a(self.nonce2())
            elif st == 1:
                d3 = dma(4); vm += [4] * 8; weave(mfmas(0, 1), rd + d3[:4], 6)
            else: weave(mfmas(st - 1, 1), rd, N2)
            a('s_waitcnt lgkmcnt(0)')
            rd = wreads(st, 1)
            if st == 0: rd += d2[PRE2:]; vm += [3] * (16 - PRE2)
            if st == 1: rd = interleave(rd, d3[4:], every=2)
            if st == 7: rd += ['ds_read_b128 v[%d:%d], v%d offset:%d' % (VXI + 4 * nt, VXI + 4 * nt + 3, VXR, 4160 * (nt >> 1) + 2048 * (nt & 1)) for nt in range(NT)]
            if st == 5: rd += ['v_add_u32 v%d, 0xffff0000, v%d' % (16 + t, TR + t) for t in range(4)]
            if st == 9: rd += auxr
            weave(mfmas(st, 0), rd, 12 if st == 9 else 0)
        weave(mfmas(9, 1), trreads(5, RSLOT[5]) + trreads(7, RSLOT[7]), 0)
        am = []
        for p in (0, 1):
            for nt in range(4):
                for mt in (2 * p, 2 * p + 1):
                    c = 'v[%d:%d]' % (acc1(mt, nt), acc1(mt, nt) + 3)
                    am.append('v_mfma_f32_16x16x32_bf16 %s, v[%d:%d], v[%d:%d], %s' % (c, AUA + 4 * mt, AUA + 4 * mt + 3, AUB + 4 * nt, AUB + 4 * nt + 3, c))
        weave(am, trreads(3, RSLOT[3], 16) + trreads(4, RSLOT[4], 16), 0)
        self.stamp(5)
        def gelu(part, nt):
            q = acc1(2 * part, nt); k = KC + 2 * nt; dl = KC + 8 + (nt & 2); o = nt & 1; t = T + 8 * (nt & 1)
            pr = lambda b, i: 'v[%d:%d]' % (b + 2 * i, b + 2 * i + 1)
            A = ['v_pk_mul_f32 %s, %s, %s' % (pr(t, i), pr(q, i), pr(q, i)) for i in range(4)]
            B = ['v_pk_fma_f32 %s, %s, v[%d:%d], v[%d:%d] op_sel:[0,0,1] op_sel_hi:[1,0,1]' % (pr(t, i), pr(t, i), k, k + 1, k, k + 1) for i in range(4)]
            C = ['v_pk_mul_f32 %s, %s, %s' % (pr(t, i), pr(t, i), pr(q, i)) for i in range(4)]
            E = ['v_exp_f32 v%d, v%d' % (t + i, t + i) for i in range(8)]
            D = ['v_pk_fma_f32 %s, %s, v[%d:%d], v[%d:%d] op_sel:[0,%d,%d] op_sel_hi:[1,%d,%d]' % (pr(t, i), pr(t, i), dl, dl + 1, dl, dl + 1, o, o, o, o) for i in range(4)]
            R = ['v_rcp_f32 v%d, v%d' % (t + i, t + i) for i in range(8)]
            Gc = ['v_cvt_pk_bf16_f32 v%d, v%d, v%d' % (P + i, t + 2 * i, t + 2 * i + 1) for i in range(4)]
            Gc[2] += '\ns_add_u32 s69, s68, %d' % (nt * 49152 + part * 24576)
            Gc[3] += '\nbuffer_store_dwordx4 v[%d:%d], v2, %s, s69 offen sc1' % (P, P + 3, WS_) if 'nost' not in self.opts else '\ns_nop 0 ; buffer_store'
            return A, B, C, E, D, R, C, Gc
        def gelu_stream(tiles):
            A, B, C, E, D, R, F, Gc = [sum((gelu(*t)[i] for t in tiles), []) for i in range(8)]
            g = lambda L, j: [L[j]] if 0 <= j < len(L) else []
            return [g(A, i + 2) + g(E, 2 * i) + g(B, i + 2) + g(E, 2 * i + 1) + g(C, i + 2) + g(D, i - 1) + g(R, 2 * i - 4) + g(F, i - 3) + g(R, 2 * i - 3) + g(Gc, i - 4)
                    for i in range(-2, 4 * len(tiles) + 4)]
        FV = 144
        flag = self.flag(FV, 3) + '\ns_add_u32 s3, s3, %d' % (32 * 3072)
        rr = []
        for b in (6, 1, 2, 0): rr += trreads(b, RSLOT[b])
        rr[16] = '\n'.join('v_add_u32 v%d, 0xffff0000, v%d' % (r, r) for r in range(4, 8)) + '\n' + rr[16]
        nst = 0
        for i, grp in enumerate(gelu_stream([(p, nt) for p in range(2) for nt in range(4)])):
            if i == B0P: a('s_barrier')
            if i == 22: self.stamp('t2')
            if i == FLAG0:
                assert nst >= 4
                for x in self.flag_regs(FV): a(x)
                self.stamp('t3')
                a('s_waitcnt vmcnt(%d)' % (nst - 4)); a(flag); self.stamp('f0')
            if i == 10: self.stamp('t1')
            if i >= B1P and (i - B1P) % RBE == 0:
                for x in rr[:RBU]:
                    if 'norr' not in self.opts: a(x)
                rr = rr[RBU:]
            for x in grp:
                a(x); nst += 'buffer_store' in x
        assert not rr
        self.stamp(6)
        a('s_waitcnt lgkmcnt(0)\ns_barrier')
        self.stamp(7)
        a("""s_cmp_lt_u32 s36, 20
        s_cbranch_scc1 L_G2
        s_waitcnt vmcnt(0)
        {flag}""".format(flag=flag))
        if HPRE:
            a('''s_sub_u32 s76, s36, 20
            s_lshl_b32 s77, s35, 2
            s_add_u32 s76, s76, s77
            s_mul_i32 s16, s76, 3072
            s_add_u32 s16, s16, {f1}
            s_lshl_b32 s76, s76, 2
            s_add_u32 s76, s76, s34
            s_mul_i32 s17, s76, 49152
            s_add_u32 s17, s17, {h1}
            v_min_u32 v10, 23, v1
            v_lshlrev_b32 v10, 7, v10
            v_lshlrev_b32 v12, 7, v1
            s_waitcnt vmcnt(0)
            s_barrier'''.format(f1=FH + 32 * 3072, h1=HH + 24576))
            self.poll('buffer_load_dword v11, v10, %s, s16 offen sc1' % WS_, 'v_cmp_ne_u32 vcc, s21, v11')
            for i in range(3): a('buffer_load_dword v%d, v12, %s, s17 offen sc1\ns_add_u32 s17, s17, 8192' % (13 + i, WS_))
        a('s_branch L_FIN\nL_G2:')
        ini = []
        for r in [VB2] + [VXI + 4 * nt for nt in range(NT)]:
            ini += ['v_permlane16_swap_b32 v%d, v%d' % (r, r + 2), 'v_permlane16_swap_b32 v%d, v%d' % (r + 1, r + 3)]
        for i in range(4):
            ini += ['v_lshlrev_b32 v%d, 16, v%d' % (T + 2 * i, VB2 + i), 'v_and_b32 v%d, 0xffff0000, v%d' % (T + 2 * i + 1, VB2 + i)]
        for nt in range(NT):
            for i in range(4):
                s = VXI + 4 * nt + i; o = acc(0, nt) + 2 * i
                ini += ['v_lshlrev_b32 v%d, 16, v%d' % (o, s), 'v_and_b32 v%d, 0xffff0000, v%d' % (o + 1, s),
                        'v_add_f32 v%d, v%d, v%d' % (o, o, T + 2 * i), 'v_add_f32 v%d, v%d, v%d' % (o + 1, o + 1, T + 2 * i + 1)]
        hpl = 'buffer_load_dword v2, v10, %s, s66 offen sc1' % WS_; hchk = 'v_cmp_ne_u32 vcc, s21, v2'
        a('v_min_u32 v10, 11, v1\nv_lshlrev_b32 v10, 7, v10')
        flag = self.flag(176, 3)
        for x in self.flag_regs(176): a(x)
        dm = self.w2_round([(RF0 + 8 + k, LSLOT[8 + k]) for k in range(8)], 8)
        d1 = dm[:NPH]
        d1.insert(PPOS, hpl)
        d1.insert(FLAG1, 's_waitcnt vmcnt(%d)\n' % FLAG1 + flag)
        for x in interleave(d1, ini, per=6): a(x)
        Lok = self.lab('OK')
        self.stamp('f1')
        a('s_waitcnt vmcnt(%d)\n%s\ns_cbranch_vccz %s' % (len(d1) - 1 - d1.index(hpl), hchk, Lok))
        self.poll(hpl, hchk)
        a('%s:' % Lok)
        self.stamp(10)
        a("""v_lshl_add_u32 v12, v1, 4, s73
        v_add_u32 v13, 49152, v12
        v_add_u32 v14, %d, v12
        v_add_u32 v15, %d, v12""" % (2 * 49152, 3 * 49152))
        RING = 3 * NT; NJ = 24 * NT
        def hload(j):
            s, nt = j // NT, j % NT
            r = HR + 16 * (s % 3) + 4 * nt
            if 'noh' in self.opts and j >= RING: return 's_nop 0'
            if 'hsame' in self.opts: return 'buffer_load_dwordx4 v[%d:%d], v%d, %s, s%d offen sc1' % (r, r + 3, 12 + nt, WS_, 4 + s % 3)
            return ('v_add_u32 v%d, 24576, v%d\n' % (12 + nt, 12 + nt) if s == 12 else '') + 'buffer_load_dwordx4 v[%d:%d], v%d, %s, s%d offen %s' % (r, r + 3, 12 + nt, WS_, 4 + s % 12, '' if 'hplain' in self.opts else 'sc1')
        RING = 3 * NT; NJ = 24 * NT
        for j in range(RING): a(hload(j))
        for x in dm[NPH:]: a(x)
        self.stamp(8)
        a("""s_lshl_b32 s76, s34, 13
        v_lshl_add_u32 v2, v1, 4, s76
        v_bfe_u32 v10, v1, 2, 3
        s_lshl_b32 s76, s61, 2
        v_xor_b32 v10, s76, v10
        v_lshlrev_b32 v10, 5, v10
        v_lshrrev_b32 v11, 2, v1
        v_lshl_add_u32 v10, v11, 8, v10
        v_and_b32 v11, 3, v1
        v_lshl_add_u32 v10, v11, 3, v10
        s_mul_i32 s16, s60, 8320
        s_add_u32 s16, s16, %d
        v_lshrrev_b32 v8, 2, v1
        v_mul_u32_u24 v3, 1280, v8
        v_lshl_add_u32 v3, v11, 4, v3
        v_mul_u32_u24 v9, 80, v8
        v_lshl_add_u32 v9, v11, 4, v9
        s_lshl_b32 s76, s34, 13
        s_add_u32 s76, s76, 32768
        v_add_u32 v9, s76, v9
        v_and_b32 v8, 15, v1
        v_mul_u32_u24 v8, 80, v8
        v_lshrrev_b32 v11, 4, v1
        v_lshl_add_u32 v8, v11, 3, v8
        v_add_u32 v8, s76, v8""" % L_TAB)
        self.stamp(9)
        def wbuf(s): return s if s < RF0 else (s - 16 if s >= 16 + RF0 else (s & 1))
        vm = list(range(RING)) + ['D'] * (len(dm) - NPH)
        assert NL1 == 8
        AZ = RF
        JF = 12 * NT - RING + 1
        extra = []
        for s in range(24):
            wb = RF + 16 * wbuf(s); nxt = s + 1; rd = []
            if RF0 <= nxt < 16 + RF0:
                if nxt in (RF0 + 4, RF0 + 12): extra += ['v_add_u32 v%d, %s, v%d' % (r, '0x10000' if nxt == RF0 + 4 else '0xffff0000', r) for r in range(4, 8)]
                rd = trreads(wbuf(nxt), LSLOT[nxt - RF0])
            if s == 16 + RF0: extra += ['v_xor_b32 v%d, %d, v10' % (4 + nt, 32 * nt) for nt in range(NT)] + ['v_add_u32 v%d, s16, v%d' % (4 + nt, 4 + nt) for nt in range(NT)]
            if s == 9:
                assert 'D' not in vm and JF >= 9 * NT
                a('s_barrier')
            if nxt in (RF0 + 4, RF0 + 12):
                for x in extra: a(x)
                extra = []
            wl = RF0 <= s < 16 + RF0
            order = [(s, nt, t) for nt in range(NT) for t in range(4)]
            if s > 24 - NFIN: continue
            if s == 24 - NFIN: order = [(z, nt, t) for tt in ((2, 3), (0, 1)) for z in range(s, 24) for nt in range(NT) for t in tt]
            nw = 0
            for k, (z, nt, t) in enumerate(order):
                j = z * NT + nt; wb = RF + 16 * wbuf(z)
                if j in vm:
                    n = len(vm) - 1 - vm.index(j); vm = vm[vm.index(j) + 1:]
                    a('s_waitcnt vmcnt(%d)' % n + (' lgkmcnt(0)' if wl else '')); wl = False
                r = HR + 16 * (z % 3) + 4 * nt
                c = 'v[%d:%d]' % (acc(t, nt), acc(t, nt) + 3)
                a('v_mfma_f32_16x16x32_bf16 %s, v[%d:%d], v[%d:%d], %s' % (c, wb + 4 * t, wb + 4 * t + 3, r, r + 3, '0' if (s == 0 and t >= 2) else c))
                if s == 24 - NFIN:
                    k2 = k - len(order) // 2
                    if k2 >= 0 and k2 % NFIN == 0:
                        a('ds_write_b128 v2, v[%d:%d] offset:%d' % (acc(2 + (nw & 1), nw // 2), acc(2 + (nw & 1), nw // 2) + 3, 1024 * nw)); nw += 1
                    continue
                if t == 1 and j >= 1 and j - 1 + RING < NJ:
                    a(hload(j - 1 + RING)); vm.append(j - 1 + RING)
                    if j == SA: a('s_barrier')
                elif rd and t != 3: a(rd.pop(0))
                elif rd and nt < 2: a(rd.pop(0))
                elif extra and t != 3:
                    a(extra.pop(0))
                    if extra: a(extra.pop(0))
            assert not rd
            if s == 0: self.stamp(11)
            self.stamp('s%d' % s)
        self.stamp(12)
        for x in extra: a(x)
        a('v_xor_b32 v2, 0x2000, v2')
        a('s_waitcnt lgkmcnt(0)\ns_barrier')
        self.stamp(13)
        for nt in range(NT):
            for t in range(2):
                a('ds_read_b64_tr_b16 v[%d:%d], v%d offset:%d' % (AZ + 32 + 4 * nt + 2 * t, AZ + 33 + 4 * nt + 2 * t, 4 + nt, 4160 * t))
                a('ds_read_b128 v[%d:%d], v2 offset:%d' % (acc(2 + t, nt), acc(2 + t, nt) + 3, 1024 * (2 * nt + t)))
        lg = [('i', nt) for nt in range(NT) for _ in range(4)]
        def lwait(tag):
            if tag in lg:
                k = len(lg) - lg[::-1].index(tag); del lg[:k]; a('s_waitcnt lgkmcnt(%d)' % len(lg))
        def store(nt):
            a('s_add_u32 s76, s72, %d' % (nt * 16 * 1280)); lwait(('o', nt))
            a('buffer_store_dwordx4 v[%d:%d], v3, %s, s76 offen %s' % (HR + 4 * nt + 16, HR + 4 * nt + 19, OUT_, OUTAUX))
        for nt in range(NT):
            lwait(('i', nt))
            o = HR + 4 * nt; k = acc(0, nt)
            for d in range(4): a('v_lshlrev_b32 v%d, 16, v%d\nv_and_b32 v%d, 0xffff0000, v%d' % (AZ + 2 * d, AZ + 32 + 4 * nt + d, AZ + 2 * d + 1, AZ + 32 + 4 * nt + d))
            for d in range(4): a('v_pk_add_f32 v[%d:%d], v[%d:%d], v[%d:%d]' % (k + 2 * d, k + 2 * d + 1, k + 2 * d, k + 2 * d + 1, k + 32 + 2 * d, k + 33 + 2 * d))
            for d in range(4): a('v_pk_add_f32 v[%d:%d], v[%d:%d], v[%d:%d]' % (k + 2 * d, k + 2 * d + 1, k + 2 * d, k + 2 * d + 1, AZ + 2 * d, AZ + 2 * d + 1))
            for d in range(4): a('v_cvt_pk_bf16_f32 v%d, v%d, v%d' % (o + d, k + 2 * d, k + 2 * d + 1))
            for t in range(2): a('ds_write_b64 v8, v[%d:%d] offset:%d' % (o + 2 * t, o + 2 * t + 1, 1280 * nt + 32 * t))
            a('ds_read_b128 v[%d:%d], v9 offset:%d' % (o + 16, o + 19, 1280 * nt))
            lg += ['w', 'w', ('o', nt)]
            if nt: store(nt - 1)
        store(NT - 1)
        self.stamp(14)
        a('s_branch L_FIN')

    def sn_entry(self):
        a = self.a
        a("""s_setprio 3
        s_cmp_ge_u32 s36, 24
        s_cselect_b32 s37, 1, 0
        s_cselect_b32 s76, 3, 1
        s_cselect_b32 s77, -48, 0
        s_lshr_b32 s78, s34, 1
        s_and_b32 s78, s78, s76
        s_add_u32 s76, s37, 1
        s_lshl_b32 s76, s36, s76
        s_mul_i32 s61, s35, 80
        s_add_u32 s61, s61, s76
        s_add_u32 s61, s61, s77
        s_add_u32 s61, s61, s78
        s_mul_i32 s76, s61, 384
        v_and_b32 v7, 31, v1
        v_mul_u32_u24 v2, 12, v7
        v_add_u32 v2, s76, v2
        s_lshl_b32 s66, s61, 1
        s_and_b32 s66, s66, 0xfffc""")
        if 'nocp' not in self.opts:
            L = self.lab('CP')
            a("""s_lshl_b32 s76, s37, 3
            s_add_u32 s76, s76, s34
            s_cmp_eq_u32 s76, 12
            s_cbranch_scc0 {L}
            s_getpc_b64 s[68:69]
            {L}pc:
            s_sub_u32 s68, s68, {L}pc-{n}
            s_subb_u32 s69, s69, 0
            s_sub_u32 s76, s36, 24
            s_mul_i32 s76, s76, 5120
            v_min_u32 v7, 39, v1
            v_lshl_add_u32 v7, v7, 7, s76
            v_min_u32 v7, L_END-{n}, v7
            global_load_dword v255, v7, s[68:69]
            {L}:""".format(L=L, n=NAME))
        a('s_waitcnt lgkmcnt(0)')
        for k, p in enumerate((6, 8, 10, 12)):
            a('global_load_dwordx3 v[%d:%d], v2, s[%d:%d]' % (16 + 4 * k, 18 + 4 * k, p, p + 1))
        a('s_load_dword s72, s[14:15], s66\ns_load_dword s73, s[16:17], s66')
        self.stamp('pl')
        if PLOW: a('s_setprio 0')
        self.srds(False)
        self.nonce0()
        a("""s_and_b32 s60, s34, 1
        s_mov_b32 s38, {t1}
        s_mov_b32 s39, {u1}
        s_cmp_eq_u32 s37, 0
        s_cselect_b32 s38, {t0}, s38
        s_cselect_b32 s39, {u0}, s39
        s_mul_i32 s76, s78, 8320
        s_add_u32 s38, s38, s76
        s_lshr_b32 s76, s78, 1
        s_mul_i32 s76, s76, 9216
        s_and_b32 s77, s78, 1
        s_lshl_b32 s77, s77, 9
        s_add_u32 s39, s39, s76
        s_add_u32 s39, s39, s77
        s_lshl_b32 s62, s35, 3
        s_add_u32 s62, s62, s36
        s_sub_u32 s62, s62, 24
        s_lshl_b32 s63, s62, 5
        s_lshl_b32 s76, s34, 2
        s_add_u32 s63, s63, s76
        s_mul_i32 s64, s63, 1280
        v_mov_b32 v14, 0
        v_mov_b32 v15, 0
        v_lshrrev_b32 v4, 4, v1
        v_and_b32 v5, 15, v1
        v_mul_u32_u24 v6, 1280, v4
        v_lshl_add_u32 v248, v5, 4, v6""".format(t0=L_TAB, t1=N_TAB, u0=L_U, u1=N_U))
        a('s_cmp_lt_u32 s34, 4\ns_cselect_b32 s19, %d, %d\ns_cmp_eq_u32 s37, 0\ns_cselect_b32 s19, 3, s19' % tuple(LNP))
        if XEARLY: self.xloads()
        a('''s_sub_u32 s76, s36, 24
        s_lshl_b32 s76, s76, 3
        s_add_u32 s76, s76, s34
        s_mul_i32 s76, s76, {n}
        s_mul_i32 s77, s35, 1920
        s_add_u32 s76, s76, s77
        s_add_u32 s76, s76, {g}
        v_min_u32 v249, {n1}, v1
        v_add_lshl_u32 v249, v249, s76, 7'''.format(n=NLN, n1=NLN - 1, g=96 * GT))
        EX = 196 + 6; a = self.a
        a("""s_xor_b32 s76, s60, 1
        s_mul_i32 s76, s76, 4160
        s_add_u32 s76, s76, s38
        v_lshl_add_u32 v{e0}, v1, 4, s76
        s_mul_i32 s76, s60, 4160
        s_add_u32 s76, s76, s38
        v_lshl_add_u32 v{e1}, v1, 4, s76
        v_mov_b32 v{e3}, s76
        s_add_u32 s76, s76, 1008
        v_lshlrev_b32 v5, 4, v1
        v_sub_u32 v{e2}, s76, v5
        v_mov_b32 v8, 0
        v_mov_b32 v9, 0
        v_mov_b32 v10, 0
        v_mov_b32 v11, 0
        v_lshl_add_u32 v6, v1, 3, s39
        ds_write_b64 v6, v[8:9]
        s_mov_b64 exec, 7
        ds_write_b128 v{e1}, v[8:11] offset:4096
        s_mov_b64 exec, -1""".format(e0=EX, e1=EX + 1, e2=EX + 2, e3=EX + 3))
    def xloads(self):
        a = self.a
        Lx = self.lab('NX')
        a('s_cmp_eq_u32 s37, 0\ns_cbranch_scc1 %s' % Lx)
        for i in range(5): a('buffer_load_dwordx4 v[%d:%d], v248, %s, s64 offen offset:%d' % (XI + 4 * i, XI + 4 * i + 3, X_, 256 * i))
        a('%s:' % Lx)
    def cmul(self, d, x, w):
        return ['v_pk_mul_f32 v[%d:%d], v[%d:%d], v[%d:%d] op_sel:[1,1] op_sel_hi:[0,1] neg_lo:[0,1]' % (d[0], d[1], x[0], x[1], w[0], w[1]),
                'v_pk_fma_f32 v[%d:%d], v[%d:%d], v[%d:%d], v[%d:%d] op_sel_hi:[1,0,1]' % (d[0], d[1], x[0], x[1], w[0], w[1], d[0], d[1])]
    def scode(self):
        a = self.a
        tag = 'S'
        SELB, SELA, KA = 32, 40, 52
        FRG = 68
        PB, PA = 68, 84
        DB, DA = 100, 132
        FB, FA2 = 164, 180
        VV = 196
        DT, D2, SC1, SC2 = 48, 49, 50, 51
        a("""v_lshrrev_b32 v3, 5, v1
        v_cmp_eq_u32 s[74:75], 1, v3
        v_bfe_u32 v4, v1, 4, 1
        v_and_b32 v5, 15, v1
        v_cmp_eq_u32 vcc, v3, v4
        v_cndmask_b32 v5, 64, v5, vcc
        v_and_b32 v6, 3, v1
        v_bfe_u32 v7, v1, 3, 2
        v_lshl_add_u32 v6, v7, 2, v6
        v_add_u32 v7, 1, v6
        v_and_b32 v7, 12, v7
        v_and_b32 v8, 9, v6
        v_cmp_eq_u32 vcc, 1, v8
        s_and_b64 vcc, vcc, s[74:75]
        v_cndmask_b32 v6, v6, v7, vcc
        v_bfe_u32 v4, v1, 2, 1
        v_cmp_eq_u32 vcc, v3, v4
        v_cndmask_b32 v6, 64, v6, vcc
        v_mov_b32 v9, 0x3f80""")
        for v, sel in ((5, SELB), (6, SELA)):
            a('v_and_b32 v7, 1, v{v}\nv_lshlrev_b32 v7, 4, v7\nv_lshlrev_b32 v7, v7, v9\nv_lshrrev_b32 v8, 1, v{v}'.format(v=v))
            for d in range(0, 8, 2):
                a('v_cmp_eq_u32 vcc, %d, v8\nv_cmp_eq_u32 s[76:77], %d, v8\nv_nop\nv_cndmask_b32 v%d, 0, v7, vcc\nv_cndmask_b32 v%d, 0, v7, s[76:77]' % (d, d + 1, sel + d, sel + d + 1))
        EX = VV + 6
        if WARM & 1:
            a('s_and_b32 s3, s34, 3'); self.warm(['S0', 'S1', 'S2', 'S3'][:WS0], 3)
        a("""v_mov_b32 v4, 0x41000000
        v_mov_b32 v5, 0x43000000
        v_cndmask_b32 v{s1}, v4, v5, s[74:75]
        v_mov_b32 v5, 0x43800000
        v_cndmask_b32 v{s2}, 1.0, v5, s[74:75]
        s_and_b32 s76, s61, 1
        s_xor_b32 s76, s76, 1
        s_lshl_b32 s76, s76, 4
        s_mul_i32 s77, s60, 0x02020000
        s_add_u32 s77, s77, 0x01000c0c
        s_waitcnt lgkmcnt(0)
        {bp}
        s_lshl_b32 s72, s72, s76
        s_and_b32 s72, s72, 0xffff0000
        s_lshl_b32 s73, s73, s76
        s_and_b32 s73, s73, 0xffff0000
        v_mov_b32 v{dt}, s72
        v_mul_f32 v{dt}, {l2e}, v{dt}
        v_exp_f32 v{dt}, v{dt}
        v_mov_b32 v31, s73
        v_cvt_pk_bf16_f32 v{dt}, v{dt}, v{dt}
        v_lshlrev_b32 v{dt}, 16, v{dt}
        v_add_f32 v{d2}, v{dt}, v{dt}""".format(bp=self.nonce2(), s1=SC1, s2=SC2, dt=DT, d2=D2, l2e=f32(LOG2E)))
        a('v_cmp_eq_u32 vcc, 0, v1\nv_cndmask_b32 v31, 0, v31, vcc')
        self.stamp('a0')
        a('s_branch L_K')
        if GPOS == 1:
            a('L_GE:'); self.sel = SEL['G']; self.gwave(True); self.sel = SEL['S']
        a('.page S\nL_K:')
        Ls = self.lab('NG'); Lx = self.lab('NX')
        if not XEARLY: self.xloads()
        a('s_setprio %d\ns_cmp_eq_u32 s37, 0\ns_cbranch_scc1 %s\ns_waitcnt vmcnt(5)\ns_branch %s\n%s:\ns_waitcnt vmcnt(0)\n%s:' % (2 * KPRIO, Lx, Ls, Lx, Ls))
        self.stamp(2)
        for k in range(4):
            for p in range(3):
                r = 16 + 4 * k + p
                a('v_perm_b32 v%d, v%d, v%d, s77' % (r, r, r))
        W8, W1, W5 = (VV, VV + 1), (VV + 2, VV + 3), (VV + 4, VV + 5)
        U = VV + 12
        XA = VV + 16
        def setup(p):
            l = """v_mul_f32 v4, {l2e}, v{la}
            v_exp_f32 v4, v4
            v_mul_f32 v5, v{ai}, v{dt}
            v_cvt_pk_bf16_f32 v4, v4, v4
            v_mul_f32 v5, {ci}, v5
            v_lshlrev_b32 v4, 16, v4
            v_mul_f32 v7, v5, v{s1}
            v_mul_f32 v4, v4, v{dt}
            v_mul_f32 v9, v5, v{s2}
            v_mul_f32 v4, {cr}, v4
            v_rndne_f32 v10, v7
            v_rndne_f32 v11, v9
            v_mul_f32 v6, v4, v{s1}
            v_mul_f32 v8, v4, v{s2}
            v_sub_f32 v7, v7, v10
            v_sub_f32 v9, v11, v9
            v_exp_f32 v6, v6
            v_exp_f32 v8, v8
            v_sin_f32 v10, v7
            v_cos_f32 v11, v7
            v_sin_f32 v12, v9
            v_cos_f32 v13, v9
            v_mul_f32 v{w8i}, v10, v6
            v_mul_f32 v{w8r}, v11, v6
            v_mul_f32 v{w1i}, v12, v8
            v_mul_f32 v{w1r}, v13, v8
            v_mul_f32 v{u1}, v10, v6
            v_mul_f32 v{u0}, v11, v6
            v_mul_f32 v{u3}, v12, v8
            v_mul_f32 v{u2}, v13, v8
            v_mul_f32 v4, v{cre}, v{d2}
            v_mul_f32 v5, v{cim}, v{d2}
            v_permlane32_swap_b32 v{w8i}, v{u1}
            v_permlane32_swap_b32 v{w8r}, v{u0}
            v_permlane32_swap_b32 v{w1i}, v{u3}
            v_permlane32_swap_b32 v{w1r}, v{u2}
            v_cndmask_b32 v{e0}, 1.0, v{u0}, s[74:75]
            v_cndmask_b32 v{e1}, 0, v{u1}, s[74:75]
            v_cndmask_b32 v6, 1.0, v{u2}, s[74:75]
            v_cndmask_b32 v7, 0, v{u3}, s[74:75]
            v_mul_f32 v{w5r}, v{u2}, v{u2}
            v_add_f32 v8, v{u2}, v{u2}
            v_fma_f32 v{w5r}, -v{u3}, v{u3}, v{w5r}
            v_mul_f32 v{w5i}, v8, v{u3}
            v_mul_f32 v{g0}, v4, v6
            v_mul_f32 v{g1}, v4, v7
            v_fmac_f32 v{g0}, v5, v7
            v_fma_f32 v{g1}, -v5, v6, v{g1}""".format(l2e=f32(LOG2E), la=16 + p, ai=20 + p, cre=24 + p, cim=28 + p, dt=DT, d2=D2, s1=SC1, s2=SC2,
                ci=f32(1 / (2 * math.pi)), cr=f32(-LOG2E), w8i=W8[1], w8r=W8[0], w1i=W1[1], w1r=W1[0], w5i=W5[1], w5r=W5[0],
                u0=U, u1=U + 1, u2=U + 2, u3=U + 3, e0=XA, e1=XA + 1, g0=XA + 4, g1=XA + 5)
            return [x.strip() for x in l.split('\n')]
        def pack(P, v, x0, x1):
            return ['v_cvt_pk_bf16_f32 v%d, v%d, v%d' % (P + v // 2, x0[0], x1[0]), 'v_cvt_pk_bf16_f32 v%d, v%d, v%d' % (P + 8 + v // 2, x0[1], x1[1])]
        def chainB():
            l = []; r = [(XA, XA + 1), (XA + 2, XA + 3)]
            for v in range(1, 16):
                l += self.cmul(r[v & 1], r[(v - 1) & 1], W8)
                if v & 1: l += pack(PB, v, r[0], r[1])
            return l
        def chainA():
            l = []; reg = {v: (XA + 4 + 2 * k, XA + 5 + 2 * k) for v, k in enumerate([0, 3, 4, 3, 1, 3, 4, 3, 2, 3, 4, 0, 1, 2, 3, 4])}
            src = {9: 0, 10: 4, 11: 8, 12: 9, 13: 11, 14: 12, 15: 13}
            for v in range(1, 16):
                l += self.cmul(reg[v], reg[v - 1] if v < 9 else reg[src[v]], W1 if v < 9 else W5)
                if v & 1: l += pack(PA, v, reg[v - 1], reg[v])
            return l
        def transp(D, P, SEL_):
            l = []
            for sg in range(2):
                for c in range(2):
                    d = 'v[%d:%d]' % (D + 16 * c, D + 16 * c + 15)
                    l.append('v_mfma_f32_32x32x16_bf16 %s, v[%d:%d], v[%d:%d], %s' % (d, P + 8 * c + 4 * sg, P + 8 * c + 4 * sg + 3, SEL_ + 4 * sg, SEL_ + 4 * sg + 3, '0' if sg == 0 else d))
            return l
        def repack(F, D): return ['v_cvt_pk_bf16_f32 v%d, v%d, v%d' % (F + i, D + 2 * i, D + 2 * i + 1) for i in range(16)]
        def mf2(first):
            k = 'v[%d:%d]' % (KA, KA + 15)
            return ['v_mfma_f32_32x32x16_bf16 %s, v[%d:%d], v[%d:%d], %s' % (k, FA2 + 4 * i, FA2 + 4 * i + 3, FB + 4 * i, FB + 4 * i + 3, '0' if (first and i == 0) else k) for i in range(4)]
        hook = 's_cmp_eq_u32 s37, 0\ns_cbranch_scc0 L_LN\nL_LNR:'
        if PK:
            seq = []
            if -1 in LNP: seq.append('s_cmp_eq_u32 s19, -1\ns_cbranch_scc1 L_LN\nL_LNRm:'); iln = 1
            seq += setup(0)
            for p in range(3):
                seq += interleave(chainB(), chainA())
                if p in LNP: seq.append('s_cmp_eq_u32 s19, %d\ns_cbranch_scc1 L_LN\nL_LNR%d:' % (p, p)); iln = len(seq)
                if p == 2 and 0 in SB: seq.append('s_cmp_eq_u32 s37, 0\ns_cbranch_scc0 {L}\ns_barrier\n{L}:'.format(L=self.lab('NB')))
                nx = setup(p + 1) if p < 2 else []
                tb, ta, rb, ra, m2 = transp(DB, PB, SELB), transp(DA, PA, SELA), repack(FB, DB), repack(FA2, DA), mf2(p == 0)
                order = [tb[0], tb[2], ta[0], ta[2], tb[1], tb[3], ta[1], ta[3]]
                h = len(nx) // 2
                seq += interleave(order[:5], nx[:h], per=6)
                seq += interleave(order[5:], rb[:8] + ra[:8], per=6)
                seq += interleave(m2[:2], nx[h:h + 6] + rb[8:] + ra[8:], per=6)
                seq += interleave(m2[2:], nx[h + 6:], per=6)
        if 'nok' in self.opts: a('s_cmp_eq_u32 s37, 0\ns_cbranch_scc1 L_NOK')
        nb = 0; n = len(seq); xh = False
        for i, x in enumerate(seq):
            if not xh and i >= iln + XHOOK * (n - iln):
                self.xhook(); xh = True
            for tp in TOUCH:
                if i == iln + int(tp * (n - iln)):
                    L = self.lab('TC')
                    a('s_cmp_eq_u32 s37, 0\ns_cbranch_scc1 %s' % L); self.touch(); a('%s:' % L)
            a(x)
        if 'nok' in self.opts: a('s_nop 15\nL_NOK:')
        self.stamp(3)
        if 1 in SB: a('s_cmp_eq_u32 s37, 0\ns_cbranch_scc0 {L}\ns_barrier\n{L}:'.format(L=self.lab('NB')))
        CA, CB = 176, 186
        a("""v_and_b32 v9, 15, v1
        v_lshrrev_b32 v10, 4, v1
        v_and_b32 v11, 1, v1
        v_xor_b32 v11, 1, v11
        v_mul_u32_u24 v11, 4162, v11
        v_lshl_add_u32 v11, v10, 4, v11
        v_lshlrev_b32 v12, 1, v9
        v_sub_u32 v11, v11, v12
        s_lshl_b32 s76, s60, 8
        s_sub_u32 s76, s38, s76
        s_add_u32 s76, s76, %d
        v_add_u32 v%d, s76, v11""" % (2 * (2047 - 16) - 512 - 192, CA))
        for p in range(1, 4): a('v_add_u32 v%d, %d, v%d' % (CA + p, -1024 * p, CA))
        a('v_lshl_add_u32 v9, v9, 1, v10\ns_lshl_b32 s76, s60, 4\ns_sub_u32 s76, 30, s76\nv_add_u32 v9, s76, v9')
        for tt in range(4):
            a('v_add_u32 v10, %d, v9\nv_and_b32 v11, 32, v10\nv_add_u32 v10, v10, v11\nv_lshl_add_u32 v%d, v10, 4, s39' % (-4 * tt, CB + tt))
        a("""s_and_b32 s3, s34, 3
        s_lshr_b32 s76, s61, 1
        s_lshl_b32 s76, s76, 13
        s_lshl_b32 s77, s3, 11
        s_add_u32 s26, s76, s77
        s_and_b32 s76, s61, 1
        s_lshl_b32 s76, s76, 9
        s_sub_u32 s27, s39, s76
        s_add_u32 s27, s27, s77
        s_add_u32 s27, s27, 1024
        v_and_b32 v181, 31, v1
        v_lshlrev_b32 v181, 5, v181
        v_lshrrev_b32 v182, 5, v1
        v_lshl_add_u32 v181, v182, 4, v181
        v_lshlrev_b32 v182, 4, v1
        v_and_b32 v184, 15, v1
        v_lshlrev_b32 v184, 7, v184
        s_add_u32 s20, s77, %d""" % FX)
        xld = 'buffer_load_dword v183, v184, %s, s20 offen sc1' % WS_; xchk = 'v_cmp_ne_u32 vcc, s21, v183'
        udma = """s_mov_b32 m0, s27
        buffer_load_dwordx4 v181, {ws}, s26 offen sc1 lds
        buffer_load_dwordx4 v181, {ws}, s26 offen offset:1024 sc1 lds""".format(ws=WS_)
        Lg = self.lab('NG'); Lw = self.lab('NW'); Lx = self.lab('NX'); Lv = self.lab('NV')
        a('s_cmp_eq_u32 s37, 0\ns_cbranch_scc0 %s\ns_setprio 0' % Lg)
        LX, LW = 16, 20
        def prep_x():
            self.tile_ids()
            a("""s_lshl_b32 s76, s62, 7
        s_lshl_b32 s77, s3, 5
        s_add_u32 s76, s76, s77
        s_mul_i32 s16, s76, 1280
        s_min_u32 s76, s63, 9
        s_lshl_b32 s76, s76, 7
        s_add_u32 s16, s16, s76
        v_lshrrev_b32 v9, 3, v1
        v_mul_u32_u24 v9, 1280, v9
        v_lshrrev_b32 v10, 4, v1
        v_xor_b32 v10, v10, v1
        v_and_b32 v10, 7, v10
        v_lshl_add_u32 v9, v10, 4, v9
        v_xor_b32 v10, 64, v9
        s_mul_i32 s17, s3, 4160
        s_add_u32 s17, s17, %d""" % L_TAB)
        def prep_aux():
            a('''s_lshl_b32 s76, s28, 2
        s_add_u32 s76, s76, s3
        s_lshl_b32 s77, s3, 4
        s_lshl_b32 s18, s65, 3
        s_add_u32 s77, s77, s18
        s_add_u32 s77, s77, s69
        s_sub_u32 s77, s77, s76
        v_and_b32 v185, 1, v1
        v_mul_i32_i24 v185, s77, v185
        v_add_u32 v185, s76, v185
        v_lshlrev_b32 v185, 7, v185
        s_mov_b32 s18, %d''' % FY)
        ald = 'buffer_load_dword v183, v185, %s, s18 offen sc1' % WS_
        vm = []
        def issue(x, tag): a(x); vm.append(tag)
        def need(*tags):
            k = max([i for i, t in enumerate(vm) if t in tags], default=-1)
            if k >= 0: a('s_waitcnt vmcnt(%d)' % (len(vm) - 1 - k)); del vm[:k + 1]
        def fetch_aux():
            Lok = self.lab('OK')
            need('f')
            a('%s\ns_cbranch_vccz %s' % (xchk, Lok))
            self.poll(ald, xchk)
            a('%s:' % Lok)
            self.stamp('st')
            a("""s_lshl_b32 s76, s3, 11
        s_add_u32 m0, s76, {lu}
        s_lshl_b32 s76, s29, 2
        s_add_u32 s76, s76, s3
        s_lshl_b32 s76, s76, 11
        s_add_u32 s76, s76, {csa}""".format(lu=L_U + 1024, csa=CSA))
            issue('buffer_load_dwordx4 v182, %s, s76 offen sc1 lds' % WS_, 'a')
            issue('buffer_load_dwordx4 v182, %s, s76 offen offset:1024 sc1 lds' % WS_, 'a')
            issue("""s_lshl_b32 s77, s3, 10
        s_add_u32 m0, s77, {ls}
        s_lshl_b32 s76, s28, 12
        s_add_u32 s76, s76, s77
        s_add_u32 s76, s76, {st}
        buffer_load_dwordx4 v182, {ws}, s76 offen sc1 lds""".format(ls=L_ST, st=ST, ws=WS_), 'a')
        slot_step = dict([(sl, RSTEP[b]) for b, sl in RSLOT.items()] + [(LSLOT[k], RF0 + k) for k in range(8)])
        dm = self.w2_round([(slot_step[k], k) for k in [12, 13, 4, 5, 14, 15, 6, 7, 0, 1, 8, 9, 2, 3, 10, 11]], 14)
        tg = ['r1'] * 8 + ['r2'] * 8 + ['l'] * 16
        assert RB7 <= 8 and RB8 <= 16 and RB9 <= 24 and RB7 % 2 == 0 and RB10 >= 16
        for k in range(1, 9):
            need(k, *(['x'] if k == 7 else []))
            a('s_barrier')
            if k == XPOS: issue(ald, 'f')
            if k == 1:
                self.g1_ids(28, 29, 30, 5); self.g1_voff(LX, LW, 3, 28, 29, 9)
            if 2 <= k <= 6:
                for x in self.g1_dma(k + 3, LX, LW, 30): issue(x, k + 3)
            if k == 2: prep_x()
            i = k - XST
            if 0 <= i < 4: issue('s_mov_b32 m0, s17\ns_add_u32 s76, s16, %d\nbuffer_load_dwordx4 v%d, %s, s76 offen offset:%d lds' % (i * (8 * 1280 - 1024), 9 + (i & 1), X_, 1024 * i), 'x')
            if k == 3:
                prep_aux(); self.w2_voff(14, 3, 13)
                a('s_cmp_lt_u32 s36, 20\ns_cselect_b32 s76, 0, 0x40000000\nv_add_u32 v14, s76, v14\nv_add_u32 v15, s76, v15')
            if k == 4: self.g2_offsets()
            if k == WS2 and WARM & 4: self.warm(['S2'], 3)
            if k == 7:
                fetch_aux()
                for x, t in zip(dm[:RB7], tg): issue(x, t)
        for x, t in zip(dm[RB7:RB8], tg[RB7:]): issue(x, t)
        need(9, 'a')
        a('s_barrier')
        issue(xld, 'X')
        for x, t in zip(dm[RB8:RB9], tg[RB8:]): issue(x, t)
        need('r1')
        a('s_barrier')
        assert RB9 % 2 == 0
        Lok = self.lab('OK')
        need('X')
        a('%s\ns_cbranch_vccz %s' % (xchk, Lok))
        self.poll(xld, xchk)
        a('%s:' % Lok)
        self.stamp(6)
        a(udma); vm += ['u', 'u']
        for x, t in zip(dm[RB9:RB10], tg[RB9:]): issue(x, t)
        need('r2')
        a('s_barrier')
        for x in dm[RB10:]: a(x)
        a('s_waitcnt vmcnt(%d)\ns_branch %s\n%s:\n%s\n%s:' % (RWAIT, Lw, Lg, xld, Lw))
        self.stamp('r0')
        a('s_setprio %d' % (2 * TPRIO))
        for k in range(4): a('ds_write_b128 v%d, v[%d:%d] offset:%d' % (EX, KA + 4 * k, KA + 4 * k + 3, 1024 * k))
        a('s_mov_b64 exec, 1\nds_write_b32 v%d, v%d offset:4128\ns_mov_b64 exec, -1' % (EX, SC1))
        V = lambda r: KA + r
        a('v_add_f32 v{v0}, v{v0}, v31\nv_and_b32 v5, 1, v1\nv_cmp_eq_u32 vcc, 0, v5'.format(v0=V(0)))
        Lp = self.lab('XP'); Lq = self.lab('XQ')
        a('s_mov_b32 s79, 0\n%s:\nds_read_b32 v4, v%d offset:4128' % (Lp, EX + 3))
        for k in range(4): a('ds_read_b128 v[%d:%d], v%d offset:%d' % (FRG + 4 * k, FRG + 4 * k + 3, EX + 1, 1024 * k))
        a('s_add_u32 s79, s79, 1\ns_waitcnt lgkmcnt(4)\nv_readfirstlane_b32 s76, v4\ns_cmp_lg_u32 s76, 0\ns_cbranch_scc1 %s\ns_cmp_gt_u32 s79, %d\ns_cbranch_scc0 %s\n%s:' % (Lq, 64 * POLLMAX, Lp, Lq))
        self.stamp(4)
        for k in range(4):
            a('s_waitcnt lgkmcnt(%d)' % (3 - k))
            for r in range(4 * k, 4 * k + 4): a('v_add_f32 v%d, v%d, v%d' % (KA + r, KA + r, FRG + r))
        a("""v_cndmask_b32 v{m0}, v{v13}, v{v12}, vcc
        v_cndmask_b32 v{m1}, v{v15}, v{v14}, vcc
        s_cmp_eq_u32 s60, 0
        s_cbranch_scc0 L{t}_T1""".format(m0=FRG + 16, m1=FRG + 17, v12=V(12), v13=V(13), v14=V(14), v15=V(15), t=tag))
        def table(c):
            lv = [([V(o) for o in range(9)], 3072), ([V(9)] * 3 + [V(10)] * 3 + [V(11)] * 3, 2048),
                  ([V(12)] * 4 + [FRG + 16] + [V(13)] * 4, 1024), ([V(14)] * 4 + [FRG + 17] + [V(15)] * 4, 0)]
            for n, (t, off) in enumerate(lv):
                for d in range(4):
                    a('v_cvt_pk_bf16_f32 v%d, v%d, v%d' % (FRG + 4 * n + d, t[7 + c - 2 * d], t[6 + c - 2 * d]))
                a('ds_write_b128 v%d, v[%d:%d] offset:%d' % (EX + 2, FRG + 4 * n, FRG + 4 * n + 3, off))
        table(0)
        a('s_branch L%s_T2\nL%s_T1:' % (tag, tag))
        table(1)
        a('v_cvt_pk_bf16_f32 v8, v%d, 0\ns_mov_b64 exec, 1\nds_write_b32 v%d, v8 offset:4096\ns_mov_b64 exec, -1\nL%s_T2:' % (V(0), EX + 1, tag))
        self.stamp(5)
        Lok = self.lab('OK')
        a('s_setprio 0\ns_cmp_eq_u32 s37, 0\ns_cbranch_scc1 %s\ns_waitcnt vmcnt(0)\n%s\ns_cbranch_vccz %s' % (Lx, xchk, Lok))
        self.poll(xld, xchk)
        a('%s:' % Lok)
        self.stamp(6)
        a(udma)
        a('%s:\ns_waitcnt vmcnt(0)' % Lx)
        self.stamp('R')
        Ln = self.lab('NB'); Lp = self.lab('XP'); Lq = self.lab('XQ'); Lt = self.lab('XT')
        a('s_setprio %d\ns_cmp_eq_u32 s37, 0\ns_cbranch_scc0 %s\ns_waitcnt lgkmcnt(0)\ns_barrier\ns_branch %s' % (2 * CPRIO, Ln, Lq))
        a('''{Ln}:
        s_lshr_b32 s76, s34, 2
        s_mul_i32 s76, s76, 16640
        s_add_u32 s76, s76, {w}
        v_mov_b32 v5, s76
        v_mov_b32 v4, 1
        s_mov_b64 exec, 1
        ds_add_u32 v5, v4
        s_mov_b64 exec, -1
        s_mov_b32 s79, 0
        {Lp}:
        ds_read_b32 v4, v5
        s_add_u32 s79, s79, 1
        s_waitcnt lgkmcnt(0)
        v_readfirstlane_b32 s76, v4
        s_cmp_eq_u32 s76, 4
        s_cbranch_scc1 {Lq}
        s_sleep 1
        s_cmp_gt_u32 s79, {mx}
        s_cbranch_scc0 {Lp}
        {Lt}:'''.format(Ln=Ln, Lp=Lp, Lq=Lt, Lt=Lt, w=N_TAB + 4140, mx=64 * POLLMAX))
        if T3:
            a('''s_cmp_ge_u32 s34, 4
            s_cbranch_scc0 {Lq}
            v_lshrrev_b32 v4, 5, v1
            v_mul_u32_u24 v4, 768, v4
            v_and_b32 v5, 31, v1
            v_add_u32 v4, v4, v5
            v_mul_u32_u24 v4, 1280, v4
            s_lshl_b32 s16, s36, 2
            s_add_u32 s16, s16, s34
            s_sub_u32 s16, s16, 100'''.format(Lq=Lq))
            for k in range(3):
                a('''s_lshr_b32 s17, s16, 3
                s_and_b32 s18, s16, 7
                s_add_u32 s18, s18, {s0}
                s_cmp_ge_u32 s18, 12
                s_cselect_b32 s19, 40960, 0
                s_mul_i32 s76, s17, 77
                s_lshr_b32 s76, s76, 6
                s_add_u32 s18, s18, s76
                s_mul_i32 s76, s18, 22
                s_lshr_b32 s76, s76, 8
                s_mul_i32 s76, s76, 12
                s_sub_u32 s18, s18, s76
                s_mul_i32 s18, s18, 81920
                s_add_u32 s18, s18, s19
                s_lshl_b32 s17, s17, 7
                s_add_u32 s18, s18, s17
                s_cmp_lt_u32 s16, 80
                s_cbranch_scc0 {Lq}
                buffer_load_dword v255, v4, {w2}, s18 offen
                s_add_u32 s16, s16, 32'''.format(s0=RF0 + 8, Lq=Lq, w2=W2_))
        a('%s:' % Lq)
        self.stamp(7)
        YA = 16; FA_ = [48, 112]
        def creads(tt):
            f = FA_[tt & 1]; l = []
            for i in range(8):
                o = (128 if i % 2 == 0 else 0) + 16 * (3 - tt)
                ra = ['ds_read2_b32 v[%d:%d], v%d offset0:%d offset1:%d' % (f + 4 * i + 2 * e, f + 4 * i + 2 * e + 1, CA + i // 2, o + 2 * e, o + 2 * e + 1) for e in range(2)]
                rb = 'ds_read_b128 v[%d:%d], v%d offset:%d' % (f + 32 + 4 * i, f + 35 + 4 * i, CB + tt, 1024 * i)
                l += ra + [rb]
            return l
        def cm(tt, i, j, first):
            f = FA_[tt & 1]; c = 'v[%d:%d]' % (YA + 4 * (i + j), YA + 4 * (i + j) + 3)
            return 'v_mfma_f32_16x16x32_bf16 %s, v[%d:%d], v[%d:%d], %s' % (c, f + 4 * i, f + 4 * i + 3, f + 32 + 4 * j, f + 35 + 4 * j, '0' if first else c)
        r0 = creads(0)
        for x in r0[:12]: a(x)
        for tt in range(4):
            order = []
            for k in range(8):
                order += [(k, i, j) for i in range(k + 1) for j in range(k + 1) if max(i, j) == k and i + j <= 7]
            if tt > 0 and CHAIN: order = [(0, i, tau - i) for tau in range(8) for i in range(tau + 1)]
            seen = set()
            nxt = (r0[12:] if tt == 0 else []) + (creads(tt + 1) if tt < 3 else [])
            issued = 12 if tt == 0 else 24
            extra = 0
            lastk = -1
            if tt > 0: a('s_waitcnt lgkmcnt(0)')
            if tt == 3: a('s_mov_b64 exec, 1\nds_write_b32 v%d, v%d offset:4132\ns_mov_b64 exec, -1\ns_nop 3' % (EX, EX))
            for (k, i, j) in order:
                if tt == 0 and k != lastk:
                    while issued < 3 * (k + 1): a(nxt.pop(0)); issued += 1
                    a('s_waitcnt lgkmcnt(%d)' % min(15, issued + extra - 3 * (k + 1)))
                    lastk = k
                a(cm(tt, i, j, tt == 0 and (i + j) not in seen)); seen.add(i + j)
                if nxt:
                    a(nxt.pop(0))
                    if issued < 24: issued += 1
                    else: extra += 1
            for x in nxt: a(x)
        self.stamp(8)
        def lflag(off): a('s_mov_b64 exec, 1\nds_write_b32 v%d, v%d offset:%d\ns_mov_b64 exec, -1' % (EX, EX, off))
        def lwait(off, extra):
            Lp = self.lab('XP'); Lq = self.lab('XQ')
            a('s_mov_b32 s79, 0\n%s:\nds_read_b32 v4, v%d offset:%d' % (Lp, EX + 3, off))
            for x in extra: a(x)
            a('s_add_u32 s79, s79, 1\ns_waitcnt lgkmcnt(%d)\nv_readfirstlane_b32 s76, v4\ns_cmp_lg_u32 s76, 0\ns_cbranch_scc1 %s\ns_cmp_gt_u32 s79, %d\ns_cbranch_scc0 %s\n%s:' % (len(extra), Lq, 64 * POLLMAX, Lp, Lq))
        if HPRE:
            L = self.lab('NB'); a('s_sub_u32 s76, s36, 20\ns_cmp_lt_u32 s76, 4\ns_cbranch_scc0 %s\ns_barrier\n%s:' % (L, L))
        lwait(4132, [])
        a('s_nop 3\ns_cmp_eq_u32 s60, 0\ns_cbranch_scc0 L%s_R1' % tag)
        for k in range(4): a('ds_write_b128 v%d, v[%d:%d] offset:%d' % (EX, YA + 16 + 4 * k, YA + 19 + 4 * k, 1024 * k))
        lflag(4136)
        a('s_branch L%s_R2\nL%s_R1:' % (tag, tag))
        for k in range(4): a('ds_write_b128 v%d, v[%d:%d] offset:%d' % (EX, YA + 4 * k, YA + 3 + 4 * k, 1024 * k))
        lflag(4136)
        for k in range(16): a('v_mov_b32 v%d, v%d' % (YA + k, YA + 16 + k))
        a('L%s_R2:' % tag)
        lwait(4136, ['ds_read_b128 v[%d:%d], v%d offset:%d' % (48 + 4 * k, 51 + 4 * k, EX + 1, 1024 * k) for k in range(4)])
        a('''s_lshl_b32 s76, s61, 12
        s_lshl_b32 s77, s60, 11
        s_add_u32 s76, s76, s77
        s_add_u32 s76, s76, %d
        v_lshlrev_b32 v4, 4, v1''' % AA)
        for p in range(2):
            a('s_waitcnt lgkmcnt(%d)' % (2 - 2 * p))
            for k in range(8 * p, 8 * p + 8): a('v_add_f32 v%d, v%d, v%d' % (YA + k, YA + k, 48 + k))
            o = 64 + 4 * p
            for d in range(4): a('v_cvt_pk_bf16_f32 v%d, v%d, v%d' % (o + d, YA + 8 * p + 2 * d, YA + 8 * p + 2 * d + 1))
            a('v_permlane16_swap_b32 v%d, v%d\nv_permlane16_swap_b32 v%d, v%d' % (o, o + 2, o + 1, o + 3))
            a('buffer_store_dwordx4 v[%d:%d], v4, %s, s76 offen offset:%d sc1' % (o, o + 3, WS_, 1024 * p))
        self.stamp(9)
        a('s_setprio 0')
        a('s_mul_i32 s76, s60, 640\ns_add_u32 s76, s76, s61\ns_lshl_b32 s76, s76, 7\ns_add_u32 s76, s76, %d' % FA)
        for x in self.flag_regs(8): a(x)
        a('s_waitcnt vmcnt(0)'); a(self.flag(8, 76))
        self.stamp(10)
        Le = self.lab('EP')
        a('''s_lshl_b32 s76, s34, 8
        s_add_u32 s76, s76, s2
        s_cmp_eq_u32 s76, 192
        s_cbranch_scc0 {L}
        v_lshrrev_b32 v2, 2, v1
        v_mul_u32_u24 v2, 6144, v2
        v_and_b32 v3, 3, v1
        v_lshl_add_u32 v2, v3, 8, v2
        s_mov_b32 s20, {fh}'''.format(L=Le, fh=FH))
        a('v_lshlrev_b32 v6, 7, v1\ns_mov_b32 s18, %d' % FX)
        self.poll('buffer_load_dword v3, v6, %s, s18 offen sc1' % WS_, 'v_cmp_ne_u32 vcc, s21, v3')
        ld = '\n'.join('buffer_load_dword v%d, v2, %s, s20 offen offset:%d sc1' % (3 + i, WS_, 1024 * i) for i in range(3))
        self.poll(ld, 'v_cmp_ne_u32 vcc, s21, v3\nv_cmp_ne_u32 s[76:77], s21, v4\nv_cmp_ne_u32 s[16:17], s21, v5\ns_or_b64 vcc, vcc, s[76:77]\ns_or_b64 vcc, vcc, s[16:17]')
        a('''s_mov_b32 s20, {ep}
        s_mov_b64 exec, 1
        buffer_store_dword v8, off, {ws}, s20 sc1
        s_branch L_FIN
        {L}:'''.format(L=Le, ep=EP, ws=WS_))
        a('s_cmp_lt_u32 s36, 20\ns_cbranch_scc0 L_FIN')
        a('s_mul_i32 s20, s62, 6144\ns_mul_i32 s77, s3, 1536\ns_add_u32 s20, s20, s77\ns_add_u32 s20, s20, %d' % (FH + 32 * 3072))
        self.spoll(12, 20)
        self.stamp('h1')
        a('s_barrier')
        a('''s_lshl_b32 s60, s63, 6
        s_lshl_b32 s76, s3, 4
        s_add_u32 s60, s60, s76
        s_lshr_b32 s76, s35, 2
        s_mul_i32 s76, s76, 640
        s_add_u32 s76, s76, s60
        s_lshl_b32 s76, s76, 7
        s_add_u32 s61, s76, {fa}
        v_and_b32 v4, 15, v1
        v_lshrrev_b32 v7, 4, v1
        v_lshlrev_b32 v8, 1, v7
        v_xor_b32 v8, v8, v4
        v_lshrrev_b32 v9, 1, v8
        v_lshlrev_b32 v9, 4, v9
        v_and_b32 v8, 1, v8
        v_lshl_add_u32 v9, v8, 9, v9
        v_lshl_add_u32 v9, v7, 12, v9
        v_xor_b32 v10, 64, v9
        s_lshl_b32 s60, s60, 12
        s_lshr_b32 s76, s35, 1
        s_lshl_b32 s76, s76, 10
        s_add_u32 s60, s60, s76
        s_and_b32 s76, s35, 1
        s_lshl_b32 s76, s76, 8
        s_add_u32 s60, s60, s76
        s_and_b32 s76, s62, 1
        s_lshl_b32 s76, s76, 7
        s_add_u32 s60, s60, s76
        s_add_u32 s60, s60, {aa}
        s_and_b32 s76, s3, 1
        s_mul_i32 s76, s76, 4160
        s_add_u32 m0, s76, s38'''.format(fa=FA, aa=AA))
        self.spoll(16, 61)
        self.stamp(11)
        a('s_barrier')
        for i in range(4):
            a('s_add_u32 s76, s60, %d\nbuffer_load_dwordx4 v%d, %s, s76 offen offset:%d sc1 lds' % (i * (16384 - 1024), 9 + (i & 1), WS_, 1024 * i))
        a('s_waitcnt vmcnt(0)')
        self.stamp(12)
        a('s_barrier\ns_branch L_FIN')
    def touch(self):
        self.a('v_add_u32 v254, %d, v249\nv_min_u32 v254, v254, v249\nbuffer_load_dword v255, v254, %s, 0 offen\nv_add_u32 v249, %d, v249' % (-15360 * 128, W2_, 64 * NLN * 128))
    def xhook(self):
        a = self.a
        L = self.lab('NH')
        a('s_cmp_eq_u32 s37, 0\ns_cbranch_scc1 %s' % L)
        a('s_waitcnt vmcnt(%d)' % TLN[2])
        a("""s_barrier
        s_cmp_eq_u32 s34, 0
        s_cbranch_scc0 {L}
        s_lshl_b32 s76, s62, 7
        s_add_u32 s76, s76, {fx}""".format(L=L, fx=FX))
        for x in self.flag_regs(250): a(x)
        a(self.flag(250, 76)); a('%s:' % L)
        self.stamp('xf')
    def wloads(self):
        a = self.a
        L = self.lab('WL')
        a("""s_cmp_ge_u32 s34, 4
        s_cbranch_scc0 {L}
        s_and_b32 s76, s35, 1
        s_mul_i32 s76, s76, 6
        s_sub_u32 s77, s36, 24
        s_add_u32 s28, s76, s77
        s_mul_i32 s77, s77, {rc}
        s_lshr_b32 s77, s77, 4
        s_lshl_b32 s77, s77, 6
        s_lshr_b32 s29, s35, 1
        s_mul_i32 s76, s29, 160
        s_add_u32 s76, s76, s77
        s_mul_i32 s76, s76, 3072
        s_lshl_b32 s77, s28, 2
        s_add_u32 s77, s77, s34
        s_sub_u32 s77, s77, 4
        s_lshl_b32 s77, s77, 6
        s_cmp_lt_u32 s36, 30
        s_cselect_b32 s18, s77, 0x40000000
        s_cselect_b32 s77, s77, 0
        v_lshrrev_b32 v9, 2, v1
        v_mul_u32_u24 v9, 3072, v9
        v_and_b32 v{c}, 3, v1
        v_lshl_add_u32 v9, v{c}, 4, v9
        v_add_u32 v9, s18, v9""".format(L=L, rc=ROT[1] if QROT else 0, c=WI + 41))
        for i in range(10): a('s_sub_u32 s18, s76, %d\ns_min_u32 s76, s76, s18\nbuffer_load_dwordx4 v[%d:%d], v9, %s, s76 offen\ns_add_u32 s76, s76, 49152' % (640 * 3072, WI + 4 * i, WI + 4 * i + 3, W1_))
        a("""v_lshlrev_b32 v{c}, 3, v{c}
        v_lshl_add_u32 v{c}, v4, 1, v{c}
        v_bfe_u32 v9, v1, 2, 1
        v_add_u32 v{c}, v{c}, v9
        v_lshl_add_u32 v9, v{c}, 1, s77
        v_mov_b32 v{b}, 0
        global_load_short_d16_hi v{b}, v9, s[22:23]
        {L}:""".format(b=WI + 40, c=WI + 41, L=L))
    def lnblock(self):
        a = self.a
        XF = 100; T0 = 140
        a('L_LN:')
        self.stamp('ln')
        a('''        v_lshrrev_b32 v4, 4, v1
        v_and_b32 v5, 15, v1
        s_and_b32 s76, s34, 1
        s_lshl_b32 s76, s76, 3
        s_and_b32 s77, s34, 4
        s_add_u32 s76, s76, s77
        v_add_u32 v6, s76, v4
        v_mul_u32_u24 v6, {ts}, v6
        v_lshl_add_u32 v6, v5, 3, v6
        s_and_b32 s76, s34, 2
        s_lshl_b32 s76, s76, 1
        v_add_u32 v6, s76, v6
        v_and_b32 v7, 1, v1
        v_bfe_u32 v8, v1, 2, 2
        v_lshl_add_u32 v7, v7, 2, v8
        v_mul_u32_u24 v7, {ts}, v7
        v_lshl_add_u32 v7, v4, 4, v7
        v_bfe_u32 v8, v1, 1, 1
        v_lshl_add_u32 v7, v8, 3, v7
        s_mul_i32 s76, s34, 320
        v_add_u32 v7, s76, v7
        v_lshrrev_b32 v8, 3, v1
        v_lshlrev_b32 v8, 15, v8
        v_and_b32 v10, 7, v1
        v_lshl_add_u32 v8, v10, 4, v8
        s_and_b32 s65, s34, 1
        s_mul_i32 s65, s65, 160
        s_lshr_b32 s76, s34, 1
        s_add_u32 s65, s65, s76
        s_lshl_b32 s65, s65, 13
        s_lshl_b32 s76, s62, 7
        s_add_u32 s65, s65, s76
        v_mov_b32 v10, 0
        v_mov_b32 v11, 0
        v_mov_b32 v12, 0
        v_mov_b32 v13, 0'''.format(ts=TSTR, cq=20 * 16384, t8=T0 + 8, t9=T0 + 9))
        if WEARLY:
            self.wloads()
            L = self.lab('WW'); a('s_waitcnt vmcnt(11)\ns_cmp_ge_u32 s34, 4\ns_cbranch_scc1 %s\ns_waitcnt vmcnt(0)\n%s:' % (L, L))
        for i in range(5):
            if not WEARLY: a('s_waitcnt vmcnt(%d)' % (4 - i))
            for d in range(4):
                s = XI + 4 * i + d; f = XF + 8 * i + 2 * d
                a('''v_lshlrev_b32 v{f}, 16, v{s}
                v_and_b32 v{f1}, 0xffff0000, v{s}
                v_pk_add_f32 v[10:11], v[10:11], v[{f}:{f1}]
                v_pk_fma_f32 v[12:13], v[{f}:{f1}], v[{f}:{f1}], v[12:13]'''.format(f=f, f1=f + 1, s=s))
        self.stamp(1)
        if not WEARLY: self.wloads()
        for k in range(TLN[0]): self.touch()
        a('v_add_f32 v10, v10, v11\nv_add_f32 v12, v12, v13')
        for sh in (8, 4, 2, 1):
            a('v_add_f32 v10, v10, v10 row_ror:%d\nv_add_f32 v12, v12, v12 row_ror:%d' % (sh, sh))
        rb = lambda d, s: 'v_cvt_pk_bf16_f32 v%d, v%d, v%d\nv_lshlrev_b32 v%d, 16, v%d' % (d, s, s, d, d)
        EPS = f32(1e-5)
        a('v_mul_f32 v10, {c}, v10\nv_mul_f32 v12, {c}, v12\nv_fma_f32 v12, -v10, v10, v12\nv_max_f32 v12, 0, v12'.format(c=f32(1.0 / 640)))
        a(rb(11, 10))
        a(rb(13, 12)); a('v_add_f32 v13, %s, v13' % EPS); a(rb(13, 13)); a('v_sqrt_f32 v13, v13'); a(rb(13, 13))
        a('v_rcp_f32 v14, v13\nv_mul_f32 v15, v11, v14\nv_sub_f32 v15, 0, v15')
        a('v_sub_f32 v10, v10, v11\nv_mul_f32 v10, v10, v14'); a(rb(10, 10))
        a('v_mul_f32 v12, v12, v14\nv_mul_f32 v12, v12, v14'); a(rb(12, 12)); a('v_add_f32 v12, %s, v12' % EPS); a(rb(12, 12)); a('v_sqrt_f32 v12, v12'); a(rb(12, 12))
        a('v_fma_f32 v10, -v10, v13, -v11\nv_mul_f32 v12, v13, v12')
        C1 = -2.0 * LOG2E * math.sqrt(2.0 / math.pi)
        a('''v_rcp_f32 v9, v12
        v_cvt_pk_bf16_f32 v{t0}, v10, v10
        v_and_b32 v11, 0xffff0000, v{t0}
        v_sub_f32 v11, v10, v11
        v_cvt_pk_bf16_f32 v{t1}, v11, v12
        v_and_b32 v11, 0xffff0000, v{t1}
        v_sub_f32 v11, v12, v11
        v_cvt_pk_bf16_f32 v{t2}, v11, 0
        v_mul_f32 v13, {c1}, v9
        v_mul_f32 v9, v9, v9
        v_mul_f32 v9, {c2}, v9
        v_mul_f32 v9, v9, v13
        v_cmp_eq_u32 vcc, 1, v5
        s_lshl_b32 s67, s63, 5
        s_add_u32 s67, s67, {st}
        v_mov_b32 v{t3}, 0
        v_cndmask_b32 v{t0}, v{t0}, v9, vcc
        v_cndmask_b32 v{t1}, v{t1}, v13, vcc
        v_cndmask_b32 v{t2}, v{t2}, v12, vcc
        v_lshlrev_b32 v9, 5, v4
        v_lshl_add_u32 v9, v5, 4, v9
        v_cmp_gt_u32 vcc, 2, v5
        s_and_saveexec_b64 s[68:69], vcc
        buffer_store_dwordx4 v[{t0}:{t3}], v9, {ws}, s67 offen sc1
        s_mov_b64 exec, s[68:69]'''.format(st=ST, ws=WS_, t0=T0, t1=T0 + 1, t2=T0 + 2, t3=T0 + 3, c1=f32(C1), c2=f32(0.044715)))
        for i in range(5):
            for d in range(4):
                s = XI + 4 * i + d; f = XF + 8 * i + 2 * d
                a('v_pk_fma_f32 v[{f}:{f1}], v[{f}:{f1}], v[14:15], v[14:15] op_sel:[0,0,1] op_sel_hi:[1,0,1]\nv_cvt_pk_bf16_f32 v{s}, v{f}, v{f1}'.format(f=f, f1=f + 1, s=s))
            for d in range(4): a('ds_write_b32 v6, v%d offset:%d' % (XI + 4 * i + d, 128 * i + 640 * d))
        CA_ = 100
        a('s_cmp_ge_u32 s34, 4\ns_cbranch_scc0 L_CSB\ns_cmp_lt_u32 s36, 30\ns_cbranch_scc0 L_CSB\ns_waitcnt vmcnt(1)')
        for i in range(10):
            d = CA_ if i == 0 else CA_ + 8
            for k in range(4): a('v_lshlrev_b32 v%d, 16, v%d\nv_and_b32 v%d, 0xffff0000, v%d' % (d + 2 * k, WI + 4 * i + k, d + 2 * k + 1, WI + 4 * i + k))
            if i:
                for k in range(4): a('v_pk_add_f32 v[%d:%d], v[%d:%d], v[%d:%d]' % (CA_ + 2 * k, CA_ + 2 * k + 1, CA_ + 2 * k, CA_ + 2 * k + 1, d + 2 * k, d + 2 * k + 1))
        a('''s_cmp_eq_u32 s29, 0
        s_cselect_b32 s76, -1, 0
        v_and_b32 v{b}, s76, v{b}
        v_and_b32 v9, 4, v1
        v_cmp_ne_u32 vcc, 0, v9'''.format(b=WI + 40))
        for k in range(4): a('v_permlane32_swap_b32 v%d, v%d' % (CA_ + k, CA_ + 4 + k))
        for k in range(2): a('v_pk_add_f32 v[%d:%d], v[%d:%d], v[%d:%d]' % (CA_ + 2 * k, CA_ + 2 * k + 1, CA_ + 2 * k, CA_ + 2 * k + 1, CA_ + 4 + 2 * k, CA_ + 5 + 2 * k))
        a('''s_lshl_b32 s76, s28, 2
        s_add_u32 s76, s76, s29
        s_lshl_b32 s76, s76, 2
        s_add_u32 s76, s76, s34
        s_lshl_b32 s76, s76, 9
        s_add_u32 s76, s76, %d''' % (CSA - 4 * 512))
        for k in range(2): a('v_permlane16_swap_b32 v%d, v%d' % (CA_ + k, CA_ + 2 + k))
        a('''v_pk_add_f32 v[{c0}:{c1}], v[{c0}:{c1}], v[{c2}:{c3}]
        v_lshlrev_b32 v9, 4, v{c}
        v_lshrrev_b32 v12, 16, v{b}
        v_add_f32 v{c0}, v{c0}, v{c0} row_ror:8
        v_add_f32 v{c1}, v{c1}, v{c1} row_ror:8
        v_mov_b32 v13, 0
        v_add_f32 v{c0}, v{c0}, v{c0} row_ror:4
        v_add_f32 v{c1}, v{c1}, v{c1} row_ror:4
        v_cndmask_b32 v{c0}, v{c0}, v{c1}, vcc
        v_cvt_pk_bf16_f32 v11, v{c0}, v{b}
        v_lshlrev_b32 v10, 16, v11
        v_sub_f32 v10, v{c0}, v10
        v_cvt_pk_bf16_f32 v10, v{c0}, v10
        s_mov_b32 exec_lo, 0x00ff00ff
        s_mov_b32 exec_hi, 0x00ff00ff
        buffer_store_dwordx4 v[10:13], v9, {ws}, s76 offen sc1
        s_mov_b64 exec, -1
        L_CSB:'''.format(b=WI + 40, c=WI + 41, ws=WS_, **{'c%d' % i: CA_ + i for i in range(4)}))
        for k in range(TLN[1]): self.touch()
        self.stamp('l4')
        a('s_waitcnt vmcnt(0) lgkmcnt(0)\ns_barrier')
        L = self.lab('YF')
        a('s_cmp_eq_u32 s34, 4\ns_cbranch_scc0 %s\ns_lshl_b32 s76, s62, 7\ns_add_u32 s76, s76, %d' % (L, FY))
        for x in self.flag_regs(250): a(x)
        a(self.flag(250, 76)); a('%s:' % L)
        self.stamp('yf')
        for i in range(5):
            for e in range(2):
                a('ds_read_b64_tr_b16 v[%d:%d], v7 offset:%d' % (XI + 4 * i + 2 * e, XI + 4 * i + 2 * e + 1, 64 * i + 8 * TSTR * e))
        for i in range(5):
            a('s_waitcnt lgkmcnt(%d)\ns_add_u32 s76, s65, %d\nbuffer_store_dwordx4 v[%d:%d], v8, %s, s76 offen sc1' % (8 - 2 * i, XT + i * 32 * 8192, XI + 4 * i, XI + 4 * i + 3, WS_))
        self.stamp('xs')
        assert max(LNP) <= 0 and TLN[0] == TLN[1] == 0
        for k in range(TLN[2]): self.touch()
        if -1 in LNP: a('s_cmp_eq_u32 s19, -1\ns_cbranch_scc1 L_LNRm')
        if 0 in LNP: a('s_nop 0\ns_branch L_LNR0')

    def build(self):
        a = self.a
        self.prologue()
        a('s_cmp_lt_u32 s36, 24\ns_cselect_b32 s76, 4, 0\ns_cmp_lt_u32 s34, s76\ns_cbranch_scc1 L_GE')
        self.sel = SEL['S']; self.sn_entry(); self.scode(); self.lnblock()
        self.sel = SEL['G']
        if PAGE == 2: a('.page G')
        elif PAGE: a('.region G')
        if GPOS == 2: a('L_GE:'); self.gwave(True)
        a('L_G:'); self.gwave()
        a('L_FIN:')
        self.dump_stamps()
        if self.AMP:
            if self.AMP[1] == 'end': a('s_memrealtime s[92:93]')
            who = self.AMP[2]
            a('s_cmp_eq_u32 s34, %d\ns_cbranch_scc0 L_END' % {'G': 0, 'S': 4, 'N': 0, 'M': 4}[who[0]])
            if len(who) > 1: a('s_cmp_eq_u32 s2, %s\ns_cbranch_scc0 L_END' % who[1:])
            else: a('s_cmp_lt_u32 s36, 20\ns_cbranch_scc0 L_END' if who in 'GS' else 's_cmp_ge_u32 s36, 24\ns_cbranch_scc0 L_END')
            a('''s_waitcnt lgkmcnt(0)
            s_sub_u32 s92, s92, s94
            s_lshl_b32 s92, s92, 3
            s_add_u32 s92, s92, 3000
            s_min_u32 s92, s92, 30000
            L_AMP:
            s_memrealtime s[98:99]
            s_waitcnt lgkmcnt(0)
            s_sub_u32 s77, s98, s96
            s_cmp_lt_u32 s77, s92
            s_cbranch_scc1 L_AMP''')
        for o_ in self.opts:
            if o_.startswith('pad='):
                a('''s_cmp_eq_u32 s34, 0
                s_cbranch_scc0 L_END
                s_cmp_lt_u32 s36, 20
                s_cbranch_scc0 L_END''')
                for q_ in self.opts:
                    if q_.startswith('padwg='): a('s_cmp_eq_u32 s2, %d\ns_cbranch_scc0 L_END' % int(q_[6:]))
                a('''L_PAD:
                s_memrealtime s[98:99]
                s_waitcnt lgkmcnt(0)
                s_sub_u32 s77, s98, s96
                s_cmp_lt_u32 s77, %d
                s_cbranch_scc1 L_PAD''' % int(o_[4:]))
        if 'span' in self.opts:
            a('''s_cmp_eq_u32 s34, 0
            s_cbranch_scc0 L_END
            s_waitcnt vmcnt(0)
            s_memrealtime s[98:99]
            s_memtime s[76:77]
            s_waitcnt lgkmcnt(0)
            s_not_b32 s97, s96
            s_sub_u32 s76, s76, s100
            s_sub_u32 s77, s98, s96
            s_mov_b64 exec, 1
            v_mov_b32 v0, 0
            v_mov_b32 v1, s97
            v_mov_b32 v2, s98
            v_mov_b32 v3, s96
            v_mov_b32 v4, s76
            v_mov_b32 v5, s77
            global_atomic_umax v0, v1, s[30:31]
            global_atomic_umax v0, v2, s[30:31] offset:4
            global_atomic_umax v0, v3, s[30:31] offset:8
            global_atomic_umax v0, v4, s[30:31] offset:12
            global_atomic_umax v0, v5, s[30:31] offset:16''')
        a('L_END:')
        body = a.finish(layout=dict(name=NAME, align=ALIGN, pads=self.wret, noprun=NOPRUN))
        used = set(re.findall(r's_c?branch\w* (PAD\w+)', body)); have = set(re.findall(r'^(PAD\w+):', body, re.M))
        for l in used - have: body = body.replace(' ' + l + '\n', ' ' + self.wret[l[3:]] + '\n')
        ref = open('parallel_sum__ssm_conv_s4d__mixer_channel_mlp__prompt.s.ref').read()
        head = ''.join(l + '\n' for l in ref.split('\n') if l.startswith(';') and '@launch' not in l)
        return head + '''; @launch grid=(256,1,1) block=(512,1,1) lds=163840
.amdgcn_target "amdgcn-amd-amdhsa--gfx950"
.text
.globl {n}
.p2align 8
.type {n},@function
{n}:
{body}    s_endpgm
.section .rodata,"a"
.p2align 6
.amdhsa_kernel {n}
  .amdhsa_next_free_vgpr 256
  .amdhsa_next_free_sgpr 102
  .amdhsa_accum_offset 256
  .amdhsa_group_segment_fixed_size 0
  .amdhsa_kernarg_size 120
  .amdhsa_user_sgpr_count 2
  .amdhsa_user_sgpr_kernarg_segment_ptr 1
  .amdhsa_system_sgpr_workgroup_id_x 1
  .amdhsa_float_denorm_mode_32 3
.end_amdhsa_kernel
'''.format(n=NAME, body=body)
if __name__ == '__main__':
    out = sys.argv[1]; opts = sys.argv[2:]
    g = G('stamps' in opts, opts); s = g.build(); open(out, 'w').write(s)
    print('wrote', out, len(s), 'bytes; nops inserted', g.a.nops, 'pads', g.a.npad, 'align fixes', g.a.fixes)
```

```python
import sys, math, struct, re
sys.path.insert(0, 'work')
from asmdsl import Asm, interleave
NAME = 'parallel_sum__ssm_conv_s4d__mixer_channel_mlp__prompt_kernel'
def f32(x): return '0x%08x' % struct.unpack('<I', struct.pack('<f', x))[0]
LOG2E = math.log2(math.e)
XT, HH, AA, FL, DBG = 0x000000, 0x400000, 0xA00000, 0xD00000, 0xE00000
ST, CSA = FL + 0x70000, FL + 0x80000
FY = FL + 0xA000
FX, EP, FH, FA = FL + 0x8000, FL + 0xC000, FL + 0x10000, FL + 0x40000
WS_BYTES = 0x1000000
XR = 131072
L_TAB, L_U, L_ST = XR, XR + 2 * 8320, XR + 2 * 8320 + 2 * 4608
N_CS = 43008
VN = 27
L_AT = XR
L_RED = 0
N_T, N_TAB, N_U = 0, 49152, 49152 + 4 * 8320
TSTR = 2592
sWV, sXCD, sJ = 34, 35, 36
X_, W1_, W2_, WS_, OUT_ = 's[40:43]', 's[44:47]', 's[48:51]', 's[52:55]', 's[56:59]'
POLLMAX = 0x8000
RSLOT = {5: 12, 7: 13, 3: 4, 4: 5, 6: 14, 1: 15, 2: 6, 0: 7}
LSLOT = [0, 1, 2, 3, 8, 9, 10, 11, 12, 13, 14, 15, 4, 5, 6, 7]
BARPOS = [.45, .7, .9, 1.0, 1.0, 1.0, 1.0]
PPOS, NPH, B1P, RBU, RBE = 7, 16, 31, 6, 1
RB7, RB8, RB9, RB10, B0P, N2 = 4, 10, 18, 22, 2, 5
FLAG0 = 34
SPLIT = 0
E3 = 4
T3 = 0
ALIGN, NOPRUN, PAGE, WARM, WS0 = 1, 7, 1, 3, 4
WG = [['G0', 'G1', 'G2', 'G3']]
WS2 = 1
BUP = 33
QROT, WEARLY = 1, 1
ROT = [32, 27, 40, 0]
SPRIO = 0
FLAG1 = 9
IPER = 9
THR = None
NOBP = 2
KPRIO = 1
LORD = [2, 3, 4, 5, 0, 1, 6, 7]
XHOOK = 0.06
TOUCH = [0.08]
TLN = [0, 0, 0]
GT = 0
SLP = 4
XST = 2
XI, WI = 228, 148
XPOS = 6
NL0, NL1 = 0, 8
THR0 = None
FRONT = 0
PK = 1
LNP = [-1, 0]
NLATE = 0
NFIN = 2
CHAIN = 1
CPRIO = 1
PRE2 = 8
GPOS, PLOW, RF0, HPRE, PAIR, SAP = 2, 0, 4, 0, 1, 0
LG = [0, 4]
W1T = 0
SB = [1]
RWAIT = 4
TPRIO = 1
SWAP = 1
XEARLY = 1
WFIRST = 1
SA = 84
OUTAUX = 'nt'
import os
SELS = {
 'main': {'G': [0, 'b0', 'b9', 5, 6, 7, 10, 11, 12], 'S': [0, 2, 3, 'st', 5, 6, 'R', 8, 10]},
 'start': {'G': [0, 'd0', 'd1', 'd2', 'w0', 'b0', 'b1', 'b2', 'b3'], 'S': [0, 'pl', 'a0', 2, 'ln', 'xs', 3, 4, 5]},
 'g1': {'G': [0, 'b0', 'b1', 'b2', 'b3', 'b4', 'b6', 'b8', 'b9'], 'S': [0, 2, 'xf', 3, 'st', 4, 5, 6, 'R']},
 'mid': {'G': [0, 'b9', 5, 't1', 't2', 't3', 'f0', 6, 7], 'S': [0, 3, 'r0', 4, 5, 6, 'r1', 'R', 7]},
 'ln': {'G': [0, 'b5', 'b6', 'b7', 'a8', 'b8', 'a9', 'w9', 'b9'], 'S': [0, 'ln', 1, 'l4', 'yf', 'xs', 'xf', 3, 'st']},
 'g2': {'G': [0, 's1', 's5', 's9', 's13', 's17', 's21', 12, 13], 'S': [0, 7, 8, 9, 10, 11, 12]},
 'bad': {'G': [0, 'b9', 7, 'f1', 10, 8, 11], 'S': [0, 'r0', 'xf', 3, 5, 6]},
 'clk': {'G': [0, 'b0', 'b5', 'b9', 't1'], 'S': [0]},
 'clk2': {'G': [0, 't1', 7, 11, 's11'], 'S': [0]},
 'g2b': {'G': [0, 's7', 's8', 's9', 's10', 's11', 's12', 's13', 's14'], 'S': [0, 10, 'h1', 11]},
 'g2c': {'G': [0, 's0', 's1', 's2', 's3', 's4', 's5', 's6', 's7'], 'S': [0, 8, 9, 10, 'h1']},
 'g2d': {'G': [0, 's19', 's20', 's21', 12, 13, 14], 'S': [0, 11, 12]},
 'none': {'G': [0, 'b0', 'b2', 'b9', 7, 11, 12], 'S': [0, 2, 'xs', 3, 7, 9]},
 'end': {'G': [0, 7, 'f1', 10, 8, 9, 11, 12, 13], 'S': [0, 7, 8, 9, 10, 'h1', 11, 12]},
}
CLK = 's_memtime' if os.environ.get('CYC') else 's_memrealtime'
SEL = SELS[os.environ.get('SEL', 'main')]
SEL['N'] = SEL['S']
for _k in ('BARPOS', 'XHOOK', 'XST', 'XPOS', 'NL0', 'NL1', 'FLAG0', 'SPLIT', 'E3', 'IPER', 'T3', 'ALIGN', 'NOPRUN', 'PAGE', 'WARM', 'WS0', 'WG', 'WS2', 'BUP', 'FLAG1', 'THR', 'SLP', 'TOUCH', 'TLN', 'GT', 'SA', 'OUTAUX', 'RB8', 'RB9', 'PPOS', 'NPH', 'B1P', 'RBU', 'ROT', 'QROT', 'WEARLY', 'NOBP', 'THR0', 'FRONT', 'PK', 'LNP', 'PRE2', 'GPOS', 'PLOW', 'RF0', 'HPRE', 'PAIR', 'SAP', 'LG', 'W1T', 'SB', 'RWAIT', 'RB7', 'RB10', 'B0P', 'N2', 'NLATE', 'NFIN', 'CHAIN', 'CPRIO', 'TPRIO', 'SWAP', 'XEARLY', 'WFIRST', 'KPRIO', 'SPRIO', 'RBE'):
    if os.environ.get(_k): globals()[_k] = eval(os.environ[_k])
NLN = min(64, -(-(15360 - 96 * GT) // (64 * max(1, len(TOUCH) + sum(TLN)))))
RSTEP = list(range(RF0)) + list(range(16 + RF0, 24))
R3ORD = [12, 13, 4, 5, 14, 15, 6, 7]
class G:
    def __init__(self, stamps=False, opts=()):
        self.a = Asm(); self.stamps = stamps; self.nlab = 0; self.opts = set(opts); self.sel = None; self.wret = {}
        self.AMP = ([o[4:].split(',') for o in opts if o.startswith('amp=')] or [None])[0]
    def lab(self, p='L'):
        self.nlab += 1; return '%s%d' % (p, self.nlab)
    def stamp(self, k):
        if self.AMP and str(k) == self.AMP[0]: self.a('s_memrealtime s[94:95]')
        if self.AMP and str(k) == self.AMP[1]: self.a('s_memrealtime s[92:93]')
        if 'padat=%s' % k in self.opts: self.a('s_memrealtime s[96:97]')
        if self.stamps and k in self.sel:
            i = self.sel.index(k); self.a('%s s[%d:%d]' % (CLK, 80 + 2 * i, 81 + 2 * i))
            if os.environ.get('BOTH'): self.a('s_memtime s[%d:%d]' % (88 + 2 * i, 89 + 2 * i))
    def dump_stamps(self):
        if not self.stamps: return
        a = self.a
        a('s_lshl_b32 s60, s2, 3\ns_add_u32 s60, s60, s%d\ns_lshl_b32 s60, s60, 6\ns_add_u32 s60, s60, %d' % (sWV, DBG))
        a('s_mov_b64 exec, -1\nv_mov_b32 v0, 0')
        a('s_memtime s[76:77]\n' + CLK + ' s[98:99]\ns_waitcnt lgkmcnt(0)\ns_sub_u32 s100, s76, s100')
        for k in range(11):
            a('v_mov_b32 v1, s%d\nbuffer_store_dword v1, v0, %s, s60 offen offset:%d' % (80 + 2 * k, WS_, 4 * k))
    def poll(self, load, check):
        L = self.lab('P'); E = self.lab('PE')
        self.a('s_mov_b32 s79, 0\n%s:\n%s\ns_add_u32 s79, s79, 1\ns_waitcnt vmcnt(0)\n%s\ns_cbranch_vccz %s\ns_sleep %d\ns_cmp_gt_u32 s79, %d\ns_cbranch_scc0 %s\n%s:' % (L, load, check, E, SLP, POLLMAX, L, E))
    def spoll(self, n, off):
        a = self.a
        D = list(range(64, 76)) + [16, 17, 18, 19]
        L = self.lab('SP'); E = self.lab('SE')
        a('s_add_u32 s22, s32, s%d\ns_addc_u32 s23, s33, 0\ns_mov_b32 s79, 0\n%s:' % (off, L))
        for i in range(n): a('s_load_dword s%d, s[22:23], %d glc' % (D[i], 128 * i))
        a('s_add_u32 s79, s79, 1\ns_waitcnt lgkmcnt(0)\ns_xor_b32 s76, s%d, s21' % D[0])
        for i in range(1, n): a('s_xor_b32 s77, s%d, s21\ns_or_b32 s76, s76, s77' % D[i])
        a('s_cbranch_scc0 %s\ns_sleep %d\ns_cmp_gt_u32 s79, %d\ns_cbranch_scc0 %s\n%s:' % (E, SLP, POLLMAX, L, E))
    def warm(self, pads, sel):
        a = self.a
        L = self.lab('WR')
        for p in pads:
            if p: assert p not in self.wret; self.wret[p] = L
        a('s_mov_b64 exec, 0')
        for i, p in enumerate(pads):
            if p: a('s_cmp_eq_u32 s%d, %d\ns_cbranch_scc1 PAD%s' % (sel, i, p))
        a('%s:\ns_mov_b64 exec, -1' % L)
    def nonce0(self): self.a('s_mov_b32 s76, %d\ns_load_dword s21, s[32:33], s76' % EP)
    def nonce2(self): return 's_mul_i32 s21, s21, 0x9e3779b1\ns_add_u32 s21, s21, 0x7f4a7c15'
    def flag(self, v, soff):
        return 's_mov_b64 exec, 0xff\nbuffer_store_dwordx4 v[%d:%d], v%d, %s, s%d offen sc1\ns_mov_b64 exec, -1' % (v, v + 3, v + 4, WS_, soff)
    def flag_regs(self, v):
        return ['v_mov_b32 v%d, s21' % (v + i) for i in range(4)] + ['v_lshlrev_b32 v%d, 4, v1' % (v + 4)]
    def prologue(self):
        a = self.a
        a('''s_cmp_ge_u32 s2, 256
        s_cbranch_scc1 L_END
        s_load_dwordx16 s[4:19], s[0:1], 0
        s_load_dwordx8 s[20:27], s[0:1], 64
        s_load_dwordx4 s[28:31], s[0:1], 96
        s_load_dwordx2 s[32:33], s[0:1], 112''')
        if self.stamps:
            a('s_memtime s[100:101]\n' + CLK + ' s[80:81]')
            for k in range(1, 10): a('s_mov_b32 s%d, 0' % (80 + 2 * k))
        if self.AMP: a('s_memrealtime s[96:97]\ns_memrealtime s[94:95]\ns_memrealtime s[92:93]')
        if 'span' in self.opts or any(o.startswith('pad=') for o in self.opts): a('s_memrealtime s[96:97]\ns_memtime s[100:101]')
        a('''v_lshrrev_b32 v2, 6, v0
        v_and_b32 v1, 63, v0
        s_and_b32 s35, s2, 7
        v_readfirstlane_b32 s34, v2
        s_lshr_b32 s36, s2, 3
        s_xor_b32 s34, s34, %d''' % (4 if SWAP else 0))
    def srds(self, wait=True):
        self.a('''s_mov_b32 s42, %d
        s_mov_b32 s43, 0x20000
        s_mov_b32 s46, %d
        s_mov_b32 s47, 0x20000
        s_mov_b32 s50, %d
        s_mov_b32 s51, 0x20000
        s_mov_b32 s54, %d
        s_mov_b32 s55, 0x20000
        s_mov_b32 s58, %d
        s_mov_b32 s59, 0x20000''' % (2048 * 1280, 640 * 3072, 1536 * 1280, WS_BYTES, 2048 * 1280))
        if wait: self.a('s_waitcnt lgkmcnt(0)')
        self.a('''s_mov_b32 s40, s4
        s_mov_b32 s41, s5
        s_mov_b32 s44, s20
        s_mov_b32 s45, s21
        s_mov_b32 s48, s24
        s_mov_b32 s49, s25
        s_mov_b32 s52, s32
        s_mov_b32 s53, s33
        s_mov_b32 s56, s28
        s_mov_b32 s57, s29''')
        self.stamp('srd')
    def g1_ids(self, rb, cb, rot, adv=0):
        self.a("""s_mul_i32 s68, s36, 43
        s_lshr_b32 s68, s68, 8
        s_mul_i32 s69, s68, 6
        s_sub_u32 s69, s36, s69
        s_lshr_b32 s64, s35, 1
        s_and_b32 s65, s35, 1
        s_lshl_b32 s{rb}, s64, 2
        s_add_u32 s{rb}, s{rb}, s68
        s_mul_i32 s{cb}, s65, 6
        s_add_u32 s{cb}, s{cb}, s69
        s_mov_b32 s{rot}, {adv}""".format(rb=rb, cb=cb, rot=rot, adv=adv))
        if QROT: self.a('s_add_u32 s64, s64, 1')
        for r, m in zip((68, 69, 64, 65), ROT):
            if m: self.a('s_mul_i32 s66, s%d, %d\ns_lshr_b32 s66, s66, 4\ns_add_u32 s%d, s%d, s66' % (r, m, rot, rot))
        self.a('s_mul_i32 s66, s{r}, 26\ns_lshr_b32 s66, s66, 8\ns_mul_i32 s66, s66, 10\ns_sub_u32 s{r}, s{r}, s66'.format(r=rot))
    def tile_ids(self):
        self.a("""s_cmp_ge_u32 s36, 10
        s_cselect_b32 s62, 1, 0
        s_mul_i32 s63, s62, 10
        s_sub_u32 s63, s36, s63
        s_lshl_b32 s66, s35, 1
        s_add_u32 s62, s62, s66""")
    def g1_voff(self, VX, VW, wv, rb, cb, t):
        a = self.a
        a("""s_lshl_b32 s76, s{rb}, 7
        s_lshl_b32 s77, s{wv}, 5
        s_add_u32 s76, s76, s77
        s_mul_i32 s76, s76, 1280
        v_lshrrev_b32 v{t0}, 3, v1
        v_mul_u32_u24 v{t0}, 1280, v{t0}
        v_lshrrev_b32 v{t1}, 4, v1
        v_xor_b32 v{t2}, v{t1}, v1
        v_and_b32 v{t2}, 7, v{t2}
        v_lshl_add_u32 v{t0}, v{t2}, 4, v{t0}
        v_add_u32 v{x0}, s76, v{t0}
        v_xor_b32 v{t0}, 64, v{x0}
        v_add_u32 v{x1}, {d1}, v{t0}
        v_add_u32 v{x2}, {d2}, v{x0}
        v_add_u32 v{x3}, {d3}, v{t0}
        s_mul_i32 s76, s{wv}, {w16}
        s_lshl_b32 s77, s{cb}, 8
        s_add_u32 s76, s76, s77
        v_mul_u32_u24 v{t0}, 3072, v{t1}
        v_lshlrev_b32 v{t2}, 2, v{t1}
        v_xor_b32 v{t2}, v{t2}, v1
        v_and_b32 v{t2}, 15, v{t2}
        v_lshl_add_u32 v{t0}, v{t2}, 4, v{t0}
        v_add_u32 v{w0}, s76, v{t0}
        v_xor_b32 v{t0}, 16, v{w0}
        v_add_u32 v{w1}, {e1}, v{w0}
        v_add_u32 v{w2}, {e2}, v{t0}
        v_add_u32 v{w3}, {e3}, v{t0}
        s_lshl_b32 s67, s{wv}, 12""".format(rb=rb, cb=cb, wv=wv, t0=t, t1=t + 1, t2=t + 2, x0=VX, x1=VX + 1, x2=VX + 2, x3=VX + 3, w0=VW, w1=VW + 1, w2=VW + 2, w3=VW + 3,
            d1=8 * 1280 - 1024, d2=16 * 1280 - 2048, d3=24 * 1280 - 3072, w16=16 * 3072, e1=4 * 3072 - 1024, e2=8 * 3072 - 2048, e3=12 * 3072 - 3072))
    def g1_dma(self, stage, VX, VW, rot, wfirst=False):
        idx = stage % 4
        lx, lw = [], []
        for i in range(4):
            pre = 's_add_u32 m0, s67, %d\ns_lshl_b32 s76, s%d, 7\n' % (idx * 16384, rot) if i == 0 else ''
            lx.append(pre + 'buffer_load_dwordx4 v%d, %s, s76 offen offset:%d lds' % (VX + i, X_, 1024 * i))
            pre = 's_add_u32 m0, s67, %d\ns_mul_i32 s77, s%d, %d\n' % (65536 + idx * 16384, rot, 64 * 3072) if i == 0 else ''
            lw.append(pre + 'buffer_load_dwordx4 v%d, %s, s77 offen offset:%d lds' % (VW + i, W1_, 1024 * i))
        l = lw + lx if wfirst else lx + lw
        l[7] += '\ns_add_u32 s{r}, s{r}, 1\ns_cmp_eq_u32 s{r}, 10\ns_cselect_b32 s{r}, 0, s{r}'.format(r=rot)
        return l
    def g2_offsets(self):
        a = self.a
        a('s_mul_i32 s4, s63, 77\ns_lshr_b32 s4, s4, 6\ns_lshl_b32 s4, s4, 10')
        for i in range(1, 12):
            a('s_add_u32 s%d, s%d, 1024\ns_cmp_eq_u32 s%d, 12288\ns_cselect_b32 s%d, 0, s%d' % (4 + i, 3 + i, 4 + i, 4 + i, 4 + i))
    def w2_voff(self, v0, wv, t):
        self.a("""s_lshr_b32 s76, s{wv}, 1
        s_mul_i32 s76, s76, {khs}
        s_and_b32 s77, s{wv}, 1
        s_mul_i32 s77, s77, {r16}
        s_add_u32 s76, s76, s77
        s_lshl_b32 s77, s63, 7
        s_add_u32 s76, s76, s77
        v_lshrrev_b32 v{t}, 3, v1
        v_mul_u32_u24 v{v0}, 1280, v{t}
        v_lshrrev_b32 v{t}, 4, v1
        v_lshlrev_b32 v{t}, 1, v{t}
        v_xor_b32 v{t}, v{t}, v1
        v_and_b32 v{t}, 7, v{t}
        v_lshl_add_u32 v{v0}, v{t}, 4, v{v0}
        v_add_u32 v{v0}, s76, v{v0}
        v_add_u32 v{v1}, {d}, v{v0}
        s_lshl_b32 s78, s{wv}, 11""".format(wv=wv, khs=24 * 32 * 1280, r16=16 * 1280, t=t, v0=v0, v1=v0 + 1, d=8 * 1280 - 1024))
    def w2_dma(self, step, slot, v0):
        part, i = step // 12, step % 12
        return ['s_add_u32 m0, s78, %d\ns_mul_i32 s76, s%d, 80\n%sbuffer_load_dwordx4 v%d, %s, s76 offen lds' % (slot * 8192, 4 + i, 's_add_u32 s76, s76, 40960\n' if part else '', v0, W2_),
                'buffer_load_dwordx4 v%d, %s, s76 offen offset:1024 lds' % (v0 + 1, W2_)]
    def w2_round(self, units, v0, thr=None):
        l = []
        for st, sl in units:
            d = self.w2_dma(st, sl, v0)
            if thr is not None: d[0] = 's_waitcnt vmcnt(%d)\n' % thr + d[0]
            l += d
        return l
    def gwave(self, entry=False):
        a = self.a
        NT = 4
        VX, VW, RX, RW = 16, 20, 24, 26
        VBA, VXR, VAA, VSA = 30, 128, 129, 130
        XB, WB = [32, 64], 96
        VB2, VXI = 12, 240
        T, P, KC = 208, 224, 228
        TR, RF, A2, HR = 4, 16, 144, 208
        acc1 = lambda mt, nt: 144 + 32 * (mt >> 1) + 8 * nt + 4 * (mt & 1)
        acc = lambda t, nt: A2 + 32 * (t >> 1) + 8 * nt + 4 * (t & 1)
        dma = lambda st, wf=False: self.g1_dma(st, VX, VW, 39, wf)
        if entry:
            a('s_setprio 1')
            self.g1_ids(37, 38, 39)
            self.g1_voff(VX, VW, 34, 37, 38, 2)
            a('s_mov_b32 s42, %d\ns_mov_b32 s43, 0x20000\ns_mov_b32 s46, %d\ns_mov_b32 s47, 0x20000\ns_waitcnt lgkmcnt(0)\ns_mov_b32 s40, s4\ns_mov_b32 s41, s5\ns_mov_b32 s44, s20\ns_mov_b32 s45, s21' % (2048 * 1280, 640 * 3072))
            for x in dma(0): a(x)
            self.stamp('d0')
            if GPOS == 1: a('s_branch L_G')
            return
        self.srds(False)
        self.nonce0()
        self.tile_ids()
        a('s_and_b32 s60, s34, 1\ns_lshr_b32 s61, s34, 1')
        a("""v_and_b32 v8, 31, v1
        v_lshrrev_b32 v9, 5, v1
        v_and_b32 v10, 15, v1
        v_lshrrev_b32 v11, 4, v1
        v_bfe_u32 v12, v1, 4, 1
        v_bfe_u32 v13, v1, 2, 2
        v_and_b32 v14, 3, v1""")
        a("""v_lshrrev_b32 v4, 1, v10
        v_xor_b32 v4, v4, v11
        v_lshlrev_b32 v4, 4, v4
        v_lshl_add_u32 v4, v10, 7, v4
        s_lshl_b32 s76, s61, 13
        v_add_u32 v{x0}, s76, v4
        v_xor_b32 v{x1}, 64, v{x0}""".format(x0=RX, x1=RX + 1))
        a("""v_lshl_add_u32 v5, v11, 3, v13
        v_lshlrev_b32 v5, 8, v5
        s_lshl_b32 s76, s60, 1
        v_xor_b32 v4, s76, v13
        v_lshl_add_u32 v5, v4, 6, v5
        v_lshrrev_b32 v4, 1, v14
        v_lshl_add_u32 v5, v4, 5, v5
        v_lshl_add_u32 v5, v12, 4, v5
        v_and_b32 v4, 1, v1
        v_lshl_add_u32 v5, v4, 3, v5
        v_add_u32 v{w0}, 0x10000, v5
        v_xor_b32 v{w1}, 16, v{w0}
        v_xor_b32 v{w2}, 64, v{w0}
        v_xor_b32 v{w3}, 80, v{w0}""".format(w0=RW, w1=RW + 1, w2=RW + 2, w3=RW + 3))
        a("""v_lshrrev_b32 v4, 3, v10
        v_lshlrev_b32 v4, 8, v4
        v_and_b32 v5, 7, v1
        v_lshl_add_u32 v4, v5, 4, v4
        v_lshlrev_b32 v5, 11, v11
        s_lshl_b32 s76, s60, 10
        s_add_u32 s76, s76, {lu}
        v_add3_u32 v{aa}, v4, v5, s76
        s_lshl_b32 s76, s61, 11
        s_add_u32 s76, s76, {st}
        v_lshl_add_u32 v{sa}, v10, 5, s76""".format(lu=L_U + 1024, st=L_ST, aa=VAA, sa=VSA))
        a("""v_lshlrev_b32 v2, 4, v1
        s_lshl_b32 s76, s37, 1
        s_add_u32 s76, s76, s61
        s_mul_i32 s68, s76, {b4}
        s_mul_i32 s3, s76, 3072
        s_lshl_b32 s76, s38, 1
        s_add_u32 s76, s76, s60
        s_lshl_b32 s77, s76, 10
        s_add_u32 s68, s68, s77
        s_add_u32 s68, s68, {hh}
        s_lshl_b32 s76, s76, 7
        s_add_u32 s3, s3, s76
        s_add_u32 s3, s3, {fh}""".format(b4=4 * 49152, hh=HH, fh=FH))
        a("""s_lshl_b32 s76, s62, 1
        s_add_u32 s76, s76, s61
        s_mul_i32 s72, s76, {r64}
        s_mul_i32 s73, s76, {b4}
        s_mul_i32 s66, s76, 3072
        s_mul_i32 s77, s60, 12288
        s_add_u32 s73, s73, s77
        s_add_u32 s73, s73, {hh}
        s_mul_i32 s77, s60, 1536
        s_add_u32 s66, s66, s77
        s_add_u32 s66, s66, {fh}
        s_min_u32 s76, s63, 9
        s_lshl_b32 s76, s76, 7
        s_lshl_b32 s77, s60, 6
        s_add_u32 s76, s76, s77
        s_add_u32 s72, s72, s76
        v_lshlrev_b32 v4, 5, v12
        v_lshl_add_u32 v4, v9, 4, v4
        v_add_u32 v{ba}, s76, v4""".format(r64=64 * 1280, b4=4 * 49152, hh=HH, fh=FH, ba=VBA + 1))
        a("""v_lshl_add_u32 v4, v12, 1, v9
        s_lshl_b32 s76, s60, 2
        v_lshrrev_b32 v5, 1, v10
        v_xor_b32 v4, v4, v5
        v_xor_b32 v4, s76, v4
        v_lshlrev_b32 v4, 4, v4
        v_lshl_add_u32 v4, v10, 7, v4
        s_mul_i32 s76, s61, 8320
        s_add_u32 s76, s76, %d
        v_add_u32 v%d, s76, v4""" % (L_TAB, VXR))
        a("""v_lshl_add_u32 v15, v12, 2, v13
        v_lshrrev_b32 v5, 1, v15
        v_lshl_add_u32 v15, v9, 4, v15
        v_lshlrev_b32 v15, 7, v15
        s_lshl_b32 s76, s60, 1
        v_xor_b32 v5, s76, v5
        v_lshl_add_u32 v15, v5, 5, v15
        v_lshl_add_u32 v15, v14, 3, v15
        s_lshl_b32 s76, s60, 12
        s_add_u32 s76, s76, 0x10000
        v_add_u32 v4, s76, v15
        v_xor_b32 v5, 32, v4
        v_xor_b32 v6, 64, v4
        v_xor_b32 v7, 96, v4""")
        self.w2_voff(8, sWV, 10)
        self.g2_offsets()
        a('global_load_dwordx4 v[%d:%d], v%d, s[26:27]' % (VB2, VB2 + 3, VBA + 1))
        for x in dma(1, WFIRST): a(x)
        self.stamp('d1')
        if WARM & 2:
            for l in WG: self.warm(l, 34)
        d2 = dma(2) + dma(3)
        for x in d2[:PRE2]: a(x)
        if GT:
            a('''s_lshl_b32 s70, s36, 2
            s_add_u32 s70, s70, s34
            s_mul_i32 s70, s70, {n}
            s_mul_i32 s71, s35, 1920
            s_add_u32 s70, s70, s71
            v_min_u32 v131, {n1}, v1
            v_add_lshl_u32 v131, v131, s70, 7
            v_add_u32 v132, {w}, v131
            v_min_u32 v131, v131, v132
            buffer_load_dword v132, v131, {w2}, 0 offen'''.format(n=GT, n1=GT - 1, w=-15360 * 128, w2=W2_))
        self.stamp('d2')
        def xreads(st):
            return ['ds_read_b128 v[%d:%d], v%d offset:%d' % (XB[st & 1] + 8 * nt + 4 * ks, XB[st & 1] + 8 * nt + 4 * ks + 3, RX + ks, (st % 4) * 16384 + 2048 * nt) for nt in range(4) for ks in range(2)]
        def wreads(st, p):
            return ['ds_read_b64_tr_b16 v[%d:%d], v%d offset:%d' % (WB + 8 * mt + 4 * ks + 2 * e, WB + 8 * mt + 4 * ks + 2 * e + 1, RW + mt, (st % 4) * 16384 + 8192 * ks + 1024 * e)
                    for mt in (2 * p, 2 * p + 1) for ks in range(2) for e in range(2)]
        def mfmas(st, p):
            l = []
            for mt in (2 * p, 2 * p + 1):
                for nt in range(4):
                    for ks in range(2):
                        c = 'v[%d:%d]' % (acc1(mt, nt), acc1(mt, nt) + 3); w = WB + 8 * mt + 4 * ks; x = XB[st & 1] + 8 * nt + 4 * ks
                        l.append('v_mfma_f32_16x16x32_bf16 %s, v[%d:%d], v[%d:%d], %s' % (c, w, w + 3, x, x + 3, '0' if st == 0 and ks == 0 else c))
            return l
        def weave(mm, rd, n2):
            for i, m in enumerate(mm):
                a(m)
                k = 2 if i < n2 else 1
                for x in rd[:k]: a(x)
                rd = rd[k:]
            assert not rd
        def trreads(buf, slot, TR=TR):
            return ['ds_read_b64_tr_b16 v[%d:%d], v%d offset:%d' % (RF + 16 * buf + 4 * t + 2 * e, RF + 16 * buf + 4 * t + 2 * e + 1, TR + t, (slot % 8) * 8192 + 1024 * e) for t in range(4) for e in range(2)]
        AUA, AUB = XB[0], XB[0] + 16
        auxr = ['ds_read_b128 v[%d:%d], v%d offset:%d' % (AUA + 4 * mt, AUA + 4 * mt + 3, VAA, 512 * (mt >> 1) + 128 * (mt & 1)) for mt in range(4)]
        auxr += ['ds_read_b128 v[%d:%d], v%d offset:%d' % (AUB + 4 * nt, AUB + 4 * nt + 3, VSA, 512 * nt) for nt in range(4)]
        auxr += ['ds_read_b64 v[%d:%d], v%d offset:%d' % (KC + 2 * nt, KC + 2 * nt + 1, VSA, 512 * nt + 16) for nt in range(4)]
        auxr += ['ds_read_b32 v%d, v%d offset:%d' % (KC + 8 + nt, VSA, 512 * nt + 24) for nt in range(4)]
        vm = [0] * 8 + ['b'] + [1] * 8 + ([2] * 8 + [3] * 8)[:PRE2] + ['t'] * (GT > 0)
        assert PRE2 >= 8
        for st in range(11):
            self.stamp('a%d' % st)
            w = ''
            if st in vm:
                k = len(vm) - vm[::-1].index(st); vm = vm[k:]; w = 'vmcnt(%d) ' % len(vm)
            a('s_waitcnt %slgkmcnt(0)' % w)
            self.stamp('w%d' % st)
            a('s_barrier')
            self.stamp('b%d' % st)
            if st == 10: break
            w0, xr = wreads(st, 0), xreads(st)
            rd = w0[:4] + xr + w0[4:]
            if st == 0:
                for x in rd: a(x)
                a(self.nonce2())
            elif st == 1:
                d3 = dma(4); vm += [4] * 8; weave(mfmas(0, 1), rd + d3[:4], 6)
            else: weave(mfmas(st - 1, 1), rd, N2)
            a('s_waitcnt lgkmcnt(0)')
            rd = wreads(st, 1)
            if st == 0: rd += d2[PRE2:]; vm += [3] * (16 - PRE2)
            if st == 1: rd = interleave(rd, d3[4:], every=2)
            if st == 7: rd += ['ds_read_b128 v[%d:%d], v%d offset:%d' % (VXI + 4 * nt, VXI + 4 * nt + 3, VXR, 4160 * (nt >> 1) + 2048 * (nt & 1)) for nt in range(NT)]
            if st == 5: rd += ['v_add_u32 v%d, 0xffff0000, v%d' % (16 + t, TR + t) for t in range(4)]
            if st == 9: rd += auxr
            weave(mfmas(st, 0), rd, 12 if st == 9 else 0)
        if not SPLIT: weave(mfmas(9, 1), trreads(5, RSLOT[5]) + trreads(7, RSLOT[7]), 0)
        am = []
        for p in (0, 1):
            for nt in range(4):
                for mt in (2 * p, 2 * p + 1):
                    c = 'v[%d:%d]' % (acc1(mt, nt), acc1(mt, nt) + 3)
                    am.append('v_mfma_f32_16x16x32_bf16 %s, v[%d:%d], v[%d:%d], %s' % (c, AUA + 4 * mt, AUA + 4 * mt + 3, AUB + 4 * nt, AUB + 4 * nt + 3, c))
        if SPLIT: weave(am[:8], trreads(5, RSLOT[5]), 0)
        else: weave(am, trreads(3, RSLOT[3], 16) + trreads(4, RSLOT[4], 16), 0)
        self.stamp(5)
        def gelu(part, nt):
            q = acc1(2 * part, nt); k = KC + 2 * nt; dl = KC + 8 + (nt & 2); o = nt & 1; t = T + 8 * (nt & 1)
            pr = lambda b, i: 'v[%d:%d]' % (b + 2 * i, b + 2 * i + 1)
            A = ['v_pk_mul_f32 %s, %s, %s' % (pr(t, i), pr(q, i), pr(q, i)) for i in range(4)]
            B = ['v_pk_fma_f32 %s, %s, v[%d:%d], v[%d:%d] op_sel:[0,0,1] op_sel_hi:[1,0,1]' % (pr(t, i), pr(t, i), k, k + 1, k, k + 1) for i in range(4)]
            C = ['v_pk_mul_f32 %s, %s, %s' % (pr(t, i), pr(t, i), pr(q, i)) for i in range(4)]
            E = ['v_exp_f32 v%d, v%d' % (t + i, t + i) for i in range(8)]
            D = ['v_pk_fma_f32 %s, %s, v[%d:%d], v[%d:%d] op_sel:[0,%d,%d] op_sel_hi:[1,%d,%d]' % (pr(t, i), pr(t, i), dl, dl + 1, dl, dl + 1, o, o, o, o) for i in range(4)]
            R = ['v_rcp_f32 v%d, v%d' % (t + i, t + i) for i in range(8)]
            Gc = ['v_cvt_pk_bf16_f32 v%d, v%d, v%d' % (P + i, t + 2 * i, t + 2 * i + 1) for i in range(4)]
            Gc[2] += '\ns_add_u32 s69, s68, %d' % (nt * 49152 + part * 24576)
            Gc[3] += '\nbuffer_store_dwordx4 v[%d:%d], v2, %s, s69 offen sc1' % (P, P + 3, WS_) if 'nost' not in self.opts else '\ns_nop 0 ; buffer_store'
            return A, B, C, E, D, R, C, Gc
        def gelu_stream(tiles):
            A, B, C, E, D, R, F, Gc = [sum((gelu(*t)[i] for t in tiles), []) for i in range(8)]
            g = lambda L, j: [L[j]] if 0 <= j < len(L) else []
            return [g(A, i + 2) + g(E, 2 * i) + g(B, i + 2) + g(E, 2 * i + 1) + g(C, i + 2) + g(D, i - 1) + g(R, 2 * i - 4) + g(F, i - 3) + g(R, 2 * i - 3) + g(Gc, i - 4)
                    for i in range(-2, 4 * len(tiles) + 4)]
        FV = 144
        flag = self.flag(FV, 3) + '\ns_add_u32 s3, s3, %d' % (32 * 3072)
        rr = []
        for b in (6, 1, 2, 0): rr += trreads(b, RSLOT[b])
        rr[16] = '\n'.join('v_add_u32 v%d, 0xffff0000, v%d' % (r, r) for r in range(4, 8)) + '\n' + rr[16]
        nst = 0
        gs = gelu_stream([(p, nt) for p in range(2) for nt in range(4)])
        if SPLIT: gs = gelu_stream([(0, nt) for nt in range(4)]) + gelu_stream([(1, nt) for nt in range(4)])
        for i, grp in enumerate(gs):
            if SPLIT and i == 22:
                weave(mfmas(9, 1), trreads(7, RSLOT[7]), 0)
                weave(am[8:], trreads(3, RSLOT[3], 16) + trreads(4, RSLOT[4], 16), 8)
            if i == B0P: a('s_waitcnt lgkmcnt(0)\ns_barrier')
            if i == 22: self.stamp('t2')
            if i == FLAG0:
                assert nst >= 4
                for x in self.flag_regs(FV): a(x)
                self.stamp('t3')
                a('s_waitcnt vmcnt(%d)' % (nst - 4)); a(flag); self.stamp('f0')
            if i == 10: self.stamp('t1')
            if i >= B1P and (i - B1P) % RBE == 0:
                for x in rr[:RBU]:
                    if 'norr' not in self.opts: a(x)
                rr = rr[RBU:]
            for x in grp:
                a(x); nst += 'buffer_store' in x
        assert not rr
        self.stamp(6)
        a('s_waitcnt lgkmcnt(0)\ns_barrier')
        self.stamp(7)
        a("""s_cmp_lt_u32 s36, 20
        s_cbranch_scc1 L_G2
        s_waitcnt vmcnt(0)
        {flag}""".format(flag=flag))
        if HPRE:
            a('''s_sub_u32 s76, s36, 20
            s_lshl_b32 s77, s35, 2
            s_add_u32 s76, s76, s77
            s_mul_i32 s16, s76, 3072
            s_add_u32 s16, s16, {f1}
            s_lshl_b32 s76, s76, 2
            s_add_u32 s76, s76, s34
            s_mul_i32 s17, s76, 49152
            s_add_u32 s17, s17, {h1}
            v_min_u32 v10, 23, v1
            v_lshlrev_b32 v10, 7, v10
            v_lshlrev_b32 v12, 7, v1
            s_waitcnt vmcnt(0)
            s_barrier'''.format(f1=FH + 32 * 3072, h1=HH + 24576))
            self.poll('buffer_load_dword v11, v10, %s, s16 offen sc1' % WS_, 'v_cmp_ne_u32 vcc, s21, v11')
            for i in range(3): a('buffer_load_dword v%d, v12, %s, s17 offen sc1\ns_add_u32 s17, s17, 8192' % (13 + i, WS_))
        a('s_branch L_FIN\nL_G2:')
        ini = []
        for r in [VB2] + [VXI + 4 * nt for nt in range(NT)]:
            ini += ['v_permlane16_swap_b32 v%d, v%d' % (r, r + 2), 'v_permlane16_swap_b32 v%d, v%d' % (r + 1, r + 3)]
        for i in range(4):
            ini += ['v_lshlrev_b32 v%d, 16, v%d' % (T + 2 * i, VB2 + i), 'v_and_b32 v%d, 0xffff0000, v%d' % (T + 2 * i + 1, VB2 + i)]
        for nt in range(NT):
            for i in range(4):
                s = VXI + 4 * nt + i; o = acc(0, nt) + 2 * i
                ini += ['v_lshlrev_b32 v%d, 16, v%d' % (o, s), 'v_and_b32 v%d, 0xffff0000, v%d' % (o + 1, s),
                        'v_add_f32 v%d, v%d, v%d' % (o, o, T + 2 * i), 'v_add_f32 v%d, v%d, v%d' % (o + 1, o + 1, T + 2 * i + 1)]
        hpl = 'buffer_load_dword v2, v10, %s, s66 offen sc1' % WS_; hchk = 'v_cmp_ne_u32 vcc, s21, v2'
        a('v_min_u32 v10, 11, v1\nv_lshlrev_b32 v10, 7, v10')
        flag = self.flag(176, 3)
        for x in self.flag_regs(176): a(x)
        dm = self.w2_round([(RF0 + LSLOT.index(k), k) for k in R3ORD[E3:]], 8)
        d1 = dm[:NPH]
        d1.insert(PPOS, hpl)
        d1.insert(FLAG1, 's_waitcnt vmcnt(%d)\n' % FLAG1 + flag)
        for x in interleave(d1, ini, per=IPER): a(x)
        Lok = self.lab('OK')
        self.stamp('f1')
        a('s_waitcnt vmcnt(%d)\n%s\ns_cbranch_vccz %s' % (len(d1) - 1 - d1.index(hpl), hchk, Lok))
        self.poll(hpl, hchk)
        a('%s:' % Lok)
        self.stamp(10)
        a("""v_lshl_add_u32 v12, v1, 4, s73
        v_add_u32 v13, 49152, v12
        v_add_u32 v14, %d, v12
        v_add_u32 v15, %d, v12""" % (2 * 49152, 3 * 49152))
        RING = 3 * NT; NJ = 24 * NT
        def hload(j):
            s, nt = (2 * (j // 8) + (j & 1), (j >> 1) & 3) if PAIR else (j // NT, j % NT)
            r = HR + 4 * (j % RING)
            if 'noh' in self.opts and j >= RING: return 's_nop 0'
            if 'hsame' in self.opts: return 'buffer_load_dwordx4 v[%d:%d], v%d, %s, s%d offen sc1' % (r, r + 3, 12 + nt, WS_, 4 + s % 3)
            return ('v_add_u32 v%d, 24576, v%d\n' % (12 + nt, 12 + nt) if s == 12 else '') + 'buffer_load_dwordx4 v[%d:%d], v%d, %s, s%d offen %s' % (r, r + 3, 12 + nt, WS_, 4 + s % 12, '' if 'hplain' in self.opts else 'sc1')
        RING = 3 * NT; NJ = 24 * NT
        for j in range(RING): a(hload(j))
        for x in dm[NPH:]: a(x)
        self.stamp(8)
        a("""s_lshl_b32 s76, s34, 13
        v_lshl_add_u32 v2, v1, 4, s76
        v_bfe_u32 v10, v1, 2, 3
        s_lshl_b32 s76, s61, 2
        v_xor_b32 v10, s76, v10
        v_lshlrev_b32 v10, 5, v10
        v_lshrrev_b32 v11, 2, v1
        v_lshl_add_u32 v10, v11, 8, v10
        v_and_b32 v11, 3, v1
        v_lshl_add_u32 v10, v11, 3, v10
        s_mul_i32 s16, s60, 8320
        s_add_u32 s16, s16, %d
        v_lshrrev_b32 v8, 2, v1
        v_mul_u32_u24 v3, 1280, v8
        v_lshl_add_u32 v3, v11, 4, v3
        v_mul_u32_u24 v9, 80, v8
        v_lshl_add_u32 v9, v11, 4, v9
        s_lshl_b32 s76, s34, 13
        s_add_u32 s76, s76, 32768
        v_add_u32 v9, s76, v9
        v_and_b32 v8, 15, v1
        v_mul_u32_u24 v8, 80, v8
        v_lshrrev_b32 v11, 4, v1
        v_lshl_add_u32 v8, v11, 3, v8
        v_add_u32 v8, s76, v8""" % L_TAB)
        self.stamp(9)
        def wbuf(s): return s if s < RF0 else (s - 16 if s >= 16 + RF0 else (s & 1))
        vm = list(range(RING)) + ['D'] * max(0, len(dm) - NPH)
        assert NL1 == 8
        AZ = RF
        JF = 12 * NT - RING + 1
        extra = []
        for p in range(12 if PAIR else 0):
            assert RF0 == 4
            wb2 = lambda z: RF + 16 * (z if z < 4 else z - 16 if z >= 20 else z & 3)
            rd = []
            if 1 <= p <= 8:
                if p in (3, 7):
                    for r in range(4, 8): a('v_add_u32 v%d, %s, v%d' % (r, '0x10000' if p == 3 else '0xffff0000', r))
                for z in (2 * p + 2, 2 * p + 3): rd += trreads(z & 3, LSLOT[z - 4])
            if p == 9: extra = ['v_xor_b32 v%d, %d, v10' % (4 + nt, 32 * nt) for nt in range(NT)] + ['v_add_u32 v%d, s16, v%d' % (4 + nt, 4 + nt) for nt in range(NT)]
            wl = 2 <= p <= 9
            order = [(nt, t, zi) for nt in range(NT) for t in range(4) for zi in range(2)]
            if p == 11: order = [(nt, t, zi) for tt in ((2, 3), (0, 1)) for nt in range(NT) for t in tt for zi in range(2)]
            nw = 0
            for k, (nt, t, zi) in enumerate(order):
                j = 8 * p + 2 * nt; z = 2 * p + zi
                if j + 1 in vm:
                    n = len(vm) - 1 - vm.index(j + 1); vm = vm[vm.index(j + 1) + 1:]
                    a('s_waitcnt vmcnt(%d)' % n + (' lgkmcnt(0)' if wl else '')); wl = False
                r = HR + 4 * ((j + zi) % RING)
                c = 'v[%d:%d]' % (acc(t, nt), acc(t, nt) + 3)
                a('v_mfma_f32_16x16x32_bf16 %s, v[%d:%d], v[%d:%d], %s' % (c, wb2(z) + 4 * t, wb2(z) + 4 * t + 3, r, r + 3, '0' if (z == 0 and t >= 2) else c))
                if p == 11:
                    if k >= 16 and k % 2 == 0:
                        a('ds_write_b128 v2, v[%d:%d] offset:%d' % (acc(2 + (nw & 1), nw // 2), acc(2 + (nw & 1), nw // 2) + 3, 1024 * nw)); nw += 1
                    continue
                g = k & 7; jn = j - 2 + RING + (g == LG[1])
                if g in LG and j >= 2 and jn < NJ:
                    if jn == 48:
                        assert 'D' not in vm; a('s_barrier')
                    a(hload(jn)); vm.append(jn)
                    if jn == NJ - 1 - SAP: a('s_barrier')
                elif rd: a(rd.pop(0))
                elif extra: a(extra.pop(0))
            assert not rd
            if p == 0: self.stamp(11)
            self.stamp('s%d' % (2 * p + 1))
        for s in range(0 if PAIR else 24):
            wb = RF + 16 * wbuf(s); nxt = s + 1; rd = []
            if RF0 <= nxt < 16 + RF0:
                if nxt in (RF0 + 4, RF0 + 12): extra += ['v_add_u32 v%d, %s, v%d' % (r, '0x10000' if nxt == RF0 + 4 else '0xffff0000', r) for r in range(4, 8)]
                rd = trreads(wbuf(nxt), LSLOT[nxt - RF0])
            if s == 16 + RF0: extra += ['v_xor_b32 v%d, %d, v10' % (4 + nt, 32 * nt) for nt in range(NT)] + ['v_add_u32 v%d, s16, v%d' % (4 + nt, 4 + nt) for nt in range(NT)]
            if s == 9:
                assert 'D' not in vm and JF >= 9 * NT
                a('s_barrier')
            if nxt in (RF0 + 4, RF0 + 12):
                for x in extra: a(x)
                extra = []
            wl = RF0 <= s < 16 + RF0
            order = [(s, nt, t) for nt in range(NT) for t in range(4)]
            if s > 24 - NFIN: continue
            if s == 24 - NFIN: order = [(z, nt, t) for tt in ((2, 3), (0, 1)) for z in range(s, 24) for nt in range(NT) for t in tt]
            nw = 0
            for k, (z, nt, t) in enumerate(order):
                j = z * NT + nt; wb = RF + 16 * wbuf(z)
                if j in vm:
                    n = len(vm) - 1 - vm.index(j); vm = vm[vm.index(j) + 1:]
                    a('s_waitcnt vmcnt(%d)' % n + (' lgkmcnt(0)' if wl else '')); wl = False
                r = HR + 16 * (z % 3) + 4 * nt
                c = 'v[%d:%d]' % (acc(t, nt), acc(t, nt) + 3)
                a('v_mfma_f32_16x16x32_bf16 %s, v[%d:%d], v[%d:%d], %s' % (c, wb + 4 * t, wb + 4 * t + 3, r, r + 3, '0' if (s == 0 and t >= 2) else c))
                if s == 24 - NFIN:
                    k2 = k - len(order) // 2
                    if k2 >= 0 and k2 % NFIN == 0:
                        a('ds_write_b128 v2, v[%d:%d] offset:%d' % (acc(2 + (nw & 1), nw // 2), acc(2 + (nw & 1), nw // 2) + 3, 1024 * nw)); nw += 1
                    continue
                if t == 1 and j >= 1 and j - 1 + RING < NJ:
                    a(hload(j - 1 + RING)); vm.append(j - 1 + RING)
                    if j == SA: a('s_barrier')
                elif rd and t != 3: a(rd.pop(0))
                elif rd and nt < 2: a(rd.pop(0))
                elif extra and t != 3:
                    a(extra.pop(0))
                    if extra: a(extra.pop(0))
            assert not rd
            if s == 0: self.stamp(11)
            self.stamp('s%d' % s)
        self.stamp(12)
        for x in extra: a(x)
        a('v_xor_b32 v2, 0x2000, v2')
        a('s_waitcnt lgkmcnt(0)\ns_barrier')
        self.stamp(13)
        for nt in range(NT):
            for t in range(2):
                a('ds_read_b64_tr_b16 v[%d:%d], v%d offset:%d' % (AZ + 32 + 4 * nt + 2 * t, AZ + 33 + 4 * nt + 2 * t, 4 + nt, 4160 * t))
                a('ds_read_b128 v[%d:%d], v2 offset:%d' % (acc(2 + t, nt), acc(2 + t, nt) + 3, 1024 * (2 * nt + t)))
        lg = [('i', nt) for nt in range(NT) for _ in range(4)]
        def lwait(tag):
            if tag in lg:
                k = len(lg) - lg[::-1].index(tag); del lg[:k]; a('s_waitcnt lgkmcnt(%d)' % len(lg))
        def store(nt):
            a('s_add_u32 s76, s72, %d' % (nt * 16 * 1280)); lwait(('o', nt))
            a('buffer_store_dwordx4 v[%d:%d], v3, %s, s76 offen %s' % (HR + 4 * nt + 16, HR + 4 * nt + 19, OUT_, OUTAUX))
        for nt in range(NT):
            lwait(('i', nt))
            o = HR + 4 * nt; k = acc(0, nt)
            for d in range(4): a('v_lshlrev_b32 v%d, 16, v%d\nv_and_b32 v%d, 0xffff0000, v%d' % (AZ + 2 * d, AZ + 32 + 4 * nt + d, AZ + 2 * d + 1, AZ + 32 + 4 * nt + d))
            for d in range(4): a('v_pk_add_f32 v[%d:%d], v[%d:%d], v[%d:%d]' % (k + 2 * d, k + 2 * d + 1, k + 2 * d, k + 2 * d + 1, k + 32 + 2 * d, k + 33 + 2 * d))
            for d in range(4): a('v_pk_add_f32 v[%d:%d], v[%d:%d], v[%d:%d]' % (k + 2 * d, k + 2 * d + 1, k + 2 * d, k + 2 * d + 1, AZ + 2 * d, AZ + 2 * d + 1))
            for d in range(4): a('v_cvt_pk_bf16_f32 v%d, v%d, v%d' % (o + d, k + 2 * d, k + 2 * d + 1))
            for t in range(2): a('ds_write_b64 v8, v[%d:%d] offset:%d' % (o + 2 * t, o + 2 * t + 1, 1280 * nt + 32 * t))
            a('ds_read_b128 v[%d:%d], v9 offset:%d' % (o + 16, o + 19, 1280 * nt))
            lg += ['w', 'w', ('o', nt)]
            if nt: store(nt - 1)
        store(NT - 1)
        self.stamp(14)
        a('s_branch L_FIN')

    def sn_entry(self):
        a = self.a
        a("""s_setprio 3
        s_cmp_ge_u32 s36, 24
        s_cselect_b32 s37, 1, 0
        s_cselect_b32 s76, 3, 1
        s_cselect_b32 s77, -48, 0
        s_lshr_b32 s78, s34, 1
        s_and_b32 s78, s78, s76
        s_add_u32 s76, s37, 1
        s_lshl_b32 s76, s36, s76
        s_mul_i32 s61, s35, 80
        s_add_u32 s61, s61, s76
        s_add_u32 s61, s61, s77
        s_add_u32 s61, s61, s78
        s_mul_i32 s76, s61, 384
        v_and_b32 v7, 31, v1
        v_mul_u32_u24 v2, 12, v7
        v_add_u32 v2, s76, v2
        s_lshl_b32 s66, s61, 1
        s_and_b32 s66, s66, 0xfffc""")
        if 'nocp' not in self.opts:
            L = self.lab('CP')
            a("""s_lshl_b32 s76, s37, 3
            s_add_u32 s76, s76, s34
            s_cmp_eq_u32 s76, 12
            s_cbranch_scc0 {L}
            s_getpc_b64 s[68:69]
            {L}pc:
            s_sub_u32 s68, s68, {L}pc-{n}
            s_subb_u32 s69, s69, 0
            s_sub_u32 s76, s36, 24
            s_mul_i32 s76, s76, 5120
            v_min_u32 v7, 39, v1
            v_lshl_add_u32 v7, v7, 7, s76
            v_min_u32 v7, L_END-{n}, v7
            global_load_dword v255, v7, s[68:69]
            {L}:""".format(L=L, n=NAME))
        a('s_waitcnt lgkmcnt(0)')
        for k, p in enumerate((6, 8, 10, 12)):
            a('global_load_dwordx3 v[%d:%d], v2, s[%d:%d]' % (16 + 4 * k, 18 + 4 * k, p, p + 1))
        a('s_load_dword s72, s[14:15], s66\ns_load_dword s73, s[16:17], s66')
        self.stamp('pl')
        if PLOW: a('s_setprio 0')
        self.srds(False)
        self.nonce0()
        a("""s_and_b32 s60, s34, 1
        s_mov_b32 s38, {t1}
        s_mov_b32 s39, {u1}
        s_cmp_eq_u32 s37, 0
        s_cselect_b32 s38, {t0}, s38
        s_cselect_b32 s39, {u0}, s39
        s_mul_i32 s76, s78, 8320
        s_add_u32 s38, s38, s76
        s_lshr_b32 s76, s78, 1
        s_mul_i32 s76, s76, 9216
        s_and_b32 s77, s78, 1
        s_lshl_b32 s77, s77, 9
        s_add_u32 s39, s39, s76
        s_add_u32 s39, s39, s77
        s_lshl_b32 s62, s35, 3
        s_add_u32 s62, s62, s36
        s_sub_u32 s62, s62, 24
        s_lshl_b32 s63, s62, 5
        s_lshl_b32 s76, s34, 2
        s_add_u32 s63, s63, s76
        s_mul_i32 s64, s63, 1280
        v_mov_b32 v14, 0
        v_mov_b32 v15, 0
        v_lshrrev_b32 v4, 4, v1
        v_and_b32 v5, 15, v1
        v_mul_u32_u24 v6, 1280, v4
        v_lshl_add_u32 v248, v5, 4, v6""".format(t0=L_TAB, t1=N_TAB, u0=L_U, u1=N_U))
        a('s_cmp_lt_u32 s34, 4\ns_cselect_b32 s19, %d, %d\ns_cmp_eq_u32 s37, 0\ns_cselect_b32 s19, 3, s19' % tuple(LNP))
        if XEARLY: self.xloads()
        a('''s_sub_u32 s76, s36, 24
        s_lshl_b32 s76, s76, 3
        s_add_u32 s76, s76, s34
        s_mul_i32 s76, s76, {n}
        s_mul_i32 s77, s35, 1920
        s_add_u32 s76, s76, s77
        s_add_u32 s76, s76, {g}
        v_min_u32 v249, {n1}, v1
        v_add_lshl_u32 v249, v249, s76, 7'''.format(n=NLN, n1=NLN - 1, g=96 * GT))
        EX = 196 + 6; a = self.a
        a("""s_xor_b32 s76, s60, 1
        s_mul_i32 s76, s76, 4160
        s_add_u32 s76, s76, s38
        v_lshl_add_u32 v{e0}, v1, 4, s76
        s_mul_i32 s76, s60, 4160
        s_add_u32 s76, s76, s38
        v_lshl_add_u32 v{e1}, v1, 4, s76
        v_mov_b32 v{e3}, s76
        s_add_u32 s76, s76, 1008
        v_lshlrev_b32 v5, 4, v1
        v_sub_u32 v{e2}, s76, v5
        v_mov_b32 v8, 0
        v_mov_b32 v9, 0
        v_mov_b32 v10, 0
        v_mov_b32 v11, 0
        v_lshl_add_u32 v6, v1, 3, s39
        ds_write_b64 v6, v[8:9]
        s_mov_b64 exec, 7
        ds_write_b128 v{e1}, v[8:11] offset:4096
        s_mov_b64 exec, -1""".format(e0=EX, e1=EX + 1, e2=EX + 2, e3=EX + 3))
    def xloads(self):
        a = self.a
        Lx = self.lab('NX')
        a('s_cmp_eq_u32 s37, 0\ns_cbranch_scc1 %s' % Lx)
        for i in range(5): a('buffer_load_dwordx4 v[%d:%d], v248, %s, s64 offen offset:%d' % (XI + 4 * i, XI + 4 * i + 3, X_, 256 * i))
        a('%s:' % Lx)
    def cmul(self, d, x, w):
        return ['v_pk_mul_f32 v[%d:%d], v[%d:%d], v[%d:%d] op_sel:[1,1] op_sel_hi:[0,1] neg_lo:[0,1]' % (d[0], d[1], x[0], x[1], w[0], w[1]),
                'v_pk_fma_f32 v[%d:%d], v[%d:%d], v[%d:%d], v[%d:%d] op_sel_hi:[1,0,1]' % (d[0], d[1], x[0], x[1], w[0], w[1], d[0], d[1])]
    def scode(self):
        a = self.a
        tag = 'S'
        SELB, SELA, KA = 32, 40, 52
        FRG = 68
        PB, PA = 68, 84
        DB, DA = 100, 132
        FB, FA2 = 164, 180
        VV = 196
        DT, D2, SC1, SC2 = 48, 49, 50, 51
        a("""v_lshrrev_b32 v3, 5, v1
        v_cmp_eq_u32 s[74:75], 1, v3
        v_bfe_u32 v4, v1, 4, 1
        v_and_b32 v5, 15, v1
        v_cmp_eq_u32 vcc, v3, v4
        v_cndmask_b32 v5, 64, v5, vcc
        v_and_b32 v6, 3, v1
        v_bfe_u32 v7, v1, 3, 2
        v_lshl_add_u32 v6, v7, 2, v6
        v_add_u32 v7, 1, v6
        v_and_b32 v7, 12, v7
        v_and_b32 v8, 9, v6
        v_cmp_eq_u32 vcc, 1, v8
        s_and_b64 vcc, vcc, s[74:75]
        v_cndmask_b32 v6, v6, v7, vcc
        v_bfe_u32 v4, v1, 2, 1
        v_cmp_eq_u32 vcc, v3, v4
        v_cndmask_b32 v6, 64, v6, vcc
        v_mov_b32 v9, 0x3f80""")
        for v, sel in ((5, SELB), (6, SELA)):
            a('v_and_b32 v7, 1, v{v}\nv_lshlrev_b32 v7, 4, v7\nv_lshlrev_b32 v7, v7, v9\nv_lshrrev_b32 v8, 1, v{v}'.format(v=v))
            for d in range(0, 8, 2):
                a('v_cmp_eq_u32 vcc, %d, v8\nv_cmp_eq_u32 s[76:77], %d, v8\nv_nop\nv_cndmask_b32 v%d, 0, v7, vcc\nv_cndmask_b32 v%d, 0, v7, s[76:77]' % (d, d + 1, sel + d, sel + d + 1))
        EX = VV + 6
        if WARM & 1:
            a('s_and_b32 s3, s34, 3'); self.warm(['S0', 'S1', 'S2', 'S3'][:WS0], 3)
        a("""v_mov_b32 v4, 0x41000000
        v_mov_b32 v5, 0x43000000
        v_cndmask_b32 v{s1}, v4, v5, s[74:75]
        v_mov_b32 v5, 0x43800000
        v_cndmask_b32 v{s2}, 1.0, v5, s[74:75]
        s_and_b32 s76, s61, 1
        s_xor_b32 s76, s76, 1
        s_lshl_b32 s76, s76, 4
        s_mul_i32 s77, s60, 0x02020000
        s_add_u32 s77, s77, 0x01000c0c
        s_waitcnt lgkmcnt(0)
        {bp}
        s_lshl_b32 s72, s72, s76
        s_and_b32 s72, s72, 0xffff0000
        s_lshl_b32 s73, s73, s76
        s_and_b32 s73, s73, 0xffff0000
        v_mov_b32 v{dt}, s72
        v_mul_f32 v{dt}, {l2e}, v{dt}
        v_exp_f32 v{dt}, v{dt}
        v_mov_b32 v31, s73
        v_cvt_pk_bf16_f32 v{dt}, v{dt}, v{dt}
        v_lshlrev_b32 v{dt}, 16, v{dt}
        v_add_f32 v{d2}, v{dt}, v{dt}""".format(bp=self.nonce2(), s1=SC1, s2=SC2, dt=DT, d2=D2, l2e=f32(LOG2E)))
        a('v_cmp_eq_u32 vcc, 0, v1\nv_cndmask_b32 v31, 0, v31, vcc')
        self.stamp('a0')
        a('s_branch L_K')
        if GPOS == 1:
            a('L_GE:'); self.sel = SEL['G']; self.gwave(True); self.sel = SEL['S']
        a('.page S\nL_K:')
        Ls = self.lab('NG'); Lx = self.lab('NX')
        if not XEARLY: self.xloads()
        a('s_setprio %d\ns_cmp_eq_u32 s37, 0\ns_cbranch_scc1 %s\ns_waitcnt vmcnt(5)\ns_branch %s\n%s:\ns_waitcnt vmcnt(0)\n%s:' % (2 * KPRIO, Lx, Ls, Lx, Ls))
        self.stamp(2)
        for k in range(4):
            for p in range(3):
                r = 16 + 4 * k + p
                a('v_perm_b32 v%d, v%d, v%d, s77' % (r, r, r))
        W8, W1, W5 = (VV, VV + 1), (VV + 2, VV + 3), (VV + 4, VV + 5)
        U = VV + 12
        XA = VV + 16
        def setup(p):
            l = """v_mul_f32 v4, {l2e}, v{la}
            v_exp_f32 v4, v4
            v_mul_f32 v5, v{ai}, v{dt}
            v_cvt_pk_bf16_f32 v4, v4, v4
            v_mul_f32 v5, {ci}, v5
            v_lshlrev_b32 v4, 16, v4
            v_mul_f32 v7, v5, v{s1}
            v_mul_f32 v4, v4, v{dt}
            v_mul_f32 v9, v5, v{s2}
            v_mul_f32 v4, {cr}, v4
            v_rndne_f32 v10, v7
            v_rndne_f32 v11, v9
            v_mul_f32 v6, v4, v{s1}
            v_mul_f32 v8, v4, v{s2}
            v_sub_f32 v7, v7, v10
            v_sub_f32 v9, v11, v9
            v_exp_f32 v6, v6
            v_exp_f32 v8, v8
            v_sin_f32 v10, v7
            v_cos_f32 v11, v7
            v_sin_f32 v12, v9
            v_cos_f32 v13, v9
            v_mul_f32 v{w8i}, v10, v6
            v_mul_f32 v{w8r}, v11, v6
            v_mul_f32 v{w1i}, v12, v8
            v_mul_f32 v{w1r}, v13, v8
            v_mul_f32 v{u1}, v10, v6
            v_mul_f32 v{u0}, v11, v6
            v_mul_f32 v{u3}, v12, v8
            v_mul_f32 v{u2}, v13, v8
            v_mul_f32 v4, v{cre}, v{d2}
            v_mul_f32 v5, v{cim}, v{d2}
            v_permlane32_swap_b32 v{w8i}, v{u1}
            v_permlane32_swap_b32 v{w8r}, v{u0}
            v_permlane32_swap_b32 v{w1i}, v{u3}
            v_permlane32_swap_b32 v{w1r}, v{u2}
            v_cndmask_b32 v{e0}, 1.0, v{u0}, s[74:75]
            v_cndmask_b32 v{e1}, 0, v{u1}, s[74:75]
            v_cndmask_b32 v6, 1.0, v{u2}, s[74:75]
            v_cndmask_b32 v7, 0, v{u3}, s[74:75]
            v_mul_f32 v{w5r}, v{u2}, v{u2}
            v_add_f32 v8, v{u2}, v{u2}
            v_fma_f32 v{w5r}, -v{u3}, v{u3}, v{w5r}
            v_mul_f32 v{w5i}, v8, v{u3}
            v_mul_f32 v{g0}, v4, v6
            v_mul_f32 v{g1}, v4, v7
            v_fmac_f32 v{g0}, v5, v7
            v_fma_f32 v{g1}, -v5, v6, v{g1}""".format(l2e=f32(LOG2E), la=16 + p, ai=20 + p, cre=24 + p, cim=28 + p, dt=DT, d2=D2, s1=SC1, s2=SC2,
                ci=f32(1 / (2 * math.pi)), cr=f32(-LOG2E), w8i=W8[1], w8r=W8[0], w1i=W1[1], w1r=W1[0], w5i=W5[1], w5r=W5[0],
                u0=U, u1=U + 1, u2=U + 2, u3=U + 3, e0=XA, e1=XA + 1, g0=XA + 4, g1=XA + 5)
            return [x.strip() for x in l.split('\n')]
        def pack(P, v, x0, x1):
            return ['v_cvt_pk_bf16_f32 v%d, v%d, v%d' % (P + v // 2, x0[0], x1[0]), 'v_cvt_pk_bf16_f32 v%d, v%d, v%d' % (P + 8 + v // 2, x0[1], x1[1])]
        def chainB():
            l = []; r = [(XA, XA + 1), (XA + 2, XA + 3)]
            for v in range(1, 16):
                l += self.cmul(r[v & 1], r[(v - 1) & 1], W8)
                if v & 1: l += pack(PB, v, r[0], r[1])
            return l
        def chainA():
            l = []; reg = {v: (XA + 4 + 2 * k, XA + 5 + 2 * k) for v, k in enumerate([0, 3, 4, 3, 1, 3, 4, 3, 2, 3, 4, 0, 1, 2, 3, 4])}
            src = {9: 0, 10: 4, 11: 8, 12: 9, 13: 11, 14: 12, 15: 13}
            for v in range(1, 16):
                l += self.cmul(reg[v], reg[v - 1] if v < 9 else reg[src[v]], W1 if v < 9 else W5)
                if v & 1: l += pack(PA, v, reg[v - 1], reg[v])
            return l
        def transp(D, P, SEL_):
            l = []
            for sg in range(2):
                for c in range(2):
                    d = 'v[%d:%d]' % (D + 16 * c, D + 16 * c + 15)
                    l.append('v_mfma_f32_32x32x16_bf16 %s, v[%d:%d], v[%d:%d], %s' % (d, P + 8 * c + 4 * sg, P + 8 * c + 4 * sg + 3, SEL_ + 4 * sg, SEL_ + 4 * sg + 3, '0' if sg == 0 else d))
            return l
        def repack(F, D): return ['v_cvt_pk_bf16_f32 v%d, v%d, v%d' % (F + i, D + 2 * i, D + 2 * i + 1) for i in range(16)]
        def mf2(first):
            k = 'v[%d:%d]' % (KA, KA + 15)
            return ['v_mfma_f32_32x32x16_bf16 %s, v[%d:%d], v[%d:%d], %s' % (k, FA2 + 4 * i, FA2 + 4 * i + 3, FB + 4 * i, FB + 4 * i + 3, '0' if (first and i == 0) else k) for i in range(4)]
        hook = 's_cmp_eq_u32 s37, 0\ns_cbranch_scc0 L_LN\nL_LNR:'
        if PK:
            seq = []
            if -1 in LNP: seq.append('s_cmp_eq_u32 s19, -1\ns_cbranch_scc1 L_LN\nL_LNRm:'); iln = 1
            seq += setup(0)
            for p in range(3):
                seq += interleave(chainB(), chainA())
                if p in LNP: seq.append('s_cmp_eq_u32 s19, %d\ns_cbranch_scc1 L_LN\nL_LNR%d:' % (p, p)); iln = len(seq)
                if p == 2 and 0 in SB: seq.append('s_cmp_eq_u32 s37, 0\ns_cbranch_scc0 {L}\ns_barrier\n{L}:'.format(L=self.lab('NB')))
                nx = setup(p + 1) if p < 2 else []
                tb, ta, rb, ra, m2 = transp(DB, PB, SELB), transp(DA, PA, SELA), repack(FB, DB), repack(FA2, DA), mf2(p == 0)
                order = [tb[0], tb[2], ta[0], ta[2], tb[1], tb[3], ta[1], ta[3]]
                h = len(nx) // 2
                seq += interleave(order[:5], nx[:h], per=6)
                seq += interleave(order[5:], rb[:8] + ra[:8], per=6)
                seq += interleave(m2[:2], nx[h:h + 6] + rb[8:] + ra[8:], per=6)
                seq += interleave(m2[2:], nx[h + 6:], per=6)
        if 'nok' in self.opts: a('s_cmp_eq_u32 s37, 0\ns_cbranch_scc1 L_NOK')
        nb = 0; n = len(seq); xh = False
        for i, x in enumerate(seq):
            if not xh and i >= iln + XHOOK * (n - iln):
                self.xhook(); xh = True
            for tp in TOUCH:
                if i == iln + int(tp * (n - iln)):
                    L = self.lab('TC')
                    a('s_cmp_eq_u32 s37, 0\ns_cbranch_scc1 %s' % L); self.touch(); a('%s:' % L)
            a(x)
        if 'nok' in self.opts: a('s_nop 15\nL_NOK:')
        self.stamp(3)
        if 1 in SB: a('s_cmp_eq_u32 s37, 0\ns_cbranch_scc0 {L}\ns_barrier\n{L}:'.format(L=self.lab('NB')))
        CA, CB = 176, 186
        a("""v_and_b32 v9, 15, v1
        v_lshrrev_b32 v10, 4, v1
        v_and_b32 v11, 1, v1
        v_xor_b32 v11, 1, v11
        v_mul_u32_u24 v11, 4162, v11
        v_lshl_add_u32 v11, v10, 4, v11
        v_lshlrev_b32 v12, 1, v9
        v_sub_u32 v11, v11, v12
        s_lshl_b32 s76, s60, 8
        s_sub_u32 s76, s38, s76
        s_add_u32 s76, s76, %d
        v_add_u32 v%d, s76, v11""" % (2 * (2047 - 16) - 512 - 192, CA))
        for p in range(1, 4): a('v_add_u32 v%d, %d, v%d' % (CA + p, -1024 * p, CA))
        a('v_lshl_add_u32 v9, v9, 1, v10\ns_lshl_b32 s76, s60, 4\ns_sub_u32 s76, 30, s76\nv_add_u32 v9, s76, v9')
        for tt in range(4):
            a('v_add_u32 v10, %d, v9\nv_and_b32 v11, 32, v10\nv_add_u32 v10, v10, v11\nv_lshl_add_u32 v%d, v10, 4, s39' % (-4 * tt, CB + tt))
        a("""s_and_b32 s3, s34, 3
        s_lshr_b32 s76, s61, 1
        s_lshl_b32 s76, s76, 13
        s_lshl_b32 s77, s3, 11
        s_add_u32 s26, s76, s77
        s_and_b32 s76, s61, 1
        s_lshl_b32 s76, s76, 9
        s_sub_u32 s27, s39, s76
        s_add_u32 s27, s27, s77
        s_add_u32 s27, s27, 1024
        v_and_b32 v181, 31, v1
        v_lshlrev_b32 v181, 5, v181
        v_lshrrev_b32 v182, 5, v1
        v_lshl_add_u32 v181, v182, 4, v181
        v_lshlrev_b32 v182, 4, v1
        v_and_b32 v184, 15, v1
        v_lshlrev_b32 v184, 7, v184
        s_add_u32 s20, s77, %d""" % FX)
        xld = 'buffer_load_dword v183, v184, %s, s20 offen sc1' % WS_; xchk = 'v_cmp_ne_u32 vcc, s21, v183'
        udma = """s_mov_b32 m0, s27
        buffer_load_dwordx4 v181, {ws}, s26 offen sc1 lds
        buffer_load_dwordx4 v181, {ws}, s26 offen offset:1024 sc1 lds""".format(ws=WS_)
        Lg = self.lab('NG'); Lw = self.lab('NW'); Lx = self.lab('NX'); Lv = self.lab('NV')
        a('s_cmp_eq_u32 s37, 0\ns_cbranch_scc0 %s\ns_setprio 0' % Lg)
        LX, LW = 16, 20
        def prep_x():
            self.tile_ids()
            a("""s_lshl_b32 s76, s62, 7
        s_lshl_b32 s77, s3, 5
        s_add_u32 s76, s76, s77
        s_mul_i32 s16, s76, 1280
        s_min_u32 s76, s63, 9
        s_lshl_b32 s76, s76, 7
        s_add_u32 s16, s16, s76
        v_lshrrev_b32 v9, 3, v1
        v_mul_u32_u24 v9, 1280, v9
        v_lshrrev_b32 v10, 4, v1
        v_xor_b32 v10, v10, v1
        v_and_b32 v10, 7, v10
        v_lshl_add_u32 v9, v10, 4, v9
        v_xor_b32 v10, 64, v9
        s_mul_i32 s17, s3, 4160
        s_add_u32 s17, s17, %d""" % L_TAB)
        def prep_aux():
            a('''s_lshl_b32 s76, s28, 2
        s_add_u32 s76, s76, s3
        s_lshl_b32 s77, s3, 4
        s_lshl_b32 s18, s65, 3
        s_add_u32 s77, s77, s18
        s_add_u32 s77, s77, s69
        s_sub_u32 s77, s77, s76
        v_and_b32 v185, 1, v1
        v_mul_i32_i24 v185, s77, v185
        v_add_u32 v185, s76, v185
        v_lshlrev_b32 v185, 7, v185
        s_mov_b32 s18, %d''' % FY)
        ald = 'buffer_load_dword v183, v185, %s, s18 offen sc1' % WS_
        vm = []
        def issue(x, tag): a(x); vm.append(tag)
        def need(*tags):
            k = max([i for i, t in enumerate(vm) if t in tags], default=-1)
            if k >= 0: a('s_waitcnt vmcnt(%d)' % (len(vm) - 1 - k)); del vm[:k + 1]
        def fetch_aux():
            Lok = self.lab('OK')
            need('f')
            a('%s\ns_cbranch_vccz %s' % (xchk, Lok))
            self.poll(ald, xchk)
            a('%s:' % Lok)
            self.stamp('st')
            a("""s_lshl_b32 s76, s3, 11
        s_add_u32 m0, s76, {lu}
        s_lshl_b32 s76, s29, 2
        s_add_u32 s76, s76, s3
        s_lshl_b32 s76, s76, 11
        s_add_u32 s76, s76, {csa}""".format(lu=L_U + 1024, csa=CSA))
            issue('buffer_load_dwordx4 v182, %s, s76 offen sc1 lds' % WS_, 'a')
            issue('buffer_load_dwordx4 v182, %s, s76 offen offset:1024 sc1 lds' % WS_, 'a')
            issue("""s_lshl_b32 s77, s3, 10
        s_add_u32 m0, s77, {ls}
        s_lshl_b32 s76, s28, 12
        s_add_u32 s76, s76, s77
        s_add_u32 s76, s76, {st}
        buffer_load_dwordx4 v182, {ws}, s76 offen sc1 lds""".format(ls=L_ST, st=ST, ws=WS_), 'a')
        slot_step = dict([(sl, RSTEP[b]) for b, sl in RSLOT.items()] + [(LSLOT[k], RF0 + k) for k in range(8)])
        dm = self.w2_round([(slot_step[k], k) for k in [12, 13, 4, 5, 14, 15, 6, 7, 0, 1, 8, 9, 2, 3, 10, 11]], 14)
        tg = ['r1'] * 8 + ['r2'] * 8 + ['l'] * 16
        assert RB7 <= 8 and RB8 <= 16 and RB9 <= 24 and RB7 % 2 == 0 and RB10 >= 16
        for k in range(1, 9):
            need(k, *(['x'] if k == 7 else []))
            a('s_barrier')
            if k == XPOS: issue(ald, 'f')
            if k == 1:
                self.g1_ids(28, 29, 30, 5); self.g1_voff(LX, LW, 3, 28, 29, 9)
            if 2 <= k <= 6:
                for x in self.g1_dma(k + 3, LX, LW, 30): issue(x, k + 3)
            if k == 2: prep_x()
            i = k - XST
            if 0 <= i < 4: issue('s_mov_b32 m0, s17\ns_add_u32 s76, s16, %d\nbuffer_load_dwordx4 v%d, %s, s76 offen offset:%d lds' % (i * (8 * 1280 - 1024), 9 + (i & 1), X_, 1024 * i), 'x')
            if k == 3:
                prep_aux(); self.w2_voff(14, 3, 13)
                a('s_cmp_lt_u32 s36, 20\ns_cselect_b32 s76, 0, 0x40000000\nv_add_u32 v14, s76, v14\nv_add_u32 v15, s76, v15')
            if k == 4: self.g2_offsets()
            if k == WS2 and WARM & 4: self.warm(['S2'], 3)
            if k == 7:
                fetch_aux()
                for x, t in zip(dm[:RB7], tg): issue(x, t)
        for x, t in zip(dm[RB7:RB8], tg[RB7:]): issue(x, t)
        need(9, 'a')
        a('s_barrier')
        issue(xld, 'X')
        for x, t in zip(dm[RB8:RB9], tg[RB8:]): issue(x, t)
        need('r1')
        a('s_barrier')
        assert RB9 % 2 == 0
        Lok = self.lab('OK')
        need('X')
        a('%s\ns_cbranch_vccz %s' % (xchk, Lok))
        self.poll(xld, xchk)
        a('%s:' % Lok)
        self.stamp(6)
        a(udma); vm += ['u', 'u']
        for x, t in zip(dm[RB9:RB10], tg[RB9:]): issue(x, t)
        need('r2')
        a('s_barrier')
        for x in dm[RB10:]: a(x)
        a('s_waitcnt vmcnt(%d)\ns_branch %s\n%s:\n%s\n%s:' % (RWAIT, Lw, Lg, xld, Lw))
        self.stamp('r0')
        a('s_setprio %d' % (2 * TPRIO))
        for k in range(4): a('ds_write_b128 v%d, v[%d:%d] offset:%d' % (EX, KA + 4 * k, KA + 4 * k + 3, 1024 * k))
        a('s_mov_b64 exec, 1\nds_write_b32 v%d, v%d offset:4128\ns_mov_b64 exec, -1' % (EX, SC1))
        V = lambda r: KA + r
        a('v_add_f32 v{v0}, v{v0}, v31\nv_and_b32 v5, 1, v1\nv_cmp_eq_u32 vcc, 0, v5'.format(v0=V(0)))
        Lp = self.lab('XP'); Lq = self.lab('XQ')
        a('s_mov_b32 s79, 0\n%s:\nds_read_b32 v4, v%d offset:4128' % (Lp, EX + 3))
        for k in range(4): a('ds_read_b128 v[%d:%d], v%d offset:%d' % (FRG + 4 * k, FRG + 4 * k + 3, EX + 1, 1024 * k))
        a('s_add_u32 s79, s79, 1\ns_waitcnt lgkmcnt(4)\nv_readfirstlane_b32 s76, v4\ns_cmp_lg_u32 s76, 0\ns_cbranch_scc1 %s\ns_cmp_gt_u32 s79, %d\ns_cbranch_scc0 %s\n%s:' % (Lq, 64 * POLLMAX, Lp, Lq))
        self.stamp(4)
        for k in range(4):
            a('s_waitcnt lgkmcnt(%d)' % (3 - k))
            for r in range(4 * k, 4 * k + 4): a('v_add_f32 v%d, v%d, v%d' % (KA + r, KA + r, FRG + r))
        a("""v_cndmask_b32 v{m0}, v{v13}, v{v12}, vcc
        v_cndmask_b32 v{m1}, v{v15}, v{v14}, vcc
        s_cmp_eq_u32 s60, 0
        s_cbranch_scc0 L{t}_T1""".format(m0=FRG + 16, m1=FRG + 17, v12=V(12), v13=V(13), v14=V(14), v15=V(15), t=tag))
        def table(c):
            lv = [([V(o) for o in range(9)], 3072), ([V(9)] * 3 + [V(10)] * 3 + [V(11)] * 3, 2048),
                  ([V(12)] * 4 + [FRG + 16] + [V(13)] * 4, 1024), ([V(14)] * 4 + [FRG + 17] + [V(15)] * 4, 0)]
            for n, (t, off) in enumerate(lv):
                for d in range(4):
                    a('v_cvt_pk_bf16_f32 v%d, v%d, v%d' % (FRG + 4 * n + d, t[7 + c - 2 * d], t[6 + c - 2 * d]))
                a('ds_write_b128 v%d, v[%d:%d] offset:%d' % (EX + 2, FRG + 4 * n, FRG + 4 * n + 3, off))
        table(0)
        a('s_branch L%s_T2\nL%s_T1:' % (tag, tag))
        table(1)
        a('v_cvt_pk_bf16_f32 v8, v%d, 0\ns_mov_b64 exec, 1\nds_write_b32 v%d, v8 offset:4096\ns_mov_b64 exec, -1\nL%s_T2:' % (V(0), EX + 1, tag))
        self.stamp(5)
        Lok = self.lab('OK')
        a('s_setprio 0\ns_cmp_eq_u32 s37, 0\ns_cbranch_scc1 %s\ns_waitcnt vmcnt(0)\n%s\ns_cbranch_vccz %s' % (Lx, xchk, Lok))
        self.poll(xld, xchk)
        a('%s:' % Lok)
        self.stamp(6)
        a(udma)
        Ly = self.lab('NY')
        a('s_waitcnt vmcnt(0)\ns_branch %s\n%s:\ns_waitcnt lgkmcnt(0)' % (Ly, Lx))
        for x in self.w2_round([(RF0 + LSLOT.index(k), k) for k in R3ORD[:E3]], 14, thr=THR): a(x)
        a('s_waitcnt vmcnt(%d)\n%s:' % (2 * E3, Ly))
        self.stamp('R')
        Ln = self.lab('NB'); Lp = self.lab('XP'); Lq = self.lab('XQ'); Lt = self.lab('XT')
        a('s_setprio %d\ns_cmp_eq_u32 s37, 0\ns_cbranch_scc0 %s\ns_waitcnt lgkmcnt(0)\ns_barrier\ns_branch %s' % (2 * CPRIO, Ln, Lq))
        a('''{Ln}:
        s_lshr_b32 s76, s34, 2
        s_mul_i32 s76, s76, 16640
        s_add_u32 s76, s76, {w}
        v_mov_b32 v5, s76
        v_mov_b32 v4, 1
        s_mov_b64 exec, 1
        ds_add_u32 v5, v4
        s_mov_b64 exec, -1
        s_mov_b32 s79, 0
        {Lp}:
        ds_read_b32 v4, v5
        s_add_u32 s79, s79, 1
        s_waitcnt lgkmcnt(0)
        v_readfirstlane_b32 s76, v4
        s_cmp_eq_u32 s76, 4
        s_cbranch_scc1 {Lq}
        s_sleep 1
        s_cmp_gt_u32 s79, {mx}
        s_cbranch_scc0 {Lp}
        {Lt}:'''.format(Ln=Ln, Lp=Lp, Lq=Lt, Lt=Lt, w=N_TAB + 4140, mx=64 * POLLMAX))
        if T3:
            a('''s_cmp_ge_u32 s34, 4
            s_cbranch_scc0 {Lq}
            v_lshrrev_b32 v4, 5, v1
            v_mul_u32_u24 v4, 768, v4
            v_and_b32 v5, 31, v1
            v_add_u32 v4, v4, v5
            v_mul_u32_u24 v4, 1280, v4
            s_lshl_b32 s16, s36, 2
            s_add_u32 s16, s16, s34
            s_sub_u32 s16, s16, 100'''.format(Lq=Lq))
            for k in range(3):
                a('''s_lshr_b32 s17, s16, 3
                s_and_b32 s18, s16, 7
                s_add_u32 s18, s18, {s0}
                s_cmp_ge_u32 s18, 12
                s_cselect_b32 s19, 40960, 0
                s_mul_i32 s76, s17, 77
                s_lshr_b32 s76, s76, 6
                s_add_u32 s18, s18, s76
                s_mul_i32 s76, s18, 22
                s_lshr_b32 s76, s76, 8
                s_mul_i32 s76, s76, 12
                s_sub_u32 s18, s18, s76
                s_mul_i32 s18, s18, 81920
                s_add_u32 s18, s18, s19
                s_lshl_b32 s17, s17, 7
                s_add_u32 s18, s18, s17
                s_cmp_lt_u32 s16, 80
                s_cbranch_scc0 {Lq}
                buffer_load_dword v255, v4, {w2}, s18 offen
                s_add_u32 s16, s16, 32'''.format(s0=RF0 + 8, Lq=Lq, w2=W2_))
        a('%s:' % Lq)
        self.stamp(7)
        YA = 16; FA_ = [48, 112]
        def creads(tt):
            f = FA_[tt & 1]; l = []
            for i in range(8):
                o = (128 if i % 2 == 0 else 0) + 16 * (3 - tt)
                ra = ['ds_read2_b32 v[%d:%d], v%d offset0:%d offset1:%d' % (f + 4 * i + 2 * e, f + 4 * i + 2 * e + 1, CA + i // 2, o + 2 * e, o + 2 * e + 1) for e in range(2)]
                rb = 'ds_read_b128 v[%d:%d], v%d offset:%d' % (f + 32 + 4 * i, f + 35 + 4 * i, CB + tt, 1024 * i)
                l += ra + [rb]
            return l
        def cm(tt, i, j, first):
            f = FA_[tt & 1]; c = 'v[%d:%d]' % (YA + 4 * (i + j), YA + 4 * (i + j) + 3)
            return 'v_mfma_f32_16x16x32_bf16 %s, v[%d:%d], v[%d:%d], %s' % (c, f + 4 * i, f + 4 * i + 3, f + 32 + 4 * j, f + 35 + 4 * j, '0' if first else c)
        r0 = creads(0)
        for x in r0[:12]: a(x)
        for tt in range(4):
            order = []
            for k in range(8):
                order += [(k, i, j) for i in range(k + 1) for j in range(k + 1) if max(i, j) == k and i + j <= 7]
            if tt > 0 and CHAIN: order = [(0, i, tau - i) for tau in range(8) for i in range(tau + 1)]
            seen = set()
            nxt = (r0[12:] if tt == 0 else []) + (creads(tt + 1) if tt < 3 else [])
            issued = 12 if tt == 0 else 24
            extra = 0
            lastk = -1
            if tt > 0: a('s_waitcnt lgkmcnt(0)')
            if tt == 3: a('s_mov_b64 exec, 1\nds_write_b32 v%d, v%d offset:4132\ns_mov_b64 exec, -1\ns_nop 3' % (EX, EX))
            for (k, i, j) in order:
                if tt == 0 and k != lastk:
                    while issued < 3 * (k + 1): a(nxt.pop(0)); issued += 1
                    a('s_waitcnt lgkmcnt(%d)' % min(15, issued + extra - 3 * (k + 1)))
                    lastk = k
                a(cm(tt, i, j, tt == 0 and (i + j) not in seen)); seen.add(i + j)
                if nxt:
                    a(nxt.pop(0))
                    if issued < 24: issued += 1
                    else: extra += 1
            for x in nxt: a(x)
        self.stamp(8)
        def lflag(off): a('s_mov_b64 exec, 1\nds_write_b32 v%d, v%d offset:%d\ns_mov_b64 exec, -1' % (EX, EX, off))
        def lwait(off, extra):
            Lp = self.lab('XP'); Lq = self.lab('XQ')
            a('s_mov_b32 s79, 0\n%s:\nds_read_b32 v4, v%d offset:%d' % (Lp, EX + 3, off))
            for x in extra: a(x)
            a('s_add_u32 s79, s79, 1\ns_waitcnt lgkmcnt(%d)\nv_readfirstlane_b32 s76, v4\ns_cmp_lg_u32 s76, 0\ns_cbranch_scc1 %s\ns_cmp_gt_u32 s79, %d\ns_cbranch_scc0 %s\n%s:' % (len(extra), Lq, 64 * POLLMAX, Lp, Lq))
        if HPRE:
            L = self.lab('NB'); a('s_sub_u32 s76, s36, 20\ns_cmp_lt_u32 s76, 4\ns_cbranch_scc0 %s\ns_barrier\n%s:' % (L, L))
        lwait(4132, [])
        a('s_nop 3\ns_cmp_eq_u32 s60, 0\ns_cbranch_scc0 L%s_R1' % tag)
        for k in range(4): a('ds_write_b128 v%d, v[%d:%d] offset:%d' % (EX, YA + 16 + 4 * k, YA + 19 + 4 * k, 1024 * k))
        lflag(4136)
        a('s_branch L%s_R2\nL%s_R1:' % (tag, tag))
        for k in range(4): a('ds_write_b128 v%d, v[%d:%d] offset:%d' % (EX, YA + 4 * k, YA + 3 + 4 * k, 1024 * k))
        lflag(4136)
        for k in range(16): a('v_mov_b32 v%d, v%d' % (YA + k, YA + 16 + k))
        a('L%s_R2:' % tag)
        lwait(4136, ['ds_read_b128 v[%d:%d], v%d offset:%d' % (48 + 4 * k, 51 + 4 * k, EX + 1, 1024 * k) for k in range(4)])
        a('''s_lshl_b32 s76, s61, 12
        s_lshl_b32 s77, s60, 11
        s_add_u32 s76, s76, s77
        s_add_u32 s76, s76, %d
        v_lshlrev_b32 v4, 4, v1''' % AA)
        for p in range(2):
            a('s_waitcnt lgkmcnt(%d)' % (2 - 2 * p))
            for k in range(8 * p, 8 * p + 8): a('v_add_f32 v%d, v%d, v%d' % (YA + k, YA + k, 48 + k))
            o = 64 + 4 * p
            for d in range(4): a('v_cvt_pk_bf16_f32 v%d, v%d, v%d' % (o + d, YA + 8 * p + 2 * d, YA + 8 * p + 2 * d + 1))
            a('v_permlane16_swap_b32 v%d, v%d\nv_permlane16_swap_b32 v%d, v%d' % (o, o + 2, o + 1, o + 3))
            a('buffer_store_dwordx4 v[%d:%d], v4, %s, s76 offen offset:%d sc1' % (o, o + 3, WS_, 1024 * p))
        self.stamp(9)
        a('s_setprio 0')
        Lh = self.lab('NH'); a('s_cmp_lt_u32 s36, 20\ns_cbranch_scc0 %s' % Lh)
        a('s_mul_i32 s20, s62, 6144\ns_mul_i32 s77, s3, 1536\ns_add_u32 s20, s20, s77\ns_add_u32 s20, s20, %d' % (FH + 32 * 3072))
        self.spoll(12, 20)
        self.stamp('h1')
        a('%s:' % Lh)
        a('s_mul_i32 s76, s60, 640\ns_add_u32 s76, s76, s61\ns_lshl_b32 s76, s76, 7\ns_add_u32 s76, s76, %d' % FA)
        for x in self.flag_regs(8): a(x)
        a('s_waitcnt vmcnt(0)'); a(self.flag(8, 76))
        self.stamp(10)
        Le = self.lab('EP')
        a('''s_lshl_b32 s76, s34, 8
        s_add_u32 s76, s76, s2
        s_cmp_eq_u32 s76, 192
        s_cbranch_scc0 {L}
        v_lshrrev_b32 v2, 2, v1
        v_mul_u32_u24 v2, 6144, v2
        v_and_b32 v3, 3, v1
        v_lshl_add_u32 v2, v3, 8, v2
        s_mov_b32 s20, {fh}'''.format(L=Le, fh=FH))
        a('v_lshlrev_b32 v6, 7, v1\ns_mov_b32 s18, %d' % FX)
        self.poll('buffer_load_dword v3, v6, %s, s18 offen sc1' % WS_, 'v_cmp_ne_u32 vcc, s21, v3')
        ld = '\n'.join('buffer_load_dword v%d, v2, %s, s20 offen offset:%d sc1' % (3 + i, WS_, 1024 * i) for i in range(3))
        self.poll(ld, 'v_cmp_ne_u32 vcc, s21, v3\nv_cmp_ne_u32 s[76:77], s21, v4\nv_cmp_ne_u32 s[16:17], s21, v5\ns_or_b64 vcc, vcc, s[76:77]\ns_or_b64 vcc, vcc, s[16:17]')
        a('''s_mov_b32 s20, {ep}
        s_mov_b64 exec, 1
        buffer_store_dword v8, off, {ws}, s20 sc1
        s_branch L_FIN
        {L}:'''.format(L=Le, ep=EP, ws=WS_))
        a('s_cmp_lt_u32 s36, 20\ns_cbranch_scc0 L_FIN')
        a('s_barrier')
        a('''s_lshl_b32 s60, s63, 6
        s_lshl_b32 s76, s3, 4
        s_add_u32 s60, s60, s76
        s_lshr_b32 s76, s35, 2
        s_mul_i32 s76, s76, 640
        s_add_u32 s76, s76, s60
        s_lshl_b32 s76, s76, 7
        s_add_u32 s61, s76, {fa}
        v_and_b32 v4, 15, v1
        v_lshrrev_b32 v7, 4, v1
        v_lshlrev_b32 v8, 1, v7
        v_xor_b32 v8, v8, v4
        v_lshrrev_b32 v9, 1, v8
        v_lshlrev_b32 v9, 4, v9
        v_and_b32 v8, 1, v8
        v_lshl_add_u32 v9, v8, 9, v9
        v_lshl_add_u32 v9, v7, 12, v9
        v_xor_b32 v10, 64, v9
        s_lshl_b32 s60, s60, 12
        s_lshr_b32 s76, s35, 1
        s_lshl_b32 s76, s76, 10
        s_add_u32 s60, s60, s76
        s_and_b32 s76, s35, 1
        s_lshl_b32 s76, s76, 8
        s_add_u32 s60, s60, s76
        s_and_b32 s76, s62, 1
        s_lshl_b32 s76, s76, 7
        s_add_u32 s60, s60, s76
        s_add_u32 s60, s60, {aa}
        s_and_b32 s76, s3, 1
        s_mul_i32 s76, s76, 4160
        s_add_u32 m0, s76, s38'''.format(fa=FA, aa=AA))
        self.spoll(16, 61)
        self.stamp(11)
        a('s_barrier')
        for i in range(4):
            a('s_add_u32 s76, s60, %d\nbuffer_load_dwordx4 v%d, %s, s76 offen offset:%d sc1 lds' % (i * (16384 - 1024), 9 + (i & 1), WS_, 1024 * i))
        a('s_waitcnt vmcnt(0)')
        self.stamp(12)
        a('s_barrier\ns_branch L_FIN')
    def touch(self):
        self.a('v_add_u32 v254, %d, v249\nv_min_u32 v254, v254, v249\nbuffer_load_dword v255, v254, %s, 0 offen\nv_add_u32 v249, %d, v249' % (-15360 * 128, W2_, 64 * NLN * 128))
    def xhook(self):
        a = self.a
        L = self.lab('NH')
        a('s_cmp_eq_u32 s37, 0\ns_cbranch_scc1 %s' % L)
        a('s_waitcnt vmcnt(%d)' % TLN[2])
        a("""s_barrier
        s_cmp_eq_u32 s34, 0
        s_cbranch_scc0 {L}
        s_lshl_b32 s76, s62, 7
        s_add_u32 s76, s76, {fx}""".format(L=L, fx=FX))
        for x in self.flag_regs(250): a(x)
        a(self.flag(250, 76)); a('%s:' % L)
        self.stamp('xf')
    def wloads(self):
        a = self.a
        L = self.lab('WL')
        a("""s_cmp_ge_u32 s34, 4
        s_cbranch_scc0 {L}
        s_and_b32 s76, s35, 1
        s_mul_i32 s76, s76, 6
        s_sub_u32 s77, s36, 24
        s_add_u32 s28, s76, s77
        s_mul_i32 s77, s77, {rc}
        s_lshr_b32 s77, s77, 4
        s_lshl_b32 s77, s77, 6
        s_lshr_b32 s29, s35, 1
        s_mul_i32 s76, s29, 160
        s_add_u32 s76, s76, s77
        s_mul_i32 s76, s76, 3072
        s_lshl_b32 s77, s28, 2
        s_add_u32 s77, s77, s34
        s_sub_u32 s77, s77, 4
        s_lshl_b32 s77, s77, 6
        s_cmp_lt_u32 s36, 30
        s_cselect_b32 s18, s77, 0x40000000
        s_cselect_b32 s77, s77, 0
        v_lshrrev_b32 v9, 2, v1
        v_mul_u32_u24 v9, 3072, v9
        v_and_b32 v{c}, 3, v1
        v_lshl_add_u32 v9, v{c}, 4, v9
        v_add_u32 v9, s18, v9""".format(L=L, rc=ROT[1] if QROT else 0, c=WI + 41))
        for i in range(10): a('s_sub_u32 s18, s76, %d\ns_min_u32 s76, s76, s18\nbuffer_load_dwordx4 v[%d:%d], v9, %s, s76 offen\ns_add_u32 s76, s76, 49152' % (640 * 3072, WI + 4 * i, WI + 4 * i + 3, W1_))
        a("""v_lshlrev_b32 v{c}, 3, v{c}
        v_lshl_add_u32 v{c}, v4, 1, v{c}
        v_bfe_u32 v9, v1, 2, 1
        v_add_u32 v{c}, v{c}, v9
        v_lshl_add_u32 v9, v{c}, 1, s77
        v_mov_b32 v{b}, 0
        global_load_short_d16_hi v{b}, v9, s[22:23]
        {L}:""".format(b=WI + 40, c=WI + 41, L=L))
    def lnblock(self):
        a = self.a
        XF = 100; T0 = 140
        a('L_LN:')
        self.stamp('ln')
        a('''        v_lshrrev_b32 v4, 4, v1
        v_and_b32 v5, 15, v1
        s_and_b32 s76, s34, 1
        s_lshl_b32 s76, s76, 3
        s_and_b32 s77, s34, 4
        s_add_u32 s76, s76, s77
        v_add_u32 v6, s76, v4
        v_mul_u32_u24 v6, {ts}, v6
        v_lshl_add_u32 v6, v5, 3, v6
        s_and_b32 s76, s34, 2
        s_lshl_b32 s76, s76, 1
        v_add_u32 v6, s76, v6
        v_and_b32 v7, 1, v1
        v_bfe_u32 v8, v1, 2, 2
        v_lshl_add_u32 v7, v7, 2, v8
        v_mul_u32_u24 v7, {ts}, v7
        v_lshl_add_u32 v7, v4, 4, v7
        v_bfe_u32 v8, v1, 1, 1
        v_lshl_add_u32 v7, v8, 3, v7
        s_mul_i32 s76, s34, 320
        v_add_u32 v7, s76, v7
        v_lshrrev_b32 v8, 3, v1
        v_lshlrev_b32 v8, 15, v8
        v_and_b32 v10, 7, v1
        v_lshl_add_u32 v8, v10, 4, v8
        s_and_b32 s65, s34, 1
        s_mul_i32 s65, s65, 160
        s_lshr_b32 s76, s34, 1
        s_add_u32 s65, s65, s76
        s_lshl_b32 s65, s65, 13
        s_lshl_b32 s76, s62, 7
        s_add_u32 s65, s65, s76
        v_mov_b32 v10, 0
        v_mov_b32 v11, 0
        v_mov_b32 v12, 0
        v_mov_b32 v13, 0'''.format(ts=TSTR, cq=20 * 16384, t8=T0 + 8, t9=T0 + 9))
        if WEARLY:
            self.wloads()
            L = self.lab('WW'); a('s_waitcnt vmcnt(11)\ns_cmp_ge_u32 s34, 4\ns_cbranch_scc1 %s\ns_waitcnt vmcnt(0)\n%s:' % (L, L))
        for i in range(5):
            if not WEARLY: a('s_waitcnt vmcnt(%d)' % (4 - i))
            for d in range(4):
                s = XI + 4 * i + d; f = XF + 8 * i + 2 * d
                a('''v_lshlrev_b32 v{f}, 16, v{s}
                v_and_b32 v{f1}, 0xffff0000, v{s}
                v_pk_add_f32 v[10:11], v[10:11], v[{f}:{f1}]
                v_pk_fma_f32 v[12:13], v[{f}:{f1}], v[{f}:{f1}], v[12:13]'''.format(f=f, f1=f + 1, s=s))
        self.stamp(1)
        if not WEARLY: self.wloads()
        for k in range(TLN[0]): self.touch()
        a('v_add_f32 v10, v10, v11\nv_add_f32 v12, v12, v13')
        for sh in (8, 4, 2, 1):
            a('v_add_f32 v10, v10, v10 row_ror:%d\nv_add_f32 v12, v12, v12 row_ror:%d' % (sh, sh))
        rb = lambda d, s: 'v_cvt_pk_bf16_f32 v%d, v%d, v%d\nv_lshlrev_b32 v%d, 16, v%d' % (d, s, s, d, d)
        EPS = f32(1e-5)
        a('v_mul_f32 v10, {c}, v10\nv_mul_f32 v12, {c}, v12\nv_fma_f32 v12, -v10, v10, v12\nv_max_f32 v12, 0, v12'.format(c=f32(1.0 / 640)))
        a(rb(11, 10))
        a(rb(13, 12)); a('v_add_f32 v13, %s, v13' % EPS); a(rb(13, 13)); a('v_sqrt_f32 v13, v13'); a(rb(13, 13))
        a('v_rcp_f32 v14, v13\nv_mul_f32 v15, v11, v14\nv_sub_f32 v15, 0, v15')
        a('v_sub_f32 v10, v10, v11\nv_mul_f32 v10, v10, v14'); a(rb(10, 10))
        a('v_mul_f32 v12, v12, v14\nv_mul_f32 v12, v12, v14'); a(rb(12, 12)); a('v_add_f32 v12, %s, v12' % EPS); a(rb(12, 12)); a('v_sqrt_f32 v12, v12'); a(rb(12, 12))
        a('v_fma_f32 v10, -v10, v13, -v11\nv_mul_f32 v12, v13, v12')
        C1 = -2.0 * LOG2E * math.sqrt(2.0 / math.pi)
        a('''v_rcp_f32 v9, v12
        v_cvt_pk_bf16_f32 v{t0}, v10, v10
        v_and_b32 v11, 0xffff0000, v{t0}
        v_sub_f32 v11, v10, v11
        v_cvt_pk_bf16_f32 v{t1}, v11, v12
        v_and_b32 v11, 0xffff0000, v{t1}
        v_sub_f32 v11, v12, v11
        v_cvt_pk_bf16_f32 v{t2}, v11, 0
        v_mul_f32 v13, {c1}, v9
        v_mul_f32 v9, v9, v9
        v_mul_f32 v9, {c2}, v9
        v_mul_f32 v9, v9, v13
        v_cmp_eq_u32 vcc, 1, v5
        s_lshl_b32 s67, s63, 5
        s_add_u32 s67, s67, {st}
        v_mov_b32 v{t3}, 0
        v_cndmask_b32 v{t0}, v{t0}, v9, vcc
        v_cndmask_b32 v{t1}, v{t1}, v13, vcc
        v_cndmask_b32 v{t2}, v{t2}, v12, vcc
        v_lshlrev_b32 v9, 5, v4
        v_lshl_add_u32 v9, v5, 4, v9
        v_cmp_gt_u32 vcc, 2, v5
        s_and_saveexec_b64 s[68:69], vcc
        buffer_store_dwordx4 v[{t0}:{t3}], v9, {ws}, s67 offen sc1
        s_mov_b64 exec, s[68:69]'''.format(st=ST, ws=WS_, t0=T0, t1=T0 + 1, t2=T0 + 2, t3=T0 + 3, c1=f32(C1), c2=f32(0.044715)))
        for i in range(5):
            for d in range(4):
                s = XI + 4 * i + d; f = XF + 8 * i + 2 * d
                a('v_pk_fma_f32 v[{f}:{f1}], v[{f}:{f1}], v[14:15], v[14:15] op_sel:[0,0,1] op_sel_hi:[1,0,1]\nv_cvt_pk_bf16_f32 v{s}, v{f}, v{f1}'.format(f=f, f1=f + 1, s=s))
            for d in range(4): a('ds_write_b32 v6, v%d offset:%d' % (XI + 4 * i + d, 128 * i + 640 * d))
        CA_ = 100
        a('s_cmp_ge_u32 s34, 4\ns_cbranch_scc0 L_CSB\ns_cmp_lt_u32 s36, 30\ns_cbranch_scc0 L_CSB\ns_waitcnt vmcnt(1)')
        for i in range(10):
            d = CA_ if i == 0 else CA_ + 8
            for k in range(4): a('v_lshlrev_b32 v%d, 16, v%d\nv_and_b32 v%d, 0xffff0000, v%d' % (d + 2 * k, WI + 4 * i + k, d + 2 * k + 1, WI + 4 * i + k))
            if i:
                for k in range(4): a('v_pk_add_f32 v[%d:%d], v[%d:%d], v[%d:%d]' % (CA_ + 2 * k, CA_ + 2 * k + 1, CA_ + 2 * k, CA_ + 2 * k + 1, d + 2 * k, d + 2 * k + 1))
        a('''s_cmp_eq_u32 s29, 0
        s_cselect_b32 s76, -1, 0
        v_and_b32 v{b}, s76, v{b}
        v_and_b32 v9, 4, v1
        v_cmp_ne_u32 vcc, 0, v9'''.format(b=WI + 40))
        for k in range(4): a('v_permlane32_swap_b32 v%d, v%d' % (CA_ + k, CA_ + 4 + k))
        for k in range(2): a('v_pk_add_f32 v[%d:%d], v[%d:%d], v[%d:%d]' % (CA_ + 2 * k, CA_ + 2 * k + 1, CA_ + 2 * k, CA_ + 2 * k + 1, CA_ + 4 + 2 * k, CA_ + 5 + 2 * k))
        a('''s_lshl_b32 s76, s28, 2
        s_add_u32 s76, s76, s29
        s_lshl_b32 s76, s76, 2
        s_add_u32 s76, s76, s34
        s_lshl_b32 s76, s76, 9
        s_add_u32 s76, s76, %d''' % (CSA - 4 * 512))
        for k in range(2): a('v_permlane16_swap_b32 v%d, v%d' % (CA_ + k, CA_ + 2 + k))
        a('''v_pk_add_f32 v[{c0}:{c1}], v[{c0}:{c1}], v[{c2}:{c3}]
        v_lshlrev_b32 v9, 4, v{c}
        v_lshrrev_b32 v12, 16, v{b}
        v_add_f32 v{c0}, v{c0}, v{c0} row_ror:8
        v_add_f32 v{c1}, v{c1}, v{c1} row_ror:8
        v_mov_b32 v13, 0
        v_add_f32 v{c0}, v{c0}, v{c0} row_ror:4
        v_add_f32 v{c1}, v{c1}, v{c1} row_ror:4
        v_cndmask_b32 v{c0}, v{c0}, v{c1}, vcc
        v_cvt_pk_bf16_f32 v11, v{c0}, v{b}
        v_lshlrev_b32 v10, 16, v11
        v_sub_f32 v10, v{c0}, v10
        v_cvt_pk_bf16_f32 v10, v{c0}, v10
        s_mov_b32 exec_lo, 0x00ff00ff
        s_mov_b32 exec_hi, 0x00ff00ff
        buffer_store_dwordx4 v[10:13], v9, {ws}, s76 offen sc1
        s_mov_b64 exec, -1
        L_CSB:'''.format(b=WI + 40, c=WI + 41, ws=WS_, **{'c%d' % i: CA_ + i for i in range(4)}))
        for k in range(TLN[1]): self.touch()
        self.stamp('l4')
        a('s_waitcnt vmcnt(0) lgkmcnt(0)\ns_barrier')
        L = self.lab('YF')
        a('s_cmp_eq_u32 s34, 4\ns_cbranch_scc0 %s\ns_lshl_b32 s76, s62, 7\ns_add_u32 s76, s76, %d' % (L, FY))
        for x in self.flag_regs(250): a(x)
        a(self.flag(250, 76)); a('%s:' % L)
        self.stamp('yf')
        for i in range(5):
            for e in range(2):
                a('ds_read_b64_tr_b16 v[%d:%d], v7 offset:%d' % (XI + 4 * i + 2 * e, XI + 4 * i + 2 * e + 1, 64 * i + 8 * TSTR * e))
        for i in range(5):
            a('s_waitcnt lgkmcnt(%d)\ns_add_u32 s76, s65, %d\nbuffer_store_dwordx4 v[%d:%d], v8, %s, s76 offen sc1' % (8 - 2 * i, XT + i * 32 * 8192, XI + 4 * i, XI + 4 * i + 3, WS_))
        self.stamp('xs')
        assert max(LNP) <= 0 and TLN[0] == TLN[1] == 0
        for k in range(TLN[2]): self.touch()
        if -1 in LNP: a('s_cmp_eq_u32 s19, -1\ns_cbranch_scc1 L_LNRm')
        if 0 in LNP: a('s_nop 0\ns_branch L_LNR0')

    def build(self):
        a = self.a
        self.prologue()
        a('s_cmp_lt_u32 s36, 24\ns_cselect_b32 s76, 4, 0\ns_cmp_lt_u32 s34, s76\ns_cbranch_scc1 L_GE')
        self.sel = SEL['S']; self.sn_entry(); self.scode(); self.lnblock()
        self.sel = SEL['G']
        if PAGE == 2: a('.page G')
        elif PAGE: a('.region G')
        if GPOS == 2: a('L_GE:'); self.gwave(True)
        a('L_G:'); self.gwave()
        a('L_FIN:')
        self.dump_stamps()
        if self.AMP:
            if self.AMP[1] == 'end': a('s_memrealtime s[92:93]')
            who = self.AMP[2]
            a('s_cmp_eq_u32 s34, %d\ns_cbranch_scc0 L_END' % {'G': 0, 'S': 4, 'N': 0, 'M': 4}[who[0]])
            if len(who) > 1: a('s_cmp_eq_u32 s2, %s\ns_cbranch_scc0 L_END' % who[1:])
            else: a('s_cmp_lt_u32 s36, 20\ns_cbranch_scc0 L_END' if who in 'GS' else 's_cmp_ge_u32 s36, 24\ns_cbranch_scc0 L_END')
            a('''s_waitcnt lgkmcnt(0)
            s_sub_u32 s92, s92, s94
            s_lshl_b32 s92, s92, 3
            s_add_u32 s92, s92, 3000
            s_min_u32 s92, s92, 30000
            L_AMP:
            s_memrealtime s[98:99]
            s_waitcnt lgkmcnt(0)
            s_sub_u32 s77, s98, s96
            s_cmp_lt_u32 s77, s92
            s_cbranch_scc1 L_AMP''')
        for o_ in self.opts:
            if o_.startswith('pad='):
                a('''s_cmp_eq_u32 s34, 0
                s_cbranch_scc0 L_END
                s_cmp_lt_u32 s36, 20
                s_cbranch_scc0 L_END''')
                for q_ in self.opts:
                    if q_.startswith('padwg='): a('s_cmp_eq_u32 s2, %d\ns_cbranch_scc0 L_END' % int(q_[6:]))
                a('''L_PAD:
                s_memrealtime s[98:99]
                s_waitcnt lgkmcnt(0)
                s_sub_u32 s77, s98, s96
                s_cmp_lt_u32 s77, %d
                s_cbranch_scc1 L_PAD''' % int(o_[4:]))
        if 'span' in self.opts:
            a('''s_cmp_eq_u32 s34, 0
            s_cbranch_scc0 L_END
            s_waitcnt vmcnt(0)
            s_memrealtime s[98:99]
            s_memtime s[76:77]
            s_waitcnt lgkmcnt(0)
            s_not_b32 s97, s96
            s_sub_u32 s76, s76, s100
            s_sub_u32 s77, s98, s96
            s_mov_b64 exec, 1
            v_mov_b32 v0, 0
            v_mov_b32 v1, s97
            v_mov_b32 v2, s98
            v_mov_b32 v3, s96
            v_mov_b32 v4, s76
            v_mov_b32 v5, s77
            global_atomic_umax v0, v1, s[30:31]
            global_atomic_umax v0, v2, s[30:31] offset:4
            global_atomic_umax v0, v3, s[30:31] offset:8
            global_atomic_umax v0, v4, s[30:31] offset:12
            global_atomic_umax v0, v5, s[30:31] offset:16''')
        a('L_END:')
        body = a.finish(layout=dict(name=NAME, align=ALIGN, pads=self.wret, noprun=NOPRUN))
        used = set(re.findall(r's_c?branch\w* (PAD\w+)', body)); have = set(re.findall(r'^(PAD\w+):', body, re.M))
        for l in used - have: body = body.replace(' ' + l + '\n', ' ' + self.wret[l[3:]] + '\n')
        ref = open('parallel_sum__ssm_conv_s4d__mixer_channel_mlp__prompt.s.ref').read()
        head = ''.join(l + '\n' for l in ref.split('\n') if l.startswith(';') and '@launch' not in l)
        return head + '''; @launch grid=(256,1,1) block=(512,1,1) lds=163840
.amdgcn_target "amdgcn-amd-amdhsa--gfx950"
.text
.globl {n}
.p2align 8
.type {n},@function
{n}:
{body}    s_endpgm
.section .rodata,"a"
.p2align 6
.amdhsa_kernel {n}
  .amdhsa_next_free_vgpr 256
  .amdhsa_next_free_sgpr 102
  .amdhsa_accum_offset 256
  .amdhsa_group_segment_fixed_size 0
  .amdhsa_kernarg_size 120
  .amdhsa_user_sgpr_count 2
  .amdhsa_user_sgpr_kernarg_segment_ptr 1
  .amdhsa_system_sgpr_workgroup_id_x 1
  .amdhsa_float_denorm_mode_32 3
.end_amdhsa_kernel
'''.format(n=NAME, body=body)
if __name__ == '__main__':
    out = sys.argv[1]; opts = sys.argv[2:]
    g = G('stamps' in opts, opts); s = g.build(); open(out, 'w').write(s)
    print('wrote', out, len(s), 'bytes; nops inserted', g.a.nops, 'pads', g.a.npad, 'align fixes', g.a.fixes)
```
